```python
import torch

def _softmax(x, axis=-1):
    return torch.softmax(x, dim=axis)
def _gelu(x):
    return torch.nn.functional.gelu(x, approximate="tanh")
def _silu(x):
    return torch.nn.functional.silu(x)
def _sigmoid(x):
    return torch.sigmoid(x)
def _layernorm(x, axis=-1, eps=1e-5):
    m = x.mean(dim=axis, keepdim=True)
    v = x.var(dim=axis, keepdim=True, unbiased=False)
    return (x - m) / torch.sqrt(v + eps)
def _scatter_add(tgt, idx, src, axis=0):
    return tgt.clone().index_add_(axis, idx, src)
def _segment_sum(src, seg, n):
    out = torch.zeros((n,) + src.shape[1:], dtype=src.dtype)
    return out.index_add_(0, seg, src)
def _pad(x, pw):
    flat = tuple(v for pair in reversed(pw) for v in pair)
    return torch.nn.functional.pad(x, flat)

kernel_name = 'recurrent_scan__spectral_gfnet__mixer_channel_mlp__prompt'

def setup_inputs():

    _w = (lambda a: (lambda t: t.to(torch.bfloat16) if t.is_floating_point() else t)(torch.as_tensor(a)))
    def _A_setup():
        B, S, D = 1, 2048, 640
        Df = D // 2 + 1
        return {
            "x": _w((lambda *s: torch.randn(*s, dtype=torch.bfloat16) * 0.05)(B, S, D)),
            "w_r": _w((lambda *s: torch.randn(*s, dtype=torch.bfloat16) * 0.8)(S, Df) * 0.02),
            "w_i": _w((lambda *s: torch.randn(*s, dtype=torch.bfloat16) * 0.8)(S, Df) * 0.02),
        }
    _A_in = _A_setup()

    def _B_setup():
        B, S, D, F = 1, 2048, 640, 1536
        return {
            "x": _w((lambda *s: torch.randn(*s, dtype=torch.bfloat16) * 0.05)(B, S, D)),
            "w1": _w((lambda *s: torch.randn(*s, dtype=torch.bfloat16) * 3.2)(D, F) * (D ** -0.5)),
            "b1": _w((lambda *s: torch.randn(*s, dtype=torch.bfloat16) * 1.6)(F)),
            "w2": _w((lambda *s: torch.randn(*s, dtype=torch.bfloat16) * 0.2)(F, D) * (F ** -0.5)),
            "b2": _w((lambda *s: torch.randn(*s, dtype=torch.bfloat16) * 0.2)(D)),
        }
    _B_in = _B_setup()

    return {
        "A_x": _A_in["x"],
        "A_w_r": _A_in["w_r"],
        "A_w_i": _A_in["w_i"],
        "B_x": _B_in["x"],
        "B_w1": _B_in["w1"],
        "B_b1": _B_in["b1"],
        "B_w2": _B_in["w2"],
        "B_b2": _B_in["b2"],
    }

def reference(A_x, A_w_r, A_w_i, B_x, B_w1, B_b1, B_w2, B_b2):
    def _A_ref(x, w_r, w_i):
        B, S, D = x.shape
        X = (lambda x, axes=(-2,-1): torch.fft.rfft2(x.float(), dim=axes))(x, axes=(-2, -1))
        W = w_r + 1j * w_i
        X = X * W
        y = (lambda x, s, axes=(-2,-1): torch.fft.irfft2(x, s=s, dim=axes).to(torch.bfloat16))(X, (S, D), axes=(-2, -1))
        return y

    def _B_ref(x, w1, b1, w2, b2):
        y = _layernorm(x, axis=-1)
        h = _gelu(torch.einsum("bsd,df->bsf", y, w1) + b1)
        return torch.einsum("bsf,fd->bsd", h, w2) + b2

    x = A_x
    xn = _layernorm(x, axis=-1)
    s = _A_ref(xn, A_w_r, A_w_i)
    g = _silu(_B_ref(xn, B_w1, B_b1, B_w2, B_b2))
    return x + s * g
```

```python
import re

TRANS = ("v_exp_f32", "v_log_f32", "v_rcp_f32", "v_rsq_f32", "v_sqrt_f32", "v_sin_f32", "v_cos_f32", "v_rcp_iflag_f32")

_reg_re = re.compile(r"(?<![\w.])([vsa])(?:(\d+)|\[(\d+):(\d+)\])(?![\w])")


def regs_of(op):
    out = set()
    op = op.strip()
    for m in _reg_re.finditer(op):
        k = m.group(1)
        if m.group(2) is not None:
            out.add((k, int(m.group(2))))
        else:
            for i in range(int(m.group(3)), int(m.group(4)) + 1):
                out.add((k, i))
    if re.search(r"\bvcc\b", op):
        out |= {("s", 106), ("s", 107)}
    if re.search(r"\bvcc_lo\b", op):
        out.add(("s", 106))
    if re.search(r"\bvcc_hi\b", op):
        out.add(("s", 107))
    if re.search(r"\bexec\b", op):
        out |= {("s", 126), ("s", 127)}
    if re.search(r"\bm0\b", op):
        out.add(("s", 124))
    return out


def split_ops(s):
    ops, depth, cur = [], 0, ""
    for ch in s:
        if ch in "[(":
            depth += 1
        if ch in "])":
            depth -= 1
        if ch == "," and depth == 0:
            ops.append(cur.strip())
            cur = ""
        else:
            cur += ch
    if cur.strip():
        ops.append(cur.strip())
    return ops


class Ins:
    __slots__ = ("text", "mn", "ops", "rd", "wr", "kind", "label", "target", "srcc", "srcab", "dpp", "lds_dma", "wide_store", "sdata", "nop", "passes")

    def __init__(self, text):
        self.text = text
        self.label = None
        self.target = None
        self.rd = set(); self.wr = set()
        self.srcc = set(); self.srcab = set()
        self.dpp = False; self.lds_dma = False; self.wide_store = False
        self.sdata = set(); self.nop = 1; self.passes = 0
        t = text.split(";")[0].strip()
        if t.endswith(":"):
            self.kind = "label"; self.label = t[:-1]; self.mn = ""; self.ops = []; self.nop = 0
            return
        if t == "" or t.startswith("."):
            self.kind = "none"; self.mn = ""; self.ops = []; self.nop = 0
            return
        parts = t.split(None, 1)
        mn = parts[0]; rest = parts[1] if len(parts) > 1 else ""
        self.mn = mn
        ops = split_ops(rest)
        mods = ""
        if ops:
            m = re.match(r"^(\S+(?:\([^)]*\))?)(\s+.*)?$", ops[-1])
            if m and m.group(2):
                ops[-1] = m.group(1); mods = m.group(2)
        self.ops = ops
        R = regs_of
        if mn.startswith("v_mfma"):
            self.kind = "mfma"
            self.wr = R(ops[0]); self.srcab = R(ops[1]) | R(ops[2]); self.srcc = R(ops[3])
            self.rd = self.srcab | self.srcc
            self.passes = 8 if "32x32" in mn else 4
        elif mn.startswith("v_"):
            self.kind = "valu"
            self.dpp = "_dpp" in mn or "row_" in mods or "quad_perm" in mods
            if mn.startswith("v_cmp"):
                self.wr = R(ops[0]); self.rd = set().union(*[R(o) for o in ops[1:]])
                if mn.startswith("v_cmpx"):
                    self.wr |= R("exec")
            elif mn.startswith(("v_add_co", "v_sub_co", "v_subrev_co", "v_addc_co", "v_subb_co", "v_mad_u64", "v_div_scale")):
                self.wr = R(ops[0]) | R(ops[1]); self.rd = set().union(*[R(o) for o in ops[2:]])
            elif mn.startswith("v_permlane") and "swap" in mn:
                self.wr = R(ops[0]) | R(ops[1]); self.rd = set(self.wr)
            elif mn == "v_nop":
                pass
            else:
                self.wr = R(ops[0]); self.rd = set().union(*[R(o) for o in ops[1:]]) if len(ops) > 1 else set()
                if mn.startswith(("v_fmac", "v_dot2c", "v_pk_fmac", "v_writelane")) or self.dpp:
                    self.rd |= R(ops[0])
        elif mn.startswith("ds_"):
            self.kind = "ds"
            if mn.startswith(("ds_read", "ds_bpermute", "ds_permute", "ds_swizzle")) or "_rtn" in mn:
                self.wr = R(ops[0]); self.rd = set().union(*[R(o) for o in ops[1:]])
            else:
                self.rd = set().union(*[R(o) for o in ops])
        elif mn.startswith(("buffer_", "global_")):
            self.kind = "vmem"
            if mn in ("buffer_wbl2", "buffer_inv"):
                pass
            elif re.search(r"\blds\b", mods) or "load_lds" in mn:
                self.lds_dma = True; self.rd = set().union(*[R(o) for o in ops]) | R("m0")
            elif "load" in mn:
                self.wr = R(ops[0]); self.rd = set().union(*[R(o) for o in ops[1:]])
            elif "atomic" in mn:
                self.rd = set().union(*[R(o) for o in ops])
                if "sc0" in mods:
                    self.wr = R(ops[0])
            else:
                self.rd = set().union(*[R(o) for o in ops])
                data = ops[0] if mn.startswith("buffer_") else ops[1]
                self.sdata = R(data)
                self.wide_store = mn.endswith(("x3", "x4"))
        elif mn.startswith("s_"):
            self.kind = "salu"
            if mn == "s_nop":
                self.nop = int(ops[0], 0) + 1
            elif mn.startswith(("s_cbranch", "s_branch")):
                self.kind = "branch"; self.target = ops[0]
                if "vcc" in mn: self.rd = R("vcc")
            elif mn == "s_endpgm":
                self.kind = "end"
            elif mn.startswith(("s_cmp", "s_waitcnt", "s_barrier", "s_sleep", "s_setprio", "s_bitcmp")):
                self.rd = set().union(*[R(o) for o in ops]) if ops else set()
            elif mn.startswith(("s_load", "s_memtime", "s_memrealtime")):
                self.kind = "smem"; self.wr = R(ops[0]); self.rd = set().union(*[R(o) for o in ops[1:]]) if len(ops) > 1 else set()
            else:
                self.wr = R(ops[0]); self.rd = set().union(*[R(o) for o in ops[1:]]) if len(ops) > 1 else set()
                if "saveexec" in mn:
                    self.wr |= R("exec")
        else:
            raise ValueError("unknown instruction " + text)


def vg(s):
    return {r for r in s if r[0] in "va"}


def sg(s):
    return {r for r in s if r[0] == "s"}


EXEC = {("s", 126), ("s", 127)}


def need(p, c):
    n = 0
    pk, ck = p.kind, c.kind
    if pk == "valu":
        pv = vg(p.wr); ps = sg(p.wr)
        isdot = p.mn.startswith("v_dot")
        if ck == "mfma" and pv & c.rd:
            n = max(n, 3 if isdot else 2)
        if ck == "mfma" and ps & EXEC:
            n = max(n, 4)
        if p.mn.startswith(TRANS) and pv & c.rd:
            n = max(n, 1)
        if isdot:
            if c.mn == p.mn:
                srcc = regs_of(c.ops[-1]) if not c.mn.startswith("v_dot2c") else regs_of(c.ops[0])
                ab = set().union(*[regs_of(o) for o in c.ops[1:3]])
                if pv & ab: n = max(n, 3)
            elif pv & (c.rd | c.wr):
                n = max(n, 3)
        if ck == "valu":
            if ps & c.rd:
                n = max(n, 4 if c.mn.startswith(("v_readlane", "v_writelane")) else 2)
            if c.mn.startswith(("v_readlane", "v_readfirstlane")) and pv & c.rd:
                n = max(n, 1)
            if (c.dpp or c.mn.startswith("v_permlane")) and pv & c.rd:
                n = max(n, 2)
            if ps & EXEC:
                if c.dpp: n = max(n, 5)
                if c.mn.startswith(("v_readlane", "v_readfirstlane", "v_writelane", "v_permlane")): n = max(n, 4)
            if "sdwa" in p.mn and pv & (c.rd | c.wr):
                n = max(n, 1)
        if ck == "vmem" and ps & c.rd:
            n = max(n, 5)
        if ck in ("salu", "branch", "smem") and ps & c.rd:
            n = max(n, 1)
    if pk == "mfma":
        big = 12 if p.passes == 8 else 8
        if ck == "mfma":
            if p.wr & c.srcab:
                n = max(n, big)
            if p.wr & c.srcc and not (p.wr == c.srcc and p.passes == c.passes):
                n = max(n, big - 2)
            if p.wr & c.wr and not (p.wr == c.srcc and p.passes == c.passes):
                n = max(n, big - 2)
        elif ck in ("valu", "vmem", "ds"):
            if p.wr & (c.rd | c.wr):
                n = max(n, big)
            if ck == "valu" and p.srcc & c.wr:
                n = max(n, p.passes - 1)
    if pk == "salu" and ("s", 124) in p.wr and c.lds_dma:
        n = max(n, 1)
    if pk == "vmem" and p.wide_store and p.sdata & c.wr:
        n = max(n, 2)
    return n


MAXD = 12


class Asm:
    def __init__(self):
        self.ins = []
        self.uid = 0

    def __call__(self, text):
        for line in text.strip().split("\n"):
            line = line.strip()
            if line:
                self.ins.append(Ins(line))

    def label(self, name):
        self.ins.append(Ins(name + ":"))

    def newlabel(self, base="L"):
        self.uid += 1
        return f"{base}_{self.uid}"

    def resolve(self):
        changed = True
        while changed:
            changed = False
            ins = self.ins
            labels = {x.label: i for i, x in enumerate(ins) if x.kind == "label"}
            jumps = {}
            for i, x in enumerate(ins):
                if x.kind == "branch":
                    jumps.setdefault(labels[x.target], []).append(i)
            out = []
            pad_at = {}

            def walk(c, i, dist, seen):
                worst = 0
                while i >= 0 and dist < MAXD:
                    x = ins[i]
                    if x.kind == "label":
                        for j in jumps.get(i, []):
                            if (j, dist) not in seen:
                                seen.add((j, dist))
                                worst = max(worst, walk(c, j, dist, seen))
                        k = i - 1
                        while k >= 0 and ins[k].kind in ("none",):
                            k -= 1
                        if k >= 0 and (ins[k].kind == "end" or ins[k].mn == "s_branch"):
                            return worst
                    elif x.kind != "none":
                        worst = max(worst, need(x, c) - dist)
                        dist += x.nop
                    dist += pad_at.get(i, 0)
                    i -= 1
                return worst

            for i, c in enumerate(ins):
                if c.kind in ("label", "none", "end"):
                    continue
                w = walk(c, i - 1, 0, set())
                if w > 0:
                    pad_at[i] = w
            if pad_at:
                for i, c in enumerate(ins):
                    if i in pad_at:
                        out.append(Ins(f"s_nop {pad_at[i] - 1}"))
                    out.append(c)
                self.ins = out
                changed = True

    def text(self):
        lines = []
        for x in self.ins:
            lines.append(x.text if x.kind == "label" or x.text.startswith(".") else "    " + x.text)
        return "\n".join(lines) + "\n"

    def max_regs(self, lo=0, hi=None):
        mv = ms = -1
        for x in self.ins[lo:hi]:
            for k, i in x.rd | x.wr:
                if k == "v": mv = max(mv, i)
                if k == "s" and i < 102: ms = max(ms, i)
        return mv + 1, ms + 1


class Pool:
    def __init__(self, kind, start, end):
        self.kind, self.cur, self.end = kind, start, end

    def get(self, n=1, align=None):
        a = align or (1 if n == 1 else (2 if (n == 2 or self.kind == "v") else 4))
        self.cur = (self.cur + a - 1) // a * a
        r = self.cur
        self.cur += n
        assert self.cur <= self.end, f"out of {self.kind} registers"
        return r

    def mark(self):
        return self.cur

    def reset(self, m):
        self.cur = m


def v(i, n=1):
    return f"v{i}" if n == 1 else f"v[{i}:{i + n - 1}]"


def s(i, n=1):
    return f"s{i}" if n == 1 else f"s[{i}:{i + n - 1}]"
```

```python
import numpy as np
S, D, F, DF = 2048, 640, 1536, 321

def bf16(x):
    x = np.asarray(x, dtype=np.float32)
    u = x.view(np.uint32)
    r = ((u + 0x7FFF + ((u >> 16) & 1)) & 0xFFFF0000).astype(np.uint32)
    return r.view(np.float32)

def make_inputs(seed=0):
    rng = np.random.default_rng(seed)
    rn = lambda *s: bf16(rng.standard_normal(s).astype(np.float32))
    x = bf16(rn(S, D) * 0.05)
    wr = bf16(bf16(rn(S, DF) * 0.8) * 0.02); wi = bf16(bf16(rn(S, DF) * 0.8) * 0.02)
    w1 = bf16(bf16(rn(D, F) * 3.2) * D ** -0.5); b1 = bf16(rn(F) * 1.6)
    w2 = bf16(bf16(rn(F, D) * 0.2) * F ** -0.5); b2 = bf16(rn(D) * 0.2)
    return x, wr, wi, w1, b1, w2, b2

def ln_ref(x):
    m = bf16(x.mean(-1, keepdims=True, dtype=np.float64))
    v = bf16(x.astype(np.float64).var(-1, keepdims=True))
    den = bf16(np.sqrt(bf16(v + np.float32(1e-5))))
    return bf16(bf16(x - m) / den)

def gelu(x):
    return 0.5 * x * (1 + np.tanh(np.sqrt(2 / np.pi) * (x + 0.044715 * x ** 3)))

def reference(x, wr, wi, w1, b1, w2, b2):
    xn = ln_ref(x)
    X = np.fft.rfft2(xn.astype(np.float64))
    s = bf16(np.fft.irfft2(X * (wr + 1j * wi), s=(S, D)))
    y = ln_ref(xn)
    h = bf16(gelu(bf16(bf16(y @ w1) + b1).astype(np.float64)))
    o = bf16(bf16(h @ w2) + b2)
    g = bf16(o / (1 + np.exp(-o)))
    return bf16(x + bf16(s * g)), s, g, xn, h

def cb(z):
    return bf16(z.real) + 1j * bf16(z.imag)

def spectral(xn, wr, wi):
    e = lambda num, den: np.exp(-2j * np.pi * num / den)
    a = np.arange(20); b = np.arange(32); c1 = np.arange(16); c2 = np.arange(32)
    X = xn.reshape(S, 20, 32)
    F20 = cb(e(np.outer(a, c1), 20))
    T = np.einsum('sab,ac->sbc', X, F20)
    T = cb(T * e(np.outer(b, c1), 640)[None])
    F32 = cb(e(np.outer(c2, b), 32))
    Zf = np.einsum('ub,sbc->suc', F32, T)
    Zf[:, 16:] = np.conj(Zf[:, 16:])
    Zf = cb(Zf)
    Z = np.zeros((S, 321), complex)
    for u in range(32):
        for c in range(16):
            k = c + 20 * u
            kp = k if u < 16 else 640 - k
            Z[:, kp] = Zf[:, u, c]
    Zp = Z.reshape(32, 64, 321)
    k1 = np.arange(32); n = np.arange(64); j = np.arange(32)
    M = cb(e(k1[None, :, None] * (n[:, None, None] + 64 * j[None, None, :]), 2048))
    Z1 = cb(np.einsum('nkj,jnq->knq', M, Zp))
    F64 = cb(e(np.outer(np.arange(64), n), 64))
    Xf = np.einsum('un,knq->kuq', F64, Z1)
    W = (wr + 1j * wi).reshape(64, 32, 321).transpose(1, 0, 2)
    Y = cb(Xf * W)
    V = cb(np.einsum('un,kuq->knq', np.conj(F64), Y))
    U = cb(np.einsum('nkj,knq->jnq', np.conj(M), V)).reshape(S, 321)
    Uf = np.zeros((S, 32, 16), complex)
    for u in range(32):
        for c in range(16):
            k = c + 20 * u
            Uf[:, u, c] = U[:, k] if u < 16 else np.conj(U[:, 640 - k])
    T = np.einsum('ub,suc->sbc', np.conj(F32), Uf)
    wgt = np.array([1] + [2] * 9 + [1] + [0] * 5) / (S * D)
    T = cb(T * np.conj(e(np.outer(b, c1), 640))[None] * wgt[None, None, :])
    out = np.einsum('sbc,ac->sab', T, np.conj(F20)).real
    return bf16(out.reshape(S, D)), Z, Z1, V, U

def mlp(x, w1, b1, w2, b2):
    x64 = x.astype(np.float64)
    mean = x64.mean(-1, keepdims=True); var = (x64 ** 2).mean(-1, keepdims=True) - mean ** 2
    m = bf16(mean); den = bf16(np.sqrt(bf16(bf16(var) + np.float32(1e-5))))
    m2 = bf16((mean - m) / den); v2 = bf16(var / den ** 2); den2 = bf16(np.sqrt(bf16(v2 + np.float32(1e-5))))
    c = 1 / (den * den2); mp = m + m2 * den
    pre = c * (x @ w1) - c * mp * w1.sum(0)[None] + b1
    h = bf16(gelu(pre.astype(np.float64)))
    P = [bf16(h[:, 512 * t:512 * t + 512] @ w2[512 * t:512 * t + 512]) for t in range(3)]
    o = P[0] + P[1] + P[2] + b2
    return o / (1 + np.exp(-o)), h

if __name__ == "__main__":
    inp = make_inputs(0)
    x, wr, wi, w1, b1, w2, b2 = inp
    ref, s_ref, g_ref, xn, h_ref = reference(*inp)
    s, *_ = spectral(xn, wr, wi)
    print("s err max", np.abs(s - s_ref).max(), "rms", np.sqrt(((s - s_ref) ** 2).mean()), "s rms", np.sqrt((s_ref ** 2).mean()))
    g, h = mlp(x, w1, b1, w2, b2)
    print("g err max", np.abs(g - g_ref).max(), "rms", np.sqrt(((g - g_ref) ** 2).mean()))
    out = bf16(x + s * g)
    print("out err max", np.abs(out - ref).max(), "thr", 8 * 2 ** -8 * np.abs(ref).max())
```

```python
import numpy as np
from model import bf16

def bf16_bits(x):
    return (bf16(np.asarray(x, dtype=np.float32)).view(np.uint32) >> 16).astype(np.uint16)

L = np.arange(64); I16 = L & 15; G = L >> 4
E = np.arange(8)

def frag(fn):
    vals = np.array([[fn(int(l & 15), int(l >> 4), e) for e in range(8)] for l in range(64)], dtype=np.float64)
    return bf16_bits(vals).tobytes()

def f32x4(fn):
    vals = np.array([[fn(int(l & 15), int(l >> 4), r) for r in range(4)] for l in range(64)], dtype=np.float32)
    return vals.tobytes()

def trnat(g, e):
    return 4 * g + e if e < 4 else 16 + 4 * g + (e - 4)

c_ = lambda num, den: np.cos(2 * np.pi * (num % den) / den)
s_ = lambda num, den: np.sin(2 * np.pi * (num % den) / den)

def tab_f1():
    out = b""
    def a_of(g, e):
        if e < 4: return 4 * g + e
        return 16 + (e - 4) if g == 0 else None
    out += frag(lambda i, g, e: 0.0 if a_of(g, e) is None else c_(a_of(g, e) * i, 20))
    out += frag(lambda i, g, e: 0.0 if a_of(g, e) is None else -s_(a_of(g, e) * i, 20))
    for u in range(2):
        for op in range(2):
            for ip in range(2):
                def fn(i, g, e):
                    c2 = 16 * u + i; b = trnat(g, e)
                    c, s = c_(b * c2, 32), s_(b * c2, 32)
                    val = [[c, s], [-s, c]][op][ip]
                    if u == 1 and op == 1: val = -val
                    return val
                out += frag(fn)
    for t in range(2):
        out += f32x4(lambda i, g, r: c_((16 * t + 4 * g + r) * i, 640))
        out += f32x4(lambda i, g, r: s_((16 * t + 4 * g + r) * i, 640))
    assert len(out) == 14 * 1024
    return out + b"\0" * 2048

def tab_f2():
    out = b""
    for f in (c_, s_, lambda a, b: -s_(a, b)):
        for t in range(4):
            for ks in range(2):
                out += frag(lambda i, g, e: f((16 * t + i) * (32 * ks + trnat(g, e)), 64))
    assert len(out) == 24 * 1024
    return out

def tab_f3():
    out = b""
    for t in range(2):
        for op in range(2):
            for u in range(2):
                def fn(i, g, e):
                    b = 16 * t + i; c2 = 16 * u + 4 * g + (e >> 1); ip = e & 1
                    c, s = c_(b * c2, 32), s_(b * c2, 32)
                    sg = 1.0 if u == 0 else -1.0
                    return [[c, -sg * s], [s, sg * c]][op][ip]
                out += frag(fn)
    for tp in range(2):
        def fn(i, g, e):
            a = 16 * tp + i
            if a >= 20: return 0.0
            c1 = 4 * g + (e & 3)
            return c_(a * c1, 20) if e < 4 else -s_(a * c1, 20)
        out += frag(fn)
    wgt = np.array([1] + [2] * 9 + [1] + [0] * 5) / (2048.0 * 640.0)
    for t in range(2):
        out += f32x4(lambda i, g, r: c_((16 * t + i) * (4 * g + r), 640) * wgt[4 * g + r])
        out += f32x4(lambda i, g, r: -s_((16 * t + i) * (4 * g + r), 640) * wgt[4 * g + r])
    assert len(out) == 14 * 1024
    return out + b"\0" * 2048

def as_asm(label, data):
    w = np.frombuffer(data, dtype=np.uint32)
    lines = [f".p2align 8", f".type {label},@object", f"{label}:"]
    for i in range(0, len(w), 8):
        lines.append(".long " + ",".join(hex(int(x)) for x in w[i:i + 8]))
    lines.append(f".size {label}, {len(data)}")
    return "\n".join(lines) + "\n"
```

```python
import sys, struct
import numpy as np
from asmlib import Asm, Pool, v, s
import tables

NAME = "recurrent_scan__spectral_gfnet__mixer_channel_mlp__prompt"

WS_H = 0
WS_ZP = WS_H + 2048 * 1536 * 2
WS_VP = WS_ZP + 64 * 45056
WS_P = WS_VP + 64 * 45056
WS_END = WS_P + 3 * 2621440
TAB_F1, TAB_F2, TAB_F3, TAB_END = 0, 16384, 40960, 57344

def f2u(x):
    return struct.unpack("<I", struct.pack("<f", x))[0]

P_X, P_WR, P_WI, P_W1, P_B1, P_W2, P_B2, P_OUT, P_DBG, P_WS = 4, 6, 8, 12, 14, 16, 18, 20, 22, 24
R_WS, R_TAB, R_A, R_B, R_C, R_D = 28, 32, 36, 40, 44, 48
S_W = 52
S_T = 53


def srd(a, dst, ptr, size):
    a(f"s_mov_b32 s{dst}, s{ptr}")
    a(f"s_mov_b32 s{dst+1}, s{ptr+1}")
    a(f"s_mov_b32 s{dst+2}, {size}")
    a(f"s_mov_b32 s{dst+3}, 0x20000")


def prologue(a, end_label):
    a("s_cmpk_ge_u32 s2, 0x100")
    a(f"s_cbranch_scc1 {end_label}")
    a("s_load_dwordx16 s[4:19], s[0:1], 0")
    a("s_load_dwordx4 s[20:23], s[0:1], 64")
    a("s_load_dwordx2 s[24:25], s[0:1], 80")
    a(f"s_getpc_b64 s[{R_TAB}:{R_TAB+1}]")
    a(f"s_add_u32 s{R_TAB}, s{R_TAB}, ctab@rel32@lo+4")
    a(f"s_addc_u32 s{R_TAB+1}, s{R_TAB+1}, ctab@rel32@hi+12")
    a(f"s_mov_b32 s{R_TAB+2}, {TAB_END}")
    a(f"s_mov_b32 s{R_TAB+3}, 0x20000")
    a("v_lshrrev_b32 v1, 6, v0")
    a(f"v_readfirstlane_b32 s{S_W}, v1")
    a("v_and_b32 v0, 63, v0")
    a("s_waitcnt lgkmcnt(0)")
    srd(a, R_WS, P_WS, WS_END)


def dma(a, voff, srd_, soff, extra=""):
    a(f"buffer_load_dwordx4 {v(voff)}, {s(srd_,4)}, {soff} offen {extra}lds")


def bf16r(a, dst, src):
    a(f"v_cvt_pk_bf16_f32 {v(dst)}, {v(src)}, {v(src)}")
    a(f"v_lshlrev_b32 {v(dst)}, 16, {v(dst)}")


def mfma(a, d, A, B, c=None):
    a(f"v_mfma_f32_16x16x32_bf16 {v(d,4)}, {v(A,4)}, {v(B,4)}, {v(d,4) if c is None else c}")


def divmod_const(a, q, r, x, c, tmp=None):
    m = (1 << 18) // c + 1
    for t in range(2048):
        assert (t * m) >> 18 == t // c
    a(f"v_mul_u32_u24 {v(q)}, {m}, {v(x)}")
    a(f"v_lshrrev_b32 {v(q)}, 18, {v(q)}")
    a(f"v_mul_u32_u24 {v(r)}, {c}, {v(q)}")
    a(f"v_sub_u32 {v(r)}, {v(x)}, {v(r)}")


def interleave(a, main, fill, per=1, start=0):
    fi = 0
    for i, m in enumerate(main):
        a(m)
        if i >= start:
            for _ in range(per):
                if fi < len(fill):
                    a(fill[fi]); fi += 1
    while fi < len(fill):
        a(fill[fi]); fi += 1


def gemm(a, which, s_rb, s_cb, s_kt, end_label):
    NT = 4 if which == 1 else 5
    NCH = 10 if which == 1 else 8
    WP = 256 if which == 1 else 320
    SLOT = 16384 + 64 * WP
    ND = 8 if which == 1 else 9
    LDS_X = 4 * SLOT
    l_load = a.newlabel("L_ld")
    if which == 1:
        srd(a, R_A, P_X, 2621440); srd(a, R_B, P_W1, 1966080); srd(a, R_C, P_B1, 3072)
    else:
        srd(a, R_B, P_W2, 1966080)
    a(f"s_cmp_ge_u32 s{S_W}, 4")
    a(f"s_cbranch_scc1 {l_load}")

    vp = Pool("v", 1, 256)
    i16, g, t0, t1 = vp.get(), vp.get(), vp.get(), vp.get()
    s_wm, s_wn, s_dl, s_cnt, s_t = S_T, S_T + 1, S_T + 2, S_T + 3, S_T + 4
    a(f"s_and_b32 s{s_wm}, s{S_W}, 1")
    a(f"s_lshr_b32 s{s_wn}, s{S_W}, 1")
    a(f"v_and_b32 {v(i16)}, 15, v0")
    a(f"v_lshrrev_b32 {v(g)}, 4, v0")
    acc = [[vp.get(4, 4) for mm in range(4)] for tt in range(NT)]
    xf = [[vp.get(4, 4) for mm in range(4)] for st in range(2)]
    wf = [[vp.get(4, 4) for tt in range(NT)] for st in range(2)]
    if which == 1:
        cs = [vp.get(4, 4) for tt in range(4)]
        ones = vp.get(4, 4)
        b1r = [vp.get(2, 2) for tt in range(4)]
        a(f"s_lshl_b32 s{s_t}, s{s_cb}, 8")
        a(f"s_lshl_b32 s{s_t+1}, s{s_wn}, 7")
        a(f"s_add_u32 s{s_t}, s{s_t}, s{s_t+1}")
        a(f"s_lshl_b32 s{s_t+1}, s{s_wm}, 6")
        a(f"v_lshlrev_b32 {v(t0)}, 3, {v(g)}")
        a(f"v_add_u32 {v(t0)}, s{s_t+1}, {v(t0)}")
        a(f"v_xor_b32 {v(t1)}, 64, {v(t0)}")
        for tt in range(4):
            a(f"buffer_load_dwordx2 {v(b1r[tt],2)}, {v(t0 if tt < 2 else t1)}, {s(R_C,4)}, s{s_t} offen offset:{32*(tt&1)}")
    if which == 1:
        xa = [vp.get(), vp.get()]
        a(f"v_and_b32 {v(t0)}, 7, v0")
        a(f"v_xor_b32 {v(t0)}, {v(t0)}, {v(g)}")
        a(f"v_lshlrev_b32 {v(t0)}, 4, {v(t0)}")
        a(f"v_lshl_add_u32 {v(t0)}, {v(i16)}, 7, {v(t0)}")
        a(f"s_lshl_b32 s{s_t}, s{s_wm}, 13")
        a(f"v_add_u32 {v(xa[0])}, s{s_t}, {v(t0)}")
        a(f"v_xor_b32 {v(xa[1])}, 64, {v(xa[0])}")
        xrd = lambda st_, ks, mm: f"ds_read_b128 {v(xf[st_][mm],4)}, {v(xa[ks])} offset:{mm*2048}"
        wa = [vp.get() for _ in range(4)]
        r_, cq = vp.get(), vp.get()
        a(f"v_lshrrev_b32 {v(r_)}, 2, {v(i16)}")
        a(f"v_and_b32 {v(cq)}, 3, v0")
        a(f"v_lshl_add_u32 {v(t0)}, {v(g)}, 3, {v(r_)}")
        a(f"v_lshlrev_b32 {v(t0)}, 8, {v(t0)}")
        a(f"v_lshl_add_u32 {v(t0)}, {v(cq)}, 3, {v(t0)}")
        a(f"v_add_u32 {v(t0)}, 16384, {v(t0)}")
        a(f"v_and_b32 {v(t1)}, 1, {v(g)}")
        a(f"v_lshl_or_b32 {v(t1)}, {v(t1)}, 2, {v(r_)}")
        a(f"s_lshl_b32 s{s_t}, s{s_wn}, 2")
        a(f"s_lshl_b32 s{s_t+1}, s{s_wm}, 1")
        a(f"s_or_b32 s{s_t}, s{s_t}, s{s_t+1}")
        a(f"v_xor_b32 {v(t1)}, s{s_t}, {v(t1)}")
        for tt in range(4):
            a(f"v_xor_b32 {v(wa[tt])}, {tt}, {v(t1)}")
            a(f"v_lshl_add_u32 {v(wa[tt])}, {v(wa[tt])}, 5, {v(t0)}")
        wrd = lambda st_, ks, tt, h: f"ds_read_b64_tr_b16 {v(wf[st_][tt]+2*h,2)}, {v(wa[tt])} offset:{ks*8192+h*1024}"
        areg = xa + wa
    else:
        xa = [vp.get()]
        a(f"s_lshl_b32 s{s_t}, s{s_wm}, 12")
        a(f"v_lshlrev_b32 {v(t0)}, 4, v0")
        a(f"v_add_u32 {v(xa[0])}, s{s_t}, {v(t0)}")
        xrd = lambda st_, ks, mm: f"ds_read_b128 {v(xf[st_][mm],4)}, {v(xa[0])} offset:{ks*8192+mm*1024}"
        wa = [vp.get(), vp.get()]
        r_, cq = vp.get(), vp.get()
        a(f"v_lshrrev_b32 {v(r_)}, 2, v0")
        a(f"v_and_b32 {v(cq)}, 3, v0")
        a(f"v_mul_u32_u24 {v(t0)}, 320, {v(r_)}")
        a(f"v_lshl_add_u32 {v(t0)}, {v(cq)}, 3, {v(t0)}")
        a(f"v_add_u32 {v(t0)}, 16384, {v(t0)}")
        a(f"v_and_b32 {v(t1)}, 1, {v(g)}")
        a(f"s_mul_i32 s{s_t}, s{s_wn}, 5")
        a(f"v_xor_b32 {v(wa[0])}, s{s_t}, {v(t1)}")
        a(f"v_lshl_add_u32 {v(wa[0])}, {v(wa[0])}, 5, {v(t0)}")
        a(f"s_add_u32 s{s_t}, s{s_t}, 1")
        a(f"v_xor_b32 {v(wa[1])}, s{s_t}, {v(t1)}")
        a(f"v_lshl_add_u32 {v(wa[1])}, {v(wa[1])}, 5, {v(t0)}")
        wrd = lambda st_, ks, tt, h: f"ds_read_b64_tr_b16 {v(wf[st_][tt]+2*h,2)}, {v(wa[tt&1])} offset:{(32*ks+16*h)*320+(tt>>1)*64}"
        areg = xa + wa
    for tt in range(NT):
        for mm in range(4):
            for r in range(4):
                a(f"v_mov_b32 {v(acc[tt][mm]+r)}, 0")
    if which == 1:
        for tt in range(2):
            for r in range(4):
                a(f"v_mov_b32 {v(cs[tt]+r)}, 0")
        for r in range(4):
            a(f"v_mov_b32 {v(ones+r)}, 0x3f803f80")
    else:
        sw = vp.get(); srd_a = [vp.get() for _ in range(5)]; gad = vp.get()
        SP = 176
        a(f"s_mul_i32 s{s_t}, s{S_W}, {64*SP}")
        a(f"v_mul_u32_u24 {v(sw)}, {SP}, {v(i16)}")
        a(f"v_lshl_add_u32 {v(sw)}, {v(g)}, 3, {v(sw)}")
        a(f"v_add_u32 {v(sw)}, s{s_t}, {v(sw)}")
        for ii in range(5):
            a(f"v_add_u32 {v(gad)}, {64*ii}, v0")
            divmod_const(a, t0, t1, gad, 10)
            a(f"v_mul_u32_u24 {v(t0)}, {SP}, {v(t0)}")
            a(f"v_lshl_add_u32 {v(t0)}, {v(t1)}, 4, {v(t0)}")
            a(f"v_add_u32 {v(srd_a[ii])}, s{s_t}, {v(t0)}")
        a(f"v_lshlrev_b32 {v(gad)}, 4, v0")

    def reads(st_, ks):
        out = []
        for i in range(max(4, NT)):
            if i < NT:
                out += [wrd(st_, ks, i, 0), wrd(st_, ks, i, 1)]
            if i < 4:
                out.append(xrd(st_, ks, i))
        return out

    def mfmas(st_):
        out = []
        for tt in range(NT):
            for mm in range(4):
                out.append(f"v_mfma_f32_16x16x32_bf16 {v(acc[tt][mm],4)}, {v(wf[st_][tt],4)}, {v(xf[st_][mm],4)}, {v(acc[tt][mm],4)}")
            if which == 1 and tt < 2:
                out.append(f"v_mfma_f32_16x16x32_bf16 {v(cs[tt],4)}, {v(wf[st_][tt],4)}, {v(ones,4)}, {v(cs[tt],4)}")
        return out

    s_sl = S_T + 10
    a(f"s_mov_b32 s{s_sl}, {SLOT}")
    a(f"s_mov_b32 s{s_cnt}, 0")
    a("s_barrier")
    for x in reads(0, 0):
        a(x)
    l_loop, l_last = a.newlabel("L_gl"), a.newlabel("L_gx")
    a.label(l_loop)
    a(f"s_add_u32 s{s_cnt}, s{s_cnt}, 1")
    a(f"s_and_b32 s{s_t}, s{s_cnt}, 3")
    a(f"s_cmp_eq_u32 s{s_t}, 0")
    a(f"s_cselect_b32 s{s_dl}, {(-3*SLOT) & 0xffffffff}, s{s_sl}")
    a("s_waitcnt lgkmcnt(0)")
    adv = [f"v_add_u32 {v(r)}, s{s_dl}, {v(r)}" for r in areg]
    interleave(a, mfmas(0), reads(1, 1) + adv)
    a(f"s_cmp_eq_u32 s{s_cnt}, {NCH}")
    a("s_waitcnt lgkmcnt(0)")
    a(f"s_cbranch_scc1 {l_last}")
    a("s_barrier")
    interleave(a, mfmas(1), reads(0, 0))
    a(f"s_branch {l_loop}")
    a.label(l_last)
    for x in mfmas(1):
        a(x)

    if which == 1:
        a(f"s_lshl_b32 s{s_t}, s{s_wn}, 8")
        a(f"s_lshl_b32 s{s_t+1}, s{s_wm}, 7")
        a(f"s_add_u32 s{s_t}, s{s_t}, s{s_t+1}")
        a(f"s_add_u32 s{s_t}, s{s_t}, {LDS_X+1024}")
        a(f"v_lshlrev_b32 {v(t0)}, 4, {v(g)}")
        a(f"v_add_u32 {v(t0)}, s{s_t}, {v(t0)}")
        a(f"v_xor_b32 {v(t1)}, 128, {v(t0)}")
        a(f"ds_write_b128 {v(t0)}, {v(cs[0],4)}")
        a(f"ds_write_b128 {v(t0)}, {v(cs[1],4)} offset:64")
        st = [xf[0][0] + 2 * mm for mm in range(4)]
        sa = xa[0]
        a(f"s_lshl_b32 s{s_t}, s{s_wm}, 9")
        a(f"s_add_u32 s{s_t}, s{s_t}, {LDS_X}")
        a(f"v_lshlrev_b32 {v(sa)}, 3, {v(i16)}")
        a(f"v_add_u32 {v(sa)}, s{s_t}, {v(sa)}")
        a("s_waitcnt lgkmcnt(0)")
        a("s_barrier")
        a(f"ds_read_b128 {v(cs[2],4)}, {v(t1)}")
        a(f"ds_read_b128 {v(cs[3],4)}, {v(t1)} offset:64")
        for mm in range(4):
            a(f"ds_read_b64 {v(st[mm],2)}, {v(sa)} offset:{mm*128}")
        b1f = [wf[0][tt] for tt in range(4)]
        a("s_waitcnt vmcnt(0)")
        for tt in range(4):
            for h in range(2):
                a(f"v_lshlrev_b32 {v(b1f[tt]+2*h)}, 16, {v(b1r[tt]+h)}")
                a(f"v_and_b32 {v(b1f[tt]+2*h+1)}, 0xffff0000, {v(b1r[tt]+h)}")
        kc = wf[1][0]
        K0 = -2.0 * np.sqrt(2.0 / np.pi) * np.log2(np.e)
        a(f"v_mov_b32 {v(kc)}, {hex(f2u(K0))}")
        a(f"v_mov_b32 {v(kc+1)}, {hex(f2u(K0*0.044715))}")
        a(f"s_mul_i32 s{s_t}, s{s_rb}, {48*8192}")
        a(f"s_lshl_b32 s{s_t+1}, s{s_cb}, 15")
        a(f"s_add_u32 s{s_t}, s{s_t}, s{s_t+1}")
        a(f"s_lshl_b32 s{s_t+1}, s{s_wn}, 14")
        a(f"s_add_u32 s{s_t}, s{s_t}, s{s_t+1}")
        a(f"s_lshl_b32 s{s_t+1}, s{s_wm}, 12")
        a(f"s_add_u32 s{s_t}, s{s_t}, s{s_t+1}")
        a(f"s_lshl_b32 s{s_t+1}, s{s_wm}, 13")
        a(f"s_add_u32 s{s_t+2}, s{s_t}, s{s_t+1}")
        a(f"s_xor_b32 s{s_t+1}, s{s_t+1}, 8192")
        a(f"s_add_u32 s{s_t+3}, s{s_t}, s{s_t+1}")
        a(f"v_lshlrev_b32 {v(t0)}, 4, v0")
        a("s_waitcnt lgkmcnt(0)")
        tmp = [xf[1][i] for i in range(4)]
        outs = [wf[1][1], wf[1][2]]
        n_o = 0
        for mm in range(4):
            for u in range(2):
                o = outs[n_o & 1]; n_o += 1
                prs = [(acc[2*u+k][mm] + 2*h, cs[2*u+k] + 2*h, b1f[2*u+k] + 2*h) for k in range(2) for h in range(2)]
                T = [tmp[0], tmp[0]+2, tmp[1], tmp[1]+2]
                Z = [tmp[2], tmp[2]+2, tmp[3], tmp[3]+2]
                for i, (p, c_, b_) in enumerate(prs):
                    a(f"v_pk_fma_f32 {v(T[i],2)}, {v(c_,2)}, {v(st[mm],2)}, {v(b_,2)} op_sel:[0,1,0] op_sel_hi:[1,1,1]")
                for i, (p, c_, b_) in enumerate(prs):
                    a(f"v_pk_fma_f32 {v(p,2)}, {v(p,2)}, {v(st[mm],2)}, {v(T[i],2)} op_sel_hi:[1,0,1]")
                for i, (p, c_, b_) in enumerate(prs):
                    a(f"v_pk_mul_f32 {v(T[i],2)}, {v(p,2)}, {v(p,2)}")
                for i, (p, c_, b_) in enumerate(prs):
                    a(f"v_pk_fma_f32 {v(T[i],2)}, {v(T[i],2)}, {v(kc,2)}, {v(kc,2)} op_sel:[0,1,0] op_sel_hi:[1,1,0]")
                for i, (p, c_, b_) in enumerate(prs):
                    a(f"v_pk_mul_f32 {v(Z[i],2)}, {v(p,2)}, {v(T[i],2)}")
                for i in range(4):
                    a(f"v_exp_f32 {v(Z[i])}, {v(Z[i])}")
                    a(f"v_exp_f32 {v(Z[i]+1)}, {v(Z[i]+1)}")
                for i in range(4):
                    a(f"v_pk_add_f32 {v(Z[i],2)}, {v(Z[i],2)}, 1.0 op_sel_hi:[1,0]")
                for i in range(4):
                    a(f"v_rcp_f32 {v(Z[i])}, {v(Z[i])}")
                    a(f"v_rcp_f32 {v(Z[i]+1)}, {v(Z[i]+1)}")
                for i, (p, c_, b_) in enumerate(prs):
                    a(f"v_pk_mul_f32 {v(p,2)}, {v(p,2)}, {v(Z[i],2)}")
                for i, (p, c_, b_) in enumerate(prs):
                    a(f"v_cvt_pk_bf16_f32 {v(o+i)}, {v(p)}, {v(p+1)}")
                a(f"buffer_store_dwordx4 {v(o,4)}, {v(t0)}, {s(R_WS,4)}, s{s_t+2+u} offen offset:{mm*1024}")
    else:
        pk = xf[0][0]
        n = 0
        for mm in range(4):
            for tt in range(NT):
                o = pk + 2 * (n % 16); n += 1
                a(f"v_cvt_pk_bf16_f32 {v(o)}, {v(acc[tt][mm])}, {v(acc[tt][mm]+1)}")
                a(f"v_cvt_pk_bf16_f32 {v(o+1)}, {v(acc[tt][mm]+2)}, {v(acc[tt][mm]+3)}")
                a(f"ds_write_b64 {v(sw)}, {v(o,2)} offset:{mm*16*SP+tt*32}")
                if n == 12:
                    a("s_waitcnt lgkmcnt(8)")
        a(f"s_mul_i32 s{s_t}, s{s_kt}, 2621440")
        a(f"s_lshl_b32 s{s_t+1}, s{s_cb}, 1")
        a(f"s_add_u32 s{s_t+1}, s{s_t+1}, s{s_wn}")
        a(f"s_mul_i32 s{s_t+1}, s{s_t+1}, {2048*160}")
        a(f"s_add_u32 s{s_t}, s{s_t}, s{s_t+1}")
        a(f"s_lshl_b32 s{s_t+1}, s{s_rb}, 1")
        a(f"s_add_u32 s{s_t+1}, s{s_t+1}, s{s_wm}")
        a(f"s_mul_i32 s{s_t+1}, s{s_t+1}, {64*160}")
        a(f"s_add_u32 s{s_t}, s{s_t}, s{s_t+1}")
        a(f"s_add_u32 s{s_t}, s{s_t}, {WS_P}")
        a(f"s_add_u32 s{s_t+1}, s{s_t}, 4096")
        a(f"s_add_u32 s{s_t+2}, s{s_t}, 8192")
        a("s_waitcnt lgkmcnt(0)")
        rb_ = [acc[i // 4][i % 4] for i in range(10)]
        for ii in range(10):
            a(f"ds_read_b128 {v(rb_[ii],4)}, {v(srd_a[ii%5])} offset:{(ii//5)*32*SP}")
        for ii in range(10):
            a(f"s_waitcnt lgkmcnt({9-ii})")
            a(f"buffer_store_dwordx4 {v(rb_[ii],4)}, {v(gad)}, {s(R_WS,4)}, s{s_t+ii//4} offen offset:{(ii%4)*1024}")
    a(f"s_branch {end_label}")

    a.label(l_load)
    vp = Pool("v", 1, 256)
    t0, t1, t2 = vp.get(), vp.get(), vp.get()
    s_lw, s_xo, s_wo, s_m, s_t = S_T, S_T + 1, S_T + 2, S_T + 3, S_T + 4
    a(f"s_sub_u32 s{s_lw}, s{S_W}, 4")
    if which == 1:
        xv = vp.get(); wv = [vp.get(), vp.get()]
        a(f"v_lshrrev_b32 {v(t0)}, 3, v0")
        a(f"v_and_b32 {v(t1)}, 7, v0")
        a(f"v_xor_b32 {v(t1)}, {v(t1)}, {v(t0)}")
        a(f"v_mul_u32_u24 {v(xv)}, {64*1280}, {v(t0)}")
        a(f"v_lshl_add_u32 {v(xv)}, {v(t1)}, 4, {v(xv)}")
        a(f"s_lshl_b32 s{s_xo}, s{s_rb}, 2")
        a(f"s_add_u32 s{s_xo}, s{s_xo}, s{s_lw}")
        a(f"s_mul_i32 s{s_xo}, s{s_xo}, 1280")
        a(f"v_lshrrev_b32 {v(t0)}, 4, v0")
        a(f"v_and_b32 {v(t1)}, 15, v0")
        a(f"v_lshlrev_b32 {v(t2)}, 1, {v(t0)}")
        a(f"v_xor_b32 {v(t1)}, {v(t1)}, {v(t2)}")
        a(f"v_mul_u32_u24 {v(wv[0])}, 3072, {v(t0)}")
        a(f"v_lshl_add_u32 {v(wv[0])}, {v(t1)}, 4, {v(wv[0])}")
        a(f"v_xor_b32 {v(wv[1])}, 128, {v(wv[0])}")
        a(f"s_mul_i32 s{s_wo}, s{s_lw}, {16*3072}")
        a(f"s_lshl_b32 s{s_t}, s{s_cb}, 8")
        a(f"s_add_u32 s{s_wo}, s{s_wo}, s{s_t}")
        a(f"s_lshl_b32 s{s_m}, s{s_lw}, 12")

        def issue(c):
            base = (c % 4) * SLOT
            for i in range(4):
                a(f"s_add_u32 m0, s{s_m}, {base + i*1024}")
                a(f"s_add_u32 s{s_t}, s{s_xo}, {i*8*64*1280 + c*128}")
                dma(a, xv, R_A, f"s{s_t}")
            for i in range(4):
                a(f"s_add_u32 m0, s{s_m}, {base + 16384 + i*1024}")
                a(f"s_add_u32 s{s_t}, s{s_wo}, {(c*64 + i*4)*3072}")
                dma(a, wv[i >> 1], R_B, f"s{s_t}")
    else:
        xv = vp.get(); wv = [vp.get() for _ in range(5)]
        a(f"v_lshlrev_b32 {v(xv)}, 4, v0")
        a(f"s_mul_i32 s{s_xo}, s{s_rb}, {48*8192}")
        a(f"s_lshl_b32 s{s_t}, s{s_kt}, 17")
        a(f"s_add_u32 s{s_xo}, s{s_xo}, s{s_t}")
        a(f"s_lshl_b32 s{s_m}, s{s_lw}, 12")
        a(f"s_add_u32 s{s_xo}, s{s_xo}, s{s_m}")
        for i in range(5):
            a(f"v_add_u32 {v(t2)}, {64*i}, v0")
            divmod_const(a, t0, t1, t2, 20)
            a(f"v_lshrrev_b32 {v(t2)}, 1, {v(t0)}")
            a(f"v_and_b32 {v(t2)}, 2, {v(t2)}")
            a(f"v_xor_b32 {v(t1)}, {v(t1)}, {v(t2)}")
            a(f"v_mul_u32_u24 {v(wv[i])}, 1280, {v(t0)}")
            a(f"v_lshl_add_u32 {v(wv[i])}, {v(t1)}, 4, {v(wv[i])}")
        a(f"s_lshl_b32 s{s_wo}, s{s_kt}, 5")
        a(f"s_add_u32 s{s_wo}, s{s_wo}, s{s_lw}")
        a(f"s_mul_i32 s{s_wo}, s{s_wo}, {16*1280}")
        a(f"s_mul_i32 s{s_t}, s{s_cb}, 320")
        a(f"s_add_u32 s{s_wo}, s{s_wo}, s{s_t}")
        s_m2 = S_T + 6
        a(f"s_mul_i32 s{s_m2}, s{s_lw}, 5120")

        def issue(c):
            base = (c % 4) * SLOT
            a(f"s_add_u32 s{s_t}, s{s_wo}, {c*64*1280}")
            for i in range(5):
                a(f"s_add_u32 m0, s{s_m2}, {base + 16384 + i*1024}")
                dma(a, wv[i], R_B, f"s{s_t}")
            for i in range(4):
                a(f"s_add_u32 m0, s{s_m}, {base + i*1024}")
                a(f"s_add_u32 s{s_t}, s{s_xo}, {c*16384 + i*1024}")
                dma(a, xv, R_WS, f"s{s_t}")

    for c in range(4):
        issue(c)
    if which == 1:
        sx = [vp.get() for _ in range(4)]; sq = [vp.get() for _ in range(4)]
        xd = [vp.get(4, 4) for _ in range(4)]
        one2 = vp.get(); la = vp.get()
        for i in range(4):
            a(f"v_mov_b32 {v(sx[i])}, 0"); a(f"v_mov_b32 {v(sq[i])}, 0")
        a(f"v_mov_b32 {v(one2)}, 0x3f803f80")
        a(f"v_lshlrev_b32 {v(la)}, 4, v0")
        a(f"v_add_u32 {v(la)}, s{s_m}, {v(la)}")
        la2 = vp.get()
        a(f"v_add_u32 {v(la2)}, {2*SLOT}, {v(la)}")
    last = 3
    for c in range(NCH):
        a(f"s_waitcnt vmcnt({ND*(last-c)})")
        a("s_barrier")
        if c >= 1 and c + 3 < NCH:
            issue(c + 3); last = c + 3
        if which == 1:
            sl = c % 4
            for i in range(4):
                a(f"ds_read_b128 {v(xd[i],4)}, {v(la if sl < 2 else la2)} offset:{(sl&1)*SLOT + i*1024}")
            for i in range(4):
                a(f"s_waitcnt lgkmcnt({3-i})")
                for r in range(4):
                    a(f"v_dot2c_f32_bf16 {v(sx[i])}, {v(xd[i]+r)}, {v(one2)}")
                    a(f"v_dot2c_f32_bf16 {v(sq[i])}, {v(xd[i]+r)}, {v(xd[i]+r)}")
    if which == 1:
        for r in sx + sq:
            a(f"v_add_f32_dpp {v(r)}, {v(r)}, {v(r)} quad_perm:[1,0,3,2] row_mask:0xf bank_mask:0xf")
        for r in sx + sq:
            a(f"v_add_f32_dpp {v(r)}, {v(r)}, {v(r)} quad_perm:[2,3,0,1] row_mask:0xf bank_mask:0xf")
        for r in sx + sq:
            a(f"v_add_f32_dpp {v(r)}, {v(r)}, {v(r)} row_half_mirror row_mask:0xf bank_mask:0xf")
        a(f"v_and_b32 {v(t0)}, 3, v0")
        for i in range(1, 4):
            a(f"v_cmp_eq_u32 vcc, {i}, {v(t0)}")
            a(f"v_cndmask_b32 {v(sx[0])}, {v(sx[0])}, {v(sx[i])}, vcc")
            a(f"v_cndmask_b32 {v(sq[0])}, {v(sq[0])}, {v(sq[i])}, vcc")
        mean, var, m, den, m2, den2 = sx[0], sq[0], sx[1], sx[2], sx[3], sq[1]
        e0, e1 = xd[0], xd[0] + 1
        a(f"v_mul_f32 {v(mean)}, {hex(f2u(1/640))}, {v(mean)}")
        a(f"v_mul_f32 {v(var)}, {hex(f2u(1/640))}, {v(var)}")
        a(f"v_fma_f32 {v(var)}, -{v(mean)}, {v(mean)}, {v(var)}")
        a(f"v_max_f32 {v(var)}, 0, {v(var)}")
        bf16r(a, m, mean)
        bf16r(a, den, var)
        a(f"v_add_f32 {v(den)}, {hex(f2u(1e-5))}, {v(den)}")
        bf16r(a, den, den)
        a(f"v_sqrt_f32 {v(den)}, {v(den)}")
        bf16r(a, den, den)
        a(f"v_rcp_f32 {v(t1)}, {v(den)}")
        a(f"v_sub_f32 {v(m2)}, {v(mean)}, {v(m)}")
        a(f"v_mul_f32 {v(m2)}, {v(m2)}, {v(t1)}")
        bf16r(a, m2, m2)
        a(f"v_mul_f32 {v(den2)}, {v(var)}, {v(t1)}")
        a(f"v_mul_f32 {v(den2)}, {v(den2)}, {v(t1)}")
        bf16r(a, den2, den2)
        a(f"v_add_f32 {v(den2)}, {hex(f2u(1e-5))}, {v(den2)}")
        bf16r(a, den2, den2)
        a(f"v_sqrt_f32 {v(den2)}, {v(den2)}")
        bf16r(a, den2, den2)
        a(f"v_rcp_f32 {v(den2)}, {v(den2)}")
        a(f"v_mul_f32 {v(e0)}, {v(t1)}, {v(den2)}")
        a(f"v_fma_f32 {v(m)}, {v(m2)}, {v(den)}, {v(m)}")
        a(f"v_mul_f32 {v(e1)}, {v(e0)}, {v(m)}")
        a(f"v_sub_f32 {v(e1)}, 0, {v(e1)}")
        a(f"v_lshrrev_b32 {v(t1)}, 3, v0")
        a(f"v_lshl_add_u32 {v(t1)}, {v(t0)}, 3, {v(t1)}")
        a(f"s_lshl_b32 s{s_t}, s{s_lw}, 8")
        a(f"s_add_u32 s{s_t}, s{s_t}, {LDS_X}")
        a(f"v_lshlrev_b32 {v(t1)}, 3, {v(t1)}")
        a(f"v_add_u32 {v(t1)}, s{s_t}, {v(t1)}")
        a(f"ds_write_b64 {v(t1)}, {v(e0,2)}")
        a("s_waitcnt lgkmcnt(0)")
        a("s_barrier")
    a(f"s_branch {end_label}")


def twiddle(a, re, im, c_, s_, tmp):
    out = []
    for h in range(2):
        out.append(f"v_pk_mul_f32 {v(tmp,2)}, {v(im+2*h,2)}, {v(s_+2*h,2)}")
        out.append(f"v_pk_mul_f32 {v(tmp+2,2)}, {v(re+2*h,2)}, {v(s_+2*h,2)}")
        out.append(f"v_pk_fma_f32 {v(re+2*h,2)}, {v(re+2*h,2)}, {v(c_+2*h,2)}, {v(tmp,2)}")
        out.append(f"v_pk_fma_f32 {v(im+2*h,2)}, {v(im+2*h,2)}, {v(c_+2*h,2)}, {v(tmp+2,2)} neg_lo:[0,0,1] neg_hi:[0,0,1]")
    for x in out:
        a(x)


def copy_out(a, lds_v, g_v, regs, pitch2, s_base, step, s_t):
    for ii in range(8):
        a(f"ds_read_b128 {v(regs[ii],4)}, {v(lds_v)} offset:{ii*pitch2}")
    a("s_mov_b32 exec_lo, 0x3fffff")
    a("s_mov_b32 exec_hi, 0x3fffff")
    for ii in range(8):
        a(f"s_add_u32 s{s_t}, s{s_base}, {ii*step}")
        a(f"s_waitcnt lgkmcnt({7-ii})")
        a(f"buffer_store_dwordx4 {v(regs[ii],4)}, {v(g_v)}, {s(R_WS,4)}, s{s_t} offen")
    a("s_mov_b64 exec, -1")


def f1(a, s_n, end_label):
    L_TAB, L_XN, L_ZX, L_ST = 0, 16384, 57344, 0
    SP = 368
    srd(a, R_A, P_X, 2621440)
    vp = Pool("v", 1, 256)
    i16, g, t0, t1, t2 = [vp.get() for _ in range(5)]
    s_t = S_T
    a(f"v_and_b32 {v(i16)}, 15, v0")
    a(f"v_lshrrev_b32 {v(g)}, 4, v0")
    xr = vp.get(20, 4)
    a(f"v_mul_u32_u24 {v(t0)}, {64*1280}, {v(g)}")
    a(f"v_lshl_add_u32 {v(t0)}, {v(i16)}, 4, {v(t0)}")
    a(f"s_lshl_b32 s{s_t}, s{S_W}, 8")
    a(f"s_add_u32 s{s_t}, s{s_t}, s{s_n}")
    a(f"s_mul_i32 s{s_t}, s{s_t}, 1280")
    for i in range(5):
        a(f"buffer_load_dwordx4 {v(xr+4*i,4)}, {v(t0)}, {s(R_A,4)}, s{s_t} offen offset:{256*i}")
    l16 = vp.get()
    a(f"v_lshlrev_b32 {v(l16)}, 4, v0")
    a(f"s_lshl_b32 s{s_t}, s{S_W}, 11")
    for i in range(2):
        a(f"s_add_u32 m0, s{s_t}, {L_TAB + i*1024}")
        a(f"s_add_u32 s{s_t+1}, s{s_t}, {TAB_F1 + i*1024}")
        dma(a, l16, R_TAB, f"s{s_t+1}")
    mf = vp.get(8, 4)
    k1v = vp.get()
    a(f"s_and_b32 s{s_t}, s{S_W}, 1")
    a(f"s_lshl_b32 s{s_t}, s{s_t}, 4")
    a(f"v_add_u32 {v(k1v)}, s{s_t}, {v(i16)}")
    a(f"s_and_b32 s{s_t}, s{S_W}, 2")
    a(f"s_lshl_b32 s{s_t}, s{s_t}, 8")
    a(f"v_lshlrev_b32 {v(t0)}, 8, {v(g)}")
    a(f"v_add_u32 {v(t0)}, s{s_n}, {v(t0)}")
    a(f"v_mul_u32_u24 {v(t0)}, {v(t0)}, {v(k1v)}")
    a(f"v_add_u32 {v(t0)}, s{s_t}, {v(t0)}")
    a(f"v_lshlrev_b32 {v(k1v)}, 6, {v(k1v)}")
    for ks in range(2):
        for jj in range(4):
            a(f"v_mad_u32_u24 {v(t1)}, {v(k1v)}, {16*ks+jj}, {v(t0)}")
            a(f"v_and_b32 {v(t1)}, 2047, {v(t1)}")
            a(f"v_cvt_f32_u32 {v(t1)}, {v(t1)}")
            a(f"v_mul_f32 {v(t1)}, {hex(f2u(1/2048))}, {v(t1)}")
            a(f"v_cos_f32 {v(t2)}, {v(t1)}")
            a(f"v_sin_f32 {v(t1)}, {v(t1)}")
            a(f"v_cvt_pk_bf16_f32 {v(mf+4*ks+jj)}, {v(t2)}, {v(t1)}")
    a(f"v_mov_b32 {v(t1)}, 0")
    a(f"v_and_b32 {v(t0)}, 31, v0")
    a(f"v_lshlrev_b32 {v(t0)}, 2, {v(t0)}")
    a(f"v_add_u32 {v(t0)}, {L_ZX + 321*128}, {v(t0)}")
    a(f"ds_write_b32 {v(t0)}, {v(t1)}")
    za = [vp.get() for _ in range(8)]
    a(f"v_mul_u32_u24 {v(t0)}, 80, {v(g)}")
    a(f"v_add_u32 {v(t0)}, {v(t0)}, {v(i16)}")
    for u in range(2):
        for r in range(4):
            z = za[4*u+r]
            if u == 0:
                a(f"v_add_u32 {v(t1)}, {20*r}, {v(t0)}")
            else:
                a(f"v_sub_u32 {v(t1)}, {320-20*r}, {v(t0)}")
            a(f"v_and_b32 {v(t2)}, 7, {v(t1)}")
            a(f"v_xor_b32 {v(t2)}, s{S_W}, {v(t2)}")
            a(f"v_lshlrev_b32 {v(t2)}, 4, {v(t2)}")
            a(f"v_lshl_add_u32 {v(z)}, {v(t1)}, 7, {v(t2)}")
            a(f"v_add_u32 {v(z)}, {L_ZX}, {v(z)}")
    xw, ta0, ta1 = vp.get(), vp.get(), vp.get()
    a(f"s_mul_i32 s{s_t}, s{S_W}, {4*1280}")
    a(f"s_add_u32 s{s_t}, s{s_t}, {L_XN}")
    a(f"v_mul_u32_u24 {v(xw)}, 1280, {v(g)}")
    a(f"v_lshl_add_u32 {v(xw)}, {v(i16)}, 4, {v(xw)}")
    a(f"v_add_u32 {v(xw)}, s{s_t}, {v(xw)}")
    a(f"v_and_b32 {v(t0)}, 3, v0")
    a(f"v_lshlrev_b32 {v(t0)}, 3, {v(t0)}")
    a(f"v_add_u32 {v(t0)}, s{s_t}, {v(t0)}")
    a(f"v_lshrrev_b32 {v(t1)}, 2, v0")
    a(f"v_lshl_add_u32 {v(ta0)}, {v(t1)}, 6, {v(t0)}")
    a(f"v_and_b32 {v(t1)}, 3, {v(t1)}")
    a(f"v_lshl_add_u32 {v(ta1)}, {v(t1)}, 6, {v(t0)}")
    a(f"v_add_u32 {v(ta1)}, 1024, {v(ta1)}")
    mk = vp.mark()
    f = vp.get(40, 2)
    ac = vp.get(4, 2); mm_ = vp.get(2, 2); rr = vp.get(2, 2); mean = vp.get()
    a("s_waitcnt vmcnt(2)")
    for i in range(20):
        a(f"v_lshlrev_b32 {v(f+2*i)}, 16, {v(xr+i)}")
        a(f"v_and_b32 {v(f+2*i+1)}, 0xffff0000, {v(xr+i)}")
    a(f"v_pk_add_f32 {v(ac,2)}, {v(f,2)}, {v(f+2,2)}")
    a(f"v_pk_add_f32 {v(ac+2,2)}, {v(f+4,2)}, {v(f+6,2)}")
    for i in range(4, 20):
        a(f"v_pk_add_f32 {v(ac+2*(i&1),2)}, {v(ac+2*(i&1),2)}, {v(f+2*i,2)}")

    def red16(dst):
        a(f"v_pk_add_f32 {v(ac,2)}, {v(ac,2)}, {v(ac+2,2)}")
        a(f"v_add_f32 {v(dst)}, {v(ac)}, {v(ac+1)}")
        for sh in (8, 4, 2, 1):
            a(f"v_add_f32_dpp {v(dst)}, {v(dst)}, {v(dst)} row_ror:{sh} row_mask:0xf bank_mask:0xf")
    red16(mean)
    a(f"v_mul_f32 {v(mean)}, {hex(f2u(1/640))}, {v(mean)}")
    bf16r(a, mm_, mean)
    for i in range(20):
        a(f"v_pk_add_f32 {v(f+2*i,2)}, {v(f+2*i,2)}, {v(mm_,2)} op_sel_hi:[1,0] neg_lo:[0,1] neg_hi:[0,1]")
    a(f"v_pk_mul_f32 {v(ac,2)}, {v(f,2)}, {v(f,2)}")
    a(f"v_pk_mul_f32 {v(ac+2,2)}, {v(f+2,2)}, {v(f+2,2)}")
    for i in range(2, 20):
        a(f"v_pk_fma_f32 {v(ac+2*(i&1),2)}, {v(f+2*i,2)}, {v(f+2*i,2)}, {v(ac+2*(i&1),2)}")
    for i in range(20):
        a(f"v_cvt_pk_bf16_f32 {v(xr+i)}, {v(f+2*i)}, {v(f+2*i+1)}")
    red16(rr)
    a(f"v_sub_f32 {v(mean)}, {v(mean)}, {v(mm_)}")
    a(f"v_mul_f32 {v(rr)}, {hex(f2u(1/640))}, {v(rr)}")
    a(f"v_fma_f32 {v(rr)}, -{v(mean)}, {v(mean)}, {v(rr)}")
    a(f"v_max_f32 {v(rr)}, 0, {v(rr)}")
    bf16r(a, rr, rr)
    a(f"v_add_f32 {v(rr)}, {hex(f2u(1e-5))}, {v(rr)}")
    bf16r(a, rr, rr)
    a(f"v_sqrt_f32 {v(rr)}, {v(rr)}")
    bf16r(a, rr, rr)
    a(f"v_rcp_f32 {v(rr)}, {v(rr)}")
    for i in range(20):
        a(f"v_lshlrev_b32 {v(f+2*i)}, 16, {v(xr+i)}")
        a(f"v_and_b32 {v(f+2*i+1)}, 0xffff0000, {v(xr+i)}")
    for i in range(20):
        a(f"v_pk_mul_f32 {v(f+2*i,2)}, {v(f+2*i,2)}, {v(rr,2)} op_sel_hi:[1,0]")
    for i in range(20):
        a(f"v_cvt_pk_bf16_f32 {v(xr+i)}, {v(f+2*i)}, {v(f+2*i+1)}")
    for i in range(5):
        a(f"ds_write_b128 {v(xw)}, {v(xr+4*i,4)} offset:{256*i}")
    vp.reset(mk)
    tb = vp.get(56, 4)
    F20 = [tb, tb + 4]; F32 = [tb + 8 + 4*i for i in range(8)]; TW = [tb + 40 + 4*i for i in range(4)]
    a("s_waitcnt vmcnt(0) lgkmcnt(0)")
    a("s_barrier")
    af = [[vp.get(4, 4) for t in range(2)] for row in range(4)]
    d = [[[vp.get(4, 4) for pl in range(2)] for t in range(2)] for row in range(4)]
    zo = [vp.get(4, 4) for _ in range(8)]
    tmp = [vp.get(4, 4) for _ in range(2)]
    for i in range(2):
        a(f"ds_read_b128 {v(tb+4*i,4)}, {v(l16)} offset:{L_TAB+1024*i}")
    for row in range(4):
        for t in range(2):
            a(f"ds_read_b64_tr_b16 {v(af[row][t],2)}, {v(ta0)} offset:{row*1280+t*32}")
            a(f"ds_read_b64_tr_b16 {v(af[row][t]+2,2)}, {v(ta1)} offset:{row*1280+t*32}")
        if row == 2:
            a("s_waitcnt lgkmcnt(8)")
    a("s_waitcnt lgkmcnt(0)")
    for i in list(range(10, 14)) + list(range(2, 10)):
        a(f"ds_read_b128 {v(tb+4*i,4)}, {v(l16)} offset:{L_TAB+1024*i}")
    for row in range(4):
        for t in range(2):
            for pl in range(2):
                mfma(a, d[row][t][pl], af[row][t], F20[pl], "0")
    a("s_waitcnt lgkmcnt(8)")
    for row in range(4):
        for t in range(2):
            twiddle(a, d[row][t][0], d[row][t][1], TW[2*t], TW[2*t+1], tmp[t])
        for pl in range(2):
            for t in range(2):
                for h in range(2):
                    a(f"v_cvt_pk_bf16_f32 {v(af[row][pl]+2*t+h)}, {v(d[row][t][pl]+2*h)}, {v(d[row][t][pl]+2*h+1)}")
        if row == 0:
            a("s_waitcnt lgkmcnt(0)")
        for u in range(2):
            for op in range(2):
                mfma(a, d[row][u][op], F32[4*u+2*op], af[row][0], "0")
        for u in range(2):
            for op in range(2):
                mfma(a, d[row][u][op], F32[4*u+2*op+1], af[row][1])
    for row in range(4):
        for u in range(2):
            for r in range(4):
                a(f"v_cvt_pk_bf16_f32 {v(zo[4*u+r]+row)}, {v(d[row][u][0]+r)}, {v(d[row][u][1]+r)}")
    for i in range(8):
        a(f"ds_write_b128 {v(za[i])}, {v(zo[i],4)}")
    vp.reset(mk)
    ca = [vp.get() for _ in range(4)]
    s_hf = S_T + 2
    a(f"s_lshr_b32 s{s_hf}, s{S_W}, 2")
    a(f"v_and_b32 {v(t0)}, 7, v0")
    a(f"v_xor_b32 {v(t0)}, {v(t0)}, {v(g)}")
    a(f"v_lshlrev_b32 {v(t0)}, 4, {v(t0)}")
    a(f"v_lshl_add_u32 {v(t0)}, {v(i16)}, 7, {v(t0)}")
    a(f"s_mul_i32 s{s_t}, s{s_hf}, {11*2048}")
    a(f"s_add_u32 s{s_t}, s{s_t}, {L_ZX}")
    a(f"v_add_u32 {v(ca[0])}, s{s_t}, {v(t0)}")
    a(f"v_xor_b32 {v(ca[1])}, 64, {v(ca[0])}")
    a(f"v_lshlrev_b32 {v(t0)}, 4, {v(g)}")
    a(f"v_add_u32 {v(t0)}, {L_ZX + 320*128}, {v(t0)}")
    a(f"v_add_u32 {v(t1)}, 128, {v(t0)}")
    a(f"v_cmp_eq_u32 vcc, 7, {v(i16)}")
    a(f"v_cndmask_b32 {v(t0)}, {v(t1)}, {v(t0)}, vcc")
    a(f"v_add_u32 {v(t1)}, {9*2048}, {v(ca[0])}")
    a(f"s_cmp_eq_u32 s{s_hf}, 1")
    a(f"s_cselect_b64 vcc, -1, 0")
    a(f"v_cndmask_b32 {v(ca[2])}, {v(t1)}, {v(t0)}, vcc")
    a(f"v_xor_b32 {v(ca[3])}, 64, {v(ca[2])}")
    sw, sr, gv = vp.get(), vp.get(), vp.get()
    a(f"s_mul_i32 s{s_t}, s{S_W}, {16*SP}")
    a(f"v_mul_u32_u24 {v(sw)}, {SP}, {v(i16)}")
    a(f"v_lshl_add_u32 {v(sw)}, {v(g)}, 3, {v(sw)}")
    a(f"v_add_u32 {v(sw)}, s{s_t}, {v(sw)}")
    a(f"v_lshrrev_b32 {v(t0)}, 5, v0")
    a(f"v_and_b32 {v(t1)}, 31, v0")
    a(f"v_lshlrev_b32 {v(t1)}, 4, {v(t1)}")
    a(f"v_mul_u32_u24 {v(sr)}, {SP}, {v(t0)}")
    a(f"v_add3_u32 {v(sr)}, {v(sr)}, {v(t1)}, s{s_t}")
    a(f"v_mul_u32_u24 {v(gv)}, 90112, {v(t0)}")
    a(f"v_add_u32 {v(gv)}, {v(gv)}, {v(t1)}")
    zf = [[vp.get(4, 4) for ks in range(2)] for i in range(11)]
    dd = [vp.get(4, 4) for i in range(11)]
    a("s_waitcnt lgkmcnt(0)")
    a("s_barrier")

    def crd(i):
        for ks in range(2):
            if i == 9:
                a(f"ds_read_b128 {v(zf[i][ks],4)}, {v(ca[2+ks])}")
            else:
                a(f"ds_read_b128 {v(zf[i][ks],4)}, {v(ca[ks])} offset:{i*2048}")
    for i in range(6):
        crd(i)
    for i in range(11):
        if i + 6 < 11:
            a("s_waitcnt lgkmcnt(10)")
        else:
            a(f"s_waitcnt lgkmcnt({2*(10-i)})")
        mfma(a, dd[i], zf[i][0], mf, "0")
        mfma(a, dd[i], zf[i][1], mf + 4)
        if i + 6 < 11:
            crd(i + 6)
    for i in range(11):
        a(f"v_cvt_pk_bf16_f32 {v(dd[i])}, {v(dd[i])}, {v(dd[i]+1)}")
        a(f"v_cvt_pk_bf16_f32 {v(dd[i]+1)}, {v(dd[i]+2)}, {v(dd[i]+3)}")
        a(f"ds_write_b64 {v(sw)}, {v(dd[i],2)} offset:{L_ST + i*32}")
    s_b = S_T + 3
    a(f"s_and_b32 s{s_b}, s{S_W}, 1")
    a(f"s_lshl_b32 s{s_b}, s{s_b}, 12")
    a(f"s_lshl_b32 s{s_t}, s{s_hf}, 7")
    a(f"s_add_u32 s{s_b}, s{s_b}, s{s_t}")
    a(f"s_and_b32 s{s_t}, s{S_W}, 2")
    a(f"s_lshl_b32 s{s_t}, s{s_t}, 5")
    a(f"s_add_u32 s{s_b}, s{s_b}, s{s_t}")
    a(f"s_add_u32 s{s_b}, s{s_b}, s{s_n}")
    a(f"s_mul_i32 s{s_b}, s{s_b}, 352")
    a(f"s_add_u32 s{s_b}, s{s_b}, {WS_ZP}")
    a("s_waitcnt lgkmcnt(0)")
    copy_out(a, sr, gv, [zf[i][0] for i in range(8)], 2*SP, s_b, 180224, s_t)
    a(f"s_branch {end_label}")


def f2(a, s_idx, end_label):
    L_ZB, L_WR, L_WI, L_TAB = 0, 45056, 67584, 90112
    srd(a, R_A, P_WR, 1314816); srd(a, R_B, P_WI, 1314816)
    vp = Pool("v", 1, 256)
    i16, g, t0, t1, t2, l16 = [vp.get() for _ in range(6)]
    s_t, s_k1, s_hf, s_b, s_i = S_T, S_T + 2, S_T + 3, S_T + 4, S_T + 5
    a(f"s_lshr_b32 s{s_k1}, s{s_idx}, 1")
    a(f"s_and_b32 s{s_hf}, s{s_idx}, 1")
    a(f"v_and_b32 {v(i16)}, 15, v0")
    a(f"v_lshrrev_b32 {v(g)}, 4, v0")
    a(f"v_lshlrev_b32 {v(l16)}, 4, v0")
    a(f"s_mul_i32 s{s_b}, s{s_idx}, 45056")
    a(f"s_lshl_b32 s{s_i}, s{S_W}, 10")
    a(f"s_add_u32 s{s_b}, s{s_b}, s{s_i}")
    for i in range(5):
        a(f"s_add_u32 m0, s{s_i}, {L_ZB + i*8192}")
        a(f"s_add_u32 s{s_t}, s{s_b}, {WS_ZP + i*8192}")
        dma(a, l16, R_WS, f"s{s_t}")
    for i in range(3):
        a(f"s_add_u32 m0, s{s_i}, {L_TAB + i*8192}")
        a(f"s_add_u32 s{s_t}, s{s_i}, {TAB_F2 + i*8192}")
        dma(a, l16, R_TAB, f"s{s_t}")
    l1 = a.newlabel("L_f2a")
    a(f"s_cmp_ge_u32 s{S_W}, 4")
    a(f"s_cbranch_scc1 {l1}")
    a(f"s_add_u32 m0, s{s_i}, {L_ZB + 5*8192}")
    a(f"s_add_u32 s{s_t}, s{s_b}, {WS_ZP + 5*8192}")
    dma(a, l16, R_WS, f"s{s_t}")
    a.label(l1)
    wv = vp.get()
    a(f"s_mul_i32 s{s_b}, s{s_k1}, 642")
    a(f"s_mul_i32 s{s_t+1}, s{s_hf}, 176")
    l2 = a.newlabel("L_f2b")
    for i in range(3):
        if i == 2:
            a(f"s_cmp_ge_u32 s{S_W}, 6")
            a(f"s_cbranch_scc1 {l2}")
        a(f"s_lshl_b32 s{s_t}, s{S_W}, 6")
        a(f"s_add_u32 s{s_t}, s{s_t}, {512*i}")
        a(f"v_add_u32 {v(t2)}, s{s_t}, v0")
        divmod_const(a, t0, t1, t2, 22)
        a(f"v_lshlrev_b32 {v(t1)}, 3, {v(t1)}")
        a(f"v_add_u32 {v(t1)}, s{s_t+1}, {v(t1)}")
        a(f"v_min_u32 {v(t1)}, 313, {v(t1)}")
        a(f"v_mul_u32_u24 {v(wv)}, {32*642}, {v(t0)}")
        a(f"v_lshl_add_u32 {v(wv)}, {v(t1)}, 1, {v(wv)}")
        a(f"s_add_u32 m0, s{s_i}, {L_WR + i*8192}")
        dma(a, wv, R_A, f"s{s_b}")
        a(f"s_add_u32 m0, s{s_i}, {L_WI + i*8192}")
        dma(a, wv, R_B, f"s{s_b}")
    a.label(l2)
    ra, rw, wa = vp.get(), vp.get(), vp.get()
    a(f"v_lshrrev_b32 {v(t0)}, 2, v0")
    a(f"v_mul_u32_u24 {v(ra)}, 352, {v(t0)}")
    a(f"v_and_b32 {v(t0)}, 3, v0")
    a(f"v_lshl_add_u32 {v(ra)}, {v(t0)}, 3, {v(ra)}")
    a(f"s_lshl_b32 s{s_t}, s{S_W}, 5")
    a(f"v_add_u32 {v(ra)}, s{s_t}, {v(ra)}")
    a(f"v_add_u32 {v(rw)}, {L_WR}, {v(ra)}")
    a(f"v_mul_u32_u24 {v(wa)}, 352, {v(i16)}")
    a(f"v_lshl_add_u32 {v(wa)}, {v(g)}, 3, {v(wa)}")
    a(f"v_add_u32 {v(wa)}, s{s_t}, {v(wa)}")
    tadr = vp.get()
    a(f"v_add_u32 {v(tadr)}, {L_TAB}, {v(l16)}")
    tb = vp.get(96, 4)
    C = [[tb + 8*t + 4*ks for ks in range(2)] for t in range(4)]
    Sm = [[tb + 32 + 8*t + 4*ks for ks in range(2)] for t in range(4)]
    NS = [[tb + 64 + 8*t + 4*ks for ks in range(2)] for t in range(4)]
    z = [[vp.get(4, 4) for ks in range(2)] for pl in range(2)]
    X = [[vp.get(4, 4) for t in range(4)] for pl in range(2)]
    wq = [[vp.get(2, 2) for t in range(4)] for pl in range(2)]
    wu = [vp.get(4, 4) for _ in range(4)]
    tmp = vp.get(4, 4)
    a("s_waitcnt vmcnt(0)")
    a("s_barrier")
    for i in range(24):
        a(f"ds_read_b128 {v(tb+4*i,4)}, {v(tadr)} offset:{1024*i}")
        if i == 11:
            a("s_waitcnt lgkmcnt(0)")
    a(f"s_mov_b32 s{s_i}, s{S_W}")
    a(f"s_sub_u32 s{s_b}, 11, s{s_hf}")
    l_loop = a.newlabel("L_f2l")
    a.label(l_loop)
    a("s_waitcnt lgkmcnt(0)")
    for pl in range(2):
        for ks in range(2):
            for h in range(2):
                a(f"ds_read_b64_tr_b16 {v(z[pl][ks]+2*h,2)}, {v(ra)} offset:{(pl*64+32*ks+16*h)*352}")
    a("s_waitcnt lgkmcnt(0)")
    for pl in range(2):
        for t in range(4):
            a(f"ds_read_b64_tr_b16 {v(wq[pl][t],2)}, {v(rw)} offset:{pl*22528+16*t*352}")
    for t in range(4):
        mfma(a, X[0][t], C[t][0], z[0][0], "0")
        mfma(a, X[1][t], C[t][0], z[1][0], "0")
        mfma(a, X[0][t], C[t][1], z[0][1])
        mfma(a, X[1][t], C[t][1], z[1][1])
        mfma(a, X[0][t], Sm[t][0], z[1][0])
        mfma(a, X[1][t], NS[t][0], z[0][0])
        mfma(a, X[0][t], Sm[t][1], z[1][1])
        mfma(a, X[1][t], NS[t][1], z[0][1])
    a("s_waitcnt lgkmcnt(0)")
    for t in range(4):
        wr_, wi_ = wu[2*(t&1)], wu[2*(t&1)+1]
        for pl, dst in ((0, wr_), (1, wi_)):
            for h in range(2):
                a(f"v_lshlrev_b32 {v(dst+2*h)}, 16, {v(wq[pl][t]+h)}")
                a(f"v_and_b32 {v(dst+2*h+1)}, 0xffff0000, {v(wq[pl][t]+h)}")
        re, im = X[0][t], X[1][t]
        for h in range(2):
            a(f"v_pk_mul_f32 {v(tmp,2)}, {v(im+2*h,2)}, {v(wi_+2*h,2)}")
            a(f"v_pk_mul_f32 {v(tmp+2,2)}, {v(re+2*h,2)}, {v(wi_+2*h,2)}")
            a(f"v_pk_fma_f32 {v(re+2*h,2)}, {v(re+2*h,2)}, {v(wr_+2*h,2)}, {v(tmp,2)} neg_lo:[0,0,1] neg_hi:[0,0,1]")
            a(f"v_pk_fma_f32 {v(im+2*h,2)}, {v(im+2*h,2)}, {v(wr_+2*h,2)}, {v(tmp+2,2)}")
        for pl in range(2):
            for h in range(2):
                a(f"v_cvt_pk_bf16_f32 {v(z[pl][t>>1]+2*(t&1)+h)}, {v(X[pl][t]+2*h)}, {v(X[pl][t]+2*h+1)}")
    for t in range(4):
        mfma(a, X[0][t], z[0][0], C[t][0], "0")
        mfma(a, X[1][t], z[1][0], C[t][0], "0")
        mfma(a, X[0][t], z[0][1], C[t][1])
        mfma(a, X[1][t], z[1][1], C[t][1])
        mfma(a, X[0][t], z[1][0], NS[t][0])
        mfma(a, X[1][t], z[0][0], Sm[t][0])
        mfma(a, X[0][t], z[1][1], NS[t][1])
        mfma(a, X[1][t], z[0][1], Sm[t][1])
    for t in range(4):
        for pl in range(2):
            r = X[pl][t]
            a(f"v_cvt_pk_bf16_f32 {v(r)}, {v(r)}, {v(r+1)}")
            a(f"v_cvt_pk_bf16_f32 {v(r+1)}, {v(r+2)}, {v(r+3)}")
            a(f"ds_write_b64 {v(wa)}, {v(r,2)} offset:{(pl*64+16*t)*352}")
    for r in (ra, rw, wa):
        a(f"v_add_u32 {v(r)}, 256, {v(r)}")
    a(f"s_add_u32 s{s_i}, s{s_i}, 8")
    a(f"s_cmp_lt_u32 s{s_i}, s{s_b}")
    a(f"s_cbranch_scc1 {l_loop}")
    sr, gv = ra, rw
    a(f"v_lshrrev_b32 {v(t0)}, 5, v0")
    a(f"v_and_b32 {v(t1)}, 31, v0")
    a(f"v_lshlrev_b32 {v(t1)}, 4, {v(t1)}")
    a(f"s_mul_i32 s{s_t}, s{S_W}, {16*352}")
    a(f"v_mul_u32_u24 {v(sr)}, 352, {v(t0)}")
    a(f"v_add3_u32 {v(sr)}, {v(sr)}, {v(t1)}, s{s_t}")
    a(f"v_mul_u32_u24 {v(gv)}, 45056, {v(t0)}")
    a(f"v_add_u32 {v(gv)}, {v(gv)}, {v(t1)}")
    a(f"s_and_b32 s{s_b}, s{S_W}, 3")
    a(f"s_lshl_b32 s{s_b}, s{s_b}, 11")
    a(f"s_lshl_b32 s{s_t}, s{s_hf}, 6")
    a(f"s_add_u32 s{s_b}, s{s_b}, s{s_t}")
    a(f"s_and_b32 s{s_t}, s{S_W}, 4")
    a(f"s_lshl_b32 s{s_t}, s{s_t}, 3")
    a(f"s_add_u32 s{s_b}, s{s_b}, s{s_t}")
    a(f"s_add_u32 s{s_b}, s{s_b}, s{s_k1}")
    a(f"s_mul_i32 s{s_b}, s{s_b}, 352")
    a(f"s_add_u32 s{s_b}, s{s_b}, {WS_VP}")
    a("s_waitcnt lgkmcnt(0)")
    a("s_barrier")
    copy_out(a, sr, gv, [tb + 4*i for i in range(8)], 2*352, s_b, 90112, s_t)
    a(f"s_branch {end_label}")


def f3(a, s_n, s_qt, end_label):
    L_VB, L_TAB, L_UX, L_SX = 0, 45056, 61440, 61440 + 8*1376
    UP = 1376
    srd(a, R_A, P_X, 2621440); srd(a, R_B, P_B2, 1280); srd(a, R_C, P_OUT, 2621440)
    vp = Pool("v", 1, 256)
    i16, g, t0, t1, t2, l16 = [vp.get() for _ in range(6)]
    s_t, s_b, s_i, s_row, s_p = S_T, S_T + 2, S_T + 3, S_T + 4, S_T + 5
    a(f"v_and_b32 {v(i16)}, 15, v0")
    a(f"v_lshrrev_b32 {v(g)}, 4, v0")
    a(f"v_lshlrev_b32 {v(l16)}, 4, v0")
    a(f"s_mul_i32 s{s_b}, s{s_n}, 45056")
    a(f"s_lshl_b32 s{s_i}, s{S_W}, 10")
    a(f"s_add_u32 s{s_b}, s{s_b}, s{s_i}")
    for i in range(5):
        a(f"s_add_u32 m0, s{s_i}, {L_VB + i*8192}")
        a(f"s_add_u32 s{s_t}, s{s_b}, {WS_VP + i*8192}")
        dma(a, l16, R_WS, f"s{s_t}")
    for i in range(2):
        a(f"s_add_u32 m0, s{s_i}, {L_TAB + i*8192}")
        a(f"s_add_u32 s{s_t}, s{s_i}, {TAB_F3 + i*8192}")
        dma(a, l16, R_TAB, f"s{s_t}")
    l1 = a.newlabel("L_f3a")
    a(f"s_cmp_ge_u32 s{S_W}, 4")
    a(f"s_cbranch_scc1 {l1}")
    a(f"s_add_u32 m0, s{s_i}, {L_VB + 5*8192}")
    a(f"s_add_u32 s{s_t}, s{s_b}, {WS_VP + 5*8192}")
    dma(a, l16, R_WS, f"s{s_t}")
    a.label(l1)
    a(f"s_lshl_b32 s{s_t}, s{s_qt}, 3")
    a(f"s_add_u32 s{s_t}, s{s_t}, s{S_W}")
    a(f"s_lshl_b32 s{s_row}, s{s_t}, 6")
    a(f"s_add_u32 s{s_row}, s{s_row}, s{s_n}")
    a(f"s_mul_i32 s{s_row}, s{s_row}, 1280")
    a(f"s_lshl_b32 s{s_p}, s{s_n}, 5")
    a(f"s_add_u32 s{s_p}, s{s_p}, s{s_t}")
    a(f"s_mul_i32 s{s_p}, s{s_p}, 160")
    a(f"s_add_u32 s{s_p}, s{s_p}, {WS_P}")
    l4, pa, pb = vp.get(), vp.get(), vp.get()
    a(f"v_lshlrev_b32 {v(l4)}, 2, v0")
    divmod_const(a, t0, t1, 0, 10)
    a(f"v_mul_u32_u24 {v(pa)}, {2048*160}, {v(t0)}")
    a(f"v_lshl_add_u32 {v(pa)}, {v(t1)}, 4, {v(pa)}")
    a(f"v_add_u32 {v(t2)}, 256, v0")
    divmod_const(a, t0, t1, t2, 40)
    a(f"v_mul_u32_u24 {v(pb)}, {2048*160}, {v(t0)}")
    a(f"v_lshl_add_u32 {v(pb)}, {v(t1)}, 2, {v(pb)}")
    PA = [vp.get(4, 4) for _ in range(5)]
    PB = [vp.get() for _ in range(5)]
    for k in range(3):
        if k:
            a(f"s_add_u32 s{s_p}, s{s_p}, 2621440")
        a(f"buffer_load_dwordx4 {v(PA[k],4)}, {v(pa)}, {s(R_WS,4)}, s{s_p} offen")
        a(f"buffer_load_dword {v(PB[k])}, {v(pb)}, {s(R_WS,4)}, s{s_p} offen")
    a(f"buffer_load_dwordx4 {v(PA[3],4)}, {v(l16)}, {s(R_B,4)}, 0 offen")
    a(f"buffer_load_dword {v(PB[3])}, {v(l4)}, {s(R_B,4)}, 0 offen offset:1024")
    a(f"buffer_load_dwordx4 {v(PA[4],4)}, {v(l16)}, {s(R_A,4)}, s{s_row} offen")
    a(f"buffer_load_dword {v(PB[4])}, {v(l4)}, {s(R_A,4)}, s{s_row} offen offset:1024")
    gf = vp.get(8, 4)
    sv, ph = vp.get(), vp.get()
    a(f"v_lshrrev_b32 {v(t0)}, 1, {v(i16)}")
    a(f"s_lshl_b32 s{s_t}, s{s_qt}, 9")
    a(f"s_add_u32 s{s_t}, s{s_t}, s{s_n}")
    a(f"v_lshlrev_b32 {v(sv)}, 6, {v(t0)}")
    a(f"v_add_u32 {v(sv)}, s{s_t}, {v(sv)}")
    a(f"v_lshlrev_b32 {v(t0)}, 2, {v(g)}")
    a(f"v_mul_u32_u24 {v(ph)}, {v(sv)}, {v(t0)}")
    a(f"v_and_b32 {v(t0)}, 1, v0")
    a(f"v_mul_u32_u24 {v(t0)}, 1536, {v(t0)}")
    a(f"v_add_u32 {v(ph)}, {v(ph)}, {v(t0)}")
    cs_ = [vp.get() for _ in range(4)]
    for e2 in range(4):
        for hh in range(2):
            e = 2 * e2 + hh
            ko = e if e < 4 else 16 + e - 4
            a(f"v_mad_u32_u24 {v(t1)}, {v(sv)}, {ko}, {v(ph)}")
            a(f"v_and_b32 {v(t1)}, 2047, {v(t1)}")
            a(f"v_cvt_f32_u32 {v(t1)}, {v(t1)}")
            a(f"v_mul_f32 {v(t1)}, {hex(f2u(1/2048))}, {v(t1)}")
            a(f"v_cos_f32 {v(cs_[hh])}, {v(t1)}")
            a(f"v_sin_f32 {v(cs_[2+hh])}, {v(t1)}")
        a(f"v_cvt_pk_bf16_f32 {v(gf+e2)}, {v(cs_[0])}, {v(cs_[1])}")
        a(f"v_cvt_pk_bf16_f32 {v(gf+4+e2)}, -{v(cs_[2])}, -{v(cs_[3])}")
    ra = [vp.get() for _ in range(3)]; ua = [vp.get() for _ in range(3)]
    a(f"v_lshrrev_b32 {v(t0)}, 2, v0")
    a(f"v_mul_u32_u24 {v(t0)}, 352, {v(t0)}")
    a(f"v_and_b32 {v(t1)}, 3, v0")
    a(f"v_lshl_add_u32 {v(t0)}, {v(t1)}, 3, {v(t0)}")
    a(f"v_mul_u32_u24 {v(t1)}, {2*UP}, {v(g)}")
    a(f"v_lshl_add_u32 {v(t1)}, {v(i16)}, 2, {v(t1)}")
    for k in range(3):
        a(f"s_add_u32 s{s_t}, s{S_W}, {8*k}")
        a(f"s_min_u32 s{s_t}, s{s_t}, 20")
        a(f"s_cmp_ge_u32 s{s_t}, 11")
        a(f"s_cselect_b32 s{s_t+1}, {22528-352}, 0")
        a(f"s_lshl_b32 s{s_b}, s{s_t}, 5")
        a(f"s_add_u32 s{s_t+1}, s{s_t+1}, s{s_b}")
        a(f"v_add_u32 {v(ra[k])}, s{s_t+1}, {v(t0)}")
        a(f"s_lshl_b32 s{s_b}, s{s_t}, 6")
        a(f"s_add_u32 s{s_b}, s{s_b}, {L_UX}")
        a(f"v_add_u32 {v(ua[k])}, s{s_b}, {v(t1)}")
    a(f"v_add_u32 {v(t0)}, 4, {v(ua[2])}")
    a(f"v_subrev_u32 {v(t1)}, 28, {v(ua[2])}")
    a(f"v_cmp_eq_u32 vcc, 7, {v(i16)}")
    a(f"v_cndmask_b32 {v(t0)}, {v(t0)}, {v(t1)}, vcc")
    a(f"s_cmp_ge_u32 s{S_W}, 4")
    a(f"s_cselect_b64 vcc, -1, 0")
    a(f"v_cndmask_b32 {v(ua[2])}, {v(ua[2])}, {v(t0)}, vcc")
    ub0, ub1, swr, srd0, srd1 = [vp.get() for _ in range(5)]
    a(f"s_mul_i32 s{s_t}, s{S_W}, {UP}")
    a(f"s_add_u32 s{s_t}, s{s_t}, {L_UX}")
    a(f"v_mul_u32_u24 {v(t0)}, 80, {v(g)}")
    a(f"v_add_u32 {v(t0)}, {v(t0)}, {v(i16)}")
    a(f"v_lshlrev_b32 {v(t0)}, 2, {v(t0)}")
    a(f"v_add_u32 {v(ub0)}, s{s_t}, {v(t0)}")
    a(f"s_add_u32 s{s_t}, s{s_t}, {260*4}")
    a(f"v_sub_u32 {v(ub1)}, s{s_t}, {v(t0)}")
    a(f"s_lshl_b32 s{s_t}, s{S_W}, 11")
    a(f"s_add_u32 s{s_t}, s{s_t}, {L_SX}")
    a(f"v_lshlrev_b32 {v(t0)}, 6, {v(i16)}")
    a(f"v_lshl_add_u32 {v(t0)}, {v(g)}, 3, {v(t0)}")
    a(f"v_add_u32 {v(swr)}, s{s_t}, {v(t0)}")
    a(f"v_add_u32 {v(srd0)}, s{s_t}, {v(l16)}")
    a(f"v_add_u32 {v(srd1)}, s{s_t}, {v(l4)}")
    tb = vp.get(56, 4)
    G32 = [tb + 4*i for i in range(8)]; G20 = [tb + 32, tb + 36]; TW = [tb + 40 + 4*i for i in range(4)]
    vf = [[vp.get(4, 4) for ks in range(2)] for k in range(3)]
    dd = [vp.get(4, 4) for k in range(4)]
    tmp = vp.get(4, 4)
    a("s_waitcnt vmcnt(10)")
    a("s_barrier")
    for k in range(3):
        for ks in range(2):
            for h in range(2):
                a(f"ds_read_b64_tr_b16 {v(vf[k][ks]+2*h,2)}, {v(ra[k])} offset:{(32*ks+16*h)*352}")
    for k in range(3):
        a(f"s_waitcnt lgkmcnt({8-4*k})")
        mfma(a, dd[k], gf, vf[k][0], "0")
        mfma(a, dd[k], gf + 4, vf[k][1])
    for i in range(14):
        a(f"ds_read_b128 {v(tb+4*i,4)}, {v(l16)} offset:{L_TAB+1024*i}")
    a("s_waitcnt lgkmcnt(6)")
    for k in range(3):
        a(f"v_cvt_pk_bf16_f32 {v(dd[k])}, {v(dd[k])}, {v(dd[k]+1)}")
        a(f"v_cvt_pk_bf16_f32 {v(dd[k]+1)}, {v(dd[k]+2)}, {v(dd[k]+3)}")
        a(f"ds_write_b32 {v(ua[k])}, {v(dd[k])}")
        a(f"ds_write_b32 {v(ua[k])}, {v(dd[k]+1)} offset:{UP}")
    a("s_waitcnt lgkmcnt(0)")
    a("s_barrier")
    uf = vf[0]
    a(f"ds_read2_b32 {v(uf[0],2)}, {v(ub0)} offset0:0 offset1:20")
    a(f"ds_read2_b32 {v(uf[0]+2,2)}, {v(ub0)} offset0:40 offset1:60")
    a(f"ds_read2_b32 {v(uf[1],2)}, {v(ub1)} offset0:60 offset1:40")
    a(f"ds_read2_b32 {v(uf[1]+2,2)}, {v(ub1)} offset0:20 offset1:0")
    o = vp.get(10, 2); w_ = vp.get(10, 2)
    a("s_waitcnt vmcnt(0)")

    def unpack(dst, A_, B_):
        for i in range(5):
            src = A_ + i if i < 4 else B_
            a(f"v_lshlrev_b32 {v(dst+2*i)}, 16, {v(src)}")
            a(f"v_and_b32 {v(dst+2*i+1)}, 0xffff0000, {v(src)}")
    a("s_waitcnt lgkmcnt(0)")
    for t in range(2):
        for op in range(2):
            mfma(a, dd[2*t+op], uf[0], G32[4*t+2*op], "0")
    for t in range(2):
        for op in range(2):
            mfma(a, dd[2*t+op], uf[1], G32[4*t+2*op+1])
    unpack(o, PA[0], PB[0])
    for k in range(1, 4):
        unpack(w_, PA[k], PB[k])
        for i in range(5):
            a(f"v_pk_add_f32 {v(o+2*i,2)}, {v(o+2*i,2)}, {v(w_+2*i,2)}")
    tf = vf[1]
    for t in range(2):
        twiddle(a, dd[2*t], dd[2*t+1], TW[2*t], TW[2*t+1], tmp)
        for pl in range(2):
            for h in range(2):
                a(f"v_cvt_pk_bf16_f32 {v(tf[t]+2*pl+h)}, {v(dd[2*t+pl]+2*h)}, {v(dd[2*t+pl]+2*h+1)}")
    for t in range(2):
        for tp in range(2):
            mfma(a, dd[2*t+tp], tf[t], G20[tp], "0")
    for i in range(10):
        a(f"v_mul_f32 {v(w_+i)}, {hex(f2u(-np.log2(np.e)))}, {v(o+i)}")
    for i in range(10):
        a(f"v_exp_f32 {v(w_+i)}, {v(w_+i)}")
    for t in range(2):
        for tp in range(2):
            r = dd[2*t+tp]
            a(f"v_cvt_pk_bf16_f32 {v(r)}, {v(r)}, {v(r+1)}")
            a(f"v_cvt_pk_bf16_f32 {v(r+1)}, {v(r+2)}, {v(r+3)}")
            a(f"ds_write_b64 {v(swr)}, {v(r,2)} offset:{tp*1024+t*32}")
    for i in range(5):
        a(f"v_pk_add_f32 {v(w_+2*i,2)}, {v(w_+2*i,2)}, 1.0 op_sel_hi:[1,0]")
    a("s_waitcnt lgkmcnt(0)")
    a(f"ds_read_b128 {v(PA[0],4)}, {v(srd0)}")
    a(f"ds_read_b32 {v(PB[0])}, {v(srd1)} offset:1024")
    for i in range(10):
        a(f"v_rcp_f32 {v(w_+i)}, {v(w_+i)}")
    for i in range(5):
        a(f"v_pk_mul_f32 {v(o+2*i,2)}, {v(o+2*i,2)}, {v(w_+2*i,2)}")
    xx = vp.get(10, 2)
    unpack(xx, PA[4], PB[4])
    a("s_waitcnt lgkmcnt(0)")
    unpack(w_, PA[0], PB[0])
    for i in range(5):
        a(f"v_pk_fma_f32 {v(o+2*i,2)}, {v(o+2*i,2)}, {v(w_+2*i,2)}, {v(xx+2*i,2)}")
    for i in range(5):
        dst = PA[1] + i if i < 4 else PB[1]
        a(f"v_cvt_pk_bf16_f32 {v(dst)}, {v(o+2*i)}, {v(o+2*i+1)}")
    a(f"buffer_store_dwordx4 {v(PA[1],4)}, {v(l16)}, {s(R_C,4)}, s{s_row} offen")
    a(f"buffer_store_dword {v(PB[1])}, {v(l4)}, {s(R_C,4)}, s{s_row} offen offset:1024")
    a(f"s_branch {end_label}")


S_RB, S_CB, S_KT, S_IDX = 80, 81, 82, 83


def decode_roles(a, l_fft):
    a("s_and_b32 s84, s2, 7")
    a("s_lshr_b32 s85, s2, 3")
    a(f"s_lshl_b32 s{S_IDX}, s84, 3")
    a(f"s_add_u32 s{S_IDX}, s{S_IDX}, s85")
    a(f"s_sub_u32 s{S_IDX}, s{S_IDX}, 24")
    a("s_mul_i32 s86, s84, 6")
    a("s_lshr_b32 s87, s85, 2")
    a("s_add_u32 s86, s86, s87")
    a(f"s_and_b32 s{S_RB}, s86, 15")
    a(f"s_lshr_b32 s{S_KT}, s86, 4")
    a(f"s_and_b32 s{S_CB}, s85, 3")
    a("s_cmp_ge_u32 s85, 24")
    a(f"s_cbranch_scc1 {l_fft}")


def kernel_desc(name, nv, ns):
    nv = max(nv, 8)
    return f""".p2align 6
.amdhsa_kernel {name}
  .amdhsa_next_free_vgpr {nv}
  .amdhsa_next_free_sgpr {ns}
  .amdhsa_accum_offset {(nv+3)//4*4}
  .amdhsa_group_segment_fixed_size 0
  .amdhsa_kernarg_size 88
  .amdhsa_user_sgpr_count 2
  .amdhsa_user_sgpr_kernarg_segment_ptr 1
  .amdhsa_system_sgpr_workgroup_id_x 1
  .amdhsa_float_denorm_mode_32 3
.end_amdhsa_kernel
"""


def build():
    kernels = []
    def start(name):
        a = Asm(); a.uid = 1000 * (len(kernels) + 1)
        return a
    a = start("k1"); e = "L_end1"
    prologue(a, e); decode_roles(a, "L_fft1")
    a(f"s_lshl_b32 s84, s{S_KT}, 2")
    a(f"s_add_u32 s{S_CB}, s{S_CB}, s84")
    gemm(a, 1, S_RB, S_CB, S_KT, e)
    a.label("L_fft1"); f1(a, S_IDX, e)
    a.label(e); a("s_endpgm")
    kernels.append(("k1_kernel", a, 4*32768 + 2048))
    a = start("k2"); e = "L_end2"
    prologue(a, e); decode_roles(a, "L_fft2")
    gemm(a, 2, S_RB, S_CB, S_KT, e)
    a.label("L_fft2"); f2(a, S_IDX, e)
    a.label(e); a("s_endpgm")
    kernels.append(("k2_kernel", a, 4*36864))
    a = start("k3"); e = "L_end3"
    prologue(a, e)
    a("s_and_b32 s84, s2, 7")
    a("s_lshr_b32 s85, s2, 3")
    a("s_lshl_b32 s80, s84, 3")
    a("s_lshr_b32 s86, s85, 2")
    a("s_add_u32 s80, s80, s86")
    a("s_and_b32 s81, s85, 3")
    f3(a, 80, 81, e)
    a.label(e); a("s_endpgm")
    kernels.append(("k3_kernel", a, 90112))

    out = "; generated by gen/gen.py (hand-written generator)\n"
    for name, a, lds in kernels:
        out += f"; @launch kernel={name} grid=(256,1,1) block=(512,1,1) lds={lds}\n"
    out += '.amdgcn_target "amdgcn-amd-amdhsa--gfx950"\n.text\n'
    desc = ""
    for name, a, lds in kernels:
        a.resolve()
        nv, ns = a.max_regs()
        out += f".globl {name}\n.p2align 8\n.type {name},@function\n{name}:\n" + a.text()
        desc += kernel_desc(name, nv, ns)
        print(name, "instr", len(a.ins), "vgpr", nv, "sgpr", ns, file=sys.stderr)
    out += '.section .rodata,"a"\n' + desc
    out += tables.as_asm("ctab", tables.tab_f1() + tables.tab_f2() + tables.tab_f3())
    return out


if __name__ == "__main__":
    path = sys.argv[1] if len(sys.argv) > 1 else f"cdna_kernels/{NAME}.s"
    open(path, "w").write(build())
```

```python
import sys, struct, os
import numpy as np
from asmlib import Asm, Pool, v, s
import tables

NAME = "recurrent_scan__spectral_gfnet__mixer_channel_mlp__prompt"
STAMP = int(os.environ.get("STAMP", "0"))
OPT = set(os.environ.get("OPT", "").split(","))

WS_H = 0
WS_ZP = WS_H + 2048 * 1536 * 2
WS_VP = WS_ZP + 64 * 45056
WS_P = WS_VP + 64 * 45056
WS_ST = WS_P + 3 * 2621440
WS_EP = WS_ST + 2048 * 16
WS_FL = WS_EP + 128
FL_H = WS_FL
FL_M = FL_H + 192 * 128
FL_Z = FL_M + 2048
FL_V = FL_Z + 64 * 512
FL_P = FL_V + 64 * 512
WS_END = FL_P + 256 * 256
WS_DBG = 24 << 20
TAB_F1, TAB_F2, TAB_F3, TAB_END = 0, 16384, 32768, 49152
SC = "sc1"
SCL = os.environ.get("SCL", "sc1")

def f2u(x):
    return struct.unpack("<I", struct.pack("<f", x))[0]

P_X, P_WR, P_WI, P_W1, P_B1, P_W2, P_B2, P_OUT, P_DBG, P_WS = 4, 6, 8, 12, 14, 16, 18, 20, 22, 24
R_WS, R_TAB, R_A, R_B, R_C, R_D, R_DBG = 28, 32, 36, 40, 44, 48, 52
S_W = 26
S_RB, S_SUB, S_KT, S_IDX, S_N3, S_Q3, S_FLAG = 56, 57, 58, 59, 60, 61, 62
S_F2 = 63
S_E = 10
S_PJ = 27
STAG = int(os.environ.get("STAG", "5"))
DEPTH = int(os.environ.get("DEPTH", "3"))
S_T = 64
NSTAMP = 10
ST0 = 80


def stamp(a, i, mode=None):
    if (mode is None and STAMP and (STAMP <= 2 or i in (0, NSTAMP - 1))) or (mode is not None and STAMP == mode):
        a(f"s_memtime s[{ST0+2*i}:{ST0+2*i+1}]")


def stamp3(a, i):
    if STAMP == 1:
        stamp(a, i)


def stamp_begin(a):
    if STAMP:
        for i in range(ST0 + 2, ST0 + 2 * NSTAMP):
            a(f"s_mov_b32 s{i}, 0")
        a("s_memrealtime s[100:101]")
        stamp(a, 0)


def stamp_end(a):
    if STAMP:
        a("s_waitcnt vmcnt(0)")
        stamp(a, NSTAMP - 1)
        a("s_memrealtime s[64:65]")
        a("s_waitcnt lgkmcnt(0)")
        for i in range(NSTAMP):
            a(f"v_mov_b32 v{8+i}, s{ST0+2*i}")
        a(f"v_mov_b32 v{8+NSTAMP}, s100")
        a(f"v_mov_b32 v{9+NSTAMP}, s64")
        a("s_lshl_b32 s66, s2, 3")
        a(f"s_add_u32 s66, s66, s{S_W}")
        a("s_lshl_b32 s66, s66, 6")
        a(f"s_add_u32 s66, s66, {WS_DBG}")
        a(f"s_mov_b32 s{R_WS+2}, 0x2000000")
        a("v_mov_b32 v1, 0")
        a("s_mov_b64 exec, 1")
        for i in range(3):
            a(f"buffer_store_dwordx4 v[{8+4*i}:{11+4*i}], v1, {s(R_WS,4)}, s66 offen offset:{16*i}")


def srd(a, dst, ptr, size):
    a(f"s_mov_b32 s{dst}, s{ptr}")
    a(f"s_mov_b32 s{dst+1}, s{ptr+1}")
    a(f"s_mov_b32 s{dst+2}, {size}")
    a(f"s_mov_b32 s{dst+3}, 0x20000")


def dma(a, voff, srd_, soff, extra=""):
    a(f"buffer_load_dwordx4 {v(voff)}, {s(srd_,4)}, {soff} offen {extra + ' ' if extra else ''}lds")


def bf16r(a, dst, src):
    a(f"v_cvt_pk_bf16_f32 {v(dst)}, {v(src)}, {v(src)}")
    a(f"v_lshlrev_b32 {v(dst)}, 16, {v(dst)}")


def mfma_s(d, A, B, c=None):
    return f"v_mfma_f32_16x16x32_bf16 {v(d,4)}, {v(A,4)}, {v(B,4)}, {v(d,4) if c is None else c}"


def mfma(a, d, A, B, c=None):
    a(mfma_s(d, A, B, c))


def divmod_const(a, q, r, x, c):
    m = (1 << 18) // c + 1
    for t in range(2048):
        assert (t * m) >> 18 == t // c
    a(f"v_mul_u32_u24 {v(q)}, {m}, {v(x)}")
    a(f"v_lshrrev_b32 {v(q)}, 18, {v(q)}")
    a(f"v_mul_u32_u24 {v(r)}, {c}, {v(q)}")
    a(f"v_sub_u32 {v(r)}, {v(x)}, {v(r)}")


def interleave(a, main, fill, per=1):
    fi = 0
    for m in main:
        a(m)
        for _ in range(per):
            if fi < len(fill):
                a(fill[fi]); fi += 1
    while fi < len(fill):
        a(fill[fi]); fi += 1


class VM:
    def __init__(self, a):
        self.a, self.q = a, []
    def op(self, tag, n=1):
        self.q += [tag] * n
    def wait(self, *tags):
        last = max([i for i, t in enumerate(self.q) if t in tags], default=-1)
        if last < 0:
            return
        n = len(self.q) - 1 - last
        assert n < 64
        self.a(f"s_waitcnt vmcnt({n})")
        self.q = self.q[last + 1:]
    def drain(self):
        self.a("s_waitcnt vmcnt(0)")
        self.q = []


def nonce(a):
    a(f"s_mul_i32 s{S_E}, s{S_E}, 1664525")
    a(f"s_add_u32 s{S_E}, s{S_E}, 1013904223")
    a(f"s_mul_i32 s{S_E+1}, s{S_E+1}, 22695477")
    a(f"s_add_u32 s{S_E+1}, s{S_E+1}, 1")


def advance_epoch(a, vt, s_t):
    for i in range(3):
        poll(a, FL_M + 512 * i, 64, s_t, sleep=8)
    a(f"v_mov_b32 {v(vt)}, s{S_E}")
    a(f"v_mov_b32 {v(vt+1)}, s{S_E+1}")
    a(f"v_mov_b32 {v(vt+2)}, 0")
    a(f"s_mov_b32 s{S_F2}, {WS_EP}")
    a("s_mov_b64 exec, 1")
    a(f"buffer_store_dwordx2 {v(vt,2)}, {v(vt+2)}, {s(R_WS,4)}, s{S_F2} offen {SC}")
    a("s_mov_b64 exec, -1")


def push_flag(a, s_base, nrec, shift, vt):
    a(f"v_mov_b32 {v(vt)}, s{S_E}")
    a(f"v_mov_b32 {v(vt+1)}, s{S_E+1}")
    a(f"v_lshlrev_b32 {v(vt+2)}, {shift}, v0")
    if nrec < 64:
        a(f"s_mov_b64 exec, {(1 << nrec) - 1}")
    a(f"buffer_store_dwordx2 {v(vt,2)}, {v(vt+2)}, {s(R_WS,4)}, s{s_base} offen {SC}")
    if nrec < 64:
        a("s_mov_b64 exec, -1")


V_POLL = 248


def poll_addr(a, base, ntag, s_t):
    ad = V_POLL + 6
    a(f"v_min_u32 {v(ad)}, {ntag-1}, v0")
    a(f"v_lshlrev_b32 {v(ad)}, 3, {v(ad)}")
    a(f"s_mov_b32 s{s_t+1}, {base}")


def poll(a, base, ntag, s_t, sleep=None):
    lp, done = a.newlabel("L_poll"), a.newlabel("L_pd")
    ad = V_POLL + 6
    poll_addr(a, base, ntag, s_t)
    ld = lambda i: a(f"buffer_load_dwordx2 {v(V_POLL+2*i,2)}, {v(ad)}, {s(R_WS,4)}, s{s_t+1} offen {SC}")
    a(f"s_mov_b32 s{s_t}, 0x20000")
    depth = 1 if sleep else DEPTH
    for i in range(depth - 1):
        ld(i)
        a(f"s_sleep {STAG}")
    a.label(lp)
    for i in range(depth):
        ld((i + depth - 1) % depth)
        a(f"s_waitcnt vmcnt({depth-1})")
        a(f"v_cmp_ne_u64 vcc, s[{S_E}:{S_E+1}], {v(V_POLL+2*i,2)}")
        a(f"s_cbranch_vccz {done}")
        if sleep:
            a(f"s_sleep {sleep}")
    a(f"s_sub_u32 s{s_t}, s{s_t}, 1")
    a(f"s_cbranch_scc0 {lp}")
    a.label(done)


LX = 0
LW = 65536
WSL = 20480
L_STAT = 149 * 1024 + 512
L_CS = L_STAT + 2048
L_STG = 104 * 1024
L3_VB, L3_TAB, L3_UX, L3_SX = 0, 45056, 61440, 61440 + 8 * 1376
L3_HAVE = 163836


def gemm_compute(a, l_f3):
    vp = Pool("v", 1, 248)
    i16, g, r_ = [vp.get() for _ in range(3)]
    t0 = vp.get(4, 2); t1 = t0 + 1; cq = vp.get(); cnt = vp.get(2, 2)
    s_wm, s_wn, s_dx, s_dw, s_cnt, s_t = S_T, S_T + 1, S_T + 2, S_T + 3, S_T + 4, S_T + 5
    s_cb = S_T + 10
    if "prio" in OPT:
        a("s_setprio 2")
    a(f"s_and_b32 s{s_wm}, s{S_W}, 1")
    a(f"s_lshr_b32 s{s_wn}, s{S_W}, 1")
    a(f"s_lshl_b32 s{s_cb}, s{S_KT}, 2")
    a(f"s_add_u32 s{s_cb}, s{s_cb}, s{S_SUB}")
    a(f"v_and_b32 {v(i16)}, 15, v0")
    a(f"v_lshrrev_b32 {v(g)}, 4, v0")
    acc = [[vp.get(4, 4) for mm in range(4)] for tt in range(5)]
    xf = [[vp.get(4, 4) for mm in range(4)] for st in range(2)]
    wf = [[vp.get(4, 4) for tt in range(5)] for st in range(2)]
    cs = acc[4]
    ones = wf[0][4]
    b1r = [vp.get(2, 2) for tt in range(4)]
    srd(a, R_C, P_B1, 3072)
    a(f"s_lshl_b32 s{s_t}, s{s_cb}, 8")
    a(f"s_lshl_b32 s{s_t+1}, s{s_wn}, 7")
    a(f"s_add_u32 s{s_t}, s{s_t}, s{s_t+1}")
    a(f"s_lshl_b32 s{s_t+1}, s{s_wm}, 6")
    a(f"v_lshlrev_b32 {v(t0)}, 3, {v(g)}")
    a(f"v_add_u32 {v(t0)}, s{s_t+1}, {v(t0)}")
    a(f"v_xor_b32 {v(t1)}, 64, {v(t0)}")
    for tt in range(4):
        a(f"buffer_load_dwordx2 {v(b1r[tt],2)}, {v(t0 if tt < 2 else t1)}, {s(R_C,4)}, s{s_t} offen offset:{32*(tt&1)}")
    if "nocode" not in OPT:
        a(f"s_getpc_b64 s[{R_D}:{R_D+1}]")
        a(f"s_add_u32 s{R_D}, s{R_D}, {NAME}_kernel@rel32@lo+4")
        a(f"s_addc_u32 s{R_D+1}, s{R_D+1}, {NAME}_kernel@rel32@hi+12")
        a(f"s_mov_b32 s{R_D+2}, L_exit-{NAME}_kernel")
        a(f"s_mov_b32 s{R_D+3}, 0x20000")
        a(f"s_lshr_b32 s{s_t}, s2, 3")
        a(f"s_and_b32 s{s_t}, s{s_t}, 7")
        a(f"s_lshl_b32 s{s_t}, s{s_t}, 2")
        a(f"s_add_u32 s{s_t}, s{s_t}, s{S_W}")
        a(f"s_lshl_b32 s{s_t}, s{s_t}, 10")
        a(f"v_lshlrev_b32 {v(t0)}, 4, v0")
        a(f"buffer_load_dwordx4 {v(xf[1][0],4)}, {v(t0)}, {s(R_D,4)}, s{s_t} offen")
        a(f"s_and_b32 s{s_t}, s{s_t}, 0x3fff")
        a(f"s_add_u32 s{s_t}, s{s_t}, {TAB_F3}")
        a(f"buffer_load_dwordx4 {v(xf[1][1],4)}, {v(t0)}, {s(R_TAB,4)}, s{s_t} offen")
    xa = [vp.get(), vp.get()]
    a(f"v_and_b32 {v(t0)}, 7, v0")
    a(f"v_xor_b32 {v(t0)}, {v(t0)}, {v(g)}")
    a(f"v_lshlrev_b32 {v(t0)}, 4, {v(t0)}")
    a(f"v_lshl_add_u32 {v(t0)}, {v(i16)}, 7, {v(t0)}")
    a(f"s_lshl_b32 s{s_t}, s{s_wm}, 13")
    a(f"v_add_u32 {v(xa[0])}, s{s_t}, {v(t0)}")
    a(f"v_xor_b32 {v(xa[1])}, 64, {v(xa[0])}")
    wa = [vp.get() for _ in range(4)]
    a(f"v_lshrrev_b32 {v(r_)}, 2, {v(i16)}")
    a(f"v_and_b32 {v(cq)}, 3, v0")
    a(f"v_lshl_add_u32 {v(t0)}, {v(g)}, 3, {v(r_)}")
    a(f"v_lshlrev_b32 {v(t0)}, 8, {v(t0)}")
    a(f"v_lshl_add_u32 {v(t0)}, {v(cq)}, 3, {v(t0)}")
    a(f"v_add_u32 {v(t0)}, {LW}, {v(t0)}")
    a(f"v_and_b32 {v(t1)}, 1, {v(g)}")
    a(f"v_lshl_or_b32 {v(t1)}, {v(t1)}, 2, {v(r_)}")
    a(f"s_lshl_b32 s{s_t}, s{s_wn}, 2")
    a(f"s_lshl_b32 s{s_t+1}, s{s_wm}, 1")
    a(f"s_or_b32 s{s_t}, s{s_t}, s{s_t+1}")
    a(f"v_xor_b32 {v(t1)}, s{s_t}, {v(t1)}")
    for tt in range(4):
        a(f"v_xor_b32 {v(wa[tt])}, {tt}, {v(t1)}")
        a(f"v_lshl_add_u32 {v(wa[tt])}, {v(wa[tt])}, 5, {v(t0)}")
    xb = vp.get(); wb = [vp.get(), vp.get()]; l16 = vp.get()
    a(f"v_lshlrev_b32 {v(l16)}, 4, v0")
    a(f"s_lshl_b32 s{s_t}, s{s_wm}, 12")
    a(f"s_add_u32 s{s_t}, s{s_t}, {LX + 2*16384}")
    a(f"v_add_u32 {v(xb)}, s{s_t}, {v(l16)}")
    a(f"v_lshrrev_b32 {v(r_)}, 2, v0")
    a(f"v_mul_u32_u24 {v(t0)}, 320, {v(r_)}")
    a(f"v_lshl_add_u32 {v(t0)}, {v(cq)}, 3, {v(t0)}")
    a(f"v_add_u32 {v(t0)}, {LW + 2*WSL}, {v(t0)}")
    a(f"v_and_b32 {v(t1)}, 1, {v(g)}")
    a(f"s_mul_i32 s{s_t}, s{s_wn}, 5")
    a(f"v_xor_b32 {v(wb[0])}, s{s_t}, {v(t1)}")
    a(f"v_lshl_add_u32 {v(wb[0])}, {v(wb[0])}, 5, {v(t0)}")
    a(f"s_add_u32 s{s_t}, s{s_t}, 1")
    a(f"v_xor_b32 {v(wb[1])}, s{s_t}, {v(t1)}")
    a(f"v_lshl_add_u32 {v(wb[1])}, {v(wb[1])}, 5, {v(t0)}")
    SP = 176
    sw = vp.get(); srd_a = [vp.get() for _ in range(5)]
    a(f"s_mul_i32 s{s_t}, s{S_W}, {64*SP}")
    a(f"s_add_u32 s{s_t}, s{s_t}, {L_STG}")
    a(f"v_mul_u32_u24 {v(sw)}, {SP}, {v(i16)}")
    a(f"v_lshl_add_u32 {v(sw)}, {v(g)}, 3, {v(sw)}")
    a(f"v_add_u32 {v(sw)}, s{s_t}, {v(sw)}")
    for ii in range(5):
        a(f"v_add_u32 {v(r_)}, {64*ii}, v0")
        divmod_const(a, t0, t1, r_, 10)
        a(f"v_mul_u32_u24 {v(t0)}, {SP}, {v(t0)}")
        a(f"v_lshl_add_u32 {v(t0)}, {v(t1)}, 4, {v(t0)}")
        a(f"v_add_u32 {v(srd_a[ii])}, s{s_t}, {v(t0)}")
    for tt in range(5):
        for mm in range(4):
            if tt < 4 or mm < 2:
                for r in range(0, 4, 2):
                    a(f"v_pk_mul_f32 {v(acc[tt][mm]+r,2)}, 0, 0") if False else (a(f"v_mov_b32 {v(acc[tt][mm]+r)}, 0"), a(f"v_mov_b32 {v(acc[tt][mm]+r+1)}, 0"))
    for r in range(4):
        a(f"v_mov_b32 {v(ones+r)}, 0x3f803f80")

    def loop(which):
        NT = 4 if which == 1 else 5
        NCH = 10 if which == 1 else 8
        if which == 1:
            xrd = lambda st_, ks, mm: f"ds_read_b128 {v(xf[st_][mm],4)}, {v(xa[ks])} offset:{mm*2048}"
            wrd = lambda st_, ks, tt, h: f"ds_read_b64_tr_b16 {v(wf[st_][tt]+2*h,2)}, {v(wa[tt])} offset:{ks*8192+h*1024}"
            ax, aw = xa, wa
        else:
            xrd = lambda st_, ks, mm: f"ds_read_b128 {v(xf[st_][mm],4)}, {v(xb)} offset:{ks*8192+mm*1024}"
            wrd = lambda st_, ks, tt, h: f"ds_read_b64_tr_b16 {v(wf[st_][tt]+2*h,2)}, {v(wb[tt&1])} offset:{(32*ks+16*h)*320+(tt>>1)*64}"
            ax, aw = [xb], wb

        def reads(st_, ks):
            out = []
            for i in range(max(4, NT)):
                if i < NT:
                    out += [wrd(st_, ks, i, 0), wrd(st_, ks, i, 1)]
                if i < 4:
                    out.append(xrd(st_, ks, i))
            return out

        def mfmas(st_, c=None):
            out = []
            for tt in range(NT):
                for mm in range(4):
                    out.append(mfma_s(acc[tt][mm], wf[st_][tt], xf[st_][mm], c))
                if which == 1 and tt < 2:
                    out.append(mfma_s(cs[tt], wf[st_][tt], ones))
            return out
        c0 = 0 if which == 1 else 10
        a(f"s_mov_b32 s{s_cnt}, {c0}")
        if which == 1:
            a("s_waitcnt vmcnt(0) lgkmcnt(0)")
            nonce(a)
        a("s_barrier")
        stamp(a, 1 if which == 1 else 4)
        for x in reads(0, 0):
            a(x)
        l_loop, l_last, l_mid = a.newlabel("L_gl"), a.newlabel("L_gx"), a.newlabel("L_gm")
        per = 2 if "per2" in OPT else 1
        s_end = S_T + 11
        if which == 2:
            a(f"s_mov_b32 s{s_end}, 12")
            a(f"s_add_u32 s{s_cnt}, s{s_cnt}, 1")
            a("s_waitcnt lgkmcnt(0)")
            adv = [f"v_add_u32 {v(r)}, 16384, {v(r)}" for r in ax] + [f"v_add_u32 {v(r)}, {WSL}, {v(r)}" for r in aw]
            interleave(a, mfmas(0, "0"), reads(1, 1) + adv, per)
            a("s_waitcnt vmcnt(0)")
            a(f"s_branch {l_mid}")
        a.label(l_loop)
        a(f"s_add_u32 s{s_cnt}, s{s_cnt}, 1")
        a(f"s_and_b32 s{s_t}, s{s_cnt}, 3")
        a(f"s_cselect_b32 s{s_t}, 1, -3")
        a(f"s_lshl_b32 s{s_dx}, s{s_t}, 14")
        a(f"s_mul_i32 s{s_dw}, s{s_t}, {WSL}")
        a("s_waitcnt lgkmcnt(0)")
        adv = [f"v_add_u32 {v(r)}, s{s_dx}, {v(r)}" for r in ax] + [f"v_add_u32 {v(r)}, s{s_dw}, {v(r)}" for r in aw]
        interleave(a, mfmas(0), reads(1, 1) + adv, per)
        a.label(l_mid)
        a(f"s_cmp_eq_u32 s{s_cnt}, {c0 + NCH}" if which == 1 else f"s_cmp_eq_u32 s{s_cnt}, s{s_end}")
        a("s_waitcnt lgkmcnt(0)")
        if which == 1:
            a(f"s_cbranch_scc1 {l_last}")
            a("s_barrier")
        else:
            a("s_barrier")
            a(f"s_cbranch_scc1 {l_last}")
        interleave(a, mfmas(1), reads(0, 0), per)
        a(f"s_branch {l_loop}")
        a.label(l_last)
        for x in mfmas(1):
            a(x)
        if which == 2:
            l_done = a.newlabel("L_gd")
            a(f"s_cmp_eq_u32 s{s_cnt}, 18")
            a(f"s_cbranch_scc1 {l_done}")
            a(f"s_mov_b32 s{s_end}, 18")
            a("s_barrier")
            for x in reads(0, 0):
                a(x)
            a(f"s_branch {l_loop}")
            a.label(l_done)

    loop(1)
    stamp(a, 2)
    a(f"s_lshl_b32 s{s_t}, s{s_wn}, 8")
    a(f"s_lshl_b32 s{s_t+1}, s{s_wm}, 7")
    a(f"s_add_u32 s{s_t}, s{s_t}, s{s_t+1}")
    a(f"s_add_u32 s{s_t}, s{s_t}, {L_CS}")
    a(f"v_lshlrev_b32 {v(t0)}, 4, {v(g)}")
    a(f"v_add_u32 {v(t0)}, s{s_t}, {v(t0)}")
    a(f"v_xor_b32 {v(t1)}, 128, {v(t0)}")
    st = [xf[0][mm] for mm in range(4)]
    sa = xa[0]; hw = xa[1]
    a(f"s_lshl_b32 s{s_t}, s{s_wm}, 10")
    a(f"v_lshlrev_b32 {v(sa)}, 4, {v(i16)}")
    a(f"v_add_u32 {v(sa)}, s{s_t}, {v(sa)}")
    sl_ = wa[1]
    a(f"v_add_u32 {v(sl_)}, {L_STAT}, {v(sa)}")
    b1f = [wf[0][tt] for tt in range(4)]
    a("s_waitcnt vmcnt(0)")
    for tt in range(4):
        for h in range(2):
            a(f"v_lshlrev_b32 {v(b1f[tt]+2*h)}, 16, {v(b1r[tt]+h)}")
            a(f"v_and_b32 {v(b1f[tt]+2*h+1)}, 0xffff0000, {v(b1r[tt]+h)}")
    a(f"ds_write_b128 {v(t0)}, {v(cs[0],4)}")
    a(f"ds_write_b128 {v(t0)}, {v(cs[1],4)} offset:64")
    kc = b1r[0]
    K0 = -2.0 * np.sqrt(2.0 / np.pi) * np.log2(np.e)
    a(f"v_mov_b32 {v(kc)}, {hex(f2u(K0))}")
    a(f"v_mov_b32 {v(kc+1)}, {hex(f2u(K0*0.044715))}")
    a(f"s_mul_i32 s{s_t}, s{S_RB}, {48*8192}")
    a(f"s_lshl_b32 s{s_t+1}, s{s_cb}, 15")
    a(f"s_add_u32 s{s_t}, s{s_t}, s{s_t+1}")
    a(f"s_lshl_b32 s{s_t+1}, s{s_wn}, 14")
    a(f"s_lshl_b32 s{s_t+2}, s{s_wm}, 12")
    a(f"s_add_u32 s{s_t+1}, s{s_t+1}, s{s_t+2}")
    a(f"s_lshl_b32 s{s_t+2}, s{s_wm}, 13")
    a(f"s_add_u32 s{s_t+1}, s{s_t+1}, s{s_t+2}")
    a(f"s_add_u32 s{s_t+2}, s{s_t}, s{s_t+1}")
    a(f"s_xor_b32 s{s_t+3}, s{s_t+1}, 8192")
    a(f"s_add_u32 s{s_t+3}, s{s_t}, s{s_t+3}")
    a(f"s_add_u32 s{s_t+1}, s{s_t+1}, {LX + 2*16384}")
    a(f"v_add_u32 {v(hw)}, s{s_t+1}, {v(l16)}")
    hw2 = wa[0]
    a(f"v_xor_b32 {v(hw2)}, 8192, {v(hw)}")
    a("s_waitcnt lgkmcnt(0)")
    a("s_barrier")
    a(f"ds_read_b128 {v(cs[2],4)}, {v(t1)}")
    a(f"ds_read_b128 {v(cs[3],4)}, {v(t1)} offset:64")
    for mm in range(4):
        a(f"ds_read_b128 {v(st[mm],4)}, {v(sl_)} offset:{mm*256}")
    a("s_waitcnt lgkmcnt(0)")
    l_chk, l_ok = a.newlabel("L_chk"), a.newlabel("L_ok")
    a(f"s_mov_b32 s{s_dx}, 0x40000")
    a.label(l_chk)
    a(f"v_xor_b32 {v(t0)}, s{S_E}, {v(st[0]+1)}")
    a(f"v_xor_b32 {v(t1)}, s{S_E+1}, {v(st[0]+3)}")
    for mm in range(1, 4):
        a(f"v_xor_b32 {v(t0+2)}, s{S_E}, {v(st[mm]+1)}")
        a(f"v_xor_b32 {v(t0+3)}, s{S_E+1}, {v(st[mm]+3)}")
        a(f"v_or3_b32 {v(t0)}, {v(t0)}, {v(t0+2)}, {v(t0+3)}")
    a(f"v_or_b32 {v(t0)}, {v(t0)}, {v(t1)}")
    a(f"v_cmp_ne_u32 vcc, 0, {v(t0)}")
    a(f"s_cbranch_vccz {l_ok}")
    a(f"s_lshl_b32 s{s_dw}, s{S_RB}, 11")
    a(f"s_add_u32 s{s_dw}, s{s_dw}, {WS_ST}")
    for mm in range(4):
        a(f"buffer_load_dwordx4 {v(st[mm],4)}, {v(sa)}, {s(R_WS,4)}, s{s_dw} offen offset:{mm*256} {SC}")
    a("s_waitcnt vmcnt(0)")
    a(f"s_sub_u32 s{s_dx}, s{s_dx}, 1")
    a(f"s_cbranch_scc0 {l_chk}")
    a.label(l_ok)
    for mm in range(4):
        a(f"v_mov_b32 {v(st[mm]+1)}, {v(st[mm]+2)}")
    stamp(a, 3)
    tmp = [xf[1][i] for i in range(4)]
    outs = [wf[1][1], wf[1][2], wf[1][3]]
    n_o = 0
    for mm in range(4):
        for u in range(2):
            o = outs[n_o % 3]; n_o += 1
            prs = [(acc[2*u+k][mm] + 2*h, cs[2*u+k] + 2*h, b1f[2*u+k] + 2*h) for k in range(2) for h in range(2)]
            T = [tmp[0], tmp[0]+2, tmp[1], tmp[1]+2]
            Z = [tmp[2], tmp[2]+2, tmp[3], tmp[3]+2]
            for i, (p, c_, b_) in enumerate(prs):
                a(f"v_pk_fma_f32 {v(T[i],2)}, {v(c_,2)}, {v(st[mm],2)}, {v(b_,2)} op_sel:[0,1,0] op_sel_hi:[1,1,1]")
            for i, (p, c_, b_) in enumerate(prs):
                a(f"v_pk_fma_f32 {v(p,2)}, {v(p,2)}, {v(st[mm],2)}, {v(T[i],2)} op_sel_hi:[1,0,1]")
            for i, (p, c_, b_) in enumerate(prs):
                a(f"v_pk_mul_f32 {v(T[i],2)}, {v(p,2)}, {v(p,2)}")
            for i, (p, c_, b_) in enumerate(prs):
                a(f"v_pk_fma_f32 {v(T[i],2)}, {v(T[i],2)}, {v(kc,2)}, {v(kc,2)} op_sel:[0,1,0] op_sel_hi:[1,1,0]")
            for i, (p, c_, b_) in enumerate(prs):
                a(f"v_pk_mul_f32 {v(Z[i],2)}, {v(p,2)}, {v(T[i],2)}")
            for i in range(4):
                a(f"v_exp_f32 {v(Z[i])}, {v(Z[i])}")
                a(f"v_exp_f32 {v(Z[i]+1)}, {v(Z[i]+1)}")
            for i in range(4):
                a(f"v_pk_add_f32 {v(Z[i],2)}, {v(Z[i],2)}, 1.0 op_sel_hi:[1,0]")
            for i in range(4):
                a(f"v_rcp_f32 {v(Z[i])}, {v(Z[i])}")
                a(f"v_rcp_f32 {v(Z[i]+1)}, {v(Z[i]+1)}")
            for i, (p, c_, b_) in enumerate(prs):
                a(f"v_pk_mul_f32 {v(p,2)}, {v(p,2)}, {v(Z[i],2)}")
            for i, (p, c_, b_) in enumerate(prs):
                a(f"v_cvt_pk_bf16_f32 {v(o+i)}, {v(p)}, {v(p+1)}")
            a(f"buffer_store_dwordx4 {v(o,4)}, {v(l16)}, {s(R_WS,4)}, s{s_t+2+u} offen offset:{mm*1024} {SC}")
            if "dbl" in OPT:
                a(f"buffer_store_dwordx4 {v(o,4)}, {v(l16)}, {s(R_WS,4)}, s{s_t+2+u} offen offset:{mm*1024}")
            a(f"ds_write_b128 {v(hw if u == 0 else hw2)}, {v(o,4)} offset:{mm*1024}")
    a("s_waitcnt lgkmcnt(0)")
    loop(2)
    stamp(a, 5)
    pk = xf[0][0]
    n = 0
    for mm in range(4):
        for tt in range(5):
            o = pk + 2 * (n % 16); n += 1
            a(f"v_cvt_pk_bf16_f32 {v(o)}, {v(acc[tt][mm])}, {v(acc[tt][mm]+1)}")
            a(f"v_cvt_pk_bf16_f32 {v(o+1)}, {v(acc[tt][mm]+2)}, {v(acc[tt][mm]+3)}")
            a(f"ds_write_b64 {v(sw)}, {v(o,2)} offset:{mm*16*SP+tt*32}")
            if n == 12:
                a("s_waitcnt lgkmcnt(6)")
    a(f"s_mul_i32 s{s_t}, s{S_KT}, 2621440")
    a(f"s_lshl_b32 s{s_t+1}, s{S_SUB}, 1")
    a(f"s_add_u32 s{s_t+1}, s{s_t+1}, s{s_wn}")
    a(f"s_mul_i32 s{s_t+1}, s{s_t+1}, {2048*160}")
    a(f"s_add_u32 s{s_t}, s{s_t}, s{s_t+1}")
    a(f"s_lshl_b32 s{s_t+1}, s{S_RB}, 1")
    a(f"s_add_u32 s{s_t+1}, s{s_t+1}, s{s_wm}")
    a(f"s_mul_i32 s{s_t+1}, s{s_t+1}, {64*160}")
    a(f"s_add_u32 s{s_t}, s{s_t}, s{s_t+1}")
    a(f"s_add_u32 s{s_t}, s{s_t}, {WS_P}")
    a(f"s_add_u32 s{s_t+1}, s{s_t}, 4096")
    a(f"s_add_u32 s{s_t+2}, s{s_t}, 8192")
    a("s_waitcnt lgkmcnt(0)")
    rb_ = [acc[i // 4][i % 4] for i in range(10)]
    for ii in range(10):
        a(f"ds_read_b128 {v(rb_[ii],4)}, {v(srd_a[ii%5])} offset:{(ii//5)*32*SP}")
    for ii in range(10):
        a(f"s_waitcnt lgkmcnt({9-ii})")
        a(f"buffer_store_dwordx4 {v(rb_[ii],4)}, {v(l16)}, {s(R_WS,4)}, s{s_t+ii//4} offen offset:{(ii%4)*1024} {SC}")
    if "prio" in OPT:
        a("s_setprio 0")
    a(f"s_lshl_b32 s{S_FLAG}, s{S_RB}, 1")
    a(f"s_add_u32 s{S_FLAG}, s{S_FLAG}, s{s_wm}")
    a(f"s_lshl_b32 s{S_FLAG}, s{S_FLAG}, 5")
    a(f"s_add_u32 s{S_FLAG}, s{S_FLAG}, s{S_KT}")
    a(f"s_lshl_b32 s{S_FLAG}, s{S_FLAG}, 2")
    a(f"s_add_u32 s{S_FLAG}, s{S_FLAG}, s{S_SUB}")
    a(f"s_lshl_b32 s{S_FLAG}, s{S_FLAG}, 1")
    a(f"s_add_u32 s{S_FLAG}, s{S_FLAG}, s{s_wn}")
    a(f"s_lshl_b32 s{S_FLAG}, s{S_FLAG}, 3")
    a(f"s_add_u32 s{S_FLAG}, s{S_FLAG}, {FL_P}")
    a(f"s_mov_b32 s{S_PJ}, 1")
    a(f"s_branch {l_f3}")


def gemm_loader(a, l_f3l):
    vp = Pool("v", 1, 248)
    t0 = vp.get(4, 2); t1, t2 = t0 + 1, t0 + 2
    s_lw, s_xo, s_wo, s_m, s_m2, s_ho, s_w2, s_t = [S_T + i for i in range(8)]
    vm = VM(a)
    a(f"s_sub_u32 s{s_lw}, s{S_W}, 4")
    srd(a, R_A, P_X, 2621440); srd(a, R_B, P_W1, 1966080)
    xv = vp.get(); wv = [vp.get(), vp.get()]
    a(f"v_lshrrev_b32 {v(t0)}, 3, v0")
    a(f"v_and_b32 {v(t1)}, 7, v0")
    a(f"v_xor_b32 {v(t1)}, {v(t1)}, {v(t0)}")
    a(f"v_mul_u32_u24 {v(xv)}, {64*1280}, {v(t0)}")
    a(f"v_lshl_add_u32 {v(xv)}, {v(t1)}, 4, {v(xv)}")
    a(f"s_lshl_b32 s{s_xo}, s{S_RB}, 2")
    a(f"s_add_u32 s{s_xo}, s{s_xo}, s{s_lw}")
    a(f"s_mul_i32 s{s_xo}, s{s_xo}, 1280")
    a(f"v_lshrrev_b32 {v(t0)}, 4, v0")
    a(f"v_and_b32 {v(t1)}, 15, v0")
    a(f"v_lshlrev_b32 {v(t2)}, 1, {v(t0)}")
    a(f"v_xor_b32 {v(t1)}, {v(t1)}, {v(t2)}")
    a(f"v_mul_u32_u24 {v(wv[0])}, 3072, {v(t0)}")
    a(f"v_lshl_add_u32 {v(wv[0])}, {v(t1)}, 4, {v(wv[0])}")
    a(f"v_xor_b32 {v(wv[1])}, 128, {v(wv[0])}")
    a(f"s_mul_i32 s{s_wo}, s{s_lw}, {16*3072}")
    a(f"s_lshl_b32 s{s_t}, s{S_KT}, 10")
    a(f"s_add_u32 s{s_wo}, s{s_wo}, s{s_t}")
    a(f"s_lshl_b32 s{s_t}, s{S_SUB}, 8")
    a(f"s_add_u32 s{s_wo}, s{s_wo}, s{s_t}")
    a(f"s_lshl_b32 s{s_m}, s{s_lw}, 12")

    s_kc, s_xc, s_wc = S_T + 11, S_T + 12, S_T + 13
    if "norot" in OPT:
        a(f"s_mov_b32 s{s_kc}, 0")
    else:
        a(f"s_mul_i32 s{s_kc}, s{S_PJ}, 27")
        a(f"s_lshr_b32 s{s_kc}, s{s_kc}, 4")
        a(f"s_mul_i32 s{s_t}, s{S_SUB}, 5")
        a(f"s_lshr_b32 s{s_t}, s{s_t}, 1")
        a(f"s_add_u32 s{s_kc}, s{s_kc}, s{s_t}")
        a(f"s_sub_u32 s{s_t}, s{s_kc}, 10")
        a(f"s_cselect_b32 s{s_kc}, s{s_kc}, s{s_t}")

    def issue1(c):
        sl = c % 4
        a(f"s_lshl_b32 s{s_xc}, s{s_kc}, 7")
        a(f"s_add_u32 s{s_xc}, s{s_xc}, s{s_xo}")
        a(f"s_mul_i32 s{s_wc}, s{s_kc}, {64*3072}")
        a(f"s_add_u32 s{s_wc}, s{s_wc}, s{s_wo}")
        for i in range(4):
            a(f"s_add_u32 m0, s{s_m}, {LX + sl*16384 + i*1024}")
            a(f"s_add_u32 s{s_t}, s{s_xc}, {i*8*64*1280}")
            dma(a, xv, R_A, f"s{s_t}")
        for i in range(4):
            a(f"s_add_u32 m0, s{s_m}, {LW + sl*WSL + i*1024}")
            a(f"s_add_u32 s{s_t}, s{s_wc}, {i*4*3072}")
            dma(a, wv[i >> 1], R_B, f"s{s_t}")
        a(f"s_add_u32 s{s_kc}, s{s_kc}, 1")
        a(f"s_cmp_eq_u32 s{s_kc}, 10")
        a(f"s_cselect_b32 s{s_kc}, 0, s{s_kc}")
        vm.op(("A", c), 8)

    stamp(a, 1)
    issue1(0); issue1(1)
    srd(a, R_C, P_W2, 1966080)
    l16 = vp.get(); w2v = [vp.get() for _ in range(5)]
    a(f"v_lshlrev_b32 {v(l16)}, 4, v0")
    a(f"s_mul_i32 s{s_ho}, s{S_RB}, {48*8192}")
    a(f"s_lshl_b32 s{s_t}, s{S_KT}, 17")
    a(f"s_add_u32 s{s_ho}, s{s_ho}, s{s_t}")
    a(f"s_add_u32 s{s_ho}, s{s_ho}, s{s_m}")
    for i in range(5):
        a(f"v_add_u32 {v(t2)}, {64*i}, v0")
        divmod_const(a, t0, t1, t2, 20)
        a(f"v_lshrrev_b32 {v(t2)}, 1, {v(t0)}")
        a(f"v_and_b32 {v(t2)}, 2, {v(t2)}")
        a(f"v_xor_b32 {v(t1)}, {v(t1)}, {v(t2)}")
        a(f"v_mul_u32_u24 {v(w2v[i])}, 1280, {v(t0)}")
        a(f"v_lshl_add_u32 {v(w2v[i])}, {v(t1)}, 4, {v(w2v[i])}")
    a(f"s_lshl_b32 s{s_w2}, s{S_KT}, 5")
    a(f"s_add_u32 s{s_w2}, s{s_w2}, s{s_lw}")
    a(f"s_mul_i32 s{s_w2}, s{s_w2}, {16*1280}")
    a(f"s_mul_i32 s{s_t}, s{S_SUB}, 320")
    a(f"s_add_u32 s{s_w2}, s{s_w2}, s{s_t}")
    a(f"s_mul_i32 s{s_m2}, s{s_lw}, 5120")

    def kchunk(c2):
        a(f"s_lshl_b32 s{s_t+1}, s{S_SUB}, 1")
        a(f"s_add_u32 s{s_t+1}, s{s_t+1}, {c2}")
        a(f"s_and_b32 s{s_t+1}, s{s_t+1}, 7")

    def issue_w2(c2):
        sl = (10 + c2) % 4
        kchunk(c2)
        a(f"s_mul_i32 s{s_t}, s{s_t+1}, {64*1280}")
        a(f"s_add_u32 s{s_t}, s{s_t}, s{s_w2}")
        for i in range(5):
            a(f"s_add_u32 m0, s{s_m2}, {LW + sl*WSL + i*1024}")
            dma(a, w2v[i], R_C, f"s{s_t}")
        vm.op(("W", c2), 5)

    def issue_h(c2):
        sl = (10 + c2) % 4
        kchunk(c2)
        a(f"s_lshl_b32 s{s_t}, s{s_t+1}, 14")
        a(f"s_add_u32 s{s_t}, s{s_t}, s{s_ho}")
        a(f"s_add_u32 m0, s{s_m}, {LX + sl*16384}")
        for i in range(4):
            a(f"buffer_load_dwordx4 {v(l16)}, {s(R_WS,4)}, s{s_t} offen offset:{i*1024} {SCL} lds")
        vm.op(("H", c2), 4)

    wreg = [[vp.get(4, 4) for i in range(5)] for c in range(4)]
    fl = vp.get(4, 2); wl = [vp.get(), vp.get()]
    a(f"v_add_u32 {v(wl[0])}, s{s_m2}, {v(l16)}")
    a(f"v_add_u32 {v(wl[0])}, {LW}, {v(wl[0])}")
    a(f"v_add_u32 {v(wl[1])}, {2*WSL}, {v(wl[0])}")

    def load_w2(c2):
        kchunk(c2)
        a(f"s_mul_i32 s{s_t}, s{s_t+1}, {64*1280}")
        a(f"s_add_u32 s{s_t}, s{s_t}, s{s_w2}")
        for i in range(5):
            a(f"buffer_load_dwordx4 {v(wreg[c2-4][i],4)}, {v(w2v[i])}, {s(R_C,4)}, s{s_t} offen")
        vm.op(("R", c2), 5)

    def put_w2(c2):
        sl = (10 + c2) % 4
        for i in range(5):
            a(f"ds_write_b128 {v(wl[sl>>1])}, {v(wreg[c2-4][i],4)} offset:{(sl&1)*WSL + i*1024}")

    a("s_waitcnt lgkmcnt(0)")
    nonce(a)
    nxt = 2
    for c in range(10):
        vm.wait(("A", c))
        if c == 0: stamp(a, 2)
        if c >= 2: stamp(a, c - 1, 3)
        a("s_barrier")
        if c >= 2: stamp(a, c - 1, 4)
        while nxt < 10 and nxt <= c + 3 and (nxt <= c + 2 or c >= 1):
            issue1(nxt); nxt += 1
            if c == 0 and "deep0" not in OPT:
                break
        if c == 3 and "nopf" not in OPT:
            a(f"s_lshl_b32 s{s_t}, s{S_FLAG}, 2")
            a(f"s_add_u32 s{s_t}, s{s_t}, s{s_lw}")
            a(f"s_mul_i32 s{s_t}, s{s_t}, 2560")
            for i in range(3):
                a(f"buffer_load_dwordx4 {v(wreg[3][i],4)}, {v(l16)}, {s(R_C,4)}, s{s_t} offen offset:{i*768}")
            vm.op("PF", 3)
        if c == 7:
            a(f"s_lshl_b32 s{s_t}, s{S_RB}, 11")
            a(f"s_add_u32 s{s_t}, s{s_t}, {WS_ST}")
            a(f"s_mov_b32 m0, {L_STAT}")
            for i in range(2):
                a(f"buffer_load_dwordx4 {v(l16)}, {s(R_WS,4)}, s{s_t} offen offset:{i*1024} {SC} lds")
            vm.op("S", 2)
        if c >= 7:
            issue_w2(c - 7)
    vm.wait("S")
    stamp(a, 3)
    a("s_barrier")
    vm.wait(("W", 1))
    issue_w2(3)
    for c2 in range(4, 8):
        if "nopace" not in OPT:
            vm.wait(("W", c2 - 2), ("R", c2 - 2))
        load_w2(c2)
    vm.wait(("W", 0))
    a("s_barrier")
    vm.wait(("W", 1), ("R", 5))
    a("s_barrier")
    stamp(a, 4)
    l_nf = a.newlabel("L_nf")
    a(f"s_cmp_lg_u32 s{s_lw}, 0")
    a(f"s_cbranch_scc1 {l_nf}")
    a(f"s_and_b32 s{s_t}, s{S_FLAG}, 0xfc")
    a(f"s_lshl_b32 s{s_t}, s{s_t}, 7")
    a(f"s_lshl_b32 s{s_t+1}, s{S_SUB}, 3")
    a(f"s_add_u32 s{s_t}, s{s_t}, s{s_t+1}")
    a(f"s_add_u32 s{s_t}, s{s_t}, {FL_H}")
    push_flag(a, s_t, 4, 7, t0)
    a(f"s_lshl_b32 s{s_t}, s{S_FLAG}, 3")
    a(f"s_add_u32 s{s_t}, s{s_t}, {FL_M}")
    push_flag(a, s_t, 1, 7, t0)
    a.label(l_nf)
    put_w2(4)
    a("s_barrier")
    put_w2(5)
    a(f"s_lshl_b32 s{s_t+2}, s{S_FLAG}, 7")
    a(f"s_add_u32 s{s_t+2}, s{s_t+2}, {FL_H}")
    poll(a, f"s{s_t+2}", 4, s_t); vm.q = []
    stamp(a, 5)
    for c2 in range(2, 6):
        issue_h(c2)
    a("s_waitcnt lgkmcnt(0)")
    for c2 in range(2, 8):
        vm.wait(("H", c2), ("W", c2))
        if c2 == 2: stamp(a, 6)
        stamp(a, c2 - 1, 5)
        a("s_barrier")
        stamp(a, c2 - 1, 6)
        if c2 in (3, 4):
            issue_h(c2 + 3); issue_w2(c2 + 3)
    stamp(a, 7, 5)
    a("s_barrier")
    stamp(a, 7, 6)
    a(f"s_branch {l_f3l}")


def twiddle(a, re, im, c_, s_, tmp):
    if "pktw" in OPT:
        for h in range(2):
            a(f"v_pk_mul_f32 {v(tmp,2)}, {v(im+2*h,2)}, {v(s_+2*h,2)}")
            a(f"v_pk_mul_f32 {v(tmp+2,2)}, {v(re+2*h,2)}, {v(s_+2*h,2)}")
            a(f"v_pk_fma_f32 {v(re+2*h,2)}, {v(re+2*h,2)}, {v(c_+2*h,2)}, {v(tmp,2)}")
            a(f"v_pk_fma_f32 {v(im+2*h,2)}, {v(im+2*h,2)}, {v(c_+2*h,2)}, {v(tmp+2,2)} neg_lo:[0,0,1] neg_hi:[0,0,1]")
        return
    for r in range(4):
        a(f"v_mul_f32 {v(tmp+r)}, {v(re+r)}, {v(s_+r)}")
    for r in range(4):
        a(f"v_mul_f32 {v(re+r)}, {v(re+r)}, {v(c_+r)}")
    for r in range(4):
        a(f"v_fmac_f32 {v(re+r)}, {v(im+r)}, {v(s_+r)}")
    for r in range(4):
        a(f"v_fma_f32 {v(im+r)}, {v(im+r)}, {v(c_+r)}, -{v(tmp+r)}")


def copy_out(a, lds_v, g_v, regs, pitch2, s_base, step, s_t):
    for ii in range(8):
        a(f"ds_read_b128 {v(regs[ii],4)}, {v(lds_v)} offset:{ii*pitch2}")
    a("s_mov_b32 exec_lo, 0x3fffff")
    a("s_mov_b32 exec_hi, 0x3fffff")
    for ii in range(8):
        a(f"s_add_u32 s{s_t}, s{s_base}, {ii*step}")
        a(f"s_waitcnt lgkmcnt({7-ii})")
        a(f"buffer_store_dwordx4 {v(regs[ii],4)}, {v(g_v)}, {s(R_WS,4)}, s{s_t} offen {SC}")
    a("s_mov_b64 exec, -1")


def wave0_flag(a, base, vt):
    l = a.newlabel("L_w0")
    a(f"s_cmp_lg_u32 s{S_W}, 0")
    a(f"s_cbranch_scc1 {l}")
    a(f"s_lshl_b32 s{S_F2}, s{S_IDX}, 3")
    a(f"s_add_u32 s{S_F2}, s{S_F2}, {base}")
    push_flag(a, S_F2, 64, 9, vt)
    a.label(l)


L1_TAB, L1_XN, L1_ZX, L1_ST = 0, 16384, 57344, 0
L2_ZB, L2_WR, L2_WI, L2_TAB = 57344, 102400, 124928, 147456


def fft_role(a, l_f3, l_f3l):
    s_n = S_IDX
    SP = 368
    srd(a, R_A, P_X, 2621440)
    vp = Pool("v", 1, 248)
    i16, g, l16 = [vp.get() for _ in range(3)]
    t0 = vp.get(3, 2); t1 = t0 + 1; t2 = t0 + 2
    pf = vp.get(4, 4)
    s_t = S_T
    a(f"v_and_b32 {v(i16)}, 15, v0")
    a(f"v_lshrrev_b32 {v(g)}, 4, v0")
    xr = vp.get(20, 4)
    a(f"v_mul_u32_u24 {v(t0)}, {64*1280}, {v(g)}")
    a(f"v_lshl_add_u32 {v(t0)}, {v(i16)}, 4, {v(t0)}")
    a(f"s_lshl_b32 s{s_t}, s{S_W}, 8")
    a(f"s_add_u32 s{s_t}, s{s_t}, s{s_n}")
    a(f"s_mul_i32 s{s_t}, s{s_t}, 1280")
    for i in range(5):
        a(f"buffer_load_dwordx4 {v(xr+4*i,4)}, {v(t0)}, {s(R_A,4)}, s{s_t} offen offset:{256*i}")
    a(f"v_lshlrev_b32 {v(l16)}, 4, v0")
    a(f"s_lshl_b32 s{s_t}, s{S_W}, 11")
    a(f"s_add_u32 m0, s{s_t}, {L1_TAB}")
    for i in range(2):
        a(f"buffer_load_dwordx4 {v(l16)}, {s(R_TAB,4)}, s{s_t} offen offset:{i*1024} lds")
    a(f"s_add_u32 m0, s{s_t}, {L2_TAB}")
    a(f"s_add_u32 s{s_t}, s{s_t}, {TAB_F2}")
    for i in range(2):
        a(f"buffer_load_dwordx4 {v(l16)}, {s(R_TAB,4)}, s{s_t} offen offset:{i*1024} lds")
    mf = vp.get(8, 4)
    k1v = vp.get()
    a(f"s_and_b32 s{s_t}, s{S_W}, 1")
    a(f"s_lshl_b32 s{s_t}, s{s_t}, 4")
    a(f"v_add_u32 {v(k1v)}, s{s_t}, {v(i16)}")
    a(f"s_and_b32 s{s_t}, s{S_W}, 2")
    a(f"s_lshl_b32 s{s_t}, s{s_t}, 8")
    a(f"v_lshlrev_b32 {v(t0)}, 8, {v(g)}")
    a(f"v_add_u32 {v(t0)}, s{s_n}, {v(t0)}")
    a(f"v_mul_u32_u24 {v(t0)}, {v(t0)}, {v(k1v)}")
    a(f"v_add_u32 {v(t0)}, s{s_t}, {v(t0)}")
    a(f"v_lshlrev_b32 {v(k1v)}, 6, {v(k1v)}")
    for ks in range(2):
        for jj in range(4):
            a(f"v_mad_u32_u24 {v(t1)}, {v(k1v)}, {16*ks+jj}, {v(t0)}")
            a(f"v_and_b32 {v(t1)}, 2047, {v(t1)}")
            a(f"v_cvt_f32_u32 {v(t1)}, {v(t1)}")
            a(f"v_mul_f32 {v(t1)}, {hex(f2u(1/2048))}, {v(t1)}")
            a(f"v_cos_f32 {v(t2)}, {v(t1)}")
            a(f"v_sin_f32 {v(t1)}, {v(t1)}")
            a(f"v_cvt_pk_bf16_f32 {v(mf+4*ks+jj)}, {v(t2)}, {v(t1)}")
    a(f"v_mov_b32 {v(t1)}, 0")
    a(f"v_and_b32 {v(t0)}, 31, v0")
    a(f"v_lshlrev_b32 {v(t0)}, 2, {v(t0)}")
    a(f"v_add_u32 {v(t0)}, {L1_ZX + 321*128}, {v(t0)}")
    a(f"ds_write_b32 {v(t0)}, {v(t1)}")
    za = [vp.get() for _ in range(8)]
    a(f"v_mul_u32_u24 {v(t0)}, 80, {v(g)}")
    a(f"v_add_u32 {v(t0)}, {v(t0)}, {v(i16)}")
    for u in range(2):
        for r in range(4):
            z = za[4*u+r]
            if u == 0:
                a(f"v_add_u32 {v(t1)}, {20*r}, {v(t0)}")
            else:
                a(f"v_sub_u32 {v(t1)}, {320-20*r}, {v(t0)}")
            a(f"v_and_b32 {v(t2)}, 7, {v(t1)}")
            a(f"v_xor_b32 {v(t2)}, s{S_W}, {v(t2)}")
            a(f"v_lshlrev_b32 {v(t2)}, 4, {v(t2)}")
            a(f"v_lshl_add_u32 {v(z)}, {v(t1)}, 7, {v(t2)}")
            a(f"v_add_u32 {v(z)}, {L1_ZX}, {v(z)}")
    xw, ta0, ta1 = vp.get(), vp.get(), vp.get()
    a(f"s_mul_i32 s{s_t}, s{S_W}, {4*1280}")
    a(f"s_add_u32 s{s_t}, s{s_t}, {L1_XN}")
    a(f"v_mul_u32_u24 {v(xw)}, 1280, {v(g)}")
    a(f"v_lshl_add_u32 {v(xw)}, {v(i16)}, 4, {v(xw)}")
    a(f"v_add_u32 {v(xw)}, s{s_t}, {v(xw)}")
    a(f"v_and_b32 {v(t0)}, 3, v0")
    a(f"v_lshlrev_b32 {v(t0)}, 3, {v(t0)}")
    a(f"v_add_u32 {v(t0)}, s{s_t}, {v(t0)}")
    a(f"v_lshrrev_b32 {v(t1)}, 2, v0")
    a(f"v_lshl_add_u32 {v(ta0)}, {v(t1)}, 6, {v(t0)}")
    a(f"v_and_b32 {v(t1)}, 3, {v(t1)}")
    a(f"v_lshl_add_u32 {v(ta1)}, {v(t1)}, 6, {v(t0)}")
    a(f"v_add_u32 {v(ta1)}, 1024, {v(ta1)}")
    ca = [vp.get() for _ in range(4)]
    s_hf = S_T + 2
    a(f"s_lshr_b32 s{s_hf}, s{S_W}, 2")
    a(f"v_and_b32 {v(t0)}, 7, v0")
    a(f"v_xor_b32 {v(t0)}, {v(t0)}, {v(g)}")
    a(f"v_lshlrev_b32 {v(t0)}, 4, {v(t0)}")
    a(f"v_lshl_add_u32 {v(t0)}, {v(i16)}, 7, {v(t0)}")
    a(f"s_mul_i32 s{s_t}, s{s_hf}, {11*2048}")
    a(f"s_add_u32 s{s_t}, s{s_t}, {L1_ZX}")
    a(f"v_add_u32 {v(ca[0])}, s{s_t}, {v(t0)}")
    a(f"v_xor_b32 {v(ca[1])}, 64, {v(ca[0])}")
    a(f"v_lshlrev_b32 {v(t0)}, 4, {v(g)}")
    a(f"v_add_u32 {v(t0)}, {L1_ZX + 320*128}, {v(t0)}")
    a(f"v_add_u32 {v(t1)}, 128, {v(t0)}")
    a(f"v_cmp_eq_u32 vcc, 7, {v(i16)}")
    a(f"v_cndmask_b32 {v(t0)}, {v(t1)}, {v(t0)}, vcc")
    a(f"v_add_u32 {v(t1)}, {9*2048}, {v(ca[0])}")
    a(f"s_cmp_eq_u32 s{s_hf}, 1")
    a(f"s_cselect_b64 vcc, -1, 0")
    a(f"v_cndmask_b32 {v(ca[2])}, {v(t1)}, {v(t0)}, vcc")
    a(f"v_xor_b32 {v(ca[3])}, 64, {v(ca[2])}")
    sw, sr, gv = vp.get(), vp.get(), vp.get()
    a(f"s_mul_i32 s{s_t}, s{S_W}, {16*SP}")
    a(f"v_mul_u32_u24 {v(sw)}, {SP}, {v(i16)}")
    a(f"v_lshl_add_u32 {v(sw)}, {v(g)}, 3, {v(sw)}")
    a(f"v_add_u32 {v(sw)}, s{s_t}, {v(sw)}")
    a(f"v_lshrrev_b32 {v(t0)}, 5, v0")
    a(f"v_and_b32 {v(t1)}, 31, v0")
    a(f"v_lshlrev_b32 {v(t1)}, 4, {v(t1)}")
    a(f"v_mul_u32_u24 {v(sr)}, {SP}, {v(t0)}")
    a(f"v_add3_u32 {v(sr)}, {v(sr)}, {v(t1)}, s{s_t}")
    a(f"v_mul_u32_u24 {v(gv)}, 90112, {v(t0)}")
    a(f"v_add_u32 {v(gv)}, {v(gv)}, {v(t1)}")
    s_k1, s_h2 = S_T + 6, S_T + 7
    a(f"s_lshr_b32 s{s_k1}, s{S_IDX}, 1")
    a(f"s_and_b32 s{s_h2}, s{S_IDX}, 1")
    wv = [vp.get() for _ in range(3)]
    a(f"s_mul_i32 s{s_t+1}, s{s_h2}, 176")
    for i in range(3):
        a(f"s_lshl_b32 s{s_t}, s{S_W}, 6")
        a(f"s_add_u32 s{s_t}, s{s_t}, {512*i}")
        a(f"v_add_u32 {v(t2)}, s{s_t}, v0")
        divmod_const(a, t0, t1, t2, 22)
        a(f"v_lshlrev_b32 {v(t1)}, 3, {v(t1)}")
        a(f"v_add_u32 {v(t1)}, s{s_t+1}, {v(t1)}")
        a(f"v_min_u32 {v(t1)}, 313, {v(t1)}")
        a(f"v_mul_u32_u24 {v(wv[i])}, {32*642}, {v(t0)}")
        a(f"v_lshl_add_u32 {v(wv[i])}, {v(t1)}, 1, {v(wv[i])}")
    srd(a, R_B, P_WR, 1314816); srd(a, R_C, P_WI, 1314816)
    mk = vp.mark()
    f = vp.get(40, 2)
    ac = vp.get(8, 2); rr = vp.get(2, 2); e0 = vp.get(4, 4)
    mean, var, m, den, m2, den2 = [vp.get() for _ in range(6)]
    a("s_waitcnt lgkmcnt(0)")
    nonce(a)
    stamp(a, 1)
    for i in range(20):
        if i % 4 == 0:
            a(f"s_waitcnt vmcnt({8 - i//4})")
        a(f"v_lshlrev_b32 {v(f+2*i)}, 16, {v(xr+i)}")
        a(f"v_and_b32 {v(f+2*i+1)}, 0xffff0000, {v(xr+i)}")
        if i < 2:
            a(f"v_pk_mul_f32 {v(ac+4+2*i,2)}, {v(f+2*i,2)}, {v(f+2*i,2)}")
        else:
            a(f"v_pk_fma_f32 {v(ac+4+2*(i&1),2)}, {v(f+2*i,2)}, {v(f+2*i,2)}, {v(ac+4+2*(i&1),2)}")
        if i in (2, 3):
            a(f"v_pk_add_f32 {v(ac+2*(i&1),2)}, {v(f+2*i-4,2)}, {v(f+2*i,2)}")
        elif i > 3:
            a(f"v_pk_add_f32 {v(ac+2*(i&1),2)}, {v(ac+2*(i&1),2)}, {v(f+2*i,2)}")
    stamp(a, 2)
    a(f"v_pk_add_f32 {v(ac,2)}, {v(ac,2)}, {v(ac+2,2)}")
    a(f"v_pk_add_f32 {v(ac+4,2)}, {v(ac+4,2)}, {v(ac+6,2)}")
    a(f"v_add_f32 {v(mean)}, {v(ac)}, {v(ac+1)}")
    a(f"v_add_f32 {v(var)}, {v(ac+4)}, {v(ac+5)}")
    for sh in (8, 4, 2, 1):
        for dst in (mean, var):
            a(f"v_add_f32_dpp {v(dst)}, {v(dst)}, {v(dst)} row_ror:{sh} row_mask:0xf bank_mask:0xf")
    a(f"v_mul_f32 {v(mean)}, {hex(f2u(1/640))}, {v(mean)}")
    a(f"v_mul_f32 {v(var)}, {hex(f2u(1/640))}, {v(var)}")
    a(f"v_fma_f32 {v(var)}, -{v(mean)}, {v(mean)}, {v(var)}")
    a(f"v_max_f32 {v(var)}, 0, {v(var)}")
    bf16r(a, m, mean)
    bf16r(a, den, var)
    a(f"v_add_f32 {v(den)}, {hex(f2u(1e-5))}, {v(den)}")
    bf16r(a, den, den)
    a(f"v_sqrt_f32 {v(den)}, {v(den)}")
    bf16r(a, den, den)
    a(f"v_rcp_f32 {v(rr)}, {v(den)}")
    a(f"v_mul_f32 {v(rr+1)}, {v(m)}, {v(rr)}")
    a(f"v_sub_f32 {v(m2)}, {v(mean)}, {v(m)}")
    a(f"v_mul_f32 {v(m2)}, {v(m2)}, {v(rr)}")
    bf16r(a, m2, m2)
    a(f"v_mul_f32 {v(den2)}, {v(var)}, {v(rr)}")
    a(f"v_mul_f32 {v(den2)}, {v(den2)}, {v(rr)}")
    bf16r(a, den2, den2)
    a(f"v_add_f32 {v(den2)}, {hex(f2u(1e-5))}, {v(den2)}")
    bf16r(a, den2, den2)
    a(f"v_sqrt_f32 {v(den2)}, {v(den2)}")
    bf16r(a, den2, den2)
    a(f"v_rcp_f32 {v(den2)}, {v(den2)}")
    a(f"v_mul_f32 {v(e0)}, {v(rr)}, {v(den2)}")
    a(f"v_fma_f32 {v(m)}, {v(m2)}, {v(den)}, {v(m)}")
    a(f"v_mul_f32 {v(e0+2)}, {v(e0)}, {v(m)}")
    a(f"v_sub_f32 {v(e0+2)}, 0, {v(e0+2)}")
    a(f"v_mov_b32 {v(e0+1)}, s{S_E}")
    a(f"v_mov_b32 {v(e0+3)}, s{S_E+1}")
    a(f"s_lshl_b32 s{s_t}, s{s_n}, 3")
    a(f"s_add_u32 s{s_t}, s{s_t}, s{S_W}")
    a(f"s_lshl_b32 s{s_t}, s{s_t}, 6")
    a(f"s_add_u32 s{s_t}, s{s_t}, {WS_ST}")
    a(f"v_lshlrev_b32 {v(t0)}, 4, {v(g)}")
    a("s_mov_b32 exec_lo, 0x00010001")
    a("s_mov_b32 exec_hi, 0x00010001")
    a(f"buffer_store_dwordx4 {v(e0,4)}, {v(t0)}, {s(R_WS,4)}, s{s_t} offen {SC}")
    a("s_mov_b64 exec, -1")
    for i in range(20):
        a(f"v_pk_fma_f32 {v(f+2*i,2)}, {v(f+2*i,2)}, {v(rr,2)}, {v(rr,2)} op_sel:[0,0,1] op_sel_hi:[1,0,1] neg_lo:[0,0,1] neg_hi:[0,0,1]")
        a(f"v_cvt_pk_bf16_f32 {v(xr+i)}, {v(f+2*i)}, {v(f+2*i+1)}")
        if i % 4 == 3:
            a(f"ds_write_b128 {v(xw)}, {v(xr+i-3,4)} offset:{64*(i-3)}")
    vp.reset(mk)
    tb = vp.get(56, 4)
    F20 = [tb, tb + 4]; F32 = [tb + 8 + 4*i for i in range(8)]; TW = [tb + 40 + 4*i for i in range(4)]
    a("s_waitcnt vmcnt(1) lgkmcnt(0)")
    a("s_barrier")
    stamp(a, 3)
    s_wb, s_wm0 = S_T + 8, S_T + 9
    a(f"s_mul_i32 s{s_wb}, s{s_k1}, 642")
    a(f"s_lshl_b32 s{s_wm0}, s{S_W}, 10")

    def wdma(k):
        i, pl = k >> 1, k & 1
        l2 = a.newlabel("L_f2b")
        if i == 2:
            a(f"s_cmp_ge_u32 s{S_W}, 6")
            a(f"s_cbranch_scc1 {l2}")
        a(f"s_add_u32 m0, s{s_wm0}, {(L2_WI if pl else L2_WR) + i*8192}")
        dma(a, wv[i], R_C if pl else R_B, f"s{s_wb}")
        a.label(l2)
    wdma(0)
    af = [[vp.get(4, 4) for t in range(2)] for row in range(4)]
    d = [[[vp.get(4, 4) for pl in range(2)] for t in range(2)] for row in range(4)]
    zo = [xr + 4*i for i in range(5)] + [vp.get(4, 4) for _ in range(3)]
    tmp = [vp.get(4, 4) for _ in range(2)]
    for i in range(2):
        a(f"ds_read_b128 {v(tb+4*i,4)}, {v(l16)} offset:{L1_TAB+1024*i}")
    for row in range(4):
        for t in range(2):
            a(f"ds_read_b64_tr_b16 {v(af[row][t],2)}, {v(ta0)} offset:{row*1280+t*32}")
            a(f"ds_read_b64_tr_b16 {v(af[row][t]+2,2)}, {v(ta1)} offset:{row*1280+t*32}")
        if row == 2:
            a("s_waitcnt lgkmcnt(8)")
    a("s_waitcnt lgkmcnt(0)")
    for i in list(range(10, 14)) + list(range(2, 10)):
        a(f"ds_read_b128 {v(tb+4*i,4)}, {v(l16)} offset:{L1_TAB+1024*i}")
    for row in range(4):
        for t in range(2):
            for pl in range(2):
                mfma(a, d[row][t][pl], af[row][t], F20[pl], "0")
    wdma(1)
    a("s_waitcnt lgkmcnt(8)")
    for row in range(4):
        for t in range(2):
            twiddle(a, d[row][t][0], d[row][t][1], TW[2*t], TW[2*t+1], tmp[t])
        for pl in range(2):
            for t in range(2):
                for h in range(2):
                    a(f"v_cvt_pk_bf16_f32 {v(af[row][pl]+2*t+h)}, {v(d[row][t][pl]+2*h)}, {v(d[row][t][pl]+2*h+1)}")
        if row == 0:
            a("s_waitcnt lgkmcnt(0)")
        for u in range(2):
            for op in range(2):
                mfma(a, d[row][u][op], F32[4*u+2*op], af[row][0], "0")
        for u in range(2):
            for op in range(2):
                mfma(a, d[row][u][op], F32[4*u+2*op+1], af[row][1])
        wdma(2 + row)
    for row in range(4):
        for u in range(2):
            for r in range(4):
                a(f"v_cvt_pk_bf16_f32 {v(zo[4*u+r]+row)}, {v(d[row][u][0]+r)}, {v(d[row][u][1]+r)}")
    for i in range(8):
        a(f"ds_write_b128 {v(za[i])}, {v(zo[i],4)}")
    vp.reset(mk)
    zf = [[vp.get(4, 4) for ks in range(2)] for i in range(11)]
    dd = [vp.get(4, 4) for i in range(11)]
    a("s_waitcnt lgkmcnt(0)")
    a("s_barrier")
    stamp(a, 4)

    def crd(i):
        for ks in range(2):
            if i == 9:
                a(f"ds_read_b128 {v(zf[i][ks],4)}, {v(ca[2+ks])}")
            else:
                a(f"ds_read_b128 {v(zf[i][ks],4)}, {v(ca[ks])} offset:{i*2048}")
    for i in range(6):
        crd(i)
    for i in range(11):
        if i + 6 < 11:
            a("s_waitcnt lgkmcnt(10)")
        else:
            a(f"s_waitcnt lgkmcnt({2*(10-i)})")
        mfma(a, dd[i], zf[i][0], mf, "0")
        mfma(a, dd[i], zf[i][1], mf + 4)
        if i + 6 < 11:
            crd(i + 6)
    for i in range(11):
        a(f"v_cvt_pk_bf16_f32 {v(dd[i])}, {v(dd[i])}, {v(dd[i]+1)}")
        a(f"v_cvt_pk_bf16_f32 {v(dd[i]+1)}, {v(dd[i]+2)}, {v(dd[i]+3)}")
        a(f"ds_write_b64 {v(sw)}, {v(dd[i],2)} offset:{L1_ST + i*32}")
    s_b = S_T + 3
    a(f"s_and_b32 s{s_b}, s{S_W}, 1")
    a(f"s_lshl_b32 s{s_b}, s{s_b}, 12")
    a(f"s_lshl_b32 s{s_t}, s{s_hf}, 7")
    a(f"s_add_u32 s{s_b}, s{s_b}, s{s_t}")
    a(f"s_and_b32 s{s_t}, s{S_W}, 2")
    a(f"s_lshl_b32 s{s_t}, s{s_t}, 5")
    a(f"s_add_u32 s{s_b}, s{s_b}, s{s_t}")
    a(f"s_add_u32 s{s_b}, s{s_b}, s{s_n}")
    a(f"s_mul_i32 s{s_b}, s{s_b}, 352")
    a(f"s_add_u32 s{s_b}, s{s_b}, {WS_ZP}")
    a("s_waitcnt lgkmcnt(0)")
    stamp(a, 1, 7)
    copy_out(a, sr, gv, [zf[i][0] for i in range(8)], 2*SP, s_b, 180224, s_t)
    stamp(a, 2, 7)

    vp.reset(mk)
    s_b, s_i = S_T + 4, S_T + 5
    ra, rw, wa, tadr = za[0], za[1], za[2], za[3]
    a(f"v_lshrrev_b32 {v(t0)}, 2, v0")
    a(f"v_mul_u32_u24 {v(ra)}, 352, {v(t0)}")
    a(f"v_and_b32 {v(t0)}, 3, v0")
    a(f"v_lshl_add_u32 {v(ra)}, {v(t0)}, 3, {v(ra)}")
    a(f"s_lshl_b32 s{s_t}, s{S_W}, 5")
    a(f"s_add_u32 s{s_t}, s{s_t}, {L2_ZB}")
    a(f"v_add_u32 {v(ra)}, s{s_t}, {v(ra)}")
    a(f"v_add_u32 {v(rw)}, {L2_WR - L2_ZB}, {v(ra)}")
    a(f"v_mul_u32_u24 {v(wa)}, 352, {v(i16)}")
    a(f"v_lshl_add_u32 {v(wa)}, {v(g)}, 3, {v(wa)}")
    a(f"v_add_u32 {v(wa)}, s{s_t}, {v(wa)}")
    a(f"v_add_u32 {v(tadr)}, {L2_TAB}, {v(l16)}")
    a("s_waitcnt vmcnt(0)")
    a("s_barrier")
    stamp(a, 5)
    stamp(a, 3, 7)
    spare = vp.get(32, 4)
    tb = vp.get(96, 4)
    C = [[tb + 8*t + 4*ks for ks in range(2)] for t in range(4)]
    Sm = [[tb + 32 + 8*t + 4*ks for ks in range(2)] for t in range(4)]
    NS = [[tb + 64 + 8*t + 4*ks for ks in range(2)] for t in range(4)]
    X = [[spare + 16*pl + 4*t for t in range(4)] for pl in range(2)]
    z = [[vp.get(4, 4) for ks in range(2)] for pl in range(2)]
    wq = [[xr + 8*pl + 2*t for t in range(4)] for pl in range(2)]
    wu = [vp.get(4, 4) for _ in range(4)]
    tmp = vp.get(4, 4)
    wave0_flag(a, FL_Z, t0)
    l_np = a.newlabel("L_np")
    a(f"s_cmp_lg_u32 s{S_W}, 7")
    a(f"s_cbranch_scc1 {l_np}")
    a(f"s_lshl_b32 s{s_t+2}, s{S_IDX}, 9")
    a(f"s_add_u32 s{s_t+2}, s{s_t+2}, {FL_Z}")
    poll(a, f"s{s_t+2}", 64, s_t)
    a.label(l_np)
    for i in range(16):
        a(f"ds_read_b128 {v(tb+4*i,4)}, {v(tadr)} offset:{1024*i}")
        if i == 11:
            a("s_waitcnt lgkmcnt(4)")
    a("s_barrier")
    stamp(a, 6)
    stamp(a, 4, 7)
    a(f"s_mul_i32 s{s_b}, s{S_IDX}, 45056")
    a(f"s_lshl_b32 s{s_i}, s{S_W}, 10")
    a(f"s_add_u32 s{s_b}, s{s_b}, s{s_i}")
    l1 = a.newlabel("L_f2a")
    for i in range(6):
        if i == 5:
            a(f"s_cmp_ge_u32 s{S_W}, 4")
            a(f"s_cbranch_scc1 {l1}")
        a(f"s_add_u32 m0, s{s_i}, {L2_ZB + i*8192}")
        a(f"s_add_u32 s{s_t}, s{s_b}, {WS_ZP + i*8192}")
        dma(a, l16, R_WS, f"s{s_t}", SCL)
    a.label(l1)
    a("s_waitcnt lgkmcnt(0)")
    for i in range(32):
        a(f"v_xor_b32 {v(tb+64+i)}, 0x80008000, {v(tb+32+i)}")
    a(f"s_mov_b32 s{s_i}, s{S_W}")
    a(f"s_sub_u32 s{s_b}, 11, s{s_h2}")
    a("s_waitcnt vmcnt(0)")
    a("s_barrier")
    stamp(a, 7)
    l_loop = a.newlabel("L_f2l")
    a.label(l_loop)
    for pl in range(2):
        for ks in range(2):
            for h in range(2):
                a(f"ds_read_b64_tr_b16 {v(z[pl][ks]+2*h,2)}, {v(ra)} offset:{(pl*64+32*ks+16*h)*352}")
    a("s_waitcnt lgkmcnt(0)")
    for pl in range(2):
        for t in range(4):
            a(f"ds_read_b64_tr_b16 {v(wq[pl][t],2)}, {v(rw)} offset:{pl*22528+16*t*352}")
    for t in range(4):
        mfma(a, X[0][t], C[t][0], z[0][0], "0")
        mfma(a, X[1][t], C[t][0], z[1][0], "0")
        mfma(a, X[0][t], C[t][1], z[0][1])
        mfma(a, X[1][t], C[t][1], z[1][1])
        mfma(a, X[0][t], Sm[t][0], z[1][0])
        mfma(a, X[1][t], NS[t][0], z[0][0])
        mfma(a, X[0][t], Sm[t][1], z[1][1])
        mfma(a, X[1][t], NS[t][1], z[0][1])
    a("s_waitcnt lgkmcnt(0)")
    for t in range(4):
        wr_, wi_ = wu[2*(t&1)], wu[2*(t&1)+1]
        for pl, dst in ((0, wr_), (1, wi_)):
            for h in range(2):
                a(f"v_lshlrev_b32 {v(dst+2*h)}, 16, {v(wq[pl][t]+h)}")
                a(f"v_and_b32 {v(dst+2*h+1)}, 0xffff0000, {v(wq[pl][t]+h)}")
        re, im = X[0][t], X[1][t]
        for r in range(4):
            a(f"v_mul_f32 {v(tmp+r)}, {v(im+r)}, {v(wi_+r)}")
        for r in range(4):
            a(f"v_mul_f32 {v(im+r)}, {v(im+r)}, {v(wr_+r)}")
        for r in range(4):
            a(f"v_fmac_f32 {v(im+r)}, {v(re+r)}, {v(wi_+r)}")
        for r in range(4):
            a(f"v_fma_f32 {v(re+r)}, {v(re+r)}, {v(wr_+r)}, -{v(tmp+r)}")
        for pl in range(2):
            for h in range(2):
                a(f"v_cvt_pk_bf16_f32 {v(z[pl][t>>1]+2*(t&1)+h)}, {v(X[pl][t]+2*h)}, {v(X[pl][t]+2*h+1)}")
    for t in range(4):
        mfma(a, X[0][t], z[0][0], C[t][0], "0")
        mfma(a, X[1][t], z[1][0], C[t][0], "0")
        mfma(a, X[0][t], z[0][1], C[t][1])
        mfma(a, X[1][t], z[1][1], C[t][1])
        mfma(a, X[0][t], z[1][0], NS[t][0])
        mfma(a, X[1][t], z[0][0], Sm[t][0])
        mfma(a, X[0][t], z[1][1], NS[t][1])
        mfma(a, X[1][t], z[0][1], Sm[t][1])
    for t in range(4):
        for pl in range(2):
            r = X[pl][t]
            a(f"v_cvt_pk_bf16_f32 {v(r)}, {v(r)}, {v(r+1)}")
            a(f"v_cvt_pk_bf16_f32 {v(r+1)}, {v(r+2)}, {v(r+3)}")
            a(f"ds_write_b64 {v(wa)}, {v(r,2)} offset:{(pl*64+16*t)*352}")
    for r in (ra, rw, wa):
        a(f"v_add_u32 {v(r)}, 256, {v(r)}")
    a(f"s_add_u32 s{s_i}, s{s_i}, 8")
    a(f"s_cmp_lt_u32 s{s_i}, s{s_b}")
    a("s_waitcnt lgkmcnt(0)")
    a(f"s_cbranch_scc1 {l_loop}")
    sr, gv = ra, rw
    a(f"v_lshrrev_b32 {v(t0)}, 5, v0")
    a(f"v_and_b32 {v(t1)}, 31, v0")
    a(f"v_lshlrev_b32 {v(t1)}, 4, {v(t1)}")
    a(f"s_mul_i32 s{s_t}, s{S_W}, {16*352}")
    a(f"s_add_u32 s{s_t}, s{s_t}, {L2_ZB}")
    a(f"v_mul_u32_u24 {v(sr)}, 352, {v(t0)}")
    a(f"v_add3_u32 {v(sr)}, {v(sr)}, {v(t1)}, s{s_t}")
    a(f"v_mul_u32_u24 {v(gv)}, 45056, {v(t0)}")
    a(f"v_add_u32 {v(gv)}, {v(gv)}, {v(t1)}")
    a(f"s_and_b32 s{s_b}, s{S_W}, 3")
    a(f"s_lshl_b32 s{s_b}, s{s_b}, 11")
    a(f"s_lshl_b32 s{s_t}, s{s_h2}, 6")
    a(f"s_add_u32 s{s_b}, s{s_b}, s{s_t}")
    a(f"s_and_b32 s{s_t}, s{S_W}, 4")
    a(f"s_lshl_b32 s{s_t}, s{s_t}, 3")
    a(f"s_add_u32 s{s_b}, s{s_b}, s{s_t}")
    a(f"s_add_u32 s{s_b}, s{s_b}, s{s_k1}")
    a(f"s_mul_i32 s{s_b}, s{s_b}, 352")
    a(f"s_add_u32 s{s_b}, s{s_b}, {WS_VP}")
    a("s_barrier")
    stamp(a, 8)
    stamp(a, 5, 7)
    copy_out(a, sr, gv, [tb + 4*i for i in range(8)], 2*352, s_b, 90112, s_t)
    stamp(a, 6, 7)
    a("s_waitcnt vmcnt(0)")
    a("s_barrier")
    stamp(a, 7, 7)
    wave0_flag(a, FL_V, t0)
    a(f"s_mov_b32 s{S_PJ}, 0")
    a(f"s_cmp_ge_u32 s{S_W}, 4")
    a(f"s_cbranch_scc1 {l_f3l}")
    a(f"s_branch {l_f3}")


def f3(a, l_f3, l_f3l):
    UP = 1376
    vp = Pool("v", 1, 248)
    i16, g, l16 = [vp.get() for _ in range(3)]
    t0 = vp.get(3, 2); t1 = t0 + 1; t2 = t0 + 2
    s_t, s_b, s_i, s_row, s_p = S_T, S_T + 3, S_T + 4, S_T + 5, S_T + 6
    s_n, s_qt = S_N3, S_Q3
    a.label(l_f3l)
    a(f"s_mov_b32 s{S_PJ}, 0")
    a(f"v_lshlrev_b32 {v(l16)}, 4, v0")
    l_w4 = a.newlabel("L_w4")
    a(f"s_cmp_eq_u32 s{S_W}, 4")
    a(f"s_cbranch_scc1 {l_w4}")
    a(f"s_sub_u32 s{s_i}, s{S_W}, 5")
    a(f"s_mul_i32 s{s_i}, s{s_i}, 5120")
    for i in range(2):
        a(f"s_add_u32 m0, s{s_i}, {L3_TAB + i*4096}")
        a(f"s_add_u32 s{s_t}, s{s_i}, {TAB_F3 + i*4096}")
        for k in range(4 if i == 0 else 1):
            a(f"buffer_load_dwordx4 {v(l16)}, {s(R_TAB,4)}, s{s_t} offen offset:{k*1024} lds")
    a(f"s_or_b32 s{s_t}, s2, s{s_i}")
    a(f"s_cbranch_scc1 {l_f3}")
    advance_epoch(a, t0, s_t)
    a(f"s_branch {l_f3}")
    a.label(l_w4)
    a(f"s_lshl_b32 s{s_t+2}, s{s_n}, 9")
    a(f"s_add_u32 s{s_t+2}, s{s_t+2}, {FL_V}")
    poll(a, f"s{s_t+2}", 64, s_t)
    stamp3(a, 7)
    stamp(a, 8, 7)
    a(f"s_mul_i32 s{s_b}, s{s_n}, 45056")
    for i in range(11):
        a(f"s_mov_b32 m0, {L3_VB + i*4096}")
        a(f"s_add_u32 s{s_t}, s{s_b}, {WS_VP + i*4096}")
        for k in range(4):
            a(f"buffer_load_dwordx4 {v(l16)}, {s(R_WS,4)}, s{s_t} offen offset:{k*1024} {SCL} lds")
    a(f"s_lshl_b32 s{s_t+2}, s{s_n}, 2")
    a(f"s_add_u32 s{s_t+2}, s{s_t+2}, s{s_qt}")
    a(f"s_lshl_b32 s{s_t+2}, s{s_t+2}, 8")
    a(f"s_add_u32 s{s_t+2}, s{s_t+2}, {FL_P}")
    poll_addr(a, f"s{s_t+2}", 24, s_t)
    a(f"buffer_load_dwordx2 {v(t0,2)}, {v(V_POLL+6)}, {s(R_WS,4)}, s{s_t+1} offen {SC}")
    a("s_waitcnt vmcnt(0)")
    a(f"v_cmp_ne_u64 vcc, s[{S_E}:{S_E+1}], {v(t0,2)}")
    a(f"s_cmp_eq_u64 vcc, 0")
    a(f"s_cselect_b32 s{s_t}, 1, 0")
    a(f"v_mov_b32 {v(t0)}, s{s_t}")
    a(f"v_mov_b32 {v(t1)}, {L3_HAVE}")
    a(f"ds_write_b32 {v(t1)}, {v(t0)}")
    a.label(l_f3)
    srd(a, R_A, P_X, 2621440); srd(a, R_B, P_B2, 1280); srd(a, R_C, P_OUT, 2621440)
    a(f"v_and_b32 {v(i16)}, 15, v0")
    a(f"v_lshrrev_b32 {v(g)}, 4, v0")
    a(f"v_lshlrev_b32 {v(l16)}, 4, v0")
    a(f"s_lshl_b32 s{s_t}, s{s_qt}, 3")
    a(f"s_add_u32 s{s_t}, s{s_t}, s{S_W}")
    a(f"s_lshl_b32 s{s_row}, s{s_t}, 6")
    a(f"s_add_u32 s{s_row}, s{s_row}, s{s_n}")
    a(f"s_mul_i32 s{s_row}, s{s_row}, 1280")
    a(f"s_lshl_b32 s{s_p}, s{s_n}, 5")
    a(f"s_add_u32 s{s_p}, s{s_p}, s{s_t}")
    a(f"s_mul_i32 s{s_p}, s{s_p}, 160")
    a(f"s_add_u32 s{s_p}, s{s_p}, {WS_P}")
    vp.get(100)
    l4, pa, pb = vp.get(), vp.get(), vp.get()
    a(f"v_lshlrev_b32 {v(l4)}, 2, v0")
    PA = [vp.get(4, 4) for _ in range(5)]
    PB = [vp.get() for _ in range(5)]
    a(f"buffer_load_dwordx4 {v(PA[3],4)}, {v(l16)}, {s(R_B,4)}, 0 offen")
    a(f"buffer_load_dword {v(PB[3])}, {v(l4)}, {s(R_B,4)}, 0 offen offset:1024")
    a(f"buffer_load_dwordx4 {v(PA[4],4)}, {v(l16)}, {s(R_A,4)}, s{s_row} offen")
    a(f"buffer_load_dword {v(PB[4])}, {v(l4)}, {s(R_A,4)}, s{s_row} offen offset:1024")
    divmod_const(a, t0, t1, 0, 10)
    a(f"v_mul_u32_u24 {v(pa)}, {2048*160}, {v(t0)}")
    a(f"v_lshl_add_u32 {v(pa)}, {v(t1)}, 4, {v(pa)}")
    a(f"v_add_u32 {v(t2)}, 256, v0")
    divmod_const(a, t0, t1, t2, 40)
    a(f"v_mul_u32_u24 {v(pb)}, {2048*160}, {v(t0)}")
    a(f"v_lshl_add_u32 {v(pb)}, {v(t1)}, 2, {v(pb)}")
    gf = vp.get(8, 4)
    sv, ph = vp.get(), vp.get()
    a(f"v_lshrrev_b32 {v(t0)}, 1, {v(i16)}")
    a(f"s_lshl_b32 s{s_t}, s{s_qt}, 9")
    a(f"s_add_u32 s{s_t}, s{s_t}, s{s_n}")
    a(f"v_lshlrev_b32 {v(sv)}, 6, {v(t0)}")
    a(f"v_add_u32 {v(sv)}, s{s_t}, {v(sv)}")
    a(f"v_lshlrev_b32 {v(t0)}, 2, {v(g)}")
    a(f"v_mul_u32_u24 {v(ph)}, {v(sv)}, {v(t0)}")
    a(f"v_and_b32 {v(t0)}, 1, v0")
    a(f"v_mul_u32_u24 {v(t0)}, 1536, {v(t0)}")
    a(f"v_add_u32 {v(ph)}, {v(ph)}, {v(t0)}")
    cs_ = [vp.get() for _ in range(4)]
    for e2 in range(4):
        for hh in range(2):
            e = 2 * e2 + hh
            ko = e if e < 4 else 16 + e - 4
            a(f"v_mad_u32_u24 {v(t1)}, {v(sv)}, {ko}, {v(ph)}")
            a(f"v_and_b32 {v(t1)}, 2047, {v(t1)}")
            a(f"v_cvt_f32_u32 {v(t1)}, {v(t1)}")
            a(f"v_mul_f32 {v(t1)}, {hex(f2u(1/2048))}, {v(t1)}")
            a(f"v_cos_f32 {v(cs_[hh])}, {v(t1)}")
            a(f"v_sin_f32 {v(cs_[2+hh])}, {v(t1)}")
        a(f"v_cvt_pk_bf16_f32 {v(gf+e2)}, {v(cs_[0])}, {v(cs_[1])}")
        a(f"v_cvt_pk_bf16_f32 {v(gf+4+e2)}, -{v(cs_[2])}, -{v(cs_[3])}")
    ra = [vp.get() for _ in range(3)]; ua = [vp.get() for _ in range(3)]
    a(f"v_lshrrev_b32 {v(t0)}, 2, v0")
    a(f"v_mul_u32_u24 {v(t0)}, 352, {v(t0)}")
    a(f"v_and_b32 {v(t1)}, 3, v0")
    a(f"v_lshl_add_u32 {v(t0)}, {v(t1)}, 3, {v(t0)}")
    a(f"v_mul_u32_u24 {v(t1)}, {2*UP}, {v(g)}")
    a(f"v_lshl_add_u32 {v(t1)}, {v(i16)}, 2, {v(t1)}")
    for k in range(3):
        a(f"s_add_u32 s{s_t}, s{S_W}, {8*k}")
        a(f"s_min_u32 s{s_t}, s{s_t}, 20")
        a(f"s_cmp_ge_u32 s{s_t}, 11")
        a(f"s_cselect_b32 s{s_t+1}, {22528-352}, 0")
        a(f"s_lshl_b32 s{s_b}, s{s_t}, 5")
        a(f"s_add_u32 s{s_t+1}, s{s_t+1}, s{s_b}")
        a(f"v_add_u32 {v(ra[k])}, s{s_t+1}, {v(t0)}")
        a(f"s_lshl_b32 s{s_b}, s{s_t}, 6")
        a(f"s_add_u32 s{s_b}, s{s_b}, {L3_UX}")
        a(f"v_add_u32 {v(ua[k])}, s{s_b}, {v(t1)}")
    a(f"v_add_u32 {v(t0)}, 4, {v(ua[2])}")
    a(f"v_subrev_u32 {v(t1)}, 28, {v(ua[2])}")
    a(f"v_cmp_eq_u32 vcc, 7, {v(i16)}")
    a(f"v_cndmask_b32 {v(t0)}, {v(t0)}, {v(t1)}, vcc")
    a(f"s_cmp_ge_u32 s{S_W}, 4")
    a(f"s_cselect_b64 vcc, -1, 0")
    a(f"v_cndmask_b32 {v(ua[2])}, {v(ua[2])}, {v(t0)}, vcc")
    ub0, ub1, swr, srd0, srd1 = [vp.get() for _ in range(5)]
    a(f"s_mul_i32 s{s_t}, s{S_W}, {UP}")
    a(f"s_add_u32 s{s_t}, s{s_t}, {L3_UX}")
    a(f"v_mul_u32_u24 {v(t0)}, 80, {v(g)}")
    a(f"v_add_u32 {v(t0)}, {v(t0)}, {v(i16)}")
    a(f"v_lshlrev_b32 {v(t0)}, 2, {v(t0)}")
    a(f"v_add_u32 {v(ub0)}, s{s_t}, {v(t0)}")
    a(f"s_add_u32 s{s_t}, s{s_t}, {260*4}")
    a(f"v_sub_u32 {v(ub1)}, s{s_t}, {v(t0)}")
    a(f"s_lshl_b32 s{s_t}, s{S_W}, 11")
    a(f"s_add_u32 s{s_t}, s{s_t}, {L3_SX}")
    a(f"v_lshlrev_b32 {v(t0)}, 6, {v(i16)}")
    a(f"v_lshl_add_u32 {v(t0)}, {v(g)}, 3, {v(t0)}")
    a(f"v_add_u32 {v(swr)}, s{s_t}, {v(t0)}")
    a(f"v_add_u32 {v(srd0)}, s{s_t}, {v(l16)}")
    a(f"v_add_u32 {v(srd1)}, s{s_t}, {v(l4)}")
    a("s_waitcnt vmcnt(0) lgkmcnt(0)")
    l_nf = a.newlabel("L_nf")
    a(f"s_cmp_eq_u32 s{S_PJ}, 0")
    a(f"s_cbranch_scc1 {l_nf}")
    push_flag(a, S_FLAG, 8, 8, t0)
    a.label(l_nf)
    a("s_barrier")
    stamp3(a, 6)
    vq = Pool("v", 8, 108)
    tb = vq.get(56, 4)
    G32 = [tb + 4*i for i in range(8)]; G20 = [tb + 32, tb + 36]; TW = [tb + 40 + 4*i for i in range(4)]
    vf = [[vq.get(4, 4) for ks in range(2)] for k in range(3)]
    dd = [vq.get(4, 4) for k in range(4)]
    tmp = vq.get(4, 4)
    s_have = S_T + 7
    a(f"v_mov_b32 {v(t1)}, {L3_HAVE}")
    a(f"ds_read_b32 {v(t0)}, {v(t1)}")
    for k in range(3):
        for ks in range(2):
            for h in range(2):
                a(f"ds_read_b64_tr_b16 {v(vf[k][ks]+2*h,2)}, {v(ra[k])} offset:{(32*ks+16*h)*352}")

    def load_p():
        for k in range(3):
            a(f"s_add_u32 s{s_t}, s{s_p}, {k*2621440}")
            a(f"buffer_load_dwordx4 {v(PA[k],4)}, {v(pa)}, {s(R_WS,4)}, s{s_t} offen {SCL}")
            a(f"buffer_load_dword {v(PB[k])}, {v(pb)}, {s(R_WS,4)}, s{s_t} offen {SCL}")
    l_nh = a.newlabel("L_nh")
    a("s_waitcnt lgkmcnt(12)")
    a(f"v_readfirstlane_b32 s{s_have}, {v(t0)}")
    a(f"s_cmp_eq_u32 s{s_have}, 0")
    a(f"s_cbranch_scc1 {l_nh}")
    load_p()
    a.label(l_nh)
    for k in range(3):
        a(f"s_waitcnt lgkmcnt({8-4*k})")
        mfma(a, dd[k], gf, vf[k][0], "0")
        mfma(a, dd[k], gf + 4, vf[k][1])
    for i in range(8):
        a(f"ds_read_b128 {v(tb+4*i,4)}, {v(l16)} offset:{L3_TAB+1024*i}")
    for k in range(3):
        a(f"v_cvt_pk_bf16_f32 {v(dd[k])}, {v(dd[k])}, {v(dd[k]+1)}")
        a(f"v_cvt_pk_bf16_f32 {v(dd[k]+1)}, {v(dd[k]+2)}, {v(dd[k]+3)}")
        a(f"ds_write_b32 {v(ua[k])}, {v(dd[k])}")
        a(f"ds_write_b32 {v(ua[k])}, {v(dd[k]+1)} offset:{UP}")
    a("s_waitcnt lgkmcnt(0)")
    a("s_barrier")
    uf = vf[0]
    a(f"ds_read2_b32 {v(uf[0],2)}, {v(ub0)} offset0:0 offset1:20")
    a(f"ds_read2_b32 {v(uf[0]+2,2)}, {v(ub0)} offset0:40 offset1:60")
    a(f"ds_read2_b32 {v(uf[1],2)}, {v(ub1)} offset0:60 offset1:40")
    a(f"ds_read2_b32 {v(uf[1]+2,2)}, {v(ub1)} offset0:20 offset1:0")
    for i in range(8, 14):
        a(f"ds_read_b128 {v(tb+4*i,4)}, {v(l16)} offset:{L3_TAB+1024*i}")
    o = vp.get(10, 2); w_ = vp.get(10, 2); xx = vp.get(10, 2); sf = vp.get(10, 2)

    def unpack(dst, A_, B_):
        for i in range(5):
            src = A_ + i if i < 4 else B_
            a(f"v_lshlrev_b32 {v(dst+2*i)}, 16, {v(src)}")
            a(f"v_and_b32 {v(dst+2*i+1)}, 0xffff0000, {v(src)}")
    a("s_waitcnt lgkmcnt(6)")
    for t in range(2):
        for op in range(2):
            mfma(a, dd[2*t+op], uf[0], G32[4*t+2*op], "0")
    for t in range(2):
        for op in range(2):
            mfma(a, dd[2*t+op], uf[1], G32[4*t+2*op+1])
    unpack(o, PA[3], PB[3])
    unpack(xx, PA[4], PB[4])
    a("s_waitcnt lgkmcnt(0)")
    tf = vf[1]
    for t in range(2):
        twiddle(a, dd[2*t], dd[2*t+1], TW[2*t], TW[2*t+1], tmp)
        for pl in range(2):
            for h in range(2):
                a(f"v_cvt_pk_bf16_f32 {v(tf[t]+2*pl+h)}, {v(dd[2*t+pl]+2*h)}, {v(dd[2*t+pl]+2*h+1)}")
    for t in range(2):
        for tp in range(2):
            mfma(a, dd[2*t+tp], tf[t], G20[tp], "0")
    for t in range(2):
        for tp in range(2):
            r = dd[2*t+tp]
            a(f"v_cvt_pk_bf16_f32 {v(r)}, {v(r)}, {v(r+1)}")
            a(f"v_cvt_pk_bf16_f32 {v(r+1)}, {v(r+2)}, {v(r+3)}")
            a(f"ds_write_b64 {v(swr)}, {v(r,2)} offset:{tp*1024+t*32}")
    a("s_waitcnt lgkmcnt(0)")
    a(f"ds_read_b128 {v(PA[3],4)}, {v(srd0)}")
    a(f"ds_read_b32 {v(PB[3])}, {v(srd1)} offset:1024")
    l_np, l_hv = a.newlabel("L_np"), a.newlabel("L_hv")
    a(f"s_cmp_lg_u32 s{s_have}, 0")
    a(f"s_cbranch_scc1 {l_hv}")
    a(f"s_cmp_lg_u32 s{S_W}, 0")
    a(f"s_cbranch_scc1 {l_np}")
    a(f"s_lshl_b32 s{s_t+2}, s{s_n}, 2")
    a(f"s_add_u32 s{s_t+2}, s{s_t+2}, s{s_qt}")
    a(f"s_lshl_b32 s{s_t+2}, s{s_t+2}, 8")
    a(f"s_add_u32 s{s_t+2}, s{s_t+2}, {FL_P}")
    poll(a, f"s{s_t+2}", 24, s_t)
    a.label(l_np)
    a("s_barrier")
    load_p()
    a.label(l_hv)
    stamp3(a, 8)
    a("s_waitcnt lgkmcnt(0)")
    unpack(sf, PA[3], PB[3])
    for k in range(3):
        a(f"s_waitcnt vmcnt({4-2*k})")
        unpack(w_, PA[k], PB[k])
        for i in range(5):
            a(f"v_pk_add_f32 {v(o+2*i,2)}, {v(o+2*i,2)}, {v(w_+2*i,2)}")
    for i in range(10):
        a(f"v_mul_f32 {v(w_+i)}, {hex(f2u(-np.log2(np.e)))}, {v(o+i)}")
    for i in range(10):
        a(f"v_exp_f32 {v(w_+i)}, {v(w_+i)}")
    for i in range(5):
        a(f"v_pk_mul_f32 {v(o+2*i,2)}, {v(o+2*i,2)}, {v(sf+2*i,2)}")
    for i in range(5):
        a(f"v_pk_add_f32 {v(w_+2*i,2)}, {v(w_+2*i,2)}, 1.0 op_sel_hi:[1,0]")
    for i in range(10):
        a(f"v_rcp_f32 {v(w_+i)}, {v(w_+i)}")
    for i in range(5):
        a(f"v_pk_fma_f32 {v(o+2*i,2)}, {v(o+2*i,2)}, {v(w_+2*i,2)}, {v(xx+2*i,2)}")
    for i in range(5):
        dst = PA[1] + i if i < 4 else PB[1]
        a(f"v_cvt_pk_bf16_f32 {v(dst)}, {v(o+2*i)}, {v(o+2*i+1)}")
    a(f"buffer_store_dwordx4 {v(PA[1],4)}, {v(l16)}, {s(R_C,4)}, s{s_row} offen")
    a(f"buffer_store_dword {v(PB[1])}, {v(l4)}, {s(R_C,4)}, s{s_row} offen offset:1024")


def build():
    a = Asm()
    a("s_cmpk_ge_u32 s2, 0x100")
    a("s_cbranch_scc1 L_exit")
    a("s_load_dwordx16 s[4:19], s[0:1], 0")
    a("s_load_dwordx4 s[20:23], s[0:1], 64")
    a("s_load_dwordx2 s[24:25], s[0:1], 80")
    stamp_begin(a)
    a(f"s_getpc_b64 s[{R_TAB}:{R_TAB+1}]")
    a(f"s_add_u32 s{R_TAB}, s{R_TAB}, ctab@rel32@lo+4")
    a(f"s_addc_u32 s{R_TAB+1}, s{R_TAB+1}, ctab@rel32@hi+12")
    a(f"s_mov_b32 s{R_TAB+2}, {TAB_END}")
    a(f"s_mov_b32 s{R_TAB+3}, 0x20000")
    a("v_lshrrev_b32 v1, 6, v0")
    a(f"v_readfirstlane_b32 s{S_W}, v1")
    a("v_and_b32 v0, 63, v0")
    t = S_T
    a(f"s_and_b32 s{t}, s2, 7")
    a(f"s_lshr_b32 s{t+1}, s2, 3")
    a(f"s_lshl_b32 s{S_N3}, s{t}, 3")
    a(f"s_add_u32 s{S_IDX}, s{S_N3}, s{t+1}")
    a(f"s_lshr_b32 s{t+2}, s{t+1}, 2")
    a(f"s_add_u32 s{S_N3}, s{S_N3}, s{t+2}")
    a(f"s_and_b32 s{S_Q3}, s{t+1}, 3")
    a(f"s_sub_u32 s{S_PJ}, s{t+2}, 2")
    a(f"s_mul_i32 s{t+3}, s{t}, 6")
    a(f"s_add_u32 s{t+3}, s{t+3}, s{S_PJ}")
    a(f"s_and_b32 s{S_RB}, s{t+3}, 15")
    a(f"s_lshr_b32 s{S_KT}, s{t+3}, 4")
    a(f"s_mov_b32 s{S_SUB}, s{S_Q3}")
    a(f"s_mul_i32 s{S_FLAG}, s{S_RB}, 3")
    a(f"s_add_u32 s{S_FLAG}, s{S_FLAG}, s{S_KT}")
    a(f"s_lshl_b32 s{S_FLAG}, s{S_FLAG}, 2")
    a(f"s_add_u32 s{S_FLAG}, s{S_FLAG}, s{S_SUB}")
    a(f"s_add_u32 s{t+3}, s{S_IDX}, 192")
    a(f"s_cmp_lt_u32 s{t+1}, 8")
    a(f"s_cselect_b32 s{S_FLAG}, s{t+3}, s{S_FLAG}")
    a("s_waitcnt lgkmcnt(0)")
    a(f"s_add_u32 s{t+4}, s{P_WS}, {WS_EP}")
    a(f"s_addc_u32 s{t+5}, s{P_WS+1}, 0")
    a(f"s_load_dwordx2 s[{S_E}:{S_E+1}], s[{t+4}:{t+5}], 0")
    srd(a, R_WS, P_WS, WS_END)
    srd(a, R_DBG, P_DBG, 256)
    a(f"s_cmp_lt_u32 s{t+1}, 8")
    a("s_cbranch_scc1 L_fft")
    a(f"s_cmp_lt_u32 s{S_W}, 4")
    a("s_cbranch_scc1 L_comp")
    gemm_loader(a, "L_f3l")
    a.label("L_comp")
    gemm_compute(a, "L_f3")
    a.label("L_fft")
    fft_role(a, "L_f3", "L_f3l")
    f3(a, "L_f3", "L_f3l")
    stamp_end(a)
    a.label("L_exit")
    a("s_endpgm")
    a.resolve()
    nv, ns = a.max_regs()
    print("instr", len(a.ins), "vgpr", nv, "sgpr", ns, file=sys.stderr)
    kn = NAME + "_kernel"
    out = "; generated by gen/gen2.py (hand-written generator)\n"
    out += "; @launch grid=(256,1,1) block=(512,1,1) lds=163840\n"
    out += '.amdgcn_target "amdgcn-amd-amdhsa--gfx950"\n.text\n'
    out += f".globl {kn}\n.p2align 8\n.type {kn},@function\n{kn}:\n" + a.text()
    out += f'''.section .rodata,"a"
.p2align 6
.amdhsa_kernel {kn}
  .amdhsa_next_free_vgpr 256
  .amdhsa_next_free_sgpr {ns}
  .amdhsa_accum_offset 256
  .amdhsa_group_segment_fixed_size 0
  .amdhsa_kernarg_size 88
  .amdhsa_user_sgpr_count 2
  .amdhsa_user_sgpr_kernarg_segment_ptr 1
  .amdhsa_system_sgpr_workgroup_id_x 1
  .amdhsa_float_denorm_mode_32 3
.end_amdhsa_kernel
'''
    out += tables.as_asm("ctab", tables.tab_f1() + tables.tab_f2()[:16384] + tables.tab_f3())
    return out


if __name__ == "__main__":
    path = sys.argv[1] if len(sys.argv) > 1 else f"cdna_kernels/{NAME}.s"
    open(path, "w").write(build())
```

```python
import sys, struct, os
import numpy as np
from asmlib import Asm, Pool, v, s
import tables

NAME = "recurrent_scan__spectral_gfnet__mixer_channel_mlp__prompt"
STAMP = int(os.environ.get("STAMP", "0"))
OPT = set(os.environ.get("OPT", "").split(","))

WS_H = 0
WS_ZP = WS_H + 2048 * 1536 * 2
WS_VP = WS_ZP + 64 * 45056
WS_P = WS_VP + 64 * 45056
WS_ST = WS_P + 3 * 2621440
WS_EP = WS_ST + 2048 * 16
WS_FL = WS_EP + 128
FL_H = WS_FL
FL_M = FL_H + 192 * 128
FL_Z = FL_M + 2048
FL_V = FL_Z + 64 * 512
FL_P = FL_V + 64 * 512
WS_END = FL_P + 256 * 256
WS_DBG = 24 << 20
TAB_F1, TAB_F2, TAB_F3, TAB_END = 0, 16384, 32768, 49152
WSOFF = (192 << 20) if "wsend" in OPT else 0
SC = "sc1"
SCG = "" if "l2x" in OPT else "sc1"
SGL = os.environ.get("SGL", "sc1")
SGP = os.environ.get("SGP", "sc1")
SCL = os.environ.get("SCL", "sc1")

def f2u(x):
    return struct.unpack("<I", struct.pack("<f", x))[0]

P_X, P_WR, P_WI, P_W1, P_B1, P_W2, P_B2, P_OUT, P_DBG, P_WS = 4, 6, 8, 12, 14, 16, 18, 20, 22, 24
R_WS, R_TAB, R_A, R_B, R_C, R_D, R_DBG = 28, 32, 36, 40, 44, 48, 52
S_W = 26
S_RB, S_SUB, S_KT, S_IDX, S_N3, S_Q3, S_FLAG = 56, 57, 58, 59, 60, 61, 62
S_F2 = 63
S_E = 10
S_PJ = 27
STAG = int(os.environ.get("STAG", "5"))
DEPTH = int(os.environ.get("DEPTH", "3"))
S_T = 64
NSTAMP = 10
ST0 = 80


def stamp(a, i, mode=None):
    if (mode is None and STAMP and (STAMP <= 2 or i in (0, NSTAMP - 1))) or (mode is not None and STAMP == mode):
        a(f"s_memtime s[{ST0+2*i}:{ST0+2*i+1}]")


def stamp3(a, i):
    if STAMP == 1:
        stamp(a, i)


def stamp_begin(a):
    if STAMP:
        for i in range(ST0 + 2, ST0 + 2 * NSTAMP):
            a(f"s_mov_b32 s{i}, 0")
        a("s_memrealtime s[100:101]")
        stamp(a, 0)


def stamp_end(a):
    if STAMP:
        a("s_waitcnt vmcnt(0)")
        stamp(a, NSTAMP - 1)
        a("s_memrealtime s[64:65]")
        a("s_waitcnt lgkmcnt(0)")
        for i in range(NSTAMP):
            a(f"v_mov_b32 v{8+i}, s{ST0+2*i}")
        a(f"v_mov_b32 v{8+NSTAMP}, s100")
        a(f"v_mov_b32 v{9+NSTAMP}, s64")
        a("s_lshl_b32 s66, s2, 3")
        a(f"s_add_u32 s66, s66, s{S_W}")
        a("s_lshl_b32 s66, s66, 6")
        a(f"s_add_u32 s66, s66, {WS_DBG}")
        a(f"s_mov_b32 s{R_WS+2}, 0x2000000")
        a("v_mov_b32 v1, 0")
        a("s_mov_b64 exec, 1")
        for i in range(3):
            a(f"buffer_store_dwordx4 v[{8+4*i}:{11+4*i}], v1, {s(R_WS,4)}, s66 offen offset:{16*i}")


def srd(a, dst, ptr, size):
    a(f"s_mov_b32 s{dst}, s{ptr}")
    a(f"s_mov_b32 s{dst+1}, s{ptr+1}")
    a(f"s_mov_b32 s{dst+2}, {size}")
    a(f"s_mov_b32 s{dst+3}, 0x20000")


def dma(a, voff, srd_, soff, extra=""):
    a(f"buffer_load_dwordx4 {v(voff)}, {s(srd_,4)}, {soff} offen {extra + ' ' if extra else ''}lds")


def bf16r(a, dst, src):
    a(f"v_cvt_pk_bf16_f32 {v(dst)}, {v(src)}, {v(src)}")
    a(f"v_lshlrev_b32 {v(dst)}, 16, {v(dst)}")


def mfma_s(d, A, B, c=None):
    return f"v_mfma_f32_16x16x32_bf16 {v(d,4)}, {v(A,4)}, {v(B,4)}, {v(d,4) if c is None else c}"


def mfma(a, d, A, B, c=None):
    a(mfma_s(d, A, B, c))


def divmod_const(a, q, r, x, c):
    m = (1 << 18) // c + 1
    for t in range(2048):
        assert (t * m) >> 18 == t // c
    a(f"v_mul_u32_u24 {v(q)}, {m}, {v(x)}")
    a(f"v_lshrrev_b32 {v(q)}, 18, {v(q)}")
    a(f"v_mul_u32_u24 {v(r)}, {c}, {v(q)}")
    a(f"v_sub_u32 {v(r)}, {v(x)}, {v(r)}")


def interleave(a, main, fill, per=1):
    fi = 0
    for m in main:
        a(m)
        for _ in range(per):
            if fi < len(fill):
                a(fill[fi]); fi += 1
    while fi < len(fill):
        a(fill[fi]); fi += 1


def weave(a, A, B):
    na, nb = len(A), len(B)
    ia = ib = 0
    while ia < na or ib < nb:
        if ib >= nb or (ia < na and ia * nb <= ib * na):
            a(A[ia]); ia += 1
        else:
            a(B[ib]); ib += 1


class VM:
    def __init__(self, a):
        self.a, self.q = a, []
    def op(self, tag, n=1):
        self.q += [tag] * n
    def wait(self, *tags):
        last = max([i for i, t in enumerate(self.q) if t in tags], default=-1)
        if last < 0:
            return
        n = len(self.q) - 1 - last
        assert n < 64
        self.a(f"s_waitcnt vmcnt({n})")
        self.q = self.q[last + 1:]
    def drain(self):
        self.a("s_waitcnt vmcnt(0)")
        self.q = []


def nonce(a):
    a(f"s_mul_i32 s{S_E}, s{S_E}, 1664525")
    a(f"s_add_u32 s{S_E}, s{S_E}, 1013904223")
    a(f"s_mul_i32 s{S_E+1}, s{S_E+1}, 22695477")
    a(f"s_add_u32 s{S_E+1}, s{S_E+1}, 1")


def advance_epoch(a, vt, s_t):
    for i in range(3):
        poll(a, FL_M + 512 * i, 64, s_t, sleep=8)
    a(f"v_mov_b32 {v(vt)}, s{S_E}")
    a(f"v_mov_b32 {v(vt+1)}, s{S_E+1}")
    a(f"v_mov_b32 {v(vt+2)}, 0")
    a(f"s_mov_b32 s{S_F2}, {WS_EP}")
    a("s_mov_b64 exec, 1")
    a(f"buffer_store_dwordx2 {v(vt,2)}, {v(vt+2)}, {s(R_WS,4)}, s{S_F2} offen {SC}")
    a("s_mov_b64 exec, -1")


def push_flag(a, s_base, nrec, shift, vt, sc=SC):
    a(f"v_mov_b32 {v(vt)}, s{S_E}")
    a(f"v_mov_b32 {v(vt+1)}, s{S_E+1}")
    a(f"v_lshlrev_b32 {v(vt+2)}, {shift}, v0")
    if nrec < 64:
        a(f"s_mov_b64 exec, {(1 << nrec) - 1}")
    a(f"buffer_store_dwordx2 {v(vt,2)}, {v(vt+2)}, {s(R_WS,4)}, s{s_base} offen {sc}")
    if nrec < 64:
        a("s_mov_b64 exec, -1")


V_POLL = 248


def poll_addr(a, base, ntag, s_t):
    ad = V_POLL + 6
    a(f"v_min_u32 {v(ad)}, {ntag-1}, v0")
    a(f"v_lshlrev_b32 {v(ad)}, 3, {v(ad)}")
    a(f"s_mov_b32 s{s_t+1}, {base}")


def poll(a, base, ntag, s_t, sleep=None, depth=None, sc=SC):
    lp, done = a.newlabel("L_poll"), a.newlabel("L_pd")
    ad = V_POLL + 6
    poll_addr(a, base, ntag, s_t)
    ld = lambda i: a(f"buffer_load_dwordx2 {v(V_POLL+2*i,2)}, {v(ad)}, {s(R_WS,4)}, s{s_t+1} offen {sc}")
    a(f"s_mov_b32 s{s_t}, 0x20000")
    depth = 1 if sleep else (depth or DEPTH)
    for i in range(depth - 1):
        ld(i)
        a(f"s_sleep {STAG}")
    a.label(lp)
    for i in range(depth):
        ld((i + depth - 1) % depth)
        a(f"s_waitcnt vmcnt({depth-1})")
        a(f"v_cmp_ne_u64 vcc, s[{S_E}:{S_E+1}], {v(V_POLL+2*i,2)}")
        a(f"s_cbranch_vccz {done}")
        if sleep:
            a(f"s_sleep {sleep}")
    a(f"s_sub_u32 s{s_t}, s{s_t}, 1")
    a(f"s_cbranch_scc0 {lp}")
    a.label(done)


LX = 0
LW = 65536
WSL = 20480
L_STAT = 147456
L_CS = L_STAT + 2048
L_STG = 102400
L3_VB, L3_TAB, L3_UX, L3_SX = 0, 147456, 61440, 61440 + 8 * 1376


def gemm_compute(a, l_f3):
    vp = Pool("v", 1, 248)
    i16, g, r_ = [vp.get() for _ in range(3)]
    t0 = vp.get(4, 2); t1 = t0 + 1; cq = vp.get(); cnt = vp.get(2, 2)
    s_wm, s_wn, s_dx, s_dw, s_cnt, s_t = S_T, S_T + 1, S_T + 2, S_T + 3, S_T + 4, S_T + 5
    s_cb = S_T + 10
    if "prio" in OPT:
        a("s_setprio 2")
    a(f"s_and_b32 s{s_wm}, s{S_W}, 1")
    a(f"s_lshr_b32 s{s_wn}, s{S_W}, 1")
    a(f"s_lshl_b32 s{s_cb}, s{S_KT}, 2")
    a(f"s_add_u32 s{s_cb}, s{s_cb}, s{S_SUB}")
    a(f"v_and_b32 {v(i16)}, 15, v0")
    a(f"v_lshrrev_b32 {v(g)}, 4, v0")
    acc = [[vp.get(4, 4) for mm in range(4)] for tt in range(5)]
    xf = [[vp.get(4, 4) for mm in range(4)] for st in range(2)]
    wf = [[vp.get(4, 4) for tt in range(5)] for st in range(2)]
    cs = acc[4]
    ones = wf[0][4]
    b1r = [vp.get(2, 2) for tt in range(4)]
    srd(a, R_C, P_B1, 3072)
    a(f"s_lshl_b32 s{s_t}, s{s_cb}, 8")
    a(f"s_lshl_b32 s{s_t+1}, s{s_wn}, 7")
    a(f"s_add_u32 s{s_t}, s{s_t}, s{s_t+1}")
    a(f"s_lshl_b32 s{s_t+1}, s{s_wm}, 6")
    a(f"v_lshlrev_b32 {v(t0)}, 3, {v(g)}")
    a(f"v_add_u32 {v(t0)}, s{s_t+1}, {v(t0)}")
    a(f"v_xor_b32 {v(t1)}, 64, {v(t0)}")
    for tt in range(4):
        a(f"buffer_load_dwordx2 {v(b1r[tt],2)}, {v(t0 if tt < 2 else t1)}, {s(R_C,4)}, s{s_t} offen offset:{32*(tt&1)}")
    if "nocode" not in OPT:
        a(f"s_getpc_b64 s[{R_D}:{R_D+1}]")
        a(f"s_add_u32 s{R_D}, s{R_D}, {NAME}_kernel@rel32@lo+4")
        a(f"s_addc_u32 s{R_D+1}, s{R_D+1}, {NAME}_kernel@rel32@hi+12")
        a(f"s_mov_b32 s{R_D+2}, L_exit-{NAME}_kernel")
        a(f"s_mov_b32 s{R_D+3}, 0x20000")
        a(f"s_lshr_b32 s{s_t}, s2, 3")
        a(f"s_and_b32 s{s_t}, s{s_t}, 7")
        a(f"s_lshl_b32 s{s_t}, s{s_t}, 2")
        a(f"s_add_u32 s{s_t}, s{s_t}, s{S_W}")
        a(f"s_lshl_b32 s{s_t}, s{s_t}, 10")
        a(f"v_lshlrev_b32 {v(t0)}, 4, v0")
        a(f"buffer_load_dwordx4 {v(V_POLL,4)}, {v(t0)}, {s(R_D,4)}, s{s_t} offen")
        a(f"s_and_b32 s{s_t}, s{s_t}, 0x3fff")
        a(f"s_add_u32 s{s_t}, s{s_t}, {TAB_F3}")
        a(f"buffer_load_dwordx4 {v(V_POLL,4)}, {v(t0)}, {s(R_TAB,4)}, s{s_t} offen")
    xa = [vp.get(), vp.get()]
    a(f"v_and_b32 {v(t0)}, 7, v0")
    a(f"v_xor_b32 {v(t0)}, {v(t0)}, {v(g)}")
    a(f"v_lshlrev_b32 {v(t0)}, 4, {v(t0)}")
    a(f"v_lshl_add_u32 {v(t0)}, {v(i16)}, 7, {v(t0)}")
    a(f"s_lshl_b32 s{s_t}, s{s_wm}, 13")
    a(f"v_add_u32 {v(xa[0])}, s{s_t}, {v(t0)}")
    a(f"v_xor_b32 {v(xa[1])}, 64, {v(xa[0])}")
    wa = [vp.get() for _ in range(4)]
    a(f"v_lshrrev_b32 {v(r_)}, 2, {v(i16)}")
    a(f"v_and_b32 {v(cq)}, 3, v0")
    a(f"v_lshl_add_u32 {v(t0)}, {v(g)}, 3, {v(r_)}")
    a(f"v_lshlrev_b32 {v(t0)}, 8, {v(t0)}")
    a(f"v_lshl_add_u32 {v(t0)}, {v(cq)}, 3, {v(t0)}")
    a(f"v_add_u32 {v(t0)}, {LW}, {v(t0)}")
    a(f"v_and_b32 {v(t1)}, 1, {v(g)}")
    a(f"v_lshl_or_b32 {v(t1)}, {v(t1)}, 2, {v(r_)}")
    a(f"s_lshl_b32 s{s_t}, s{s_wn}, 2")
    a(f"s_lshl_b32 s{s_t+1}, s{s_wm}, 1")
    a(f"s_or_b32 s{s_t}, s{s_t}, s{s_t+1}")
    a(f"v_xor_b32 {v(t1)}, s{s_t}, {v(t1)}")
    for tt in range(4):
        a(f"v_xor_b32 {v(wa[tt])}, {tt}, {v(t1)}")
        a(f"v_lshl_add_u32 {v(wa[tt])}, {v(wa[tt])}, 5, {v(t0)}")
    xb = vp.get(); wb = [vp.get(), vp.get()]; l16 = vp.get()
    a(f"v_lshlrev_b32 {v(l16)}, 4, v0")
    a(f"s_lshl_b32 s{s_t}, s{s_wm}, 12")
    a(f"s_add_u32 s{s_t}, s{s_t}, {LX + 2*16384}")
    a(f"v_add_u32 {v(xb)}, s{s_t}, {v(l16)}")
    a(f"v_lshrrev_b32 {v(r_)}, 2, v0")
    a(f"v_mul_u32_u24 {v(t0)}, 320, {v(r_)}")
    a(f"v_lshl_add_u32 {v(t0)}, {v(cq)}, 3, {v(t0)}")
    a(f"v_add_u32 {v(t0)}, {LW + 2*WSL}, {v(t0)}")
    a(f"v_and_b32 {v(t1)}, 1, {v(g)}")
    a(f"s_mul_i32 s{s_t}, s{s_wn}, 5")
    a(f"v_xor_b32 {v(wb[0])}, s{s_t}, {v(t1)}")
    a(f"v_lshl_add_u32 {v(wb[0])}, {v(wb[0])}, 5, {v(t0)}")
    a(f"s_add_u32 s{s_t}, s{s_t}, 1")
    a(f"v_xor_b32 {v(wb[1])}, s{s_t}, {v(t1)}")
    a(f"v_lshl_add_u32 {v(wb[1])}, {v(wb[1])}, 5, {v(t0)}")
    SP = 176
    sw = vp.get(); srd_a = [vp.get() for _ in range(5)]
    a(f"s_mul_i32 s{s_t}, s{S_W}, {64*SP}")
    a(f"s_add_u32 s{s_t}, s{s_t}, {L_STG}")
    a(f"v_mul_u32_u24 {v(sw)}, {SP}, {v(i16)}")
    a(f"v_lshl_add_u32 {v(sw)}, {v(g)}, 3, {v(sw)}")
    a(f"v_add_u32 {v(sw)}, s{s_t}, {v(sw)}")
    for ii in range(5):
        a(f"v_add_u32 {v(r_)}, {64*ii}, v0")
        divmod_const(a, t0, t1, r_, 10)
        a(f"v_mul_u32_u24 {v(t0)}, {SP}, {v(t0)}")
        a(f"v_lshl_add_u32 {v(t0)}, {v(t1)}, 4, {v(t0)}")
        a(f"v_add_u32 {v(srd_a[ii])}, s{s_t}, {v(t0)}")
    for tt in range(5):
        for mm in range(4):
            if tt < 4 or mm < 2:
                for r in range(0, 4, 2):
                    a(f"v_pk_mul_f32 {v(acc[tt][mm]+r,2)}, 0, 0") if False else (a(f"v_mov_b32 {v(acc[tt][mm]+r)}, 0"), a(f"v_mov_b32 {v(acc[tt][mm]+r+1)}, 0"))
    for r in range(4):
        a(f"v_mov_b32 {v(ones+r)}, 0x3f803f80")

    def loop(which):
        NT = 4 if which == 1 else 5
        NCH = 10 if which == 1 else 8
        if which == 1:
            xrd = lambda st_, ks, mm: f"ds_read_b128 {v(xf[st_][mm],4)}, {v(xa[ks])} offset:{mm*2048}"
            wrd = lambda st_, ks, tt, h: f"ds_read_b64_tr_b16 {v(wf[st_][tt]+2*h,2)}, {v(wa[tt])} offset:{ks*8192+h*1024}"
            ax, aw = xa, wa
        else:
            xrd = lambda st_, ks, mm: f"ds_read_b128 {v(xf[st_][mm],4)}, {v(xb)} offset:{ks*8192+mm*1024}"
            wrd = lambda st_, ks, tt, h: f"ds_read_b64_tr_b16 {v(wf[st_][tt]+2*h,2)}, {v(wb[tt&1])} offset:{(32*ks+16*h)*320+(tt>>1)*64}"
            ax, aw = [xb], wb

        def reads(st_, ks):
            out = []
            for i in range(max(4, NT)):
                if i < NT:
                    out += [wrd(st_, ks, i, 0), wrd(st_, ks, i, 1)]
                if i < 4:
                    out.append(xrd(st_, ks, i))
            return out

        def mfmas(st_, c=None):
            out = []
            for tt in range(NT):
                for mm in range(4):
                    out.append(mfma_s(acc[tt][mm], wf[st_][tt], xf[st_][mm], c))
                if which == 1 and tt < 2:
                    out.append(mfma_s(cs[tt], wf[st_][tt], ones))
            return out
        c0 = 0 if which == 1 else 10
        a(f"s_mov_b32 s{s_cnt}, {c0}")
        a("s_barrier")
        stamp(a, 1 if which == 1 else 4)
        for x in reads(0, 0):
            a(x)
        l_loop, l_last, l_mid = a.newlabel("L_gl"), a.newlabel("L_gx"), a.newlabel("L_gm")
        per = 2 if "per2" in OPT else 1
        s_end = S_T + 11
        if which == 2:
            a(f"s_mov_b32 s{s_end}, 12")
            a(f"s_add_u32 s{s_cnt}, s{s_cnt}, 1")
            a("s_waitcnt lgkmcnt(0)")
            adv = [f"v_add_u32 {v(r)}, 16384, {v(r)}" for r in ax] + [f"v_add_u32 {v(r)}, {WSL}, {v(r)}" for r in aw]
            interleave(a, mfmas(0, "0"), reads(1, 1) + adv, per)
            a("s_waitcnt vmcnt(0)")
            a(f"s_branch {l_mid}")
        a.label(l_loop)
        a(f"s_add_u32 s{s_cnt}, s{s_cnt}, 1")
        a(f"s_and_b32 s{s_t}, s{s_cnt}, 3")
        a(f"s_cselect_b32 s{s_t}, 1, -3")
        a(f"s_lshl_b32 s{s_dx}, s{s_t}, 14")
        a(f"s_mul_i32 s{s_dw}, s{s_t}, {WSL}")
        a("s_waitcnt lgkmcnt(0)")
        adv = [f"v_add_u32 {v(r)}, s{s_dx}, {v(r)}" for r in ax] + [f"v_add_u32 {v(r)}, s{s_dw}, {v(r)}" for r in aw]
        interleave(a, mfmas(0), reads(1, 1) + adv, per)
        a.label(l_mid)
        a(f"s_cmp_eq_u32 s{s_cnt}, {c0 + NCH}" if which == 1 else f"s_cmp_eq_u32 s{s_cnt}, s{s_end}")
        a("s_waitcnt lgkmcnt(0)")
        if which == 1:
            a(f"s_cbranch_scc1 {l_last}")
            a("s_barrier")
        else:
            a("s_barrier")
            a(f"s_cbranch_scc1 {l_last}")
        interleave(a, mfmas(1), reads(0, 0), per)
        a(f"s_branch {l_loop}")
        a.label(l_last)
        if which == 1:
            load_epoch(a, S_T + 12)
        for x in mfmas(1):
            a(x)
        if which == 2:
            l_done = a.newlabel("L_gd")
            a(f"s_cmp_eq_u32 s{s_cnt}, 18")
            a(f"s_cbranch_scc1 {l_done}")
            a(f"s_mov_b32 s{s_end}, 18")
            a("s_barrier")
            for x in reads(0, 0):
                a(x)
            a(f"s_branch {l_loop}")
            a.label(l_done)

    loop(1)
    stamp(a, 2)
    a(f"s_lshl_b32 s{s_t}, s{s_wn}, 8")
    a(f"s_lshl_b32 s{s_t+1}, s{s_wm}, 7")
    a(f"s_add_u32 s{s_t}, s{s_t}, s{s_t+1}")
    a(f"s_add_u32 s{s_t}, s{s_t}, {L_CS}")
    a(f"v_lshlrev_b32 {v(t0)}, 4, {v(g)}")
    a(f"v_add_u32 {v(t0)}, s{s_t}, {v(t0)}")
    a(f"v_xor_b32 {v(t1)}, 128, {v(t0)}")
    st = [xf[0][mm] for mm in range(4)]
    sa = xa[0]; hw = xa[1]
    a(f"s_lshl_b32 s{s_t}, s{s_wm}, 10")
    a(f"v_lshlrev_b32 {v(sa)}, 4, {v(i16)}")
    a(f"v_add_u32 {v(sa)}, s{s_t}, {v(sa)}")
    sl_ = wa[1]
    a(f"v_add_u32 {v(sl_)}, {L_STAT}, {v(sa)}")
    b1f = [wf[0][tt] for tt in range(4)]
    a("s_waitcnt vmcnt(0)")
    for tt in range(4):
        for h in range(2):
            a(f"v_lshlrev_b32 {v(b1f[tt]+2*h)}, 16, {v(b1r[tt]+h)}")
            a(f"v_and_b32 {v(b1f[tt]+2*h+1)}, 0xffff0000, {v(b1r[tt]+h)}")
    a(f"ds_write_b128 {v(t0)}, {v(cs[0],4)}")
    a(f"ds_write_b128 {v(t0)}, {v(cs[1],4)} offset:64")
    kc = b1r[0]
    K0 = -2.0 * np.sqrt(2.0 / np.pi) * np.log2(np.e)
    a(f"v_mov_b32 {v(kc)}, {hex(f2u(K0))}")
    a(f"v_mov_b32 {v(kc+1)}, {hex(f2u(K0*0.044715))}")
    a(f"s_mul_i32 s{s_t}, s{S_RB}, {48*8192}")
    a(f"s_lshl_b32 s{s_t+1}, s{s_cb}, 15")
    a(f"s_add_u32 s{s_t}, s{s_t}, s{s_t+1}")
    a(f"s_lshl_b32 s{s_t+1}, s{s_wn}, 14")
    a(f"s_lshl_b32 s{s_t+2}, s{s_wm}, 12")
    a(f"s_add_u32 s{s_t+1}, s{s_t+1}, s{s_t+2}")
    a(f"s_lshl_b32 s{s_t+2}, s{s_wm}, 13")
    a(f"s_add_u32 s{s_t+1}, s{s_t+1}, s{s_t+2}")
    a(f"s_add_u32 s{s_t+2}, s{s_t}, s{s_t+1}")
    a(f"s_xor_b32 s{s_t+3}, s{s_t+1}, 8192")
    a(f"s_add_u32 s{s_t+3}, s{s_t}, s{s_t+3}")
    a(f"s_add_u32 s{s_t+1}, s{s_t+1}, {LX + 2*16384}")
    a(f"v_add_u32 {v(hw)}, s{s_t+1}, {v(l16)}")
    hw2 = wa[0]
    a(f"v_xor_b32 {v(hw2)}, 8192, {v(hw)}")
    a("s_waitcnt lgkmcnt(0)")
    a("s_barrier")
    nonce(a)
    a(f"ds_read_b128 {v(cs[2],4)}, {v(t1)}")
    a(f"ds_read_b128 {v(cs[3],4)}, {v(t1)} offset:64")
    for mm in range(4):
        a(f"ds_read_b128 {v(st[mm],4)}, {v(sl_)} offset:{mm*256}")
    a("s_waitcnt lgkmcnt(0)")
    l_chk, l_ok = a.newlabel("L_chk"), a.newlabel("L_ok")
    a(f"s_mov_b32 s{s_dx}, 0x40000")
    a.label(l_chk)
    a(f"v_xor_b32 {v(t0)}, s{S_E}, {v(st[0]+1)}")
    a(f"v_xor_b32 {v(t1)}, s{S_E+1}, {v(st[0]+3)}")
    for mm in range(1, 4):
        a(f"v_xor_b32 {v(t0+2)}, s{S_E}, {v(st[mm]+1)}")
        a(f"v_xor_b32 {v(t0+3)}, s{S_E+1}, {v(st[mm]+3)}")
        a(f"v_or3_b32 {v(t0)}, {v(t0)}, {v(t0+2)}, {v(t0+3)}")
    a(f"v_or_b32 {v(t0)}, {v(t0)}, {v(t1)}")
    a(f"v_cmp_ne_u32 vcc, 0, {v(t0)}")
    a(f"s_cbranch_vccz {l_ok}")
    a(f"s_lshl_b32 s{s_dw}, s{S_RB}, 11")
    a(f"s_add_u32 s{s_dw}, s{s_dw}, {WS_ST}")
    for mm in range(4):
        a(f"buffer_load_dwordx4 {v(st[mm],4)}, {v(sa)}, {s(R_WS,4)}, s{s_dw} offen offset:{mm*256} {SC}")
    a("s_waitcnt vmcnt(0)")
    a(f"s_sub_u32 s{s_dx}, s{s_dx}, 1")
    a(f"s_cbranch_scc0 {l_chk}")
    a.label(l_ok)
    for mm in range(4):
        a(f"v_mov_b32 {v(st[mm]+1)}, {v(st[mm]+2)}")
    stamp(a, 3)
    tmp = [xf[1][i] for i in range(4)]
    outs = [wf[1][1], wf[1][2], wf[1][3]]
    n_o = 0
    for mm in range(4):
        for u in range(2):
            o = outs[n_o % 3]; n_o += 1
            prs = [(acc[2*u+k][mm] + 2*h, cs[2*u+k] + 2*h, b1f[2*u+k] + 2*h) for k in range(2) for h in range(2)]
            T = [tmp[0], tmp[0]+2, tmp[1], tmp[1]+2]
            Z = [tmp[2], tmp[2]+2, tmp[3], tmp[3]+2]
            for i, (p, c_, b_) in enumerate(prs):
                a(f"v_pk_fma_f32 {v(T[i],2)}, {v(c_,2)}, {v(st[mm],2)}, {v(b_,2)} op_sel:[0,1,0] op_sel_hi:[1,1,1]")
            for i, (p, c_, b_) in enumerate(prs):
                a(f"v_pk_fma_f32 {v(p,2)}, {v(p,2)}, {v(st[mm],2)}, {v(T[i],2)} op_sel_hi:[1,0,1]")
            for i, (p, c_, b_) in enumerate(prs):
                a(f"v_pk_mul_f32 {v(T[i],2)}, {v(p,2)}, {v(p,2)}")
            for i, (p, c_, b_) in enumerate(prs):
                a(f"v_pk_fma_f32 {v(T[i],2)}, {v(T[i],2)}, {v(kc,2)}, {v(kc,2)} op_sel:[0,1,0] op_sel_hi:[1,1,0]")
            for i, (p, c_, b_) in enumerate(prs):
                a(f"v_pk_mul_f32 {v(Z[i],2)}, {v(p,2)}, {v(T[i],2)}")
            for i in range(4):
                a(f"v_exp_f32 {v(Z[i])}, {v(Z[i])}")
                a(f"v_exp_f32 {v(Z[i]+1)}, {v(Z[i]+1)}")
            for i in range(4):
                a(f"v_pk_add_f32 {v(Z[i],2)}, {v(Z[i],2)}, 1.0 op_sel_hi:[1,0]")
            for i in range(4):
                a(f"v_rcp_f32 {v(Z[i])}, {v(Z[i])}")
                a(f"v_rcp_f32 {v(Z[i]+1)}, {v(Z[i]+1)}")
            for i, (p, c_, b_) in enumerate(prs):
                a(f"v_pk_mul_f32 {v(p,2)}, {v(p,2)}, {v(Z[i],2)}")
            for i, (p, c_, b_) in enumerate(prs):
                a(f"v_cvt_pk_bf16_f32 {v(o+i)}, {v(p)}, {v(p+1)}")
            a(f"buffer_store_dwordx4 {v(o,4)}, {v(l16)}, {s(R_WS,4)}, s{s_t+2+u} offen offset:{mm*1024} {SCG}")
            if "dbl" in OPT:
                a(f"buffer_store_dwordx4 {v(o,4)}, {v(l16)}, {s(R_WS,4)}, s{s_t+2+u} offen offset:{mm*1024}")
            a(f"ds_write_b128 {v(hw if u == 0 else hw2)}, {v(o,4)} offset:{mm*1024}")
    a("s_waitcnt lgkmcnt(0)")
    loop(2)
    stamp(a, 5)
    pk = xf[0][0]
    n = 0
    for mm in range(4):
        for tt in range(5):
            o = pk + 2 * (n % 16); n += 1
            a(f"v_cvt_pk_bf16_f32 {v(o)}, {v(acc[tt][mm])}, {v(acc[tt][mm]+1)}")
            a(f"v_cvt_pk_bf16_f32 {v(o+1)}, {v(acc[tt][mm]+2)}, {v(acc[tt][mm]+3)}")
            a(f"ds_write_b64 {v(sw)}, {v(o,2)} offset:{mm*16*SP+tt*32}")
            if n == 12:
                a("s_waitcnt lgkmcnt(6)")
    a(f"s_mul_i32 s{s_t}, s{S_KT}, 2621440")
    a(f"s_lshl_b32 s{s_t+1}, s{S_SUB}, 1")
    a(f"s_add_u32 s{s_t+1}, s{s_t+1}, s{s_wn}")
    a(f"s_mul_i32 s{s_t+1}, s{s_t+1}, {2048*160}")
    a(f"s_add_u32 s{s_t}, s{s_t}, s{s_t+1}")
    a(f"s_lshl_b32 s{s_t+1}, s{S_RB}, 1")
    a(f"s_add_u32 s{s_t+1}, s{s_t+1}, s{s_wm}")
    a(f"s_mul_i32 s{s_t+1}, s{s_t+1}, {64*160}")
    a(f"s_add_u32 s{s_t}, s{s_t}, s{s_t+1}")
    a(f"s_add_u32 s{s_t}, s{s_t}, {WS_P}")
    a(f"s_add_u32 s{s_t+1}, s{s_t}, 4096")
    a(f"s_add_u32 s{s_t+2}, s{s_t}, 8192")
    a("s_waitcnt lgkmcnt(0)")
    rb_ = [acc[i // 4][i % 4] for i in range(10)]
    for ii in range(10):
        a(f"ds_read_b128 {v(rb_[ii],4)}, {v(srd_a[ii%5])} offset:{(ii//5)*32*SP}")
    for ii in range(10):
        a(f"s_waitcnt lgkmcnt({9-ii})")
        a(f"buffer_store_dwordx4 {v(rb_[ii],4)}, {v(l16)}, {s(R_WS,4)}, s{s_t+ii//4} offen offset:{(ii%4)*1024} {SCG}")
        if "p2x" in OPT:
            a(f"s_add_u32 s{s_t+3}, s{s_t+ii//4}, {32<<20}")
            a(f"buffer_store_dwordx4 {v(rb_[ii],4)}, {v(l16)}, {s(R_WS,4)}, s{s_t+3} offen offset:{(ii%4)*1024} {SC}")
    if "prio" in OPT:
        a("s_setprio 0")
    a(f"s_lshl_b32 s{S_FLAG}, s{S_RB}, 1")
    a(f"s_add_u32 s{S_FLAG}, s{S_FLAG}, s{s_wm}")
    a(f"s_lshl_b32 s{S_FLAG}, s{S_FLAG}, 5")
    a(f"s_add_u32 s{S_FLAG}, s{S_FLAG}, s{S_KT}")
    a(f"s_lshl_b32 s{S_FLAG}, s{S_FLAG}, 2")
    a(f"s_add_u32 s{S_FLAG}, s{S_FLAG}, s{S_SUB}")
    a(f"s_lshl_b32 s{S_FLAG}, s{S_FLAG}, 1")
    a(f"s_add_u32 s{S_FLAG}, s{S_FLAG}, s{s_wn}")
    a(f"s_lshl_b32 s{S_FLAG}, s{S_FLAG}, 3")
    a(f"s_add_u32 s{S_FLAG}, s{S_FLAG}, {FL_P}")
    a(f"s_mov_b32 s{S_PJ}, 1")
    a(f"s_branch {l_f3}")


def gemm_loader(a, l_f3l):
    vp = Pool("v", 1, 248)
    t0 = vp.get(4, 2); t1, t2 = t0 + 1, t0 + 2
    s_lw, s_xo, s_wo, s_m, s_m2, s_ho, s_w2, s_t = [S_T + i for i in range(8)]
    vm = VM(a)
    a(f"s_sub_u32 s{s_lw}, s{S_W}, 4")
    srd(a, R_A, P_X, 2621440); srd(a, R_B, P_W1, 1966080)
    xv = vp.get(); wv = [vp.get(), vp.get()]
    a(f"v_lshrrev_b32 {v(t0)}, 3, v0")
    a(f"v_and_b32 {v(t1)}, 7, v0")
    a(f"v_xor_b32 {v(t1)}, {v(t1)}, {v(t0)}")
    a(f"v_mul_u32_u24 {v(xv)}, {64*1280}, {v(t0)}")
    a(f"v_lshl_add_u32 {v(xv)}, {v(t1)}, 4, {v(xv)}")
    a(f"s_lshl_b32 s{s_xo}, s{S_RB}, 2")
    a(f"s_add_u32 s{s_xo}, s{s_xo}, s{s_lw}")
    a(f"s_mul_i32 s{s_xo}, s{s_xo}, 1280")
    a(f"v_lshrrev_b32 {v(t0)}, 4, v0")
    a(f"v_and_b32 {v(t1)}, 15, v0")
    a(f"v_lshlrev_b32 {v(t2)}, 1, {v(t0)}")
    a(f"v_xor_b32 {v(t1)}, {v(t1)}, {v(t2)}")
    a(f"v_mul_u32_u24 {v(wv[0])}, 3072, {v(t0)}")
    a(f"v_lshl_add_u32 {v(wv[0])}, {v(t1)}, 4, {v(wv[0])}")
    a(f"v_xor_b32 {v(wv[1])}, 128, {v(wv[0])}")
    a(f"s_mul_i32 s{s_wo}, s{s_lw}, {16*3072}")
    a(f"s_lshl_b32 s{s_t}, s{S_KT}, 10")
    a(f"s_add_u32 s{s_wo}, s{s_wo}, s{s_t}")
    a(f"s_lshl_b32 s{s_t}, s{S_SUB}, 8")
    a(f"s_add_u32 s{s_wo}, s{s_wo}, s{s_t}")
    a(f"s_lshl_b32 s{s_m}, s{s_lw}, 12")

    s_kc, s_xc, s_wc = S_T + 11, S_T + 12, S_T + 13
    if "norot" in OPT:
        a(f"s_mov_b32 s{s_kc}, 0")
    elif "oldmap" not in OPT:
        a(f"s_and_b32 s{s_kc}, s{S_RB}, 1")
        a(f"s_mul_i32 s{s_kc}, s{s_kc}, 5")
        a(f"s_lshr_b32 s{s_t}, s{S_RB}, 1")
        a(f"s_add_u32 s{s_kc}, s{s_kc}, s{s_t}")
        a(f"s_lshl_b32 s{s_t}, s{S_KT}, 2")
        a(f"s_add_u32 s{s_kc}, s{s_kc}, s{s_t}")
        a(f"s_add_u32 s{s_kc}, s{s_kc}, s{S_SUB}")
        for _ in range(2):
            a(f"s_sub_u32 s{s_t}, s{s_kc}, 10")
            a(f"s_cselect_b32 s{s_kc}, s{s_kc}, s{s_t}")
    else:
        a(f"s_mul_i32 s{s_kc}, s{S_PJ}, 27")
        a(f"s_lshr_b32 s{s_kc}, s{s_kc}, 4")
        a(f"s_mul_i32 s{s_t}, s{S_SUB}, 5")
        a(f"s_lshr_b32 s{s_t}, s{s_t}, 1")
        a(f"s_add_u32 s{s_kc}, s{s_kc}, s{s_t}")
        a(f"s_sub_u32 s{s_t}, s{s_kc}, 10")
        a(f"s_cselect_b32 s{s_kc}, s{s_kc}, s{s_t}")

    def issue1(c):
        sl = c % 4
        a(f"s_lshl_b32 s{s_xc}, s{s_kc}, 7")
        a(f"s_add_u32 s{s_xc}, s{s_xc}, s{s_xo}")
        a(f"s_mul_i32 s{s_wc}, s{s_kc}, {64*3072}")
        a(f"s_add_u32 s{s_wc}, s{s_wc}, s{s_wo}")
        for i in range(4):
            a(f"s_add_u32 m0, s{s_m}, {LX + sl*16384 + i*1024}")
            a(f"s_add_u32 s{s_t}, s{s_xc}, {i*8*64*1280}")
            dma(a, xv, R_A, f"s{s_t}")
        for i in range(4):
            a(f"s_add_u32 m0, s{s_m}, {LW + sl*WSL + i*1024}")
            a(f"s_add_u32 s{s_t}, s{s_wc}, {i*4*3072}")
            dma(a, wv[i >> 1], R_B, f"s{s_t}")
        a(f"s_add_u32 s{s_kc}, s{s_kc}, 1")
        a(f"s_cmp_eq_u32 s{s_kc}, 10")
        a(f"s_cselect_b32 s{s_kc}, 0, s{s_kc}")
        vm.op(("A", c), 8)

    stamp(a, 1)
    issue1(0); issue1(1)
    srd(a, R_C, P_W2, 1966080)
    l16 = vp.get(); w2v = [vp.get() for _ in range(5)]
    a(f"v_lshlrev_b32 {v(l16)}, 4, v0")
    a(f"s_mul_i32 s{s_ho}, s{S_RB}, {48*8192}")
    a(f"s_lshl_b32 s{s_t}, s{S_KT}, 17")
    a(f"s_add_u32 s{s_ho}, s{s_ho}, s{s_t}")
    a(f"s_add_u32 s{s_ho}, s{s_ho}, s{s_m}")
    for i in range(5):
        a(f"v_add_u32 {v(t2)}, {64*i}, v0")
        divmod_const(a, t0, t1, t2, 20)
        a(f"v_lshrrev_b32 {v(t2)}, 1, {v(t0)}")
        a(f"v_and_b32 {v(t2)}, 2, {v(t2)}")
        a(f"v_xor_b32 {v(t1)}, {v(t1)}, {v(t2)}")
        a(f"v_mul_u32_u24 {v(w2v[i])}, 1280, {v(t0)}")
        a(f"v_lshl_add_u32 {v(w2v[i])}, {v(t1)}, 4, {v(w2v[i])}")
    a(f"s_lshl_b32 s{s_w2}, s{S_KT}, 5")
    a(f"s_add_u32 s{s_w2}, s{s_w2}, s{s_lw}")
    a(f"s_mul_i32 s{s_w2}, s{s_w2}, {16*1280}")
    a(f"s_mul_i32 s{s_t}, s{S_SUB}, 320")
    a(f"s_add_u32 s{s_w2}, s{s_w2}, s{s_t}")
    a(f"s_mul_i32 s{s_m2}, s{s_lw}, 5120")

    def kchunk(c2):
        a(f"s_lshl_b32 s{s_t+1}, s{S_SUB}, 1")
        a(f"s_add_u32 s{s_t+1}, s{s_t+1}, {c2}")
        a(f"s_and_b32 s{s_t+1}, s{s_t+1}, 7")

    def issue_w2(c2):
        sl = (10 + c2) % 4
        kchunk(c2)
        a(f"s_mul_i32 s{s_t}, s{s_t+1}, {64*1280}")
        a(f"s_add_u32 s{s_t}, s{s_t}, s{s_w2}")
        for i in range(5):
            a(f"s_add_u32 m0, s{s_m2}, {LW + sl*WSL + i*1024}")
            dma(a, w2v[i], R_C, f"s{s_t}")
        vm.op(("W", c2), 5)

    def issue_h(c2):
        sl = (10 + c2) % 4
        kchunk(c2)
        a(f"s_lshl_b32 s{s_t}, s{s_t+1}, 14")
        a(f"s_add_u32 s{s_t}, s{s_t}, s{s_ho}")
        a(f"s_add_u32 m0, s{s_m}, {LX + sl*16384}")
        for i in range(4):
            a(f"buffer_load_dwordx4 {v(l16)}, {s(R_WS,4)}, s{s_t} offen offset:{i*1024} {SGL} lds")
        vm.op(("H", c2), 4)

    wreg = [[vp.get(4, 4) for i in range(5)] for c in range(4)]
    fl = vp.get(4, 2); wl = [vp.get(), vp.get()]
    a(f"v_add_u32 {v(wl[0])}, s{s_m2}, {v(l16)}")
    a(f"v_add_u32 {v(wl[0])}, {LW}, {v(wl[0])}")
    a(f"v_add_u32 {v(wl[1])}, {2*WSL}, {v(wl[0])}")

    def load_w2(c2):
        kchunk(c2)
        a(f"s_mul_i32 s{s_t}, s{s_t+1}, {64*1280}")
        a(f"s_add_u32 s{s_t}, s{s_t}, s{s_w2}")
        for i in range(5):
            a(f"buffer_load_dwordx4 {v(wreg[c2-4][i],4)}, {v(w2v[i])}, {s(R_C,4)}, s{s_t} offen")
        vm.op(("R", c2), 5)

    def put_w2(c2):
        sl = (10 + c2) % 4
        for i in range(5):
            a(f"ds_write_b128 {v(wl[sl>>1])}, {v(wreg[c2-4][i],4)} offset:{(sl&1)*WSL + i*1024}")

    load_epoch(a, S_T + 14)
    if "tlb" in OPT:
        l_nt = a.newlabel("L_nt")
        a(f"s_lshr_b32 s{s_t}, s2, 3")
        a(f"s_cmp_lg_u32 s{s_t}, 31")
        a(f"s_cbranch_scc1 {l_nt}")
        a(f"s_lshl_b32 s{s_t}, s{s_lw}, 21")
        for i in range(3):
            a(f"s_add_u32 s{S_T+14}, s{P_WS}, s{s_t}")
            a(f"s_addc_u32 s{S_T+15}, s{P_WS+1}, 0")
            a(f"s_load_dword s3, s[{S_T+14}:{S_T+15}], 0")
            a(f"s_add_u32 s{s_t}, s{s_t}, {4 << 21}")
        for p in (P_OUT, P_W2, P_WR, P_WI, P_B2):
            a(f"s_load_dword s3, s[{p}:{p+1}], 0")
        a(f"s_add_u32 s{S_T+14}, s{P_OUT}, {1 << 21}")
        a(f"s_addc_u32 s{S_T+15}, s{P_OUT+1}, 0")
        a(f"s_load_dword s3, s[{S_T+14}:{S_T+15}], 0")
        a.label(l_nt)
    nxt = 2
    for c in range(10):
        vm.wait(("A", c))
        if c == 0: stamp(a, 2)
        if c >= 2: stamp(a, c - 1, 3)
        a("s_barrier")
        if c >= 2: stamp(a, c - 1, 4)
        while nxt < 10 and nxt <= c + 3 and (nxt <= c + 2 or c >= 1):
            issue1(nxt); nxt += 1
            if c == 0 and "deep0" not in OPT:
                break
        if c == 3 and "nopf" not in OPT:
            a(f"s_lshl_b32 s{s_t}, s{S_FLAG}, 2")
            a(f"s_add_u32 s{s_t}, s{s_t}, s{s_lw}")
            a(f"s_mul_i32 s{s_t}, s{s_t}, 2560")
            for i in range(3):
                a(f"buffer_load_dwordx4 {v(wreg[3][i],4)}, {v(l16)}, {s(R_C,4)}, s{s_t} offen offset:{i*768}")
            vm.op("PF", 3)
        if c == 7:
            a(f"s_lshl_b32 s{s_t}, s{S_RB}, 11")
            a(f"s_add_u32 s{s_t}, s{s_t}, {WS_ST}")
            a(f"s_mov_b32 m0, {L_STAT}")
            for i in range(2):
                a(f"buffer_load_dwordx4 {v(l16)}, {s(R_WS,4)}, s{s_t} offen offset:{i*1024} {SC} lds")
            vm.op("S", 2)
        if c >= 7:
            issue_w2(c - 7)
    vm.wait("S")
    a("s_waitcnt lgkmcnt(0)")
    nonce(a)
    stamp(a, 3)
    a("s_barrier")
    vm.wait(("W", 1))
    issue_w2(3)
    for c2 in range(4, 8):
        if "nopace" not in OPT:
            vm.wait(("W", c2 - 2), ("R", c2 - 2))
        load_w2(c2)
    vm.wait(("W", 0))
    a("s_barrier")
    vm.wait(("W", 1), ("R", 5))
    a("s_barrier")
    stamp(a, 4)
    l_nf = a.newlabel("L_nf")
    a(f"s_cmp_lg_u32 s{s_lw}, 0")
    a(f"s_cbranch_scc1 {l_nf}")
    a(f"s_and_b32 s{s_t}, s{S_FLAG}, 0xfc")
    a(f"s_lshl_b32 s{s_t}, s{s_t}, 7")
    a(f"s_lshl_b32 s{s_t+1}, s{S_SUB}, 3")
    a(f"s_add_u32 s{s_t}, s{s_t}, s{s_t+1}")
    a(f"s_add_u32 s{s_t}, s{s_t}, {FL_H}")
    push_flag(a, s_t, 4, 7, t0, SCG)
    a(f"s_lshl_b32 s{s_t}, s{S_FLAG}, 3")
    a(f"s_add_u32 s{s_t}, s{s_t}, {FL_M}")
    push_flag(a, s_t, 1, 7, t0)
    a.label(l_nf)
    put_w2(4)
    a("s_barrier")
    put_w2(5)
    a(f"s_lshl_b32 s{s_t+2}, s{S_FLAG}, 7")
    a(f"s_add_u32 s{s_t+2}, s{s_t+2}, {FL_H}")
    poll(a, f"s{s_t+2}", 4, s_t, depth=1, sc=SGP); vm.q = []
    stamp(a, 5)
    for c2 in range(2, 6):
        issue_h(c2)
    a("s_waitcnt lgkmcnt(0)")
    for c2 in range(2, 8):
        vm.wait(("H", c2), ("W", c2))
        if c2 == 2: stamp(a, 6)
        stamp(a, c2 - 1, 5)
        a("s_barrier")
        stamp(a, c2 - 1, 6)
        if c2 in (3, 4):
            issue_h(c2 + 3); issue_w2(c2 + 3)
        if c2 == 5:
            a(f"s_and_b32 s{s_t}, s{S_W}, 3")
            a(f"s_lshl_b32 s{s_t}, s{s_t}, 12")
            a(f"s_add_u32 m0, s{s_t}, {L3_TAB}")
            a(f"s_add_u32 s{s_t}, s{s_t}, {TAB_F3}")
            for k in range(4):
                a(f"buffer_load_dwordx4 {v(l16)}, {s(R_TAB,4)}, s{s_t} offen offset:{k*1024} lds")
            vm.op("T3", 4)
    vm.wait("T3")
    stamp(a, 7, 5)
    a("s_barrier")
    stamp(a, 7, 6)
    a(f"s_branch {l_f3l}")


def twiddle_l(re, im, c_, s_, tmp, pk=None):
    o = []
    if ("pktw" in OPT) if pk is None else pk:
        for h in range(2):
            o.append(f"v_pk_mul_f32 {v(tmp,2)}, {v(im+2*h,2)}, {v(s_+2*h,2)}")
            o.append(f"v_pk_mul_f32 {v(tmp+2,2)}, {v(re+2*h,2)}, {v(s_+2*h,2)}")
            o.append(f"v_pk_fma_f32 {v(re+2*h,2)}, {v(re+2*h,2)}, {v(c_+2*h,2)}, {v(tmp,2)}")
            o.append(f"v_pk_fma_f32 {v(im+2*h,2)}, {v(im+2*h,2)}, {v(c_+2*h,2)}, {v(tmp+2,2)} neg_lo:[0,0,1] neg_hi:[0,0,1]")
        return o
    o += [f"v_mul_f32 {v(tmp+r)}, {v(re+r)}, {v(s_+r)}" for r in range(4)]
    o += [f"v_mul_f32 {v(re+r)}, {v(re+r)}, {v(c_+r)}" for r in range(4)]
    o += [f"v_fmac_f32 {v(re+r)}, {v(im+r)}, {v(s_+r)}" for r in range(4)]
    o += [f"v_fma_f32 {v(im+r)}, {v(im+r)}, {v(c_+r)}, -{v(tmp+r)}" for r in range(4)]
    return o


def twiddle(a, re, im, c_, s_, tmp, pk=None):
    for x in twiddle_l(re, im, c_, s_, tmp, pk):
        a(x)


def load_epoch(a, s_t):
    a(f"s_add_u32 s{s_t}, s{P_WS}, {WS_EP}")
    a(f"s_addc_u32 s{s_t+1}, s{P_WS+1}, 0")
    a(f"s_load_dwordx2 s[{S_E}:{S_E+1}], s[{s_t}:{s_t+1}], 0")


def copy_out(a, lds_v, g_v, regs, pitch2, s_base, step, s_t):
    for ii in range(8):
        a(f"ds_read_b128 {v(regs[ii],4)}, {v(lds_v)} offset:{ii*pitch2}")
    a("s_mov_b32 exec_lo, 0x3fffff")
    a("s_mov_b32 exec_hi, 0x3fffff")
    for ii in range(8):
        a(f"s_add_u32 s{s_t}, s{s_base}, {ii*step}")
        a(f"s_waitcnt lgkmcnt({7-ii})")
        a(f"buffer_store_dwordx4 {v(regs[ii],4)}, {v(g_v)}, {s(R_WS,4)}, s{s_t} offen {SC}")
    a("s_mov_b64 exec, -1")


def wave0_flag(a, base, vt):
    l = a.newlabel("L_w0")
    a(f"s_cmp_lg_u32 s{S_W}, 0")
    a(f"s_cbranch_scc1 {l}")
    a(f"s_lshl_b32 s{S_F2}, s{S_IDX}, 3")
    a(f"s_add_u32 s{S_F2}, s{S_F2}, {base}")
    push_flag(a, S_F2, 64, 9, vt)
    a.label(l)


L1_TAB, L1_XN, L1_ZX, L1_ST = 0, 16384, 57344, 0
L2_ZB, L2_WR, L2_WI, L2_TAB = 57344, 102400, 124928, 147456


FV = dict(i16=1, g=2, l16=3, t0=4, xr=8)


def fft_head(a):
    i16, g, l16, t0, xr = FV["i16"], FV["g"], FV["l16"], FV["t0"], FV["xr"]
    s_t = S_T
    srd(a, R_A, P_X, 2621440)
    a(f"s_lshl_b32 s{s_t+1}, s{S_W}, 11")
    a(f"s_add_u32 m0, s{s_t+1}, {L1_TAB}")
    a(f"s_lshl_b32 s{s_t}, s{S_W}, 8")
    for i in range(2):
        a(f"buffer_load_dwordx4 {v(l16)}, {s(R_TAB,4)}, s{s_t+1} offen offset:{i*1024} lds")
    a(f"v_mul_u32_u24 {v(t0)}, {64*1280}, {v(g)}")
    a(f"v_lshl_add_u32 {v(t0)}, {v(i16)}, 4, {v(t0)}")
    a(f"s_add_u32 s{s_t}, s{s_t}, s{S_IDX}")
    a(f"s_mul_i32 s{s_t}, s{s_t}, 1280")
    for i in range(5):
        a(f"buffer_load_dwordx4 {v(xr+4*i,4)}, {v(t0)}, {s(R_A,4)}, s{s_t} offen offset:{256*i}")
    a(f"s_add_u32 m0, s{s_t+1}, {L2_TAB}")
    a(f"s_add_u32 s{s_t+1}, s{s_t+1}, {TAB_F2}")
    for i in range(2):
        a(f"buffer_load_dwordx4 {v(l16)}, {s(R_TAB,4)}, s{s_t+1} offen offset:{i*1024} lds")


def fft_role(a, l_f3, l_f3l):
    s_n = S_IDX
    SP = 368
    vp = Pool("v", 28, 248)
    i16, g, l16, t0, xr = FV["i16"], FV["g"], FV["l16"], FV["t0"], FV["xr"]
    t1 = t0 + 1; t2 = t0 + 2
    s_t = S_T
    mf = vp.get(8, 4)
    k1v = vp.get()
    a(f"s_and_b32 s{s_t}, s{S_W}, 1")
    a(f"s_lshl_b32 s{s_t}, s{s_t}, 4")
    a(f"v_add_u32 {v(k1v)}, s{s_t}, {v(i16)}")
    a(f"s_and_b32 s{s_t}, s{S_W}, 2")
    a(f"s_lshl_b32 s{s_t}, s{s_t}, 8")
    a(f"v_lshlrev_b32 {v(t0)}, 8, {v(g)}")
    a(f"v_add_u32 {v(t0)}, s{s_n}, {v(t0)}")
    a(f"v_mul_u32_u24 {v(t0)}, {v(t0)}, {v(k1v)}")
    a(f"v_add_u32 {v(t0)}, s{s_t}, {v(t0)}")
    a(f"v_lshlrev_b32 {v(k1v)}, 6, {v(k1v)}")
    for ks in range(2):
        for jj in range(4):
            a(f"v_mad_u32_u24 {v(t1)}, {v(k1v)}, {16*ks+jj}, {v(t0)}")
            a(f"v_and_b32 {v(t1)}, 2047, {v(t1)}")
            a(f"v_cvt_f32_u32 {v(t1)}, {v(t1)}")
            a(f"v_mul_f32 {v(t1)}, {hex(f2u(1/2048))}, {v(t1)}")
            a(f"v_cos_f32 {v(t2)}, {v(t1)}")
            a(f"v_sin_f32 {v(t1)}, {v(t1)}")
            a(f"v_cvt_pk_bf16_f32 {v(mf+4*ks+jj)}, {v(t2)}, {v(t1)}")
    a(f"v_mov_b32 {v(t1)}, 0")
    a(f"v_and_b32 {v(t0)}, 31, v0")
    a(f"v_lshlrev_b32 {v(t0)}, 2, {v(t0)}")
    a(f"v_add_u32 {v(t0)}, {L1_ZX + 321*128}, {v(t0)}")
    a(f"ds_write_b32 {v(t0)}, {v(t1)}")
    za = [vp.get() for _ in range(8)]
    a(f"v_mul_u32_u24 {v(t0)}, 80, {v(g)}")
    a(f"v_add_u32 {v(t0)}, {v(t0)}, {v(i16)}")
    for u in range(2):
        for r in range(4):
            z = za[4*u+r]
            if u == 0:
                a(f"v_add_u32 {v(t1)}, {20*r}, {v(t0)}")
            else:
                a(f"v_sub_u32 {v(t1)}, {320-20*r}, {v(t0)}")
            a(f"v_and_b32 {v(t2)}, 7, {v(t1)}")
            a(f"v_xor_b32 {v(t2)}, s{S_W}, {v(t2)}")
            a(f"v_lshlrev_b32 {v(t2)}, 4, {v(t2)}")
            a(f"v_lshl_add_u32 {v(z)}, {v(t1)}, 7, {v(t2)}")
            a(f"v_add_u32 {v(z)}, {L1_ZX}, {v(z)}")
    xw, ta0, ta1 = vp.get(), vp.get(), vp.get()
    a(f"s_mul_i32 s{s_t}, s{S_W}, {4*1280}")
    a(f"s_add_u32 s{s_t}, s{s_t}, {L1_XN}")
    a(f"v_mul_u32_u24 {v(xw)}, 1280, {v(g)}")
    a(f"v_lshl_add_u32 {v(xw)}, {v(i16)}, 4, {v(xw)}")
    a(f"v_add_u32 {v(xw)}, s{s_t}, {v(xw)}")
    a(f"v_and_b32 {v(t0)}, 3, v0")
    a(f"v_lshlrev_b32 {v(t0)}, 3, {v(t0)}")
    a(f"v_add_u32 {v(t0)}, s{s_t}, {v(t0)}")
    a(f"v_lshrrev_b32 {v(t1)}, 2, v0")
    a(f"v_lshl_add_u32 {v(ta0)}, {v(t1)}, 6, {v(t0)}")
    a(f"v_and_b32 {v(t1)}, 3, {v(t1)}")
    a(f"v_lshl_add_u32 {v(ta1)}, {v(t1)}, 6, {v(t0)}")
    a(f"v_add_u32 {v(ta1)}, 1024, {v(ta1)}")
    ca = [vp.get() for _ in range(4)]
    s_hf = S_T + 2
    a(f"s_lshr_b32 s{s_hf}, s{S_W}, 2")
    a(f"v_and_b32 {v(t0)}, 7, v0")
    a(f"v_xor_b32 {v(t0)}, {v(t0)}, {v(g)}")
    a(f"v_lshlrev_b32 {v(t0)}, 4, {v(t0)}")
    a(f"v_lshl_add_u32 {v(t0)}, {v(i16)}, 7, {v(t0)}")
    a(f"s_mul_i32 s{s_t}, s{s_hf}, {11*2048}")
    a(f"s_add_u32 s{s_t}, s{s_t}, {L1_ZX}")
    a(f"v_add_u32 {v(ca[0])}, s{s_t}, {v(t0)}")
    a(f"v_xor_b32 {v(ca[1])}, 64, {v(ca[0])}")
    a(f"v_lshlrev_b32 {v(t0)}, 4, {v(g)}")
    a(f"v_add_u32 {v(t0)}, {L1_ZX + 320*128}, {v(t0)}")
    a(f"v_add_u32 {v(t1)}, 128, {v(t0)}")
    a(f"v_cmp_eq_u32 vcc, 7, {v(i16)}")
    a(f"v_cndmask_b32 {v(t0)}, {v(t1)}, {v(t0)}, vcc")
    a(f"v_add_u32 {v(t1)}, {9*2048}, {v(ca[0])}")
    a(f"s_cmp_eq_u32 s{s_hf}, 1")
    a(f"s_cselect_b64 vcc, -1, 0")
    a(f"v_cndmask_b32 {v(ca[2])}, {v(t1)}, {v(t0)}, vcc")
    a(f"v_xor_b32 {v(ca[3])}, 64, {v(ca[2])}")
    sw, sr, gv = vp.get(), vp.get(), vp.get()
    a(f"s_mul_i32 s{s_t}, s{S_W}, {16*SP}")
    a(f"v_mul_u32_u24 {v(sw)}, {SP}, {v(i16)}")
    a(f"v_lshl_add_u32 {v(sw)}, {v(g)}, 3, {v(sw)}")
    a(f"v_add_u32 {v(sw)}, s{s_t}, {v(sw)}")
    a(f"v_lshrrev_b32 {v(t0)}, 5, v0")
    a(f"v_and_b32 {v(t1)}, 31, v0")
    a(f"v_lshlrev_b32 {v(t1)}, 4, {v(t1)}")
    a(f"v_mul_u32_u24 {v(sr)}, {SP}, {v(t0)}")
    a(f"v_add3_u32 {v(sr)}, {v(sr)}, {v(t1)}, s{s_t}")
    a(f"v_mul_u32_u24 {v(gv)}, 90112, {v(t0)}")
    a(f"v_add_u32 {v(gv)}, {v(gv)}, {v(t1)}")
    s_k1, s_h2 = S_T + 6, S_T + 7
    a(f"s_lshr_b32 s{s_k1}, s{S_IDX}, 1")
    a(f"s_and_b32 s{s_h2}, s{S_IDX}, 1")
    wv = [vp.get() for _ in range(3)]
    a(f"s_mul_i32 s{s_t+1}, s{s_h2}, 176")
    for i in range(3):
        a(f"s_lshl_b32 s{s_t}, s{S_W}, 6")
        a(f"s_add_u32 s{s_t}, s{s_t}, {512*i}")
        a(f"v_add_u32 {v(t2)}, s{s_t}, v0")
        divmod_const(a, t0, t1, t2, 22)
        a(f"v_lshlrev_b32 {v(t1)}, 3, {v(t1)}")
        a(f"v_add_u32 {v(t1)}, s{s_t+1}, {v(t1)}")
        a(f"v_min_u32 {v(t1)}, 313, {v(t1)}")
        a(f"v_mul_u32_u24 {v(wv[i])}, {32*642}, {v(t0)}")
        a(f"v_lshl_add_u32 {v(wv[i])}, {v(t1)}, 1, {v(wv[i])}")
    srd(a, R_B, P_WR, 1314816); srd(a, R_C, P_WI, 1314816)
    mk = vp.mark()
    tb = vp.get(56, 4)
    F20 = [tb, tb + 4]; F32 = [tb + 8 + 4*i for i in range(8)]; TW = [tb + 40 + 4*i for i in range(4)]
    a("s_waitcnt vmcnt(7)")
    a("s_barrier")
    for i in range(14):
        a(f"ds_read_b128 {v(tb+4*i,4)}, {v(l16)} offset:{L1_TAB+1024*i}")
    load_epoch(a, s_t)
    mk2 = vp.mark()
    f = vp.get(40, 2)
    ac = vp.get(8, 2)
    vp.reset(mk2 + 100)
    rr = vp.get(2, 2); e0 = vp.get(4, 4)
    mean, var, m, den, m2, den2 = [vp.get() for _ in range(6)]
    mk3 = vp.mark()
    stamp(a, 1)
    for i in range(20):
        if i % 4 == 0:
            a(f"s_waitcnt vmcnt({6 - i//4})")
        a(f"v_lshlrev_b32 {v(f+2*i)}, 16, {v(xr+i)}")
        a(f"v_and_b32 {v(f+2*i+1)}, 0xffff0000, {v(xr+i)}")
        if i < 2:
            a(f"v_pk_mul_f32 {v(ac+4+2*i,2)}, {v(f+2*i,2)}, {v(f+2*i,2)}")
        else:
            a(f"v_pk_fma_f32 {v(ac+4+2*(i&1),2)}, {v(f+2*i,2)}, {v(f+2*i,2)}, {v(ac+4+2*(i&1),2)}")
        if i in (2, 3):
            a(f"v_pk_add_f32 {v(ac+2*(i&1),2)}, {v(f+2*i-4,2)}, {v(f+2*i,2)}")
        elif i > 3:
            a(f"v_pk_add_f32 {v(ac+2*(i&1),2)}, {v(ac+2*(i&1),2)}, {v(f+2*i,2)}")
    stamp(a, 2)
    a(f"v_pk_add_f32 {v(ac,2)}, {v(ac,2)}, {v(ac+2,2)}")
    a(f"v_pk_add_f32 {v(ac+4,2)}, {v(ac+4,2)}, {v(ac+6,2)}")
    a(f"v_add_f32 {v(mean)}, {v(ac)}, {v(ac+1)}")
    a(f"v_add_f32 {v(var)}, {v(ac+4)}, {v(ac+5)}")
    for sh in (8, 4, 2, 1):
        for dst in (mean, var):
            a(f"v_add_f32_dpp {v(dst)}, {v(dst)}, {v(dst)} row_ror:{sh} row_mask:0xf bank_mask:0xf")
    a(f"v_mul_f32 {v(mean)}, {hex(f2u(1/640))}, {v(mean)}")
    a(f"v_mul_f32 {v(var)}, {hex(f2u(1/640))}, {v(var)}")
    a(f"v_fma_f32 {v(var)}, -{v(mean)}, {v(mean)}, {v(var)}")
    a(f"v_max_f32 {v(var)}, 0, {v(var)}")
    bf16r(a, m, mean)
    bf16r(a, den, var)
    a(f"v_add_f32 {v(den)}, {hex(f2u(1e-5))}, {v(den)}")
    bf16r(a, den, den)
    a(f"v_sqrt_f32 {v(den)}, {v(den)}")
    bf16r(a, den, den)
    a(f"v_rcp_f32 {v(rr)}, {v(den)}")
    a(f"v_mul_f32 {v(rr+1)}, {v(m)}, {v(rr)}")
    for i in range(20):
        a(f"v_pk_fma_f32 {v(f+2*i,2)}, {v(f+2*i,2)}, {v(rr,2)}, {v(rr,2)} op_sel:[0,0,1] op_sel_hi:[1,0,1] neg_lo:[0,0,1] neg_hi:[0,0,1]")
        a(f"v_cvt_pk_bf16_f32 {v(xr+i)}, {v(f+2*i)}, {v(f+2*i+1)}")
        if i % 4 == 3:
            a(f"ds_write_b128 {v(xw)}, {v(xr+i-3,4)} offset:{64*(i-3)}")
    vp.reset(mk2)
    d = [[[vp.get(4, 4) for pl in range(2)] for t in range(2)] for row in range(4)]
    af = [[vp.get(4, 4) for t in range(2)] for row in range(4)]
    tmp = [vp.get(4, 4)]
    assert vp.mark() <= mk2 + 100
    vp.reset(mk3)
    tmp.append(vp.get(4, 4))
    zo = [xr + 4*i for i in range(5)] + [vp.get(4, 4) for _ in range(3)]
    s_wb, s_wm0 = S_T + 8, S_T + 9
    a(f"s_mul_i32 s{s_wb}, s{s_k1}, 642")
    a(f"s_lshl_b32 s{s_wm0}, s{S_W}, 10")

    def wdma(k):
        i, pl = k >> 1, k & 1
        l2 = a.newlabel("L_f2b")
        if i == 2:
            a(f"s_cmp_ge_u32 s{S_W}, 6")
            a(f"s_cbranch_scc1 {l2}")
        a(f"s_add_u32 m0, s{s_wm0}, {(L2_WI if pl else L2_WR) + i*8192}")
        dma(a, wv[i], R_C if pl else R_B, f"s{s_wb}")
        a.label(l2)
    a(f"v_sub_f32 {v(m2)}, {v(mean)}, {v(m)}")
    a(f"v_mul_f32 {v(m2)}, {v(m2)}, {v(rr)}")
    bf16r(a, m2, m2)
    a(f"v_mul_f32 {v(den2)}, {v(var)}, {v(rr)}")
    a(f"v_mul_f32 {v(den2)}, {v(den2)}, {v(rr)}")
    bf16r(a, den2, den2)
    a(f"v_add_f32 {v(den2)}, {hex(f2u(1e-5))}, {v(den2)}")
    bf16r(a, den2, den2)
    a("s_waitcnt lgkmcnt(0)")
    stamp(a, 3)
    for row in range(4):
        for t in range(2):
            a(f"ds_read_b64_tr_b16 {v(af[row][t],2)}, {v(ta0)} offset:{row*1280+t*32}")
            a(f"ds_read_b64_tr_b16 {v(af[row][t]+2,2)}, {v(ta1)} offset:{row*1280+t*32}")
        if row == 2:
            nonce(a)
            a(f"v_sqrt_f32 {v(den2)}, {v(den2)}")
            bf16r(a, den2, den2)
            a(f"v_rcp_f32 {v(den2)}, {v(den2)}")
            a(f"v_fma_f32 {v(m)}, {v(m2)}, {v(den)}, {v(m)}")
            a(f"v_mul_f32 {v(e0)}, {v(rr)}, {v(den2)}")
            a(f"v_mul_f32 {v(e0+2)}, {v(e0)}, {v(m)}")
            a(f"v_sub_f32 {v(e0+2)}, 0, {v(e0+2)}")
            a(f"v_mov_b32 {v(e0+1)}, s{S_E}")
            a(f"v_mov_b32 {v(e0+3)}, s{S_E+1}")
            a("s_waitcnt lgkmcnt(8)")
    a(f"s_lshl_b32 s{s_t}, s{s_n}, 3")
    a(f"s_add_u32 s{s_t}, s{s_t}, s{S_W}")
    a(f"s_lshl_b32 s{s_t}, s{s_t}, 6")
    a(f"s_add_u32 s{s_t}, s{s_t}, {WS_ST}")
    a(f"v_lshlrev_b32 {v(t0)}, 4, {v(g)}")
    a("s_mov_b32 exec_lo, 0x00010001")
    a("s_mov_b32 exec_hi, 0x00010001")
    a(f"buffer_store_dwordx4 {v(e0,4)}, {v(t0)}, {s(R_WS,4)}, s{s_t} offen {SC}")
    a("s_mov_b64 exec, -1")
    R1 = lambda row: [mfma_s(d[row][t][pl], af[row][t], F20[pl], "0") for t in range(2) for pl in range(2)]
    R2 = lambda row: ([mfma_s(d[row][u][op], F32[4*u+2*op], af[row][0], "0") for u in range(2) for op in range(2)] +
                      [mfma_s(d[row][u][op], F32[4*u+2*op+1], af[row][1]) for u in range(2) for op in range(2)])
    TWD = lambda row: (twiddle_l(d[row][0][0], d[row][0][1], TW[0], TW[1], tmp[0]) + twiddle_l(d[row][1][0], d[row][1][1], TW[2], TW[3], tmp[1]) +
                       [f"v_cvt_pk_bf16_f32 {v(af[row][pl]+2*t+h)}, {v(d[row][t][pl]+2*h)}, {v(d[row][t][pl]+2*h+1)}"
                        for pl in range(2) for t in range(2) for h in range(2)])
    OUT = lambda row: [f"v_cvt_pk_bf16_f32 {v(zo[4*u+r]+row)}, {v(d[row][u][0]+r)}, {v(d[row][u][1]+r)}" for u in range(2) for r in range(4)]
    for x in R1(0): a(x)
    a("s_waitcnt lgkmcnt(8)")
    for x in R1(1): a(x)
    wdma(0)
    a("s_waitcnt lgkmcnt(0)")
    weave(a, R1(2) + R1(3), TWD(0))
    wdma(1)
    weave(a, R2(0), TWD(1))
    wdma(2)
    weave(a, R2(1), TWD(2) + OUT(0))
    wdma(3)
    weave(a, R2(2), TWD(3) + OUT(1))
    wdma(4)
    weave(a, R2(3), [f"s_nop 0"] * 2 + OUT(2))
    wdma(5)
    o3 = OUT(3)
    for i in range(8):
        a(o3[i])
        a(f"ds_write_b128 {v(za[i])}, {v(zo[i],4)}")
    vp.reset(mk)
    zf = [[vp.get(4, 4) for ks in range(2)] for i in range(11)]
    dd = [vp.get(4, 4) for i in range(11)]
    a("s_waitcnt lgkmcnt(0)")
    a("s_barrier")
    stamp(a, 4)

    def crd(i):
        for ks in range(2):
            if i == 9:
                a(f"ds_read_b128 {v(zf[i][ks],4)}, {v(ca[2+ks])}")
            else:
                a(f"ds_read_b128 {v(zf[i][ks],4)}, {v(ca[ks])} offset:{i*2048}")
    for i in range(6):
        crd(i)
    for i in range(11):
        if i + 6 < 11:
            a("s_waitcnt lgkmcnt(10)")
        else:
            a(f"s_waitcnt lgkmcnt({2*(10-i)})")
        mfma(a, dd[i], zf[i][0], mf, "0")
        mfma(a, dd[i], zf[i][1], mf + 4)
        if i + 6 < 11:
            crd(i + 6)
    for i in range(11):
        a(f"v_cvt_pk_bf16_f32 {v(dd[i])}, {v(dd[i])}, {v(dd[i]+1)}")
        a(f"v_cvt_pk_bf16_f32 {v(dd[i]+1)}, {v(dd[i]+2)}, {v(dd[i]+3)}")
        a(f"ds_write_b64 {v(sw)}, {v(dd[i],2)} offset:{L1_ST + i*32}")
    s_b = S_T + 3
    a(f"s_and_b32 s{s_b}, s{S_W}, 1")
    a(f"s_lshl_b32 s{s_b}, s{s_b}, 12")
    a(f"s_lshl_b32 s{s_t}, s{s_hf}, 7")
    a(f"s_add_u32 s{s_b}, s{s_b}, s{s_t}")
    a(f"s_and_b32 s{s_t}, s{S_W}, 2")
    a(f"s_lshl_b32 s{s_t}, s{s_t}, 5")
    a(f"s_add_u32 s{s_b}, s{s_b}, s{s_t}")
    a(f"s_add_u32 s{s_b}, s{s_b}, s{s_n}")
    a(f"s_mul_i32 s{s_b}, s{s_b}, 352")
    a(f"s_add_u32 s{s_b}, s{s_b}, {WS_ZP}")
    a("s_waitcnt lgkmcnt(0)")
    stamp(a, 1, 7)
    copy_out(a, sr, gv, [zf[i][0] for i in range(8)], 2*SP, s_b, 180224, s_t)
    stamp(a, 2, 7)

    vp.reset(mk)
    s_b, s_i = S_T + 4, S_T + 5
    ra, rw, wa, tadr = za[0], za[1], za[2], za[3]
    a(f"v_lshrrev_b32 {v(t0)}, 2, v0")
    a(f"v_mul_u32_u24 {v(ra)}, 352, {v(t0)}")
    a(f"v_and_b32 {v(t0)}, 3, v0")
    a(f"v_lshl_add_u32 {v(ra)}, {v(t0)}, 3, {v(ra)}")
    a(f"s_lshl_b32 s{s_t}, s{S_W}, 5")
    a(f"s_add_u32 s{s_t}, s{s_t}, {L2_ZB}")
    a(f"v_add_u32 {v(ra)}, s{s_t}, {v(ra)}")
    a(f"v_add_u32 {v(rw)}, {L2_WR - L2_ZB}, {v(ra)}")
    a(f"v_mul_u32_u24 {v(wa)}, 352, {v(i16)}")
    a(f"v_lshl_add_u32 {v(wa)}, {v(g)}, 3, {v(wa)}")
    a(f"v_add_u32 {v(wa)}, s{s_t}, {v(wa)}")
    a(f"v_add_u32 {v(tadr)}, {L2_TAB}, {v(l16)}")
    a("s_waitcnt vmcnt(0)")
    a("s_barrier")
    stamp(a, 5)
    stamp(a, 3, 7)
    spare = vp.get(32, 4)
    tb = vp.get(96, 4)
    C = [[tb + 8*t + 4*ks for ks in range(2)] for t in range(4)]
    Sm = [[tb + 32 + 8*t + 4*ks for ks in range(2)] for t in range(4)]
    NS = [[tb + 64 + 8*t + 4*ks for ks in range(2)] for t in range(4)]
    X = [[spare + 16*pl + 4*t for t in range(4)] for pl in range(2)]
    z = [[vp.get(4, 4) for ks in range(2)] for pl in range(2)]
    wq = [[xr + 8*pl + 2*t for t in range(4)] for pl in range(2)]
    wu = [vp.get(4, 4) for _ in range(4)]
    tmp = vp.get(4, 4)
    wave0_flag(a, FL_Z, t0)
    l_np = a.newlabel("L_np")
    a(f"s_cmp_lg_u32 s{S_W}, 7")
    a(f"s_cbranch_scc1 {l_np}")
    a(f"s_lshl_b32 s{s_t+2}, s{S_IDX}, 9")
    a(f"s_add_u32 s{s_t+2}, s{s_t+2}, {FL_Z}")
    poll(a, f"s{s_t+2}", 64, s_t)
    a.label(l_np)
    for i in range(16):
        a(f"ds_read_b128 {v(tb+4*i,4)}, {v(tadr)} offset:{1024*i}")
        if i == 11:
            a("s_waitcnt lgkmcnt(4)")
    a("s_barrier")
    stamp(a, 6)
    stamp(a, 4, 7)
    a(f"s_mul_i32 s{s_b}, s{S_IDX}, 45056")
    a(f"s_lshl_b32 s{s_i}, s{S_W}, 10")
    a(f"s_add_u32 s{s_b}, s{s_b}, s{s_i}")
    l1 = a.newlabel("L_f2a")
    for i in range(6):
        if i == 5:
            a(f"s_cmp_ge_u32 s{S_W}, 4")
            a(f"s_cbranch_scc1 {l1}")
        a(f"s_add_u32 m0, s{s_i}, {L2_ZB + i*8192}")
        a(f"s_add_u32 s{s_t}, s{s_b}, {WS_ZP + i*8192}")
        dma(a, l16, R_WS, f"s{s_t}", SCL)
    a.label(l1)
    a("s_waitcnt lgkmcnt(0)")
    for i in range(32):
        a(f"v_xor_b32 {v(tb+64+i)}, 0x80008000, {v(tb+32+i)}")
    a(f"s_mov_b32 s{s_i}, s{S_W}")
    a(f"s_sub_u32 s{s_b}, 11, s{s_h2}")
    a("s_waitcnt vmcnt(0)")
    a("s_barrier")
    stamp(a, 7)
    l3 = a.newlabel("L_t3")
    a(f"s_cmp_lt_u32 s{S_W}, 4")
    a(f"s_cbranch_scc1 {l3}")
    a(f"s_and_b32 s{s_t}, s{S_W}, 3")
    a(f"s_lshl_b32 s{s_t}, s{s_t}, 12")
    a(f"s_add_u32 m0, s{s_t}, {L3_TAB}")
    a(f"s_add_u32 s{s_t}, s{s_t}, {TAB_F3}")
    for k in range(4):
        a(f"buffer_load_dwordx4 {v(l16)}, {s(R_TAB,4)}, s{s_t} offen offset:{k*1024} lds")
    a.label(l3)
    l_loop = a.newlabel("L_f2l")
    a.label(l_loop)
    for pl in range(2):
        for ks in range(2):
            for h in range(2):
                a(f"ds_read_b64_tr_b16 {v(z[pl][ks]+2*h,2)}, {v(ra)} offset:{(pl*64+32*ks+16*h)*352}")
    a("s_waitcnt lgkmcnt(0)")
    for pl in range(2):
        for t in range(4):
            a(f"ds_read_b64_tr_b16 {v(wq[pl][t],2)}, {v(rw)} offset:{pl*22528+16*t*352}")
    for t in range(4):
        mfma(a, X[0][t], C[t][0], z[0][0], "0")
        mfma(a, X[1][t], C[t][0], z[1][0], "0")
        mfma(a, X[0][t], C[t][1], z[0][1])
        mfma(a, X[1][t], C[t][1], z[1][1])
        mfma(a, X[0][t], Sm[t][0], z[1][0])
        mfma(a, X[1][t], NS[t][0], z[0][0])
        mfma(a, X[0][t], Sm[t][1], z[1][1])
        mfma(a, X[1][t], NS[t][1], z[0][1])
    a("s_waitcnt lgkmcnt(0)")
    for t in range(4):
        wr_, wi_ = wu[2*(t&1)], wu[2*(t&1)+1]
        for pl, dst in ((0, wr_), (1, wi_)):
            for h in range(2):
                a(f"v_lshlrev_b32 {v(dst+2*h)}, 16, {v(wq[pl][t]+h)}")
                a(f"v_and_b32 {v(dst+2*h+1)}, 0xffff0000, {v(wq[pl][t]+h)}")
        re, im = X[0][t], X[1][t]
        for r in range(4):
            a(f"v_mul_f32 {v(tmp+r)}, {v(im+r)}, {v(wi_+r)}")
        for r in range(4):
            a(f"v_mul_f32 {v(im+r)}, {v(im+r)}, {v(wr_+r)}")
        for r in range(4):
            a(f"v_fmac_f32 {v(im+r)}, {v(re+r)}, {v(wi_+r)}")
        for r in range(4):
            a(f"v_fma_f32 {v(re+r)}, {v(re+r)}, {v(wr_+r)}, -{v(tmp+r)}")
        for pl in range(2):
            for h in range(2):
                a(f"v_cvt_pk_bf16_f32 {v(z[pl][t>>1]+2*(t&1)+h)}, {v(X[pl][t]+2*h)}, {v(X[pl][t]+2*h+1)}")
    for t in range(4):
        mfma(a, X[0][t], z[0][0], C[t][0], "0")
        mfma(a, X[1][t], z[1][0], C[t][0], "0")
        mfma(a, X[0][t], z[0][1], C[t][1])
        mfma(a, X[1][t], z[1][1], C[t][1])
        mfma(a, X[0][t], z[1][0], NS[t][0])
        mfma(a, X[1][t], z[0][0], Sm[t][0])
        mfma(a, X[0][t], z[1][1], NS[t][1])
        mfma(a, X[1][t], z[0][1], Sm[t][1])
    for t in range(4):
        for pl in range(2):
            r = X[pl][t]
            a(f"v_cvt_pk_bf16_f32 {v(r)}, {v(r)}, {v(r+1)}")
            a(f"v_cvt_pk_bf16_f32 {v(r+1)}, {v(r+2)}, {v(r+3)}")
            a(f"ds_write_b64 {v(wa)}, {v(r,2)} offset:{(pl*64+16*t)*352}")
    for r in (ra, rw, wa):
        a(f"v_add_u32 {v(r)}, 256, {v(r)}")
    a(f"s_add_u32 s{s_i}, s{s_i}, 8")
    a(f"s_cmp_lt_u32 s{s_i}, s{s_b}")
    a("s_waitcnt lgkmcnt(0)")
    a(f"s_cbranch_scc1 {l_loop}")
    sr, gv = ra, rw
    a(f"v_lshrrev_b32 {v(t0)}, 5, v0")
    a(f"v_and_b32 {v(t1)}, 31, v0")
    a(f"v_lshlrev_b32 {v(t1)}, 4, {v(t1)}")
    a(f"s_mul_i32 s{s_t}, s{S_W}, {16*352}")
    a(f"s_add_u32 s{s_t}, s{s_t}, {L2_ZB}")
    a(f"v_mul_u32_u24 {v(sr)}, 352, {v(t0)}")
    a(f"v_add3_u32 {v(sr)}, {v(sr)}, {v(t1)}, s{s_t}")
    a(f"v_mul_u32_u24 {v(gv)}, 45056, {v(t0)}")
    a(f"v_add_u32 {v(gv)}, {v(gv)}, {v(t1)}")
    a(f"s_and_b32 s{s_b}, s{S_W}, 3")
    a(f"s_lshl_b32 s{s_b}, s{s_b}, 11")
    a(f"s_lshl_b32 s{s_t}, s{s_h2}, 6")
    a(f"s_add_u32 s{s_b}, s{s_b}, s{s_t}")
    a(f"s_and_b32 s{s_t}, s{S_W}, 4")
    a(f"s_lshl_b32 s{s_t}, s{s_t}, 3")
    a(f"s_add_u32 s{s_b}, s{s_b}, s{s_t}")
    a(f"s_add_u32 s{s_b}, s{s_b}, s{s_k1}")
    a(f"s_mul_i32 s{s_b}, s{s_b}, 352")
    a(f"s_add_u32 s{s_b}, s{s_b}, {WS_VP}")
    a("s_barrier")
    stamp(a, 8)
    stamp(a, 5, 7)
    copy_out(a, sr, gv, [tb + 4*i for i in range(8)], 2*352, s_b, 90112, s_t)
    stamp(a, 6, 7)
    a("s_waitcnt vmcnt(0)")
    a("s_barrier")
    stamp(a, 7, 7)
    wave0_flag(a, FL_V, t0)
    a(f"s_xor_b32 s{s_t}, s{S_W}, 1")
    a(f"s_or_b32 s{s_t}, s2, s{s_t}")
    a(f"s_cbranch_scc1 {l_f3l}")
    advance_epoch(a, t0, s_t)
    a("s_waitcnt vmcnt(0)")


def f3(a, l_f3, l_f3l):
    UP = 1376
    vp = Pool("v", 1, 248)
    i16, g, l16 = [vp.get() for _ in range(3)]
    t0 = vp.get(3, 2); t1 = t0 + 1; t2 = t0 + 2
    s_t, s_b, s_i, s_row, s_p = S_T, S_T + 3, S_T + 4, S_T + 5, S_T + 6
    s_n, s_qt = S_N3, S_Q3
    a.label(l_f3l)
    a(f"s_mov_b32 s{S_PJ}, 0")
    a.label(l_f3)
    stamp(a, 1, 8)
    srd(a, R_A, P_X, 2621440); srd(a, R_B, P_B2, 1280); srd(a, R_C, P_OUT, 2621440)
    a(f"v_and_b32 {v(i16)}, 15, v0")
    a(f"v_lshrrev_b32 {v(g)}, 4, v0")
    a(f"v_lshlrev_b32 {v(l16)}, 4, v0")
    a(f"s_lshl_b32 s{s_t}, s{s_qt}, 3")
    a(f"s_add_u32 s{s_t}, s{s_t}, s{S_W}")
    a(f"s_lshl_b32 s{s_row}, s{s_t}, 6")
    a(f"s_add_u32 s{s_row}, s{s_row}, s{s_n}")
    a(f"s_mul_i32 s{s_row}, s{s_row}, 1280")
    a(f"s_lshl_b32 s{s_p}, s{s_n}, 5")
    a(f"s_add_u32 s{s_p}, s{s_p}, s{s_t}")
    a(f"s_mul_i32 s{s_p}, s{s_p}, 160")
    a(f"s_add_u32 s{s_p}, s{s_p}, {WS_P}")
    vp.get(101)
    l4, pa, pb = vp.get(), vp.get(), vp.get()
    a(f"v_lshlrev_b32 {v(l4)}, 2, v0")
    PA = [vp.get(4, 4) for _ in range(5)]
    PB = [vp.get() for _ in range(5)]
    a(f"buffer_load_dwordx4 {v(PA[3],4)}, {v(l16)}, {s(R_B,4)}, 0 offen")
    a(f"buffer_load_dword {v(PB[3])}, {v(l4)}, {s(R_B,4)}, 0 offen offset:1024")
    a(f"buffer_load_dwordx4 {v(PA[4],4)}, {v(l16)}, {s(R_A,4)}, s{s_row} offen")
    a(f"buffer_load_dword {v(PB[4])}, {v(l4)}, {s(R_A,4)}, s{s_row} offen offset:1024")
    divmod_const(a, t0, t1, 0, 10)
    a(f"v_mul_u32_u24 {v(pa)}, {2048*160}, {v(t0)}")
    a(f"v_lshl_add_u32 {v(pa)}, {v(t1)}, 4, {v(pa)}")
    a(f"v_add_u32 {v(t2)}, 256, v0")
    divmod_const(a, t0, t1, t2, 40)
    a(f"v_mul_u32_u24 {v(pb)}, {2048*160}, {v(t0)}")
    a(f"v_lshl_add_u32 {v(pb)}, {v(t1)}, 2, {v(pb)}")
    gf = vp.get(8, 4)
    sv, ph = vp.get(), vp.get()
    a(f"v_lshrrev_b32 {v(t0)}, 1, {v(i16)}")
    a(f"s_lshl_b32 s{s_t}, s{s_qt}, 9")
    a(f"s_add_u32 s{s_t}, s{s_t}, s{s_n}")
    a(f"v_lshlrev_b32 {v(sv)}, 6, {v(t0)}")
    a(f"v_add_u32 {v(sv)}, s{s_t}, {v(sv)}")
    a(f"v_lshlrev_b32 {v(t0)}, 2, {v(g)}")
    a(f"v_mul_u32_u24 {v(ph)}, {v(sv)}, {v(t0)}")
    a(f"v_and_b32 {v(t0)}, 1, v0")
    a(f"v_mul_u32_u24 {v(t0)}, 1536, {v(t0)}")
    a(f"v_add_u32 {v(ph)}, {v(ph)}, {v(t0)}")
    cs_ = [vp.get() for _ in range(4)]
    for e2 in range(4):
        for hh in range(2):
            e = 2 * e2 + hh
            ko = e if e < 4 else 16 + e - 4
            a(f"v_mad_u32_u24 {v(t1)}, {v(sv)}, {ko}, {v(ph)}")
            a(f"v_and_b32 {v(t1)}, 2047, {v(t1)}")
            a(f"v_cvt_f32_u32 {v(t1)}, {v(t1)}")
            a(f"v_mul_f32 {v(t1)}, {hex(f2u(1/2048))}, {v(t1)}")
            a(f"v_cos_f32 {v(cs_[hh])}, {v(t1)}")
            a(f"v_sin_f32 {v(cs_[2+hh])}, {v(t1)}")
        a(f"v_cvt_pk_bf16_f32 {v(gf+e2)}, {v(cs_[0])}, {v(cs_[1])}")
        a(f"v_cvt_pk_bf16_f32 {v(gf+4+e2)}, -{v(cs_[2])}, -{v(cs_[3])}")
    ra = [vp.get() for _ in range(3)]; ua = [vp.get() for _ in range(3)]
    a(f"v_lshrrev_b32 {v(t0)}, 2, v0")
    a(f"v_mul_u32_u24 {v(t0)}, 352, {v(t0)}")
    a(f"v_and_b32 {v(t1)}, 3, v0")
    a(f"v_lshl_add_u32 {v(t0)}, {v(t1)}, 3, {v(t0)}")
    a(f"v_mul_u32_u24 {v(t1)}, {2*UP}, {v(g)}")
    a(f"v_lshl_add_u32 {v(t1)}, {v(i16)}, 2, {v(t1)}")
    for k in range(3):
        a(f"s_add_u32 s{s_t}, s{S_W}, {8*k}")
        a(f"s_min_u32 s{s_t}, s{s_t}, 20")
        a(f"s_cmp_ge_u32 s{s_t}, 11")
        a(f"s_cselect_b32 s{s_t+1}, {22528-352}, 0")
        a(f"s_lshl_b32 s{s_b}, s{s_t}, 5")
        a(f"s_add_u32 s{s_t+1}, s{s_t+1}, s{s_b}")
        a(f"v_add_u32 {v(ra[k])}, s{s_t+1}, {v(t0)}")
        a(f"s_lshl_b32 s{s_b}, s{s_t}, 6")
        a(f"s_add_u32 s{s_b}, s{s_b}, {L3_UX}")
        a(f"v_add_u32 {v(ua[k])}, s{s_b}, {v(t1)}")
    a(f"v_add_u32 {v(t0)}, 4, {v(ua[2])}")
    a(f"v_subrev_u32 {v(t1)}, 28, {v(ua[2])}")
    a(f"v_cmp_eq_u32 vcc, 7, {v(i16)}")
    a(f"v_cndmask_b32 {v(t0)}, {v(t0)}, {v(t1)}, vcc")
    a(f"s_cmp_ge_u32 s{S_W}, 4")
    a(f"s_cselect_b64 vcc, -1, 0")
    a(f"v_cndmask_b32 {v(ua[2])}, {v(ua[2])}, {v(t0)}, vcc")
    ub0, ub1, swr, srd0, srd1 = [vp.get() for _ in range(5)]
    a(f"s_mul_i32 s{s_t}, s{S_W}, {UP}")
    a(f"s_add_u32 s{s_t}, s{s_t}, {L3_UX}")
    a(f"v_mul_u32_u24 {v(t0)}, 80, {v(g)}")
    a(f"v_add_u32 {v(t0)}, {v(t0)}, {v(i16)}")
    a(f"v_lshlrev_b32 {v(t0)}, 2, {v(t0)}")
    a(f"v_add_u32 {v(ub0)}, s{s_t}, {v(t0)}")
    a(f"s_add_u32 s{s_t}, s{s_t}, {260*4}")
    a(f"v_sub_u32 {v(ub1)}, s{s_t}, {v(t0)}")
    a(f"s_lshl_b32 s{s_t}, s{S_W}, 11")
    a(f"s_add_u32 s{s_t}, s{s_t}, {L3_SX}")
    a(f"v_lshlrev_b32 {v(t0)}, 6, {v(i16)}")
    a(f"v_lshl_add_u32 {v(t0)}, {v(g)}, 3, {v(t0)}")
    a(f"v_add_u32 {v(swr)}, s{s_t}, {v(t0)}")
    a(f"v_add_u32 {v(srd0)}, s{s_t}, {v(l16)}")
    a(f"v_add_u32 {v(srd1)}, s{s_t}, {v(l4)}")
    vq = Pool("v", 52, 108)
    tb = vq.get(56, 4)
    G32 = [tb + 4*i for i in range(8)]; G20 = [tb + 32, tb + 36]; TW = [tb + 40 + 4*i for i in range(4)]
    a(f"v_add_u32 {v(t0)}, {L3_TAB}, {v(l16)}")
    for i in range(14):
        a(f"ds_read_b128 {v(tb+4*i,4)}, {v(t0)} offset:{1024*i}")
    o = vp.get(10, 2); w_ = vp.get(10, 2); xx = vp.get(10, 2); sf = vp.get(10, 2)
    pfl = vp.get(3, 2)
    s_have, s_pf = S_T + 7, S_T + 8
    a(f"s_mov_b32 s{s_have}, 0")
    a(f"s_lshl_b32 s{s_pf}, s{s_n}, 2")
    a(f"s_add_u32 s{s_pf}, s{s_pf}, s{s_qt}")
    a(f"s_lshl_b32 s{s_pf}, s{s_pf}, 8")
    a(f"s_add_u32 s{s_pf}, s{s_pf}, {FL_P}")
    a(f"v_min_u32 {v(pfl+2)}, 23, v0")
    a(f"v_lshlrev_b32 {v(pfl+2)}, 3, {v(pfl+2)}")

    def unpack(dst, A_, B_):
        for i in range(5):
            src = A_ + i if i < 4 else B_
            a(f"v_lshlrev_b32 {v(dst+2*i)}, 16, {v(src)}")
            a(f"v_and_b32 {v(dst+2*i+1)}, 0xffff0000, {v(src)}")

    def load_p():
        for k in range(3):
            a(f"s_add_u32 s{s_t}, s{s_p}, {k*2621440}")
            a(f"buffer_load_dwordx4 {v(PA[k],4)}, {v(pa)}, {s(R_WS,4)}, s{s_t} offen {SGL}")
            a(f"buffer_load_dword {v(PB[k])}, {v(pb)}, {s(R_WS,4)}, s{s_t} offen {SGL}")

    def look():
        a(f"buffer_load_dwordx2 {v(pfl,2)}, {v(pfl+2)}, {s(R_WS,4)}, s{s_pf} offen {SGP}")

    def try_p(last=False):
        l_d, l_no, l_again = a.newlabel("L_tp"), a.newlabel("L_tn"), a.newlabel("L_ta")
        a(f"s_cmp_lg_u32 s{s_have}, 0")
        a(f"s_cbranch_scc1 {l_d}")
        if last:
            a(f"s_mov_b32 s{s_t+1}, 0x40000")
            a.label(l_again)
        a("s_waitcnt vmcnt(0)")
        a(f"v_cmp_ne_u64 vcc, s[{S_E}:{S_E+1}], {v(pfl,2)}")
        a(f"s_cbranch_vccz {l_no}")
        look()
        if last:
            a(f"s_sub_u32 s{s_t+1}, s{s_t+1}, 1")
            a(f"s_cbranch_scc0 {l_again}")
        else:
            a(f"s_branch {l_d}")
        a.label(l_no)
        load_p()
        a(f"s_mov_b32 s{s_have}, 1")
        a.label(l_d)

    stamp(a, 2, 8)
    a("s_waitcnt vmcnt(0)")
    stamp(a, 3, 8)
    l_nf = a.newlabel("L_nf")
    a(f"s_cmp_eq_u32 s{S_PJ}, 0")
    a(f"s_cbranch_scc1 {l_nf}")
    push_flag(a, S_FLAG, 8, 8, t0, SCG)
    a.label(l_nf)
    unpack(o, PA[3], PB[3])
    unpack(xx, PA[4], PB[4])
    l_nv = a.newlabel("L_nv")
    a(f"s_cmp_lt_u32 s{S_W}, 4")
    a(f"s_cbranch_scc1 {l_nv}")
    a(f"s_lshl_b32 s{s_t+2}, s{s_n}, 9")
    a(f"s_add_u32 s{s_t+2}, s{s_t+2}, {FL_V}")
    poll(a, f"s{s_t+2}", 64, s_t, depth=2)
    stamp3(a, 7)
    stamp(a, 8, 7)
    a(f"s_sub_u32 s{s_i}, s{S_W}, 4")
    a(f"s_mul_i32 s{s_i}, s{s_i}, 11264")
    a(f"s_mul_i32 s{s_b}, s{s_n}, 45056")
    a(f"s_add_u32 s{s_b}, s{s_b}, s{s_i}")
    for i in range(3):
        a(f"s_add_u32 m0, s{s_i}, {L3_VB + i*4096}")
        a(f"s_add_u32 s{s_t}, s{s_b}, {WS_VP + i*4096}")
        for k in range(4 if i < 2 else 3):
            a(f"buffer_load_dwordx4 {v(l16)}, {s(R_WS,4)}, s{s_t} offen offset:{k*1024} {SCL} lds")
    a("s_waitcnt vmcnt(0)")
    a.label(l_nv)
    a("s_waitcnt lgkmcnt(0)")
    a("s_barrier")
    stamp3(a, 6)
    stamp(a, 4, 8)
    look()
    vq = Pool("v", 8, 52)
    vf = [[vq.get(4, 4) for ks in range(2)] for k in range(3)]
    dd = [vq.get(4, 4) for k in range(4)]
    tmp = vq.get(4, 4)
    for k in range(3):
        for ks in range(2):
            for h in range(2):
                a(f"ds_read_b64_tr_b16 {v(vf[k][ks]+2*h,2)}, {v(ra[k])} offset:{(32*ks+16*h)*352}")
    for k in range(3):
        a(f"s_waitcnt lgkmcnt({8-4*k})")
        mfma(a, dd[k], gf, vf[k][0], "0")
        mfma(a, dd[k], gf + 4, vf[k][1])
    for k in range(3):
        a(f"v_cvt_pk_bf16_f32 {v(dd[k])}, {v(dd[k])}, {v(dd[k]+1)}")
        a(f"v_cvt_pk_bf16_f32 {v(dd[k]+1)}, {v(dd[k]+2)}, {v(dd[k]+3)}")
        a(f"ds_write_b32 {v(ua[k])}, {v(dd[k])}")
        a(f"ds_write_b32 {v(ua[k])}, {v(dd[k]+1)} offset:{UP}")
    a("s_waitcnt lgkmcnt(0)")
    a("s_barrier")
    stamp(a, 5, 8)
    uf = vf[0]
    a(f"ds_read2_b32 {v(uf[0],2)}, {v(ub0)} offset0:0 offset1:20")
    a(f"ds_read2_b32 {v(uf[0]+2,2)}, {v(ub0)} offset0:40 offset1:60")
    a(f"ds_read2_b32 {v(uf[1],2)}, {v(ub1)} offset0:60 offset1:40")
    a(f"ds_read2_b32 {v(uf[1]+2,2)}, {v(ub1)} offset0:20 offset1:0")
    a("s_waitcnt lgkmcnt(2)")
    for t in range(2):
        for op in range(2):
            mfma(a, dd[2*t+op], uf[0], G32[4*t+2*op], "0")
    a("s_waitcnt lgkmcnt(0)")
    for t in range(2):
        for op in range(2):
            mfma(a, dd[2*t+op], uf[1], G32[4*t+2*op+1])
    try_p()
    tf = vf[1]
    for t in range(2):
        twiddle(a, dd[2*t], dd[2*t+1], TW[2*t], TW[2*t+1], tmp, True)
        for pl in range(2):
            for h in range(2):
                a(f"v_cvt_pk_bf16_f32 {v(tf[t]+2*pl+h)}, {v(dd[2*t+pl]+2*h)}, {v(dd[2*t+pl]+2*h+1)}")
        for tp in range(2):
            mfma(a, dd[2*t+tp], tf[t], G20[tp], "0")
    for t in range(2):
        for tp in range(2):
            r = dd[2*t+tp]
            a(f"v_cvt_pk_bf16_f32 {v(r)}, {v(r)}, {v(r+1)}")
            a(f"v_cvt_pk_bf16_f32 {v(r+1)}, {v(r+2)}, {v(r+3)}")
            a(f"ds_write_b64 {v(swr)}, {v(r,2)} offset:{tp*1024+t*32}")
    stamp(a, 6, 8)
    try_p(True)
    a("s_waitcnt lgkmcnt(0)")
    a(f"ds_read_b128 {v(PA[3],4)}, {v(srd0)}")
    a(f"ds_read_b32 {v(PB[3])}, {v(srd1)} offset:1024")
    stamp3(a, 8)
    stamp(a, 7, 8)
    for k in range(3):
        a(f"s_waitcnt vmcnt({4-2*k})")
        unpack(w_, PA[k], PB[k])
        for i in range(5):
            a(f"v_pk_add_f32 {v(o+2*i,2)}, {v(o+2*i,2)}, {v(w_+2*i,2)}")
    for i in range(10):
        a(f"v_mul_f32 {v(w_+i)}, {hex(f2u(-np.log2(np.e)))}, {v(o+i)}")
    for i in range(10):
        a(f"v_exp_f32 {v(w_+i)}, {v(w_+i)}")
    a("s_waitcnt lgkmcnt(0)")
    unpack(sf, PA[3], PB[3])
    for i in range(5):
        a(f"v_pk_add_f32 {v(w_+2*i,2)}, {v(w_+2*i,2)}, 1.0 op_sel_hi:[1,0]")
    for i in range(5):
        a(f"v_pk_mul_f32 {v(o+2*i,2)}, {v(o+2*i,2)}, {v(sf+2*i,2)}")
    for i in range(10):
        a(f"v_rcp_f32 {v(w_+i)}, {v(w_+i)}")
    for i in range(5):
        a(f"v_pk_fma_f32 {v(o+2*i,2)}, {v(o+2*i,2)}, {v(w_+2*i,2)}, {v(xx+2*i,2)}")
    for i in range(5):
        dst = PA[1] + i if i < 4 else PB[1]
        a(f"v_cvt_pk_bf16_f32 {v(dst)}, {v(o+2*i)}, {v(o+2*i+1)}")
    stamp(a, 8, 8)
    a(f"buffer_store_dwordx4 {v(PA[1],4)}, {v(l16)}, {s(R_C,4)}, s{s_row} offen")
    a(f"buffer_store_dword {v(PB[1])}, {v(l4)}, {s(R_C,4)}, s{s_row} offen offset:1024")


def build():
    a = Asm()
    a("s_cmpk_ge_u32 s2, 0x100")
    a("s_cbranch_scc1 L_exit")
    a("s_load_dwordx16 s[4:19], s[0:1], 0")
    a("s_load_dwordx4 s[20:23], s[0:1], 64")
    a("s_load_dwordx2 s[24:25], s[0:1], 80")
    stamp_begin(a)
    a(f"s_getpc_b64 s[{R_TAB}:{R_TAB+1}]")
    a(f"s_add_u32 s{R_TAB}, s{R_TAB}, ctab@rel32@lo+4")
    a(f"s_addc_u32 s{R_TAB+1}, s{R_TAB+1}, ctab@rel32@hi+12")
    a(f"s_mov_b32 s{R_TAB+2}, {TAB_END}")
    a(f"s_mov_b32 s{R_TAB+3}, 0x20000")
    a("v_lshrrev_b32 v1, 6, v0")
    a(f"v_readfirstlane_b32 s{S_W}, v1")
    a("v_and_b32 v0, 63, v0")
    a("v_and_b32 v1, 15, v0")
    a("v_lshrrev_b32 v2, 4, v0")
    a("v_lshlrev_b32 v3, 4, v0")
    t = S_T
    a(f"s_and_b32 s{t}, s2, 7")
    a(f"s_lshr_b32 s{t+1}, s2, 3")
    a(f"s_lshl_b32 s{S_N3}, s{t}, 3")
    a(f"s_add_u32 s{S_IDX}, s{S_N3}, s{t+1}")
    a(f"s_lshr_b32 s{t+2}, s{t+1}, 2")
    a(f"s_add_u32 s{S_N3}, s{S_N3}, s{t+2}")
    a(f"s_and_b32 s{S_Q3}, s{t+1}, 3")
    a(f"s_sub_u32 s{S_PJ}, s{t+2}, 2")
    if "oldmap" in OPT:
        a(f"s_mul_i32 s{t+3}, s{t}, 6")
        a(f"s_add_u32 s{t+3}, s{t+3}, s{S_PJ}")
        a(f"s_and_b32 s{S_RB}, s{t+3}, 15")
        a(f"s_lshr_b32 s{S_KT}, s{t+3}, 4")
    else:
        a(f"s_lshl_b32 s{S_RB}, s{t}, 1")
        a(f"s_sub_u32 s{S_KT}, s{S_PJ}, 3")
        a(f"s_cselect_b32 s{S_KT}, s{S_PJ}, s{S_KT}")
        a(f"s_cselect_b32 s{t+3}, 0, 1")
        a(f"s_add_u32 s{S_RB}, s{S_RB}, s{t+3}")
    a(f"s_mov_b32 s{S_SUB}, s{S_Q3}")
    a(f"s_mul_i32 s{S_FLAG}, s{S_RB}, 3")
    a(f"s_add_u32 s{S_FLAG}, s{S_FLAG}, s{S_KT}")
    a(f"s_lshl_b32 s{S_FLAG}, s{S_FLAG}, 2")
    a(f"s_add_u32 s{S_FLAG}, s{S_FLAG}, s{S_SUB}")
    a(f"s_add_u32 s{t+3}, s{S_IDX}, 192")
    a(f"s_cmp_lt_u32 s{t+1}, 8")
    a(f"s_cselect_b32 s{S_FLAG}, s{t+3}, s{S_FLAG}")
    a("s_waitcnt lgkmcnt(0)")
    a(f"s_add_u32 s{t+4}, s{P_WS}, {WS_EP + ((192<<20) if "wsend" in OPT else 0)}")
    a(f"s_addc_u32 s{t+5}, s{P_WS+1}, 0")
    a(f"s_load_dwordx2 s[{S_E}:{S_E+1}], s[{t+4}:{t+5}], 0")
    if "wsend" in OPT:
        a(f"s_add_u32 s{P_WS}, s{P_WS}, {192<<20}")
        a(f"s_addc_u32 s{P_WS+1}, s{P_WS+1}, 0")
    srd(a, R_WS, P_WS, WS_END if "p2x" not in OPT else 64 << 20)
    a(f"s_cmp_ge_u32 s{t+1}, 8")
    a("s_cbranch_scc1 L_gemm")
    fft_head(a)
    a("s_branch L_fft")
    a.label("L_gemm")
    a(f"s_cmp_lt_u32 s{S_W}, 4")
    a("s_cbranch_scc1 L_comp")
    gemm_loader(a, "L_f3l")
    a.label("L_comp")
    gemm_compute(a, "L_f3")
    a.label("L_fft")
    fft_role(a, "L_f3", "L_f3l")
    f3(a, "L_f3", "L_f3l")
    stamp_end(a)
    a.label("L_exit")
    a("s_endpgm")
    a.resolve()
    nv, ns = a.max_regs()
    print("instr", len(a.ins), "vgpr", nv, "sgpr", ns, file=sys.stderr)
    kn = NAME + "_kernel"
    out = "; generated by gen/gen2.py (hand-written generator)\n"
    out += "; @launch grid=(256,1,1) block=(512,1,1) lds=163840\n"
    out += '.amdgcn_target "amdgcn-amd-amdhsa--gfx950"\n.text\n'
    out += f".globl {kn}\n.p2align 8\n.type {kn},@function\n{kn}:\n" + a.text()
    out += f'''.section .rodata,"a"
.p2align 6
.amdhsa_kernel {kn}
  .amdhsa_next_free_vgpr 256
  .amdhsa_next_free_sgpr {ns}
  .amdhsa_accum_offset 256
  .amdhsa_group_segment_fixed_size 0
  .amdhsa_kernarg_size 88
  .amdhsa_user_sgpr_count 2
  .amdhsa_user_sgpr_kernarg_segment_ptr 1
  .amdhsa_system_sgpr_workgroup_id_x 1
  .amdhsa_float_denorm_mode_32 3
.end_amdhsa_kernel
'''
    out += tables.as_asm("ctab", tables.tab_f1() + tables.tab_f2()[:16384] + tables.tab_f3())
    return out


if __name__ == "__main__":
    path = sys.argv[1] if len(sys.argv) > 1 else f"cdna_kernels/{NAME}.s"
    open(path, "w").write(build())
```

```python
import re, os
RULES = os.environ.get("RULES", "C")
RULE_A, RULE_B, RULE_C = "A" in RULES, "B" in RULES, "C" in RULES

TRANS = ("v_exp_f32", "v_log_f32", "v_rcp_f32", "v_rsq_f32", "v_sqrt_f32", "v_sin_f32", "v_cos_f32", "v_rcp_iflag_f32")

_reg_re = re.compile(r"(?<![\w.])([vsa])(?:(\d+)|\[(\d+):(\d+)\])(?![\w])")


def regs_of(op):
    out = set()
    op = op.strip()
    for m in _reg_re.finditer(op):
        k = m.group(1)
        if m.group(2) is not None:
            out.add((k, int(m.group(2))))
        else:
            for i in range(int(m.group(3)), int(m.group(4)) + 1):
                out.add((k, i))
    if re.search(r"\bvcc\b", op):
        out |= {("s", 106), ("s", 107)}
    if re.search(r"\bvcc_lo\b", op):
        out.add(("s", 106))
    if re.search(r"\bvcc_hi\b", op):
        out.add(("s", 107))
    if re.search(r"\bexec\b", op):
        out |= {("s", 126), ("s", 127)}
    if re.search(r"\bm0\b", op):
        out.add(("s", 124))
    return out


def split_ops(s):
    ops, depth, cur = [], 0, ""
    for ch in s:
        if ch in "[(":
            depth += 1
        if ch in "])":
            depth -= 1
        if ch == "," and depth == 0:
            ops.append(cur.strip())
            cur = ""
        else:
            cur += ch
    if cur.strip():
        ops.append(cur.strip())
    return ops


class Ins:
    __slots__ = ("text", "mn", "ops", "rd", "wr", "kind", "label", "target", "srcc", "srcab", "dpp", "lds_dma", "wide_store", "sdata", "nop", "passes")

    def __init__(self, text):
        self.text = text
        self.label = None
        self.target = None
        self.rd = set(); self.wr = set()
        self.srcc = set(); self.srcab = set()
        self.dpp = False; self.lds_dma = False; self.wide_store = False
        self.sdata = set(); self.nop = 1; self.passes = 0
        t = text.split(";")[0].strip()
        if t.endswith(":"):
            self.kind = "label"; self.label = t[:-1]; self.mn = ""; self.ops = []; self.nop = 0
            return
        if t == "" or t.startswith("."):
            self.kind = "none"; self.mn = ""; self.ops = []; self.nop = 0
            return
        parts = t.split(None, 1)
        mn = parts[0]; rest = parts[1] if len(parts) > 1 else ""
        self.mn = mn
        ops = split_ops(rest)
        mods = ""
        if ops:
            m = re.match(r"^(\S+(?:\([^)]*\))?)(\s+.*)?$", ops[-1])
            if m and m.group(2):
                ops[-1] = m.group(1); mods = m.group(2)
        self.ops = ops
        R = regs_of
        if mn.startswith("v_mfma"):
            self.kind = "mfma"
            self.wr = R(ops[0]); self.srcab = R(ops[1]) | R(ops[2]); self.srcc = R(ops[3])
            self.rd = self.srcab | self.srcc
            self.passes = 8 if "32x32" in mn else 4
        elif mn.startswith("v_"):
            self.kind = "valu"
            assert not (mn.startswith("v_pk_") and mods.strip()), text
            self.dpp = "_dpp" in mn or "row_" in mods or "quad_perm" in mods
            if mn.startswith("v_cmp"):
                self.wr = R(ops[0]); self.rd = set().union(*[R(o) for o in ops[1:]])
                if mn.startswith("v_cmpx"):
                    self.wr |= R("exec")
            elif mn.startswith(("v_add_co", "v_sub_co", "v_subrev_co", "v_addc_co", "v_subb_co", "v_mad_u64", "v_div_scale")):
                self.wr = R(ops[0]) | R(ops[1]); self.rd = set().union(*[R(o) for o in ops[2:]])
            elif mn.startswith("v_permlane") and "swap" in mn:
                self.wr = R(ops[0]) | R(ops[1]); self.rd = set(self.wr)
            elif mn == "v_nop":
                pass
            else:
                self.wr = R(ops[0]); self.rd = set().union(*[R(o) for o in ops[1:]]) if len(ops) > 1 else set()
                if mn.startswith(("v_fmac", "v_dot2c", "v_pk_fmac", "v_writelane")) or self.dpp:
                    self.rd |= R(ops[0])
        elif mn.startswith("ds_"):
            self.kind = "ds"
            if mn.startswith(("ds_read", "ds_bpermute", "ds_permute", "ds_swizzle")) or "_rtn" in mn:
                self.wr = R(ops[0]); self.rd = set().union(*[R(o) for o in ops[1:]])
            else:
                self.rd = set().union(*[R(o) for o in ops])
        elif mn.startswith(("buffer_", "global_")):
            self.kind = "vmem"
            if mn in ("buffer_wbl2", "buffer_inv"):
                pass
            elif re.search(r"\blds\b", mods) or "load_lds" in mn:
                self.lds_dma = True; self.rd = set().union(*[R(o) for o in ops]) | R("m0")
            elif "load" in mn:
                self.wr = R(ops[0]); self.rd = set().union(*[R(o) for o in ops[1:]])
            elif "atomic" in mn:
                self.rd = set().union(*[R(o) for o in ops])
                if "sc0" in mods:
                    self.wr = R(ops[0])
            else:
                self.rd = set().union(*[R(o) for o in ops])
                data = ops[0] if mn.startswith("buffer_") else ops[1]
                self.sdata = R(data)
                self.wide_store = mn.endswith(("x3", "x4"))
        elif mn.startswith("s_"):
            self.kind = "salu"
            if mn == "s_nop":
                self.nop = int(ops[0], 0) + 1
            elif mn.startswith(("s_cbranch", "s_branch")):
                self.kind = "branch"; self.target = ops[0]
                if "vcc" in mn: self.rd = R("vcc")
            elif mn == "s_endpgm":
                self.kind = "end"
            elif mn.startswith(("s_cmp", "s_waitcnt", "s_barrier", "s_sleep", "s_setprio", "s_bitcmp")):
                self.rd = set().union(*[R(o) for o in ops]) if ops else set()
            elif mn.startswith(("s_load", "s_memtime", "s_memrealtime")):
                self.kind = "smem"; self.wr = R(ops[0]); self.rd = set().union(*[R(o) for o in ops[1:]]) if len(ops) > 1 else set()
            else:
                self.wr = R(ops[0]); self.rd = set().union(*[R(o) for o in ops[1:]]) if len(ops) > 1 else set()
                if "saveexec" in mn:
                    self.wr |= R("exec")
        else:
            raise ValueError("unknown instruction " + text)


def vg(s):
    return {r for r in s if r[0] in "va"}


def sg(s):
    return {r for r in s if r[0] == "s"}


EXEC = {("s", 126), ("s", 127)}


def need(p, c):
    n = 0
    pk, ck = p.kind, c.kind
    if pk == "valu":
        pv = vg(p.wr); ps = sg(p.wr)
        isdot = p.mn.startswith("v_dot")
        if ck == "mfma" and pv & c.rd:
            n = max(n, 3 if isdot else 2)
        if ck == "mfma" and ps & EXEC:
            n = max(n, 4)
        if p.mn.startswith(TRANS) and pv & c.rd:
            n = max(n, 1)
        if isdot:
            if c.mn == p.mn:
                srcc = regs_of(c.ops[-1]) if not c.mn.startswith("v_dot2c") else regs_of(c.ops[0])
                ab = set().union(*[regs_of(o) for o in c.ops[1:3]])
                if pv & ab: n = max(n, 3)
            elif pv & (c.rd | c.wr):
                n = max(n, 3)
        if ck == "valu":
            if ps & c.rd:
                n = max(n, 4 if c.mn.startswith(("v_readlane", "v_writelane")) else 2)
            if c.mn.startswith(("v_readlane", "v_readfirstlane")) and pv & c.rd:
                n = max(n, 1)
            if (c.dpp or c.mn.startswith("v_permlane")) and pv & c.rd:
                n = max(n, 2)
            if ps & EXEC:
                if c.dpp: n = max(n, 5)
                if c.mn.startswith(("v_readlane", "v_readfirstlane", "v_writelane", "v_permlane")): n = max(n, 4)
            if "sdwa" in p.mn and pv & (c.rd | c.wr):
                n = max(n, 1)
            if RULE_A and c.mn.startswith("v_pk_") and "op_sel" in c.text and pv & c.rd:
                n = max(n, 2)
            if RULE_B and p.mn.startswith("v_pk_") and "op_sel" in p.text and pv & c.rd:
                n = max(n, 1)
        if ck == "vmem" and ps & c.rd:
            n = max(n, 5)
        if ck in ("salu", "branch", "smem") and ps & c.rd:
            n = max(n, 1)
    if pk == "mfma":
        big = 12 if p.passes == 8 else 8
        if ck == "mfma":
            if p.wr & c.srcab:
                n = max(n, big)
            if p.wr & c.srcc and not (p.wr == c.srcc and p.passes == c.passes):
                n = max(n, big - 2)
            if p.wr & c.wr and not (p.wr == c.srcc and p.passes == c.passes):
                n = max(n, big - 2)
        elif ck in ("valu", "vmem", "ds"):
            if p.wr & (c.rd | c.wr):
                n = max(n, big)
            if ck == "valu" and p.srcc & c.wr:
                n = max(n, p.passes - 1)
    if RULE_C and pk == "salu" and ck == "mfma" and ("exec" in p.ops[0] if p.ops else False):
        n = max(n, 4)
    if pk == "salu" and ("s", 124) in p.wr and c.lds_dma:
        n = max(n, 1)
    if pk == "vmem" and p.wide_store and p.sdata & c.wr:
        n = max(n, 2)
    return n


MAXD = 12


class Asm:
    def __init__(self):
        self.ins = []
        self.uid = 0

    def __call__(self, text):
        for line in text.strip().split("\n"):
            line = line.strip()
            if line:
                self.ins.append(Ins(line))

    def label(self, name):
        self.ins.append(Ins(name + ":"))

    def newlabel(self, base="L"):
        self.uid += 1
        return f"{base}_{self.uid}"

    def resolve(self):
        changed = True
        while changed:
            changed = False
            ins = self.ins
            labels = {x.label: i for i, x in enumerate(ins) if x.kind == "label"}
            jumps = {}
            for i, x in enumerate(ins):
                if x.kind == "branch":
                    jumps.setdefault(labels[x.target], []).append(i)
            out = []
            pad_at = {}

            def walk(c, i, dist, seen):
                worst = 0
                while i >= 0 and dist < MAXD:
                    x = ins[i]
                    if x.kind == "label":
                        for j in jumps.get(i, []):
                            if (j, dist) not in seen:
                                seen.add((j, dist))
                                worst = max(worst, walk(c, j, dist, seen))
                        k = i - 1
                        while k >= 0 and ins[k].kind in ("none",):
                            k -= 1
                        if k >= 0 and (ins[k].kind == "end" or ins[k].mn == "s_branch"):
                            return worst
                    elif x.kind != "none":
                        worst = max(worst, need(x, c) - dist)
                        dist += x.nop
                    dist += pad_at.get(i, 0)
                    i -= 1
                return worst

            for i, c in enumerate(ins):
                if c.kind in ("label", "none", "end"):
                    continue
                w = walk(c, i - 1, 0, set())
                if w > 0:
                    pad_at[i] = w
            if pad_at:
                for i, c in enumerate(ins):
                    if i in pad_at:
                        out.append(Ins(f"s_nop {pad_at[i] - 1}"))
                    out.append(c)
                self.ins = out
                changed = True

    def text(self):
        lines = []
        for x in self.ins:
            lines.append(x.text if x.kind == "label" or x.text.startswith(".") else "    " + x.text)
        return "\n".join(lines) + "\n"

    def max_regs(self, lo=0, hi=None):
        mv = ms = -1
        for x in self.ins[lo:hi]:
            for k, i in x.rd | x.wr:
                if k == "v": mv = max(mv, i)
                if k == "s" and i < 102: ms = max(ms, i)
        return mv + 1, ms + 1


class Pool:
    def __init__(self, kind, start, end):
        self.kind, self.cur, self.end = kind, start, end

    def get(self, n=1, align=None):
        a = align or (1 if n == 1 else (2 if (n == 2 or self.kind == "v") else 4))
        self.cur = (self.cur + a - 1) // a * a
        r = self.cur
        self.cur += n
        assert self.cur <= self.end, f"out of {self.kind} registers"
        return r

    def mark(self):
        return self.cur

    def reset(self, m):
        self.cur = m


def v(i, n=1):
    return f"v{i}" if n == 1 else f"v[{i}:{i + n - 1}]"


def s(i, n=1):
    return f"s{i}" if n == 1 else f"s[{i}:{i + n - 1}]"
```

```python
import sys, struct, os
import numpy as np
from asmlib import Asm, Pool, v, s
import tables

NAME = "recurrent_scan__spectral_gfnet__mixer_channel_mlp__prompt"
STAMP = int(os.environ.get("STAMP", "0"))
OPT = set(os.environ.get("OPT", "").split(","))

WS_H = 0
WS_ZP = WS_H + 2048 * 1536 * 2
WS_VP = WS_ZP + 64 * 45056
WS_P = WS_VP + 64 * 45056
WS_ST = WS_P + 3 * 2621440
WS_EP = WS_ST + 2048 * 16
WS_FL = WS_EP + 128
FL_H = WS_FL
FL_M = FL_H + 192 * 128
FL_Z = FL_M + 2048
FL_V = FL_Z + 64 * 512
FL_P = FL_V + 64 * 512
WS_END = FL_P + 256 * 256
WS_DBG = 24 << 20
TAB_F1, TAB_F2, TAB_F3, TAB_END = 0, 16384, 32768, 49152
WSOFF = (192 << 20) if "wsend" in OPT else 0
SC = "sc1"
SCG = "" if "l2x" in OPT else "sc1"
SGL = os.environ.get("SGL", "sc1")
SGP = os.environ.get("SGP", "sc1")
SCL = os.environ.get("SCL", "sc1")

def f2u(x):
    return struct.unpack("<I", struct.pack("<f", x))[0]

P_X, P_WR, P_WI, P_W1, P_B1, P_W2, P_B2, P_OUT, P_DBG, P_WS = 4, 6, 8, 12, 14, 16, 18, 20, 22, 24
R_WS, R_TAB, R_A, R_B, R_C, R_D, R_DBG = 28, 32, 36, 40, 44, 48, 52
S_W = 26
S_RB, S_SUB, S_KT, S_IDX, S_N3, S_Q3, S_FLAG = 56, 57, 58, 59, 60, 61, 62
S_F2 = 63
S_E = 10
S_PJ = 27
STAG = int(os.environ.get("STAG", "5"))
DEPTH = int(os.environ.get("DEPTH", "3"))
S_T = 64
NSTAMP = 10
ST0 = 80


def stamp(a, i, mode=None):
    if (mode is None and STAMP and (STAMP <= 2 or i in (0, NSTAMP - 1))) or (mode is not None and STAMP == mode):
        a(f"s_memtime s[{ST0+2*i}:{ST0+2*i+1}]")


def stamp3(a, i):
    if STAMP == 1:
        stamp(a, i)


def stamp_begin(a):
    if STAMP:
        for i in range(ST0 + 2, ST0 + 2 * NSTAMP):
            a(f"s_mov_b32 s{i}, 0")
        a("s_memrealtime s[100:101]")
        stamp(a, 0)


def stamp_end(a):
    if STAMP:
        a("s_waitcnt vmcnt(0)")
        stamp(a, NSTAMP - 1)
        a("s_memrealtime s[64:65]")
        a("s_waitcnt lgkmcnt(0)")
        for i in range(NSTAMP):
            a(f"v_mov_b32 v{8+i}, s{ST0+2*i}")
        a(f"v_mov_b32 v{8+NSTAMP}, s100")
        a(f"v_mov_b32 v{9+NSTAMP}, s64")
        a("s_lshl_b32 s66, s2, 3")
        a(f"s_add_u32 s66, s66, s{S_W}")
        a("s_lshl_b32 s66, s66, 6")
        a(f"s_add_u32 s66, s66, {WS_DBG}")
        a(f"s_mov_b32 s{R_WS+2}, 0x2000000")
        a("v_mov_b32 v1, 0")
        a("s_mov_b64 exec, 1")
        for i in range(3):
            a(f"buffer_store_dwordx4 v[{8+4*i}:{11+4*i}], v1, {s(R_WS,4)}, s66 offen offset:{16*i}")


def srd(a, dst, ptr, size):
    a(f"s_mov_b32 s{dst}, s{ptr}")
    a(f"s_mov_b32 s{dst+1}, s{ptr+1}")
    a(f"s_mov_b32 s{dst+2}, {size}")
    a(f"s_mov_b32 s{dst+3}, 0x20000")


def dma(a, voff, srd_, soff, extra=""):
    a(f"buffer_load_dwordx4 {v(voff)}, {s(srd_,4)}, {soff} offen {extra + ' ' if extra else ''}lds")


def bf16r(a, dst, src):
    a(f"v_cvt_pk_bf16_f32 {v(dst)}, {v(src)}, {v(src)}")
    a(f"v_lshlrev_b32 {v(dst)}, 16, {v(dst)}")


def mfma_s(d, A, B, c=None):
    return f"v_mfma_f32_16x16x32_bf16 {v(d,4)}, {v(A,4)}, {v(B,4)}, {v(d,4) if c is None else c}"


def mfma(a, d, A, B, c=None):
    a(mfma_s(d, A, B, c))


def divmod_const(a, q, r, x, c):
    m = (1 << 18) // c + 1
    for t in range(2048):
        assert (t * m) >> 18 == t // c
    a(f"v_mul_u32_u24 {v(q)}, {m}, {v(x)}")
    a(f"v_lshrrev_b32 {v(q)}, 18, {v(q)}")
    a(f"v_mul_u32_u24 {v(r)}, {c}, {v(q)}")
    a(f"v_sub_u32 {v(r)}, {v(x)}, {v(r)}")


def interleave(a, main, fill, per=1):
    fi = 0
    for m in main:
        a(m)
        for _ in range(per):
            if fi < len(fill):
                a(fill[fi]); fi += 1
    while fi < len(fill):
        a(fill[fi]); fi += 1


def weave(a, A, B):
    na, nb = len(A), len(B)
    ia = ib = 0
    while ia < na or ib < nb:
        if ib >= nb or (ia < na and ia * nb <= ib * na):
            a(A[ia]); ia += 1
        else:
            a(B[ib]); ib += 1


class VM:
    def __init__(self, a):
        self.a, self.q = a, []
    def op(self, tag, n=1):
        self.q += [tag] * n
    def wait(self, *tags):
        last = max([i for i, t in enumerate(self.q) if t in tags], default=-1)
        if last < 0:
            return
        n = len(self.q) - 1 - last
        assert n < 64
        self.a(f"s_waitcnt vmcnt({n})")
        self.q = self.q[last + 1:]
    def drain(self):
        self.a("s_waitcnt vmcnt(0)")
        self.q = []


def nonce(a):
    a(f"s_mul_i32 s{S_E}, s{S_E}, 1664525")
    a(f"s_add_u32 s{S_E}, s{S_E}, 1013904223")
    a(f"s_mul_i32 s{S_E+1}, s{S_E+1}, 22695477")
    a(f"s_add_u32 s{S_E+1}, s{S_E+1}, 1")


def advance_epoch(a, vt, s_t):
    for i in range(3):
        poll(a, FL_M + 512 * i, 64, s_t, sleep=8)
    a(f"v_mov_b32 {v(vt)}, s{S_E}")
    a(f"v_mov_b32 {v(vt+1)}, s{S_E+1}")
    a(f"v_mov_b32 {v(vt+2)}, 0")
    a(f"s_mov_b32 s{S_F2}, {WS_EP}")
    a("s_mov_b64 exec, 1")
    a(f"buffer_store_dwordx2 {v(vt,2)}, {v(vt+2)}, {s(R_WS,4)}, s{S_F2} offen {SC}")
    a("s_mov_b64 exec, -1")


def push_flag(a, s_base, nrec, shift, vt, sc=SC):
    a(f"v_mov_b32 {v(vt)}, s{S_E}")
    a(f"v_mov_b32 {v(vt+1)}, s{S_E+1}")
    a(f"v_lshlrev_b32 {v(vt+2)}, {shift}, v0")
    if nrec < 64:
        a(f"s_mov_b64 exec, {(1 << nrec) - 1}")
    a(f"buffer_store_dwordx2 {v(vt,2)}, {v(vt+2)}, {s(R_WS,4)}, s{s_base} offen {sc}")
    if nrec < 64:
        a("s_mov_b64 exec, -1")


V_POLL = 248


def poll_addr(a, base, ntag, s_t):
    ad = V_POLL + 6
    a(f"v_min_u32 {v(ad)}, {ntag-1}, v0")
    a(f"v_lshlrev_b32 {v(ad)}, 3, {v(ad)}")
    a(f"s_mov_b32 s{s_t+1}, {base}")


def poll(a, base, ntag, s_t, sleep=None, depth=None, sc=SC):
    lp, done = a.newlabel("L_poll"), a.newlabel("L_pd")
    ad = V_POLL + 6
    poll_addr(a, base, ntag, s_t)
    ld = lambda i: a(f"buffer_load_dwordx2 {v(V_POLL+2*i,2)}, {v(ad)}, {s(R_WS,4)}, s{s_t+1} offen {sc}")
    a(f"s_mov_b32 s{s_t}, 0x20000")
    depth = 1 if sleep else (depth or DEPTH)
    for i in range(depth - 1):
        ld(i)
        a(f"s_sleep {STAG}")
    a.label(lp)
    for i in range(depth):
        ld((i + depth - 1) % depth)
        a(f"s_waitcnt vmcnt({depth-1})")
        a(f"v_cmp_ne_u64 vcc, s[{S_E}:{S_E+1}], {v(V_POLL+2*i,2)}")
        a(f"s_cbranch_vccz {done}")
        if sleep:
            a(f"s_sleep {sleep}")
    a(f"s_sub_u32 s{s_t}, s{s_t}, 1")
    a(f"s_cbranch_scc0 {lp}")
    a.label(done)


LX = 0
LW = 65536
WSL = 20480
L_STAT = 147456
L_CS = L_STAT + 2048
L_STG = 102400
L3_VB, L3_TAB, L3_UX, L3_SX = 0, 147456, 61440, 61440 + 8 * 1376


def gemm_compute(a, l_f3):
    vp = Pool("v", 1, 248)
    i16, g, r_ = [vp.get() for _ in range(3)]
    t0 = vp.get(4, 2); t1 = t0 + 1; cq = vp.get(); cnt = vp.get(2, 2)
    s_wm, s_wn, s_dx, s_dw, s_cnt, s_t = S_T, S_T + 1, S_T + 2, S_T + 3, S_T + 4, S_T + 5
    s_cb = S_T + 10
    if "prio" in OPT:
        a("s_setprio 2")
    a(f"s_and_b32 s{s_wm}, s{S_W}, 1")
    a(f"s_lshr_b32 s{s_wn}, s{S_W}, 1")
    a(f"s_lshl_b32 s{s_cb}, s{S_KT}, 2")
    a(f"s_add_u32 s{s_cb}, s{s_cb}, s{S_SUB}")
    a(f"v_and_b32 {v(i16)}, 15, v0")
    a(f"v_lshrrev_b32 {v(g)}, 4, v0")
    acc = [[vp.get(4, 4) for mm in range(4)] for tt in range(5)]
    xf = [[vp.get(4, 4) for mm in range(4)] for st in range(2)]
    wf = [[vp.get(4, 4) for tt in range(5)] for st in range(2)]
    cs = acc[4]
    ones = wf[0][4]
    b1r = [vp.get(2, 2) for tt in range(4)]
    srd(a, R_C, P_B1, 3072)
    a(f"s_lshl_b32 s{s_t}, s{s_cb}, 8")
    a(f"s_lshl_b32 s{s_t+1}, s{s_wn}, 7")
    a(f"s_add_u32 s{s_t}, s{s_t}, s{s_t+1}")
    a(f"s_lshl_b32 s{s_t+1}, s{s_wm}, 6")
    a(f"v_lshlrev_b32 {v(t0)}, 3, {v(g)}")
    a(f"v_add_u32 {v(t0)}, s{s_t+1}, {v(t0)}")
    a(f"v_xor_b32 {v(t1)}, 64, {v(t0)}")
    for tt in range(4):
        a(f"buffer_load_dwordx2 {v(b1r[tt],2)}, {v(t0 if tt < 2 else t1)}, {s(R_C,4)}, s{s_t} offen offset:{32*(tt&1)}")
    if "nocode" not in OPT:
        a(f"s_getpc_b64 s[{R_D}:{R_D+1}]")
        a(f"s_add_u32 s{R_D}, s{R_D}, {NAME}_kernel@rel32@lo+4")
        a(f"s_addc_u32 s{R_D+1}, s{R_D+1}, {NAME}_kernel@rel32@hi+12")
        a(f"s_mov_b32 s{R_D+2}, L_exit-{NAME}_kernel")
        a(f"s_mov_b32 s{R_D+3}, 0x20000")
        a(f"s_lshr_b32 s{s_t}, s2, 3")
        a(f"s_and_b32 s{s_t}, s{s_t}, 7")
        a(f"s_lshl_b32 s{s_t}, s{s_t}, 2")
        a(f"s_add_u32 s{s_t}, s{s_t}, s{S_W}")
        a(f"s_lshl_b32 s{s_t}, s{s_t}, 10")
        a(f"v_lshlrev_b32 {v(t0)}, 4, v0")
        a(f"buffer_load_dwordx4 {v(V_POLL,4)}, {v(t0)}, {s(R_D,4)}, s{s_t} offen")
        a(f"s_and_b32 s{s_t}, s{s_t}, 0x3fff")
        a(f"s_add_u32 s{s_t}, s{s_t}, {TAB_F3}")
        a(f"buffer_load_dwordx4 {v(V_POLL,4)}, {v(t0)}, {s(R_TAB,4)}, s{s_t} offen")
    xa = [vp.get(), vp.get()]
    a(f"v_and_b32 {v(t0)}, 7, v0")
    a(f"v_xor_b32 {v(t0)}, {v(t0)}, {v(g)}")
    a(f"v_lshlrev_b32 {v(t0)}, 4, {v(t0)}")
    a(f"v_lshl_add_u32 {v(t0)}, {v(i16)}, 7, {v(t0)}")
    a(f"s_lshl_b32 s{s_t}, s{s_wm}, 13")
    a(f"v_add_u32 {v(xa[0])}, s{s_t}, {v(t0)}")
    a(f"v_xor_b32 {v(xa[1])}, 64, {v(xa[0])}")
    wa = [vp.get() for _ in range(4)]
    a(f"v_lshrrev_b32 {v(r_)}, 2, {v(i16)}")
    a(f"v_and_b32 {v(cq)}, 3, v0")
    a(f"v_lshl_add_u32 {v(t0)}, {v(g)}, 3, {v(r_)}")
    a(f"v_lshlrev_b32 {v(t0)}, 8, {v(t0)}")
    a(f"v_lshl_add_u32 {v(t0)}, {v(cq)}, 3, {v(t0)}")
    a(f"v_add_u32 {v(t0)}, {LW}, {v(t0)}")
    a(f"v_and_b32 {v(t1)}, 1, {v(g)}")
    a(f"v_lshl_or_b32 {v(t1)}, {v(t1)}, 2, {v(r_)}")
    a(f"s_lshl_b32 s{s_t}, s{s_wn}, 2")
    a(f"s_lshl_b32 s{s_t+1}, s{s_wm}, 1")
    a(f"s_or_b32 s{s_t}, s{s_t}, s{s_t+1}")
    a(f"v_xor_b32 {v(t1)}, s{s_t}, {v(t1)}")
    for tt in range(4):
        a(f"v_xor_b32 {v(wa[tt])}, {tt}, {v(t1)}")
        a(f"v_lshl_add_u32 {v(wa[tt])}, {v(wa[tt])}, 5, {v(t0)}")
    xb = vp.get(); wb = [vp.get(), vp.get()]; l16 = vp.get()
    a(f"v_lshlrev_b32 {v(l16)}, 4, v0")
    a(f"s_lshl_b32 s{s_t}, s{s_wm}, 12")
    a(f"s_add_u32 s{s_t}, s{s_t}, {LX + 2*16384}")
    a(f"v_add_u32 {v(xb)}, s{s_t}, {v(l16)}")
    a(f"v_lshrrev_b32 {v(r_)}, 2, v0")
    a(f"v_mul_u32_u24 {v(t0)}, 320, {v(r_)}")
    a(f"v_lshl_add_u32 {v(t0)}, {v(cq)}, 3, {v(t0)}")
    a(f"v_add_u32 {v(t0)}, {LW + 2*WSL}, {v(t0)}")
    a(f"v_and_b32 {v(t1)}, 1, {v(g)}")
    a(f"s_mul_i32 s{s_t}, s{s_wn}, 5")
    a(f"v_xor_b32 {v(wb[0])}, s{s_t}, {v(t1)}")
    a(f"v_lshl_add_u32 {v(wb[0])}, {v(wb[0])}, 5, {v(t0)}")
    a(f"s_add_u32 s{s_t}, s{s_t}, 1")
    a(f"v_xor_b32 {v(wb[1])}, s{s_t}, {v(t1)}")
    a(f"v_lshl_add_u32 {v(wb[1])}, {v(wb[1])}, 5, {v(t0)}")
    SP = 176
    sw = vp.get(); srd_a = [vp.get() for _ in range(5)]
    a(f"s_mul_i32 s{s_t}, s{S_W}, {64*SP}")
    a(f"s_add_u32 s{s_t}, s{s_t}, {L_STG}")
    a(f"v_mul_u32_u24 {v(sw)}, {SP}, {v(i16)}")
    a(f"v_lshl_add_u32 {v(sw)}, {v(g)}, 3, {v(sw)}")
    a(f"v_add_u32 {v(sw)}, s{s_t}, {v(sw)}")
    for ii in range(5):
        a(f"v_add_u32 {v(r_)}, {64*ii}, v0")
        divmod_const(a, t0, t1, r_, 10)
        a(f"v_mul_u32_u24 {v(t0)}, {SP}, {v(t0)}")
        a(f"v_lshl_add_u32 {v(t0)}, {v(t1)}, 4, {v(t0)}")
        a(f"v_add_u32 {v(srd_a[ii])}, s{s_t}, {v(t0)}")
    for tt in range(5):
        for mm in range(4):
            if tt < 4 or mm < 2:
                for r in range(0, 4, 2):
                    a(f"v_pk_mul_f32 {v(acc[tt][mm]+r,2)}, 0, 0") if False else (a(f"v_mov_b32 {v(acc[tt][mm]+r)}, 0"), a(f"v_mov_b32 {v(acc[tt][mm]+r+1)}, 0"))
    for r in range(4):
        a(f"v_mov_b32 {v(ones+r)}, 0x3f803f80")

    def loop(which):
        NT = 4 if which == 1 else 5
        NCH = 10 if which == 1 else 8
        if which == 1:
            xrd = lambda st_, ks, mm: f"ds_read_b128 {v(xf[st_][mm],4)}, {v(xa[ks])} offset:{mm*2048}"
            wrd = lambda st_, ks, tt, h: f"ds_read_b64_tr_b16 {v(wf[st_][tt]+2*h,2)}, {v(wa[tt])} offset:{ks*8192+h*1024}"
            ax, aw = xa, wa
        else:
            xrd = lambda st_, ks, mm: f"ds_read_b128 {v(xf[st_][mm],4)}, {v(xb)} offset:{ks*8192+mm*1024}"
            wrd = lambda st_, ks, tt, h: f"ds_read_b64_tr_b16 {v(wf[st_][tt]+2*h,2)}, {v(wb[tt&1])} offset:{(32*ks+16*h)*320+(tt>>1)*64}"
            ax, aw = [xb], wb

        def reads(st_, ks):
            out = []
            for i in range(max(4, NT)):
                if i < NT:
                    out += [wrd(st_, ks, i, 0), wrd(st_, ks, i, 1)]
                if i < 4:
                    out.append(xrd(st_, ks, i))
            return out

        def mfmas(st_, c=None):
            out = []
            for tt in range(NT):
                for mm in range(4):
                    out.append(mfma_s(acc[tt][mm], wf[st_][tt], xf[st_][mm], c))
                if which == 1 and tt < 2:
                    out.append(mfma_s(cs[tt], wf[st_][tt], ones))
            return out
        c0 = 0 if which == 1 else 10
        a(f"s_mov_b32 s{s_cnt}, {c0}")
        a("s_barrier")
        stamp(a, 1 if which == 1 else 4)
        for x in reads(0, 0):
            a(x)
        l_loop, l_last, l_mid = a.newlabel("L_gl"), a.newlabel("L_gx"), a.newlabel("L_gm")
        per = 2 if "per2" in OPT else 1
        s_end = S_T + 11
        if which == 2:
            a(f"s_mov_b32 s{s_end}, 12")
            a(f"s_add_u32 s{s_cnt}, s{s_cnt}, 1")
            a("s_waitcnt lgkmcnt(0)")
            adv = [f"v_add_u32 {v(r)}, 16384, {v(r)}" for r in ax] + [f"v_add_u32 {v(r)}, {WSL}, {v(r)}" for r in aw]
            interleave(a, mfmas(0, "0"), reads(1, 1) + adv, per)
            a("s_waitcnt vmcnt(0)")
            a(f"s_branch {l_mid}")
        a.label(l_loop)
        a(f"s_add_u32 s{s_cnt}, s{s_cnt}, 1")
        a(f"s_and_b32 s{s_t}, s{s_cnt}, 3")
        a(f"s_cselect_b32 s{s_t}, 1, -3")
        a(f"s_lshl_b32 s{s_dx}, s{s_t}, 14")
        a(f"s_mul_i32 s{s_dw}, s{s_t}, {WSL}")
        a("s_waitcnt lgkmcnt(0)")
        adv = [f"v_add_u32 {v(r)}, s{s_dx}, {v(r)}" for r in ax] + [f"v_add_u32 {v(r)}, s{s_dw}, {v(r)}" for r in aw]
        interleave(a, mfmas(0), reads(1, 1) + adv, per)
        a.label(l_mid)
        a(f"s_cmp_eq_u32 s{s_cnt}, {c0 + NCH}" if which == 1 else f"s_cmp_eq_u32 s{s_cnt}, s{s_end}")
        a("s_waitcnt lgkmcnt(0)")
        if which == 1:
            a(f"s_cbranch_scc1 {l_last}")
            a("s_barrier")
        else:
            a("s_barrier")
            a(f"s_cbranch_scc1 {l_last}")
        interleave(a, mfmas(1), reads(0, 0), per)
        a(f"s_branch {l_loop}")
        a.label(l_last)
        if which == 1:
            load_epoch(a, S_T + 12)
        for x in mfmas(1):
            a(x)
        if which == 2:
            l_done = a.newlabel("L_gd")
            a(f"s_cmp_eq_u32 s{s_cnt}, 18")
            a(f"s_cbranch_scc1 {l_done}")
            a(f"s_mov_b32 s{s_end}, 18")
            a("s_barrier")
            for x in reads(0, 0):
                a(x)
            a(f"s_branch {l_loop}")
            a.label(l_done)

    loop(1)
    stamp(a, 2)
    a(f"s_lshl_b32 s{s_t}, s{s_wn}, 8")
    a(f"s_lshl_b32 s{s_t+1}, s{s_wm}, 7")
    a(f"s_add_u32 s{s_t}, s{s_t}, s{s_t+1}")
    a(f"s_add_u32 s{s_t}, s{s_t}, {L_CS}")
    a(f"v_lshlrev_b32 {v(t0)}, 4, {v(g)}")
    a(f"v_add_u32 {v(t0)}, s{s_t}, {v(t0)}")
    a(f"v_xor_b32 {v(t1)}, 128, {v(t0)}")
    st = [xf[0][mm] for mm in range(4)]
    sa = xa[0]; hw = xa[1]
    a(f"s_lshl_b32 s{s_t}, s{s_wm}, 10")
    a(f"v_lshlrev_b32 {v(sa)}, 4, {v(i16)}")
    a(f"v_add_u32 {v(sa)}, s{s_t}, {v(sa)}")
    sl_ = wa[1]
    a(f"v_add_u32 {v(sl_)}, {L_STAT}, {v(sa)}")
    b1f = [wf[0][tt] for tt in range(4)]
    a("s_waitcnt vmcnt(0)")
    for tt in range(4):
        for h in range(2):
            a(f"v_lshlrev_b32 {v(b1f[tt]+2*h)}, 16, {v(b1r[tt]+h)}")
            a(f"v_and_b32 {v(b1f[tt]+2*h+1)}, 0xffff0000, {v(b1r[tt]+h)}")
    a(f"ds_write_b128 {v(t0)}, {v(cs[0],4)}")
    a(f"ds_write_b128 {v(t0)}, {v(cs[1],4)} offset:64")
    kc = b1r[0]
    K0 = -2.0 * np.sqrt(2.0 / np.pi) * np.log2(np.e)
    for i in range(2):
        a(f"v_mov_b32 {v(b1r[0]+i)}, {hex(f2u(K0))}")
        a(f"v_mov_b32 {v(b1r[1]+i)}, {hex(f2u(K0*0.044715))}")
        a(f"v_mov_b32 {v(b1r[2]+i)}, 1.0")
    a(f"s_mul_i32 s{s_t}, s{S_RB}, {48*8192}")
    a(f"s_lshl_b32 s{s_t+1}, s{s_cb}, 15")
    a(f"s_add_u32 s{s_t}, s{s_t}, s{s_t+1}")
    a(f"s_lshl_b32 s{s_t+1}, s{s_wn}, 14")
    a(f"s_lshl_b32 s{s_t+2}, s{s_wm}, 12")
    a(f"s_add_u32 s{s_t+1}, s{s_t+1}, s{s_t+2}")
    a(f"s_lshl_b32 s{s_t+2}, s{s_wm}, 13")
    a(f"s_add_u32 s{s_t+1}, s{s_t+1}, s{s_t+2}")
    a(f"s_add_u32 s{s_t+2}, s{s_t}, s{s_t+1}")
    a(f"s_xor_b32 s{s_t+3}, s{s_t+1}, 8192")
    a(f"s_add_u32 s{s_t+3}, s{s_t}, s{s_t+3}")
    a(f"s_add_u32 s{s_t+1}, s{s_t+1}, {LX + 2*16384}")
    a(f"v_add_u32 {v(hw)}, s{s_t+1}, {v(l16)}")
    hw2 = wa[0]
    a(f"v_xor_b32 {v(hw2)}, 8192, {v(hw)}")
    a("s_waitcnt lgkmcnt(0)")
    a("s_barrier")
    nonce(a)
    a(f"ds_read_b128 {v(cs[2],4)}, {v(t1)}")
    a(f"ds_read_b128 {v(cs[3],4)}, {v(t1)} offset:64")
    for mm in range(4):
        a(f"ds_read_b128 {v(st[mm],4)}, {v(sl_)} offset:{mm*256}")
    a("s_waitcnt lgkmcnt(0)")
    l_chk, l_ok = a.newlabel("L_chk"), a.newlabel("L_ok")
    a(f"s_mov_b32 s{s_dx}, 0x40000")
    a.label(l_chk)
    a(f"v_xor_b32 {v(t0)}, s{S_E}, {v(st[0]+1)}")
    a(f"v_xor_b32 {v(t1)}, s{S_E+1}, {v(st[0]+3)}")
    for mm in range(1, 4):
        a(f"v_xor_b32 {v(t0+2)}, s{S_E}, {v(st[mm]+1)}")
        a(f"v_xor_b32 {v(t0+3)}, s{S_E+1}, {v(st[mm]+3)}")
        a(f"v_or3_b32 {v(t0)}, {v(t0)}, {v(t0+2)}, {v(t0+3)}")
    a(f"v_or_b32 {v(t0)}, {v(t0)}, {v(t1)}")
    a(f"v_cmp_ne_u32 vcc, 0, {v(t0)}")
    a(f"s_cbranch_vccz {l_ok}")
    a(f"s_lshl_b32 s{s_dw}, s{S_RB}, 11")
    a(f"s_add_u32 s{s_dw}, s{s_dw}, {WS_ST}")
    for mm in range(4):
        a(f"buffer_load_dwordx4 {v(st[mm],4)}, {v(sa)}, {s(R_WS,4)}, s{s_dw} offen offset:{mm*256} {SC}")
    a("s_waitcnt vmcnt(0)")
    a(f"s_sub_u32 s{s_dx}, s{s_dx}, 1")
    a(f"s_cbranch_scc0 {l_chk}")
    a.label(l_ok)
    for mm in range(4):
        a(f"v_mov_b32 {v(st[mm]+1)}, {v(st[mm])}")
        a(f"v_mov_b32 {v(st[mm]+3)}, {v(st[mm]+2)}")
    stamp(a, 3)
    tmp = [xf[1][i] for i in range(4)]
    outs = [wf[1][1], wf[1][2], wf[1][3]]
    n_o = 0
    for mm in range(4):
        for u in range(2):
            o = outs[n_o % 3]; n_o += 1
            prs = [(acc[2*u+k][mm] + 2*h, cs[2*u+k] + 2*h, b1f[2*u+k] + 2*h) for k in range(2) for h in range(2)]
            T = [tmp[0], tmp[0]+2, tmp[1], tmp[1]+2]
            Z = [tmp[2], tmp[2]+2, tmp[3], tmp[3]+2]
            for i, (p, c_, b_) in enumerate(prs):
                a(f"v_pk_fma_f32 {v(T[i],2)}, {v(c_,2)}, {v(st[mm]+2,2)}, {v(b_,2)}")
            for i, (p, c_, b_) in enumerate(prs):
                a(f"v_pk_fma_f32 {v(p,2)}, {v(p,2)}, {v(st[mm],2)}, {v(T[i],2)}")
            for i, (p, c_, b_) in enumerate(prs):
                a(f"v_pk_mul_f32 {v(T[i],2)}, {v(p,2)}, {v(p,2)}")
            for i, (p, c_, b_) in enumerate(prs):
                a(f"v_pk_fma_f32 {v(T[i],2)}, {v(T[i],2)}, {v(b1r[1],2)}, {v(b1r[0],2)}")
            for i, (p, c_, b_) in enumerate(prs):
                a(f"v_pk_mul_f32 {v(Z[i],2)}, {v(p,2)}, {v(T[i],2)}")
            for i in range(4):
                a(f"v_exp_f32 {v(Z[i])}, {v(Z[i])}")
                a(f"v_exp_f32 {v(Z[i]+1)}, {v(Z[i]+1)}")
            for i in range(4):
                a(f"v_pk_add_f32 {v(Z[i],2)}, {v(Z[i],2)}, {v(b1r[2],2)}")
            for i in range(4):
                a(f"v_rcp_f32 {v(Z[i])}, {v(Z[i])}")
                a(f"v_rcp_f32 {v(Z[i]+1)}, {v(Z[i]+1)}")
            for i, (p, c_, b_) in enumerate(prs):
                a(f"v_pk_mul_f32 {v(p,2)}, {v(p,2)}, {v(Z[i],2)}")
            for i, (p, c_, b_) in enumerate(prs):
                a(f"v_cvt_pk_bf16_f32 {v(o+i)}, {v(p)}, {v(p+1)}")
            a(f"buffer_store_dwordx4 {v(o,4)}, {v(l16)}, {s(R_WS,4)}, s{s_t+2+u} offen offset:{mm*1024} {SCG}")
            if "dbl" in OPT:
                a(f"buffer_store_dwordx4 {v(o,4)}, {v(l16)}, {s(R_WS,4)}, s{s_t+2+u} offen offset:{mm*1024}")
            a(f"ds_write_b128 {v(hw if u == 0 else hw2)}, {v(o,4)} offset:{mm*1024}")
    a("s_waitcnt lgkmcnt(0)")
    loop(2)
    stamp(a, 5)
    pk = xf[0][0]
    n = 0
    for mm in range(4):
        for tt in range(5):
            o = pk + 2 * (n % 16); n += 1
            a(f"v_cvt_pk_bf16_f32 {v(o)}, {v(acc[tt][mm])}, {v(acc[tt][mm]+1)}")
            a(f"v_cvt_pk_bf16_f32 {v(o+1)}, {v(acc[tt][mm]+2)}, {v(acc[tt][mm]+3)}")
            a(f"ds_write_b64 {v(sw)}, {v(o,2)} offset:{mm*16*SP+tt*32}")
            if n == 12:
                a("s_waitcnt lgkmcnt(6)")
    a(f"s_mul_i32 s{s_t}, s{S_KT}, 2621440")
    a(f"s_lshl_b32 s{s_t+1}, s{S_SUB}, 1")
    a(f"s_add_u32 s{s_t+1}, s{s_t+1}, s{s_wn}")
    a(f"s_mul_i32 s{s_t+1}, s{s_t+1}, {2048*160}")
    a(f"s_add_u32 s{s_t}, s{s_t}, s{s_t+1}")
    a(f"s_lshl_b32 s{s_t+1}, s{S_RB}, 1")
    a(f"s_add_u32 s{s_t+1}, s{s_t+1}, s{s_wm}")
    a(f"s_mul_i32 s{s_t+1}, s{s_t+1}, {64*160}")
    a(f"s_add_u32 s{s_t}, s{s_t}, s{s_t+1}")
    a(f"s_add_u32 s{s_t}, s{s_t}, {WS_P}")
    a(f"s_add_u32 s{s_t+1}, s{s_t}, 4096")
    a(f"s_add_u32 s{s_t+2}, s{s_t}, 8192")
    a("s_waitcnt lgkmcnt(0)")
    rb_ = [acc[i // 4][i % 4] for i in range(10)]
    for ii in range(10):
        a(f"ds_read_b128 {v(rb_[ii],4)}, {v(srd_a[ii%5])} offset:{(ii//5)*32*SP}")
    for ii in range(10):
        a(f"s_waitcnt lgkmcnt({9-ii})")
        a(f"buffer_store_dwordx4 {v(rb_[ii],4)}, {v(l16)}, {s(R_WS,4)}, s{s_t+ii//4} offen offset:{(ii%4)*1024} {SCG}")
        if "p2x" in OPT:
            a(f"s_add_u32 s{s_t+3}, s{s_t+ii//4}, {32<<20}")
            a(f"buffer_store_dwordx4 {v(rb_[ii],4)}, {v(l16)}, {s(R_WS,4)}, s{s_t+3} offen offset:{(ii%4)*1024} {SC}")
    if "prio" in OPT:
        a("s_setprio 0")
    a(f"s_lshl_b32 s{S_FLAG}, s{S_RB}, 1")
    a(f"s_add_u32 s{S_FLAG}, s{S_FLAG}, s{s_wm}")
    a(f"s_lshl_b32 s{S_FLAG}, s{S_FLAG}, 5")
    a(f"s_add_u32 s{S_FLAG}, s{S_FLAG}, s{S_KT}")
    a(f"s_lshl_b32 s{S_FLAG}, s{S_FLAG}, 2")
    a(f"s_add_u32 s{S_FLAG}, s{S_FLAG}, s{S_SUB}")
    a(f"s_lshl_b32 s{S_FLAG}, s{S_FLAG}, 1")
    a(f"s_add_u32 s{S_FLAG}, s{S_FLAG}, s{s_wn}")
    a(f"s_lshl_b32 s{S_FLAG}, s{S_FLAG}, 3")
    a(f"s_add_u32 s{S_FLAG}, s{S_FLAG}, {FL_P}")
    a(f"s_mov_b32 s{S_PJ}, 1")
    a(f"s_branch {l_f3}")


def gemm_loader(a, l_f3l):
    vp = Pool("v", 1, 248)
    t0 = vp.get(4, 2); t1, t2 = t0 + 1, t0 + 2
    s_lw, s_xo, s_wo, s_m, s_m2, s_ho, s_w2, s_t = [S_T + i for i in range(8)]
    vm = VM(a)
    a(f"s_sub_u32 s{s_lw}, s{S_W}, 4")
    srd(a, R_A, P_X, 2621440); srd(a, R_B, P_W1, 1966080)
    xv = vp.get(); wv = [vp.get(), vp.get()]
    a(f"v_lshrrev_b32 {v(t0)}, 3, v0")
    a(f"v_and_b32 {v(t1)}, 7, v0")
    a(f"v_xor_b32 {v(t1)}, {v(t1)}, {v(t0)}")
    a(f"v_mul_u32_u24 {v(xv)}, {64*1280}, {v(t0)}")
    a(f"v_lshl_add_u32 {v(xv)}, {v(t1)}, 4, {v(xv)}")
    a(f"s_lshl_b32 s{s_xo}, s{S_RB}, 2")
    a(f"s_add_u32 s{s_xo}, s{s_xo}, s{s_lw}")
    a(f"s_mul_i32 s{s_xo}, s{s_xo}, 1280")
    a(f"v_lshrrev_b32 {v(t0)}, 4, v0")
    a(f"v_and_b32 {v(t1)}, 15, v0")
    a(f"v_lshlrev_b32 {v(t2)}, 1, {v(t0)}")
    a(f"v_xor_b32 {v(t1)}, {v(t1)}, {v(t2)}")
    a(f"v_mul_u32_u24 {v(wv[0])}, 3072, {v(t0)}")
    a(f"v_lshl_add_u32 {v(wv[0])}, {v(t1)}, 4, {v(wv[0])}")
    a(f"v_xor_b32 {v(wv[1])}, 128, {v(wv[0])}")
    a(f"s_mul_i32 s{s_wo}, s{s_lw}, {16*3072}")
    a(f"s_lshl_b32 s{s_t}, s{S_KT}, 10")
    a(f"s_add_u32 s{s_wo}, s{s_wo}, s{s_t}")
    a(f"s_lshl_b32 s{s_t}, s{S_SUB}, 8")
    a(f"s_add_u32 s{s_wo}, s{s_wo}, s{s_t}")
    a(f"s_lshl_b32 s{s_m}, s{s_lw}, 12")

    s_kc, s_xc, s_wc = S_T + 11, S_T + 12, S_T + 13
    if "norot" in OPT:
        a(f"s_mov_b32 s{s_kc}, 0")
    elif "oldmap" not in OPT:
        a(f"s_and_b32 s{s_kc}, s{S_RB}, 1")
        a(f"s_mul_i32 s{s_kc}, s{s_kc}, 5")
        a(f"s_lshr_b32 s{s_t}, s{S_RB}, 1")
        a(f"s_add_u32 s{s_kc}, s{s_kc}, s{s_t}")
        a(f"s_lshl_b32 s{s_t}, s{S_KT}, 2")
        a(f"s_add_u32 s{s_kc}, s{s_kc}, s{s_t}")
        a(f"s_add_u32 s{s_kc}, s{s_kc}, s{S_SUB}")
        for _ in range(2):
            a(f"s_sub_u32 s{s_t}, s{s_kc}, 10")
            a(f"s_cselect_b32 s{s_kc}, s{s_kc}, s{s_t}")
    else:
        a(f"s_mul_i32 s{s_kc}, s{S_PJ}, 27")
        a(f"s_lshr_b32 s{s_kc}, s{s_kc}, 4")
        a(f"s_mul_i32 s{s_t}, s{S_SUB}, 5")
        a(f"s_lshr_b32 s{s_t}, s{s_t}, 1")
        a(f"s_add_u32 s{s_kc}, s{s_kc}, s{s_t}")
        a(f"s_sub_u32 s{s_t}, s{s_kc}, 10")
        a(f"s_cselect_b32 s{s_kc}, s{s_kc}, s{s_t}")

    def issue1(c):
        sl = c % 4
        a(f"s_lshl_b32 s{s_xc}, s{s_kc}, 7")
        a(f"s_add_u32 s{s_xc}, s{s_xc}, s{s_xo}")
        a(f"s_mul_i32 s{s_wc}, s{s_kc}, {64*3072}")
        a(f"s_add_u32 s{s_wc}, s{s_wc}, s{s_wo}")
        for i in range(4):
            a(f"s_add_u32 m0, s{s_m}, {LX + sl*16384 + i*1024}")
            a(f"s_add_u32 s{s_t}, s{s_xc}, {i*8*64*1280}")
            dma(a, xv, R_A, f"s{s_t}")
        for i in range(4):
            a(f"s_add_u32 m0, s{s_m}, {LW + sl*WSL + i*1024}")
            a(f"s_add_u32 s{s_t}, s{s_wc}, {i*4*3072}")
            dma(a, wv[i >> 1], R_B, f"s{s_t}")
        a(f"s_add_u32 s{s_kc}, s{s_kc}, 1")
        a(f"s_cmp_eq_u32 s{s_kc}, 10")
        a(f"s_cselect_b32 s{s_kc}, 0, s{s_kc}")
        vm.op(("A", c), 8)

    stamp(a, 1)
    issue1(0); issue1(1)
    srd(a, R_C, P_W2, 1966080)
    l16 = vp.get(); w2v = [vp.get() for _ in range(5)]
    a(f"v_lshlrev_b32 {v(l16)}, 4, v0")
    a(f"s_mul_i32 s{s_ho}, s{S_RB}, {48*8192}")
    a(f"s_lshl_b32 s{s_t}, s{S_KT}, 17")
    a(f"s_add_u32 s{s_ho}, s{s_ho}, s{s_t}")
    a(f"s_add_u32 s{s_ho}, s{s_ho}, s{s_m}")
    for i in range(5):
        a(f"v_add_u32 {v(t2)}, {64*i}, v0")
        divmod_const(a, t0, t1, t2, 20)
        a(f"v_lshrrev_b32 {v(t2)}, 1, {v(t0)}")
        a(f"v_and_b32 {v(t2)}, 2, {v(t2)}")
        a(f"v_xor_b32 {v(t1)}, {v(t1)}, {v(t2)}")
        a(f"v_mul_u32_u24 {v(w2v[i])}, 1280, {v(t0)}")
        a(f"v_lshl_add_u32 {v(w2v[i])}, {v(t1)}, 4, {v(w2v[i])}")
    a(f"s_lshl_b32 s{s_w2}, s{S_KT}, 5")
    a(f"s_add_u32 s{s_w2}, s{s_w2}, s{s_lw}")
    a(f"s_mul_i32 s{s_w2}, s{s_w2}, {16*1280}")
    a(f"s_mul_i32 s{s_t}, s{S_SUB}, 320")
    a(f"s_add_u32 s{s_w2}, s{s_w2}, s{s_t}")
    a(f"s_mul_i32 s{s_m2}, s{s_lw}, 5120")

    def kchunk(c2):
        a(f"s_lshl_b32 s{s_t+1}, s{S_SUB}, 1")
        a(f"s_add_u32 s{s_t+1}, s{s_t+1}, {c2}")
        a(f"s_and_b32 s{s_t+1}, s{s_t+1}, 7")

    def issue_w2(c2):
        sl = (10 + c2) % 4
        kchunk(c2)
        a(f"s_mul_i32 s{s_t}, s{s_t+1}, {64*1280}")
        a(f"s_add_u32 s{s_t}, s{s_t}, s{s_w2}")
        for i in range(5):
            a(f"s_add_u32 m0, s{s_m2}, {LW + sl*WSL + i*1024}")
            dma(a, w2v[i], R_C, f"s{s_t}")
        vm.op(("W", c2), 5)

    def issue_h(c2):
        sl = (10 + c2) % 4
        kchunk(c2)
        a(f"s_lshl_b32 s{s_t}, s{s_t+1}, 14")
        a(f"s_add_u32 s{s_t}, s{s_t}, s{s_ho}")
        a(f"s_add_u32 m0, s{s_m}, {LX + sl*16384}")
        for i in range(4):
            a(f"buffer_load_dwordx4 {v(l16)}, {s(R_WS,4)}, s{s_t} offen offset:{i*1024} {SGL} lds")
        vm.op(("H", c2), 4)

    wreg = [[vp.get(4, 4) for i in range(5)] for c in range(4)]
    fl = vp.get(4, 2); wl = [vp.get(), vp.get()]
    a(f"v_add_u32 {v(wl[0])}, s{s_m2}, {v(l16)}")
    a(f"v_add_u32 {v(wl[0])}, {LW}, {v(wl[0])}")
    a(f"v_add_u32 {v(wl[1])}, {2*WSL}, {v(wl[0])}")

    def load_w2(c2):
        kchunk(c2)
        a(f"s_mul_i32 s{s_t}, s{s_t+1}, {64*1280}")
        a(f"s_add_u32 s{s_t}, s{s_t}, s{s_w2}")
        for i in range(5):
            a(f"buffer_load_dwordx4 {v(wreg[c2-4][i],4)}, {v(w2v[i])}, {s(R_C,4)}, s{s_t} offen")
        vm.op(("R", c2), 5)

    def put_w2(c2):
        sl = (10 + c2) % 4
        for i in range(5):
            a(f"ds_write_b128 {v(wl[sl>>1])}, {v(wreg[c2-4][i],4)} offset:{(sl&1)*WSL + i*1024}")

    load_epoch(a, S_T + 14)
    if "tlb" in OPT:
        l_nt = a.newlabel("L_nt")
        a(f"s_lshr_b32 s{s_t}, s2, 3")
        a(f"s_cmp_lg_u32 s{s_t}, 31")
        a(f"s_cbranch_scc1 {l_nt}")
        a(f"s_lshl_b32 s{s_t}, s{s_lw}, 21")
        for i in range(3):
            a(f"s_add_u32 s{S_T+14}, s{P_WS}, s{s_t}")
            a(f"s_addc_u32 s{S_T+15}, s{P_WS+1}, 0")
            a(f"s_load_dword s3, s[{S_T+14}:{S_T+15}], 0")
            a(f"s_add_u32 s{s_t}, s{s_t}, {4 << 21}")
        for p in (P_OUT, P_W2, P_WR, P_WI, P_B2):
            a(f"s_load_dword s3, s[{p}:{p+1}], 0")
        a(f"s_add_u32 s{S_T+14}, s{P_OUT}, {1 << 21}")
        a(f"s_addc_u32 s{S_T+15}, s{P_OUT+1}, 0")
        a(f"s_load_dword s3, s[{S_T+14}:{S_T+15}], 0")
        a.label(l_nt)
    nxt = 2
    for c in range(10):
        vm.wait(("A", c))
        if c == 0: stamp(a, 2)
        if c >= 2: stamp(a, c - 1, 3)
        a("s_barrier")
        if c >= 2: stamp(a, c - 1, 4)
        while nxt < 10 and nxt <= c + 3 and (nxt <= c + 2 or c >= 1):
            issue1(nxt); nxt += 1
            if c == 0 and "deep0" not in OPT:
                break
        if c == 3 and "nopf" not in OPT:
            a(f"s_lshl_b32 s{s_t}, s{S_FLAG}, 2")
            a(f"s_add_u32 s{s_t}, s{s_t}, s{s_lw}")
            a(f"s_mul_i32 s{s_t}, s{s_t}, 2560")
            for i in range(3):
                a(f"buffer_load_dwordx4 {v(wreg[3][i],4)}, {v(l16)}, {s(R_C,4)}, s{s_t} offen offset:{i*768}")
            vm.op("PF", 3)
        if c == 7:
            a(f"s_lshl_b32 s{s_t}, s{S_RB}, 11")
            a(f"s_add_u32 s{s_t}, s{s_t}, {WS_ST}")
            a(f"s_mov_b32 m0, {L_STAT}")
            for i in range(2):
                a(f"buffer_load_dwordx4 {v(l16)}, {s(R_WS,4)}, s{s_t} offen offset:{i*1024} {SC} lds")
            vm.op("S", 2)
        if c >= 7:
            issue_w2(c - 7)
    vm.wait("S")
    a("s_waitcnt lgkmcnt(0)")
    nonce(a)
    stamp(a, 3)
    a("s_barrier")
    vm.wait(("W", 1))
    issue_w2(3)
    for c2 in range(4, 8):
        if "nopace" not in OPT:
            vm.wait(("W", c2 - 2), ("R", c2 - 2))
        load_w2(c2)
    vm.wait(("W", 0))
    a("s_barrier")
    vm.wait(("W", 1), ("R", 5))
    a("s_barrier")
    stamp(a, 4)
    l_nf = a.newlabel("L_nf")
    a(f"s_cmp_lg_u32 s{s_lw}, 0")
    a(f"s_cbranch_scc1 {l_nf}")
    a(f"s_and_b32 s{s_t}, s{S_FLAG}, 0xfc")
    a(f"s_lshl_b32 s{s_t}, s{s_t}, 7")
    a(f"s_lshl_b32 s{s_t+1}, s{S_SUB}, 3")
    a(f"s_add_u32 s{s_t}, s{s_t}, s{s_t+1}")
    a(f"s_add_u32 s{s_t}, s{s_t}, {FL_H}")
    push_flag(a, s_t, 4, 7, t0, SCG)
    a(f"s_lshl_b32 s{s_t}, s{S_FLAG}, 3")
    a(f"s_add_u32 s{s_t}, s{s_t}, {FL_M}")
    push_flag(a, s_t, 1, 7, t0)
    a.label(l_nf)
    put_w2(4)
    a("s_barrier")
    put_w2(5)
    a(f"s_lshl_b32 s{s_t+2}, s{S_FLAG}, 7")
    a(f"s_add_u32 s{s_t+2}, s{s_t+2}, {FL_H}")
    poll(a, f"s{s_t+2}", 4, s_t, depth=1, sc=SGP); vm.q = []
    stamp(a, 5)
    for c2 in range(2, 6):
        issue_h(c2)
    a("s_waitcnt lgkmcnt(0)")
    for c2 in range(2, 8):
        vm.wait(("H", c2), ("W", c2))
        if c2 == 2: stamp(a, 6)
        stamp(a, c2 - 1, 5)
        a("s_barrier")
        stamp(a, c2 - 1, 6)
        if c2 in (3, 4):
            issue_h(c2 + 3); issue_w2(c2 + 3)
        if c2 == 5:
            a(f"s_and_b32 s{s_t}, s{S_W}, 3")
            a(f"s_lshl_b32 s{s_t}, s{s_t}, 12")
            a(f"s_add_u32 m0, s{s_t}, {L3_TAB}")
            a(f"s_add_u32 s{s_t}, s{s_t}, {TAB_F3}")
            for k in range(4):
                a(f"buffer_load_dwordx4 {v(l16)}, {s(R_TAB,4)}, s{s_t} offen offset:{k*1024} lds")
            vm.op("T3", 4)
    vm.wait("T3")
    stamp(a, 7, 5)
    a("s_barrier")
    stamp(a, 7, 6)
    a(f"s_branch {l_f3l}")


def twiddle_l(re, im, c_, s_, tmp, pk=None):
    o = []
    if pk is not None:
        for h in range(2):
            o.append(f"v_pk_mul_f32 {v(tmp,2)}, {v(im+2*h,2)}, {v(s_+2*h,2)}")
            o.append(f"v_pk_mul_f32 {v(tmp+2,2)}, {v(re+2*h,2)}, {v(pk+2*h,2)}")
            o.append(f"v_pk_fma_f32 {v(re+2*h,2)}, {v(re+2*h,2)}, {v(c_+2*h,2)}, {v(tmp,2)}")
            o.append(f"v_pk_fma_f32 {v(im+2*h,2)}, {v(im+2*h,2)}, {v(c_+2*h,2)}, {v(tmp+2,2)}")
        return o
    o += [f"v_mul_f32 {v(tmp+r)}, {v(re+r)}, {v(s_+r)}" for r in range(4)]
    o += [f"v_mul_f32 {v(re+r)}, {v(re+r)}, {v(c_+r)}" for r in range(4)]
    o += [f"v_fmac_f32 {v(re+r)}, {v(im+r)}, {v(s_+r)}" for r in range(4)]
    o += [f"v_fma_f32 {v(im+r)}, {v(im+r)}, {v(c_+r)}, -{v(tmp+r)}" for r in range(4)]
    return o


def twiddle(a, re, im, c_, s_, tmp, pk=None):
    for x in twiddle_l(re, im, c_, s_, tmp, pk):
        a(x)


def load_epoch(a, s_t):
    a(f"s_add_u32 s{s_t}, s{P_WS}, {WS_EP}")
    a(f"s_addc_u32 s{s_t+1}, s{P_WS+1}, 0")
    a(f"s_load_dwordx2 s[{S_E}:{S_E+1}], s[{s_t}:{s_t+1}], 0")


def copy_out(a, lds_v, g_v, regs, pitch2, s_base, step, s_t):
    for ii in range(8):
        a(f"ds_read_b128 {v(regs[ii],4)}, {v(lds_v)} offset:{ii*pitch2}")
    a("s_mov_b32 exec_lo, 0x3fffff")
    a("s_mov_b32 exec_hi, 0x3fffff")
    for ii in range(8):
        a(f"s_add_u32 s{s_t}, s{s_base}, {ii*step}")
        a(f"s_waitcnt lgkmcnt({7-ii})")
        a(f"buffer_store_dwordx4 {v(regs[ii],4)}, {v(g_v)}, {s(R_WS,4)}, s{s_t} offen {SC}")
    a("s_mov_b64 exec, -1")


def wave0_flag(a, base, vt):
    l = a.newlabel("L_w0")
    a(f"s_cmp_lg_u32 s{S_W}, 0")
    a(f"s_cbranch_scc1 {l}")
    a(f"s_lshl_b32 s{S_F2}, s{S_IDX}, 3")
    a(f"s_add_u32 s{S_F2}, s{S_F2}, {base}")
    push_flag(a, S_F2, 64, 9, vt)
    a.label(l)


L1_TAB, L1_XN, L1_ZX, L1_ST = 0, 16384, 57344, 0
L2_ZB, L2_WR, L2_WI, L2_TAB = 57344, 102400, 124928, 147456


FV = dict(i16=1, g=2, l16=3, t0=4, xr=8)


def fft_head(a):
    i16, g, l16, t0, xr = FV["i16"], FV["g"], FV["l16"], FV["t0"], FV["xr"]
    s_t = S_T
    srd(a, R_A, P_X, 2621440)
    a(f"s_lshl_b32 s{s_t+1}, s{S_W}, 11")
    a(f"s_add_u32 m0, s{s_t+1}, {L1_TAB}")
    a(f"s_lshl_b32 s{s_t}, s{S_W}, 8")
    for i in range(2):
        a(f"buffer_load_dwordx4 {v(l16)}, {s(R_TAB,4)}, s{s_t+1} offen offset:{i*1024} lds")
    a(f"v_mul_u32_u24 {v(t0)}, {64*1280}, {v(g)}")
    a(f"v_lshl_add_u32 {v(t0)}, {v(i16)}, 4, {v(t0)}")
    a(f"s_add_u32 s{s_t}, s{s_t}, s{S_IDX}")
    a(f"s_mul_i32 s{s_t}, s{s_t}, 1280")
    for i in range(5):
        a(f"buffer_load_dwordx4 {v(xr+4*i,4)}, {v(t0)}, {s(R_A,4)}, s{s_t} offen offset:{256*i}")
    a(f"s_add_u32 m0, s{s_t+1}, {L2_TAB}")
    a(f"s_add_u32 s{s_t+1}, s{s_t+1}, {TAB_F2}")
    for i in range(2):
        a(f"buffer_load_dwordx4 {v(l16)}, {s(R_TAB,4)}, s{s_t+1} offen offset:{i*1024} lds")


def fft_role(a, l_f3, l_f3l):
    s_n = S_IDX
    SP = 368
    vp = Pool("v", 28, 248)
    i16, g, l16, t0, xr = FV["i16"], FV["g"], FV["l16"], FV["t0"], FV["xr"]
    t1 = t0 + 1; t2 = t0 + 2
    s_t = S_T
    mf = vp.get(8, 4)
    k1v = vp.get()
    a(f"s_and_b32 s{s_t}, s{S_W}, 1")
    a(f"s_lshl_b32 s{s_t}, s{s_t}, 4")
    a(f"v_add_u32 {v(k1v)}, s{s_t}, {v(i16)}")
    a(f"s_and_b32 s{s_t}, s{S_W}, 2")
    a(f"s_lshl_b32 s{s_t}, s{s_t}, 8")
    a(f"v_lshlrev_b32 {v(t0)}, 8, {v(g)}")
    a(f"v_add_u32 {v(t0)}, s{s_n}, {v(t0)}")
    a(f"v_mul_u32_u24 {v(t0)}, {v(t0)}, {v(k1v)}")
    a(f"v_add_u32 {v(t0)}, s{s_t}, {v(t0)}")
    a(f"v_lshlrev_b32 {v(k1v)}, 6, {v(k1v)}")
    for ks in range(2):
        for jj in range(4):
            a(f"v_mad_u32_u24 {v(t1)}, {v(k1v)}, {16*ks+jj}, {v(t0)}")
            a(f"v_and_b32 {v(t1)}, 2047, {v(t1)}")
            a(f"v_cvt_f32_u32 {v(t1)}, {v(t1)}")
            a(f"v_mul_f32 {v(t1)}, {hex(f2u(1/2048))}, {v(t1)}")
            a(f"v_cos_f32 {v(t2)}, {v(t1)}")
            a(f"v_sin_f32 {v(t1)}, {v(t1)}")
            a(f"v_cvt_pk_bf16_f32 {v(mf+4*ks+jj)}, {v(t2)}, {v(t1)}")
    a(f"v_mov_b32 {v(t1)}, 0")
    a(f"v_and_b32 {v(t0)}, 31, v0")
    a(f"v_lshlrev_b32 {v(t0)}, 2, {v(t0)}")
    a(f"v_add_u32 {v(t0)}, {L1_ZX + 321*128}, {v(t0)}")
    a(f"ds_write_b32 {v(t0)}, {v(t1)}")
    za = [vp.get() for _ in range(8)]
    a(f"v_mul_u32_u24 {v(t0)}, 80, {v(g)}")
    a(f"v_add_u32 {v(t0)}, {v(t0)}, {v(i16)}")
    for u in range(2):
        for r in range(4):
            z = za[4*u+r]
            if u == 0:
                a(f"v_add_u32 {v(t1)}, {20*r}, {v(t0)}")
            else:
                a(f"v_sub_u32 {v(t1)}, {320-20*r}, {v(t0)}")
            a(f"v_and_b32 {v(t2)}, 7, {v(t1)}")
            a(f"v_xor_b32 {v(t2)}, s{S_W}, {v(t2)}")
            a(f"v_lshlrev_b32 {v(t2)}, 4, {v(t2)}")
            a(f"v_lshl_add_u32 {v(z)}, {v(t1)}, 7, {v(t2)}")
            a(f"v_add_u32 {v(z)}, {L1_ZX}, {v(z)}")
    xw, ta0, ta1 = vp.get(), vp.get(), vp.get()
    a(f"s_mul_i32 s{s_t}, s{S_W}, {4*1280}")
    a(f"s_add_u32 s{s_t}, s{s_t}, {L1_XN}")
    a(f"v_mul_u32_u24 {v(xw)}, 1280, {v(g)}")
    a(f"v_lshl_add_u32 {v(xw)}, {v(i16)}, 4, {v(xw)}")
    a(f"v_add_u32 {v(xw)}, s{s_t}, {v(xw)}")
    a(f"v_and_b32 {v(t0)}, 3, v0")
    a(f"v_lshlrev_b32 {v(t0)}, 3, {v(t0)}")
    a(f"v_add_u32 {v(t0)}, s{s_t}, {v(t0)}")
    a(f"v_lshrrev_b32 {v(t1)}, 2, v0")
    a(f"v_lshl_add_u32 {v(ta0)}, {v(t1)}, 6, {v(t0)}")
    a(f"v_and_b32 {v(t1)}, 3, {v(t1)}")
    a(f"v_lshl_add_u32 {v(ta1)}, {v(t1)}, 6, {v(t0)}")
    a(f"v_add_u32 {v(ta1)}, 1024, {v(ta1)}")
    ca = [vp.get() for _ in range(4)]
    s_hf = S_T + 2
    a(f"s_lshr_b32 s{s_hf}, s{S_W}, 2")
    a(f"v_and_b32 {v(t0)}, 7, v0")
    a(f"v_xor_b32 {v(t0)}, {v(t0)}, {v(g)}")
    a(f"v_lshlrev_b32 {v(t0)}, 4, {v(t0)}")
    a(f"v_lshl_add_u32 {v(t0)}, {v(i16)}, 7, {v(t0)}")
    a(f"s_mul_i32 s{s_t}, s{s_hf}, {11*2048}")
    a(f"s_add_u32 s{s_t}, s{s_t}, {L1_ZX}")
    a(f"v_add_u32 {v(ca[0])}, s{s_t}, {v(t0)}")
    a(f"v_xor_b32 {v(ca[1])}, 64, {v(ca[0])}")
    a(f"v_lshlrev_b32 {v(t0)}, 4, {v(g)}")
    a(f"v_add_u32 {v(t0)}, {L1_ZX + 320*128}, {v(t0)}")
    a(f"v_add_u32 {v(t1)}, 128, {v(t0)}")
    a(f"v_cmp_eq_u32 vcc, 7, {v(i16)}")
    a(f"v_cndmask_b32 {v(t0)}, {v(t1)}, {v(t0)}, vcc")
    a(f"v_add_u32 {v(t1)}, {9*2048}, {v(ca[0])}")
    a(f"s_cmp_eq_u32 s{s_hf}, 1")
    a(f"s_cselect_b64 vcc, -1, 0")
    a(f"v_cndmask_b32 {v(ca[2])}, {v(t1)}, {v(t0)}, vcc")
    a(f"v_xor_b32 {v(ca[3])}, 64, {v(ca[2])}")
    sw, sr, gv = vp.get(), vp.get(), vp.get()
    a(f"s_mul_i32 s{s_t}, s{S_W}, {16*SP}")
    a(f"v_mul_u32_u24 {v(sw)}, {SP}, {v(i16)}")
    a(f"v_lshl_add_u32 {v(sw)}, {v(g)}, 3, {v(sw)}")
    a(f"v_add_u32 {v(sw)}, s{s_t}, {v(sw)}")
    a(f"v_lshrrev_b32 {v(t0)}, 5, v0")
    a(f"v_and_b32 {v(t1)}, 31, v0")
    a(f"v_lshlrev_b32 {v(t1)}, 4, {v(t1)}")
    a(f"v_mul_u32_u24 {v(sr)}, {SP}, {v(t0)}")
    a(f"v_add3_u32 {v(sr)}, {v(sr)}, {v(t1)}, s{s_t}")
    a(f"v_mul_u32_u24 {v(gv)}, 90112, {v(t0)}")
    a(f"v_add_u32 {v(gv)}, {v(gv)}, {v(t1)}")
    s_k1, s_h2 = S_T + 6, S_T + 7
    a(f"s_lshr_b32 s{s_k1}, s{S_IDX}, 1")
    a(f"s_and_b32 s{s_h2}, s{S_IDX}, 1")
    wv = [vp.get() for _ in range(3)]
    a(f"s_mul_i32 s{s_t+1}, s{s_h2}, 176")
    for i in range(3):
        a(f"s_lshl_b32 s{s_t}, s{S_W}, 6")
        a(f"s_add_u32 s{s_t}, s{s_t}, {512*i}")
        a(f"v_add_u32 {v(t2)}, s{s_t}, v0")
        divmod_const(a, t0, t1, t2, 22)
        a(f"v_lshlrev_b32 {v(t1)}, 3, {v(t1)}")
        a(f"v_add_u32 {v(t1)}, s{s_t+1}, {v(t1)}")
        a(f"v_min_u32 {v(t1)}, 313, {v(t1)}")
        a(f"v_mul_u32_u24 {v(wv[i])}, {32*642}, {v(t0)}")
        a(f"v_lshl_add_u32 {v(wv[i])}, {v(t1)}, 1, {v(wv[i])}")
    srd(a, R_B, P_WR, 1314816); srd(a, R_C, P_WI, 1314816)
    mk = vp.mark()
    tb = vp.get(56, 4)
    F20 = [tb, tb + 4]; F32 = [tb + 8 + 4*i for i in range(8)]; TW = [tb + 40 + 4*i for i in range(4)]
    a("s_waitcnt vmcnt(7)")
    a("s_barrier")
    for i in range(14):
        a(f"ds_read_b128 {v(tb+4*i,4)}, {v(l16)} offset:{L1_TAB+1024*i}")
    load_epoch(a, s_t)
    mk2 = vp.mark()
    f = vp.get(40, 2)
    ac = vp.get(8, 2)
    vp.reset(mk2 + 100)
    rr = vp.get(2, 2); e0 = vp.get(4, 4)
    mean, var, m, den, m2, den2 = [vp.get() for _ in range(6)]
    mk3 = vp.mark()
    stamp(a, 1)
    for i in range(20):
        if i % 4 == 0:
            a(f"s_waitcnt vmcnt({6 - i//4})")
        a(f"v_lshlrev_b32 {v(f+2*i)}, 16, {v(xr+i)}")
        a(f"v_and_b32 {v(f+2*i+1)}, 0xffff0000, {v(xr+i)}")
        if i < 2:
            a(f"v_pk_mul_f32 {v(ac+4+2*i,2)}, {v(f+2*i,2)}, {v(f+2*i,2)}")
        else:
            a(f"v_pk_fma_f32 {v(ac+4+2*(i&1),2)}, {v(f+2*i,2)}, {v(f+2*i,2)}, {v(ac+4+2*(i&1),2)}")
        if i in (2, 3):
            a(f"v_pk_add_f32 {v(ac+2*(i&1),2)}, {v(f+2*i-4,2)}, {v(f+2*i,2)}")
        elif i > 3:
            a(f"v_pk_add_f32 {v(ac+2*(i&1),2)}, {v(ac+2*(i&1),2)}, {v(f+2*i,2)}")
    stamp(a, 2)
    a(f"v_pk_add_f32 {v(ac,2)}, {v(ac,2)}, {v(ac+2,2)}")
    a(f"v_pk_add_f32 {v(ac+4,2)}, {v(ac+4,2)}, {v(ac+6,2)}")
    a(f"v_add_f32 {v(mean)}, {v(ac)}, {v(ac+1)}")
    a(f"v_add_f32 {v(var)}, {v(ac+4)}, {v(ac+5)}")
    for sh in (8, 4, 2, 1):
        for dst in (mean, var):
            a(f"v_add_f32_dpp {v(dst)}, {v(dst)}, {v(dst)} row_ror:{sh} row_mask:0xf bank_mask:0xf")
    a(f"v_mul_f32 {v(mean)}, {hex(f2u(1/640))}, {v(mean)}")
    a(f"v_mul_f32 {v(var)}, {hex(f2u(1/640))}, {v(var)}")
    a(f"v_fma_f32 {v(var)}, -{v(mean)}, {v(mean)}, {v(var)}")
    a(f"v_max_f32 {v(var)}, 0, {v(var)}")
    bf16r(a, m, mean)
    bf16r(a, den, var)
    a(f"v_add_f32 {v(den)}, {hex(f2u(1e-5))}, {v(den)}")
    bf16r(a, den, den)
    a(f"v_sqrt_f32 {v(den)}, {v(den)}")
    bf16r(a, den, den)
    a(f"v_rcp_f32 {v(rr)}, {v(den)}")
    a(f"v_mul_f32 {v(rr+1)}, {v(m)}, {v(rr)}")
    a(f"v_mov_b32 {v(ac)}, {v(rr)}"); a(f"v_mov_b32 {v(ac+1)}, {v(rr)}")
    a(f"v_sub_f32 {v(ac+2)}, 0, {v(rr+1)}"); a(f"v_sub_f32 {v(ac+3)}, 0, {v(rr+1)}")
    for i in range(21):
        if i < 20:
            a(f"v_pk_fma_f32 {v(f+2*i,2)}, {v(f+2*i,2)}, {v(ac,2)}, {v(ac+2,2)}")
        if i > 0:
            a(f"v_cvt_pk_bf16_f32 {v(xr+i-1)}, {v(f+2*i-2)}, {v(f+2*i-1)}")
            if i % 4 == 0:
                a(f"ds_write_b128 {v(xw)}, {v(xr+i-4,4)} offset:{64*(i-4)}")
    vp.reset(mk2)
    d = [[[vp.get(4, 4) for pl in range(2)] for t in range(2)] for row in range(4)]
    af = [[vp.get(4, 4) for t in range(2)] for row in range(4)]
    tmp = [vp.get(4, 4)]
    assert vp.mark() <= mk2 + 100
    vp.reset(mk3)
    tmp.append(vp.get(4, 4))
    zo = [xr + 4*i for i in range(5)] + [vp.get(4, 4) for _ in range(3)]
    s_wb, s_wm0 = S_T + 8, S_T + 9
    a(f"s_mul_i32 s{s_wb}, s{s_k1}, 642")
    a(f"s_lshl_b32 s{s_wm0}, s{S_W}, 10")

    def wdma(k):
        i, pl = k >> 1, k & 1
        l2 = a.newlabel("L_f2b")
        if i == 2:
            a(f"s_cmp_ge_u32 s{S_W}, 6")
            a(f"s_cbranch_scc1 {l2}")
        a(f"s_add_u32 m0, s{s_wm0}, {(L2_WI if pl else L2_WR) + i*8192}")
        dma(a, wv[i], R_C if pl else R_B, f"s{s_wb}")
        a.label(l2)
    a(f"v_sub_f32 {v(m2)}, {v(mean)}, {v(m)}")
    a(f"v_mul_f32 {v(m2)}, {v(m2)}, {v(rr)}")
    bf16r(a, m2, m2)
    a(f"v_mul_f32 {v(den2)}, {v(var)}, {v(rr)}")
    a(f"v_mul_f32 {v(den2)}, {v(den2)}, {v(rr)}")
    bf16r(a, den2, den2)
    a(f"v_add_f32 {v(den2)}, {hex(f2u(1e-5))}, {v(den2)}")
    bf16r(a, den2, den2)
    a("s_waitcnt lgkmcnt(0)")
    stamp(a, 3)
    for row in range(4):
        for t in range(2):
            a(f"ds_read_b64_tr_b16 {v(af[row][t],2)}, {v(ta0)} offset:{row*1280+t*32}")
            a(f"ds_read_b64_tr_b16 {v(af[row][t]+2,2)}, {v(ta1)} offset:{row*1280+t*32}")
        if row == 2:
            nonce(a)
            a(f"v_sqrt_f32 {v(den2)}, {v(den2)}")
            bf16r(a, den2, den2)
            a(f"v_rcp_f32 {v(den2)}, {v(den2)}")
            a(f"v_fma_f32 {v(m)}, {v(m2)}, {v(den)}, {v(m)}")
            a(f"v_mul_f32 {v(e0)}, {v(rr)}, {v(den2)}")
            a(f"v_mul_f32 {v(e0+2)}, {v(e0)}, {v(m)}")
            a(f"v_sub_f32 {v(e0+2)}, 0, {v(e0+2)}")
            a(f"v_mov_b32 {v(e0+1)}, s{S_E}")
            a(f"v_mov_b32 {v(e0+3)}, s{S_E+1}")
            a("s_waitcnt lgkmcnt(8)")
    a(f"s_lshl_b32 s{s_t}, s{s_n}, 3")
    a(f"s_add_u32 s{s_t}, s{s_t}, s{S_W}")
    a(f"s_lshl_b32 s{s_t}, s{s_t}, 6")
    a(f"s_add_u32 s{s_t}, s{s_t}, {WS_ST}")
    a(f"v_lshlrev_b32 {v(t0)}, 4, {v(g)}")
    a("s_mov_b32 exec_lo, 0x00010001")
    a("s_mov_b32 exec_hi, 0x00010001")
    a(f"buffer_store_dwordx4 {v(e0,4)}, {v(t0)}, {s(R_WS,4)}, s{s_t} offen {SC}")
    a("s_mov_b64 exec, -1")
    R1 = lambda row: [mfma_s(d[row][t][pl], af[row][t], F20[pl], "0") for t in range(2) for pl in range(2)]
    R2 = lambda row: ([mfma_s(d[row][u][op], F32[4*u+2*op], af[row][0], "0") for u in range(2) for op in range(2)] +
                      [mfma_s(d[row][u][op], F32[4*u+2*op+1], af[row][1]) for u in range(2) for op in range(2)])
    TWD = lambda row: (twiddle_l(d[row][0][0], d[row][0][1], TW[0], TW[1], tmp[0]) + twiddle_l(d[row][1][0], d[row][1][1], TW[2], TW[3], tmp[1]) +
                       [f"v_cvt_pk_bf16_f32 {v(af[row][pl]+2*t+h)}, {v(d[row][t][pl]+2*h)}, {v(d[row][t][pl]+2*h+1)}"
                        for pl in range(2) for t in range(2) for h in range(2)])
    OUT = lambda row: [f"v_cvt_pk_bf16_f32 {v(zo[4*u+r]+row)}, {v(d[row][u][0]+r)}, {v(d[row][u][1]+r)}" for u in range(2) for r in range(4)]
    for x in R1(0): a(x)
    a("s_waitcnt lgkmcnt(8)")
    for x in R1(1): a(x)
    wdma(0)
    a("s_waitcnt lgkmcnt(0)")
    weave(a, R1(2) + R1(3), TWD(0))
    wdma(1)
    weave(a, R2(0), TWD(1))
    wdma(2)
    weave(a, R2(1), TWD(2) + OUT(0))
    wdma(3)
    weave(a, R2(2), TWD(3) + OUT(1))
    wdma(4)
    weave(a, R2(3), [f"s_nop 0"] * 2 + OUT(2))
    wdma(5)
    o3 = OUT(3)
    for i in range(8):
        a(o3[i])
        a(f"ds_write_b128 {v(za[i])}, {v(zo[i],4)}")
    vp.reset(mk)
    zf = [[vp.get(4, 4) for ks in range(2)] for i in range(11)]
    dd = [vp.get(4, 4) for i in range(11)]
    a("s_waitcnt lgkmcnt(0)")
    a("s_barrier")
    stamp(a, 4)

    def crd(i):
        for ks in range(2):
            if i == 9:
                a(f"ds_read_b128 {v(zf[i][ks],4)}, {v(ca[2+ks])}")
            else:
                a(f"ds_read_b128 {v(zf[i][ks],4)}, {v(ca[ks])} offset:{i*2048}")
    for i in range(6):
        crd(i)
    for i in range(11):
        if i + 6 < 11:
            a("s_waitcnt lgkmcnt(10)")
        else:
            a(f"s_waitcnt lgkmcnt({2*(10-i)})")
        mfma(a, dd[i], zf[i][0], mf, "0")
        mfma(a, dd[i], zf[i][1], mf + 4)
        if i + 6 < 11:
            crd(i + 6)
    for i in range(11):
        a(f"v_cvt_pk_bf16_f32 {v(dd[i])}, {v(dd[i])}, {v(dd[i]+1)}")
        a(f"v_cvt_pk_bf16_f32 {v(dd[i]+1)}, {v(dd[i]+2)}, {v(dd[i]+3)}")
        a(f"ds_write_b64 {v(sw)}, {v(dd[i],2)} offset:{L1_ST + i*32}")
    s_b = S_T + 3
    a(f"s_and_b32 s{s_b}, s{S_W}, 1")
    a(f"s_lshl_b32 s{s_b}, s{s_b}, 12")
    a(f"s_lshl_b32 s{s_t}, s{s_hf}, 7")
    a(f"s_add_u32 s{s_b}, s{s_b}, s{s_t}")
    a(f"s_and_b32 s{s_t}, s{S_W}, 2")
    a(f"s_lshl_b32 s{s_t}, s{s_t}, 5")
    a(f"s_add_u32 s{s_b}, s{s_b}, s{s_t}")
    a(f"s_add_u32 s{s_b}, s{s_b}, s{s_n}")
    a(f"s_mul_i32 s{s_b}, s{s_b}, 352")
    a(f"s_add_u32 s{s_b}, s{s_b}, {WS_ZP}")
    a("s_waitcnt lgkmcnt(0)")
    stamp(a, 1, 7)
    copy_out(a, sr, gv, [zf[i][0] for i in range(8)], 2*SP, s_b, 180224, s_t)
    stamp(a, 2, 7)

    vp.reset(mk)
    s_b, s_i = S_T + 4, S_T + 5
    ra, rw, wa, tadr = za[0], za[1], za[2], za[3]
    a(f"v_lshrrev_b32 {v(t0)}, 2, v0")
    a(f"v_mul_u32_u24 {v(ra)}, 352, {v(t0)}")
    a(f"v_and_b32 {v(t0)}, 3, v0")
    a(f"v_lshl_add_u32 {v(ra)}, {v(t0)}, 3, {v(ra)}")
    a(f"s_lshl_b32 s{s_t}, s{S_W}, 5")
    a(f"s_add_u32 s{s_t}, s{s_t}, {L2_ZB}")
    a(f"v_add_u32 {v(ra)}, s{s_t}, {v(ra)}")
    a(f"v_add_u32 {v(rw)}, {L2_WR - L2_ZB}, {v(ra)}")
    a(f"v_mul_u32_u24 {v(wa)}, 352, {v(i16)}")
    a(f"v_lshl_add_u32 {v(wa)}, {v(g)}, 3, {v(wa)}")
    a(f"v_add_u32 {v(wa)}, s{s_t}, {v(wa)}")
    a(f"v_add_u32 {v(tadr)}, {L2_TAB}, {v(l16)}")
    a("s_waitcnt vmcnt(0)")
    a("s_barrier")
    stamp(a, 5)
    stamp(a, 3, 7)
    spare = vp.get(32, 4)
    tb = vp.get(96, 4)
    C = [[tb + 8*t + 4*ks for ks in range(2)] for t in range(4)]
    Sm = [[tb + 32 + 8*t + 4*ks for ks in range(2)] for t in range(4)]
    NS = [[tb + 64 + 8*t + 4*ks for ks in range(2)] for t in range(4)]
    X = [[spare + 16*pl + 4*t for t in range(4)] for pl in range(2)]
    z = [[vp.get(4, 4) for ks in range(2)] for pl in range(2)]
    wq = [[xr + 8*pl + 2*t for t in range(4)] for pl in range(2)]
    wu = [vp.get(4, 4) for _ in range(4)]
    tmp = vp.get(4, 4)
    wave0_flag(a, FL_Z, t0)
    l_np = a.newlabel("L_np")
    a(f"s_cmp_lg_u32 s{S_W}, 7")
    a(f"s_cbranch_scc1 {l_np}")
    a(f"s_lshl_b32 s{s_t+2}, s{S_IDX}, 9")
    a(f"s_add_u32 s{s_t+2}, s{s_t+2}, {FL_Z}")
    poll(a, f"s{s_t+2}", 64, s_t)
    a.label(l_np)
    for i in range(16):
        a(f"ds_read_b128 {v(tb+4*i,4)}, {v(tadr)} offset:{1024*i}")
        if i == 11:
            a("s_waitcnt lgkmcnt(4)")
    a("s_barrier")
    stamp(a, 6)
    stamp(a, 4, 7)
    a(f"s_mul_i32 s{s_b}, s{S_IDX}, 45056")
    a(f"s_lshl_b32 s{s_i}, s{S_W}, 10")
    a(f"s_add_u32 s{s_b}, s{s_b}, s{s_i}")
    l1 = a.newlabel("L_f2a")
    for i in range(6):
        if i == 5:
            a(f"s_cmp_ge_u32 s{S_W}, 4")
            a(f"s_cbranch_scc1 {l1}")
        a(f"s_add_u32 m0, s{s_i}, {L2_ZB + i*8192}")
        a(f"s_add_u32 s{s_t}, s{s_b}, {WS_ZP + i*8192}")
        dma(a, l16, R_WS, f"s{s_t}", SCL)
    a.label(l1)
    a("s_waitcnt lgkmcnt(0)")
    for i in range(32):
        a(f"v_xor_b32 {v(tb+64+i)}, 0x80008000, {v(tb+32+i)}")
    a(f"s_mov_b32 s{s_i}, s{S_W}")
    a(f"s_sub_u32 s{s_b}, 11, s{s_h2}")
    a("s_waitcnt vmcnt(0)")
    a("s_barrier")
    stamp(a, 7)
    l3 = a.newlabel("L_t3")
    a(f"s_cmp_lt_u32 s{S_W}, 4")
    a(f"s_cbranch_scc1 {l3}")
    a(f"s_and_b32 s{s_t}, s{S_W}, 3")
    a(f"s_lshl_b32 s{s_t}, s{s_t}, 12")
    a(f"s_add_u32 m0, s{s_t}, {L3_TAB}")
    a(f"s_add_u32 s{s_t}, s{s_t}, {TAB_F3}")
    for k in range(4):
        a(f"buffer_load_dwordx4 {v(l16)}, {s(R_TAB,4)}, s{s_t} offen offset:{k*1024} lds")
    a.label(l3)
    l_loop = a.newlabel("L_f2l")
    a.label(l_loop)
    for pl in range(2):
        for ks in range(2):
            for h in range(2):
                a(f"ds_read_b64_tr_b16 {v(z[pl][ks]+2*h,2)}, {v(ra)} offset:{(pl*64+32*ks+16*h)*352}")
    a("s_waitcnt lgkmcnt(0)")
    for pl in range(2):
        for t in range(4):
            a(f"ds_read_b64_tr_b16 {v(wq[pl][t],2)}, {v(rw)} offset:{pl*22528+16*t*352}")
    for t in range(4):
        mfma(a, X[0][t], C[t][0], z[0][0], "0")
        mfma(a, X[1][t], C[t][0], z[1][0], "0")
        mfma(a, X[0][t], C[t][1], z[0][1])
        mfma(a, X[1][t], C[t][1], z[1][1])
        mfma(a, X[0][t], Sm[t][0], z[1][0])
        mfma(a, X[1][t], NS[t][0], z[0][0])
        mfma(a, X[0][t], Sm[t][1], z[1][1])
        mfma(a, X[1][t], NS[t][1], z[0][1])
    a("s_waitcnt lgkmcnt(0)")
    for t in range(4):
        wr_, wi_ = wu[2*(t&1)], wu[2*(t&1)+1]
        for pl, dst in ((0, wr_), (1, wi_)):
            for h in range(2):
                a(f"v_lshlrev_b32 {v(dst+2*h)}, 16, {v(wq[pl][t]+h)}")
                a(f"v_and_b32 {v(dst+2*h+1)}, 0xffff0000, {v(wq[pl][t]+h)}")
        re, im = X[0][t], X[1][t]
        for r in range(4):
            a(f"v_mul_f32 {v(tmp+r)}, {v(im+r)}, {v(wi_+r)}")
        for r in range(4):
            a(f"v_mul_f32 {v(im+r)}, {v(im+r)}, {v(wr_+r)}")
        for r in range(4):
            a(f"v_fmac_f32 {v(im+r)}, {v(re+r)}, {v(wi_+r)}")
        for r in range(4):
            a(f"v_fma_f32 {v(re+r)}, {v(re+r)}, {v(wr_+r)}, -{v(tmp+r)}")
        for pl in range(2):
            for h in range(2):
                a(f"v_cvt_pk_bf16_f32 {v(z[pl][t>>1]+2*(t&1)+h)}, {v(X[pl][t]+2*h)}, {v(X[pl][t]+2*h+1)}")
    for t in range(4):
        mfma(a, X[0][t], z[0][0], C[t][0], "0")
        mfma(a, X[1][t], z[1][0], C[t][0], "0")
        mfma(a, X[0][t], z[0][1], C[t][1])
        mfma(a, X[1][t], z[1][1], C[t][1])
        mfma(a, X[0][t], z[1][0], NS[t][0])
        mfma(a, X[1][t], z[0][0], Sm[t][0])
        mfma(a, X[0][t], z[1][1], NS[t][1])
        mfma(a, X[1][t], z[0][1], Sm[t][1])
    for t in range(4):
        for pl in range(2):
            r = X[pl][t]
            a(f"v_cvt_pk_bf16_f32 {v(r)}, {v(r)}, {v(r+1)}")
            a(f"v_cvt_pk_bf16_f32 {v(r+1)}, {v(r+2)}, {v(r+3)}")
            a(f"ds_write_b64 {v(wa)}, {v(r,2)} offset:{(pl*64+16*t)*352}")
    for r in (ra, rw, wa):
        a(f"v_add_u32 {v(r)}, 256, {v(r)}")
    a(f"s_add_u32 s{s_i}, s{s_i}, 8")
    a(f"s_cmp_lt_u32 s{s_i}, s{s_b}")
    a("s_waitcnt lgkmcnt(0)")
    a(f"s_cbranch_scc1 {l_loop}")
    sr, gv = ra, rw
    a(f"v_lshrrev_b32 {v(t0)}, 5, v0")
    a(f"v_and_b32 {v(t1)}, 31, v0")
    a(f"v_lshlrev_b32 {v(t1)}, 4, {v(t1)}")
    a(f"s_mul_i32 s{s_t}, s{S_W}, {16*352}")
    a(f"s_add_u32 s{s_t}, s{s_t}, {L2_ZB}")
    a(f"v_mul_u32_u24 {v(sr)}, 352, {v(t0)}")
    a(f"v_add3_u32 {v(sr)}, {v(sr)}, {v(t1)}, s{s_t}")
    a(f"v_mul_u32_u24 {v(gv)}, 45056, {v(t0)}")
    a(f"v_add_u32 {v(gv)}, {v(gv)}, {v(t1)}")
    a(f"s_and_b32 s{s_b}, s{S_W}, 3")
    a(f"s_lshl_b32 s{s_b}, s{s_b}, 11")
    a(f"s_lshl_b32 s{s_t}, s{s_h2}, 6")
    a(f"s_add_u32 s{s_b}, s{s_b}, s{s_t}")
    a(f"s_and_b32 s{s_t}, s{S_W}, 4")
    a(f"s_lshl_b32 s{s_t}, s{s_t}, 3")
    a(f"s_add_u32 s{s_b}, s{s_b}, s{s_t}")
    a(f"s_add_u32 s{s_b}, s{s_b}, s{s_k1}")
    a(f"s_mul_i32 s{s_b}, s{s_b}, 352")
    a(f"s_add_u32 s{s_b}, s{s_b}, {WS_VP}")
    a("s_barrier")
    stamp(a, 8)
    stamp(a, 5, 7)
    copy_out(a, sr, gv, [tb + 4*i for i in range(8)], 2*352, s_b, 90112, s_t)
    stamp(a, 6, 7)
    a("s_waitcnt vmcnt(0)")
    a("s_barrier")
    stamp(a, 7, 7)
    wave0_flag(a, FL_V, t0)
    a(f"s_xor_b32 s{s_t}, s{S_W}, 1")
    a(f"s_or_b32 s{s_t}, s2, s{s_t}")
    a(f"s_cbranch_scc1 {l_f3l}")
    advance_epoch(a, t0, s_t)
    a("s_waitcnt vmcnt(0)")


def f3(a, l_f3, l_f3l):
    UP = 1376
    vp = Pool("v", 1, 248)
    i16, g, l16 = [vp.get() for _ in range(3)]
    t0 = vp.get(3, 2); t1 = t0 + 1; t2 = t0 + 2
    s_t, s_b, s_i, s_row, s_p = S_T, S_T + 3, S_T + 4, S_T + 5, S_T + 6
    s_n, s_qt = S_N3, S_Q3
    a.label(l_f3l)
    a(f"s_mov_b32 s{S_PJ}, 0")
    a.label(l_f3)
    stamp(a, 1, 8)
    srd(a, R_A, P_X, 2621440); srd(a, R_B, P_B2, 1280); srd(a, R_C, P_OUT, 2621440)
    a(f"v_and_b32 {v(i16)}, 15, v0")
    a(f"v_lshrrev_b32 {v(g)}, 4, v0")
    a(f"v_lshlrev_b32 {v(l16)}, 4, v0")
    a(f"s_lshl_b32 s{s_t}, s{s_qt}, 3")
    a(f"s_add_u32 s{s_t}, s{s_t}, s{S_W}")
    a(f"s_lshl_b32 s{s_row}, s{s_t}, 6")
    a(f"s_add_u32 s{s_row}, s{s_row}, s{s_n}")
    a(f"s_mul_i32 s{s_row}, s{s_row}, 1280")
    a(f"s_lshl_b32 s{s_p}, s{s_n}, 5")
    a(f"s_add_u32 s{s_p}, s{s_p}, s{s_t}")
    a(f"s_mul_i32 s{s_p}, s{s_p}, 160")
    a(f"s_add_u32 s{s_p}, s{s_p}, {WS_P}")
    vp.get(101)
    l4, pa, pb = vp.get(), vp.get(), vp.get()
    a(f"v_lshlrev_b32 {v(l4)}, 2, v0")
    PA = [vp.get(4, 4) for _ in range(5)]
    PB = [vp.get() for _ in range(5)]
    a(f"buffer_load_dwordx4 {v(PA[3],4)}, {v(l16)}, {s(R_B,4)}, 0 offen")
    a(f"buffer_load_dword {v(PB[3])}, {v(l4)}, {s(R_B,4)}, 0 offen offset:1024")
    a(f"buffer_load_dwordx4 {v(PA[4],4)}, {v(l16)}, {s(R_A,4)}, s{s_row} offen")
    a(f"buffer_load_dword {v(PB[4])}, {v(l4)}, {s(R_A,4)}, s{s_row} offen offset:1024")
    divmod_const(a, t0, t1, 0, 10)
    a(f"v_mul_u32_u24 {v(pa)}, {2048*160}, {v(t0)}")
    a(f"v_lshl_add_u32 {v(pa)}, {v(t1)}, 4, {v(pa)}")
    a(f"v_add_u32 {v(t2)}, 256, v0")
    divmod_const(a, t0, t1, t2, 40)
    a(f"v_mul_u32_u24 {v(pb)}, {2048*160}, {v(t0)}")
    a(f"v_lshl_add_u32 {v(pb)}, {v(t1)}, 2, {v(pb)}")
    gf = vp.get(8, 4)
    sv, ph = vp.get(), vp.get()
    a(f"v_lshrrev_b32 {v(t0)}, 1, {v(i16)}")
    a(f"s_lshl_b32 s{s_t}, s{s_qt}, 9")
    a(f"s_add_u32 s{s_t}, s{s_t}, s{s_n}")
    a(f"v_lshlrev_b32 {v(sv)}, 6, {v(t0)}")
    a(f"v_add_u32 {v(sv)}, s{s_t}, {v(sv)}")
    a(f"v_lshlrev_b32 {v(t0)}, 2, {v(g)}")
    a(f"v_mul_u32_u24 {v(ph)}, {v(sv)}, {v(t0)}")
    a(f"v_and_b32 {v(t0)}, 1, v0")
    a(f"v_mul_u32_u24 {v(t0)}, 1536, {v(t0)}")
    a(f"v_add_u32 {v(ph)}, {v(ph)}, {v(t0)}")
    cs_ = [vp.get() for _ in range(4)]
    for e2 in range(4):
        for hh in range(2):
            e = 2 * e2 + hh
            ko = e if e < 4 else 16 + e - 4
            a(f"v_mad_u32_u24 {v(t1)}, {v(sv)}, {ko}, {v(ph)}")
            a(f"v_and_b32 {v(t1)}, 2047, {v(t1)}")
            a(f"v_cvt_f32_u32 {v(t1)}, {v(t1)}")
            a(f"v_mul_f32 {v(t1)}, {hex(f2u(1/2048))}, {v(t1)}")
            a(f"v_cos_f32 {v(cs_[hh])}, {v(t1)}")
            a(f"v_sin_f32 {v(cs_[2+hh])}, {v(t1)}")
        a(f"v_cvt_pk_bf16_f32 {v(gf+e2)}, {v(cs_[0])}, {v(cs_[1])}")
        a(f"v_cvt_pk_bf16_f32 {v(gf+4+e2)}, -{v(cs_[2])}, -{v(cs_[3])}")
    ra = [vp.get() for _ in range(3)]; ua = [vp.get() for _ in range(3)]
    a(f"v_lshrrev_b32 {v(t0)}, 2, v0")
    a(f"v_mul_u32_u24 {v(t0)}, 352, {v(t0)}")
    a(f"v_and_b32 {v(t1)}, 3, v0")
    a(f"v_lshl_add_u32 {v(t0)}, {v(t1)}, 3, {v(t0)}")
    a(f"v_mul_u32_u24 {v(t1)}, {2*UP}, {v(g)}")
    a(f"v_lshl_add_u32 {v(t1)}, {v(i16)}, 2, {v(t1)}")
    for k in range(3):
        a(f"s_add_u32 s{s_t}, s{S_W}, {8*k}")
        a(f"s_min_u32 s{s_t}, s{s_t}, 20")
        a(f"s_cmp_ge_u32 s{s_t}, 11")
        a(f"s_cselect_b32 s{s_t+1}, {22528-352}, 0")
        a(f"s_lshl_b32 s{s_b}, s{s_t}, 5")
        a(f"s_add_u32 s{s_t+1}, s{s_t+1}, s{s_b}")
        a(f"v_add_u32 {v(ra[k])}, s{s_t+1}, {v(t0)}")
        a(f"s_lshl_b32 s{s_b}, s{s_t}, 6")
        a(f"s_add_u32 s{s_b}, s{s_b}, {L3_UX}")
        a(f"v_add_u32 {v(ua[k])}, s{s_b}, {v(t1)}")
    a(f"v_add_u32 {v(t0)}, 4, {v(ua[2])}")
    a(f"v_subrev_u32 {v(t1)}, 28, {v(ua[2])}")
    a(f"v_cmp_eq_u32 vcc, 7, {v(i16)}")
    a(f"v_cndmask_b32 {v(t0)}, {v(t0)}, {v(t1)}, vcc")
    a(f"s_cmp_ge_u32 s{S_W}, 4")
    a(f"s_cselect_b64 vcc, -1, 0")
    a(f"v_cndmask_b32 {v(ua[2])}, {v(ua[2])}, {v(t0)}, vcc")
    ub0, ub1, swr, srd0, srd1 = [vp.get() for _ in range(5)]
    a(f"s_mul_i32 s{s_t}, s{S_W}, {UP}")
    a(f"s_add_u32 s{s_t}, s{s_t}, {L3_UX}")
    a(f"v_mul_u32_u24 {v(t0)}, 80, {v(g)}")
    a(f"v_add_u32 {v(t0)}, {v(t0)}, {v(i16)}")
    a(f"v_lshlrev_b32 {v(t0)}, 2, {v(t0)}")
    a(f"v_add_u32 {v(ub0)}, s{s_t}, {v(t0)}")
    a(f"s_add_u32 s{s_t}, s{s_t}, {260*4}")
    a(f"v_sub_u32 {v(ub1)}, s{s_t}, {v(t0)}")
    a(f"s_lshl_b32 s{s_t}, s{S_W}, 11")
    a(f"s_add_u32 s{s_t}, s{s_t}, {L3_SX}")
    a(f"v_lshlrev_b32 {v(t0)}, 6, {v(i16)}")
    a(f"v_lshl_add_u32 {v(t0)}, {v(g)}, 3, {v(t0)}")
    a(f"v_add_u32 {v(swr)}, s{s_t}, {v(t0)}")
    a(f"v_add_u32 {v(srd0)}, s{s_t}, {v(l16)}")
    a(f"v_add_u32 {v(srd1)}, s{s_t}, {v(l4)}")
    vq = Pool("v", 52, 108)
    tb = vq.get(56, 4)
    G32 = [tb + 4*i for i in range(8)]; G20 = [tb + 32, tb + 36]; TW = [tb + 40 + 4*i for i in range(4)]
    a(f"v_add_u32 {v(t0)}, {L3_TAB}, {v(l16)}")
    for i in range(14):
        a(f"ds_read_b128 {v(tb+4*i,4)}, {v(t0)} offset:{1024*i}")
    o = vp.get(10, 2); w_ = vp.get(10, 2); xx = vp.get(10, 2); sf = vp.get(10, 2)
    pfl = vp.get(3, 2)
    s_have, s_pf = S_T + 7, S_T + 8
    a(f"s_mov_b32 s{s_have}, 0")
    a(f"s_lshl_b32 s{s_pf}, s{s_n}, 2")
    a(f"s_add_u32 s{s_pf}, s{s_pf}, s{s_qt}")
    a(f"s_lshl_b32 s{s_pf}, s{s_pf}, 8")
    a(f"s_add_u32 s{s_pf}, s{s_pf}, {FL_P}")
    a(f"v_min_u32 {v(pfl+2)}, 23, v0")
    a(f"v_lshlrev_b32 {v(pfl+2)}, 3, {v(pfl+2)}")

    def unpack(dst, A_, B_):
        for i in range(5):
            src = A_ + i if i < 4 else B_
            a(f"v_lshlrev_b32 {v(dst+2*i)}, 16, {v(src)}")
            a(f"v_and_b32 {v(dst+2*i+1)}, 0xffff0000, {v(src)}")

    def load_p():
        for k in range(3):
            a(f"s_add_u32 s{s_t}, s{s_p}, {k*2621440}")
            a(f"buffer_load_dwordx4 {v(PA[k],4)}, {v(pa)}, {s(R_WS,4)}, s{s_t} offen {SGL}")
            a(f"buffer_load_dword {v(PB[k])}, {v(pb)}, {s(R_WS,4)}, s{s_t} offen {SGL}")

    def look():
        a(f"buffer_load_dwordx2 {v(pfl,2)}, {v(pfl+2)}, {s(R_WS,4)}, s{s_pf} offen {SGP}")

    def try_p(last=False):
        l_d, l_no, l_again = a.newlabel("L_tp"), a.newlabel("L_tn"), a.newlabel("L_ta")
        a(f"s_cmp_lg_u32 s{s_have}, 0")
        a(f"s_cbranch_scc1 {l_d}")
        if last:
            a(f"s_mov_b32 s{s_t+1}, 0x40000")
            a.label(l_again)
        a("s_waitcnt vmcnt(0)")
        a(f"v_cmp_ne_u64 vcc, s[{S_E}:{S_E+1}], {v(pfl,2)}")
        a(f"s_cbranch_vccz {l_no}")
        look()
        if last:
            a(f"s_sub_u32 s{s_t+1}, s{s_t+1}, 1")
            a(f"s_cbranch_scc0 {l_again}")
        else:
            a(f"s_branch {l_d}")
        a.label(l_no)
        load_p()
        a(f"s_mov_b32 s{s_have}, 1")
        a.label(l_d)

    stamp(a, 2, 8)
    a("s_waitcnt vmcnt(0)")
    stamp(a, 3, 8)
    l_nf = a.newlabel("L_nf")
    a(f"s_cmp_eq_u32 s{S_PJ}, 0")
    a(f"s_cbranch_scc1 {l_nf}")
    push_flag(a, S_FLAG, 8, 8, t0, SCG)
    a.label(l_nf)
    unpack(o, PA[3], PB[3])
    unpack(xx, PA[4], PB[4])
    nsn = vp.get(8, 4); one2 = vp.get(2, 2)
    a("s_waitcnt lgkmcnt(0)")
    for t in range(2):
        for r in range(4):
            a(f"v_xor_b32 {v(nsn+4*t+r)}, 0x80000000, {v(TW[2*t+1]+r)}")
    a(f"v_mov_b32 {v(one2)}, 1.0"); a(f"v_mov_b32 {v(one2+1)}, 1.0")
    l_nv = a.newlabel("L_nv")
    a(f"s_cmp_lt_u32 s{S_W}, 4")
    a(f"s_cbranch_scc1 {l_nv}")
    a(f"s_lshl_b32 s{s_t+2}, s{s_n}, 9")
    a(f"s_add_u32 s{s_t+2}, s{s_t+2}, {FL_V}")
    poll(a, f"s{s_t+2}", 64, s_t, depth=2)
    stamp3(a, 7)
    stamp(a, 8, 7)
    a(f"s_sub_u32 s{s_i}, s{S_W}, 4")
    a(f"s_mul_i32 s{s_i}, s{s_i}, 11264")
    a(f"s_mul_i32 s{s_b}, s{s_n}, 45056")
    a(f"s_add_u32 s{s_b}, s{s_b}, s{s_i}")
    for i in range(3):
        a(f"s_add_u32 m0, s{s_i}, {L3_VB + i*4096}")
        a(f"s_add_u32 s{s_t}, s{s_b}, {WS_VP + i*4096}")
        for k in range(4 if i < 2 else 3):
            a(f"buffer_load_dwordx4 {v(l16)}, {s(R_WS,4)}, s{s_t} offen offset:{k*1024} {SCL} lds")
    a("s_waitcnt vmcnt(0)")
    a.label(l_nv)
    a("s_barrier")
    stamp3(a, 6)
    stamp(a, 4, 8)
    look()
    vq = Pool("v", 8, 52)
    vf = [[vq.get(4, 4) for ks in range(2)] for k in range(3)]
    dd = [vq.get(4, 4) for k in range(4)]
    tmp = vq.get(4, 4)
    for k in range(3):
        for ks in range(2):
            for h in range(2):
                a(f"ds_read_b64_tr_b16 {v(vf[k][ks]+2*h,2)}, {v(ra[k])} offset:{(32*ks+16*h)*352}")
    for k in range(3):
        a(f"s_waitcnt lgkmcnt({8-4*k})")
        mfma(a, dd[k], gf, vf[k][0], "0")
        mfma(a, dd[k], gf + 4, vf[k][1])
    for k in range(3):
        a(f"v_cvt_pk_bf16_f32 {v(dd[k])}, {v(dd[k])}, {v(dd[k]+1)}")
        a(f"v_cvt_pk_bf16_f32 {v(dd[k]+1)}, {v(dd[k]+2)}, {v(dd[k]+3)}")
        a(f"ds_write_b32 {v(ua[k])}, {v(dd[k])}")
        a(f"ds_write_b32 {v(ua[k])}, {v(dd[k]+1)} offset:{UP}")
    a("s_waitcnt lgkmcnt(0)")
    a("s_barrier")
    stamp(a, 5, 8)
    uf = vf[0]
    a(f"ds_read2_b32 {v(uf[0],2)}, {v(ub0)} offset0:0 offset1:20")
    a(f"ds_read2_b32 {v(uf[0]+2,2)}, {v(ub0)} offset0:40 offset1:60")
    a(f"ds_read2_b32 {v(uf[1],2)}, {v(ub1)} offset0:60 offset1:40")
    a(f"ds_read2_b32 {v(uf[1]+2,2)}, {v(ub1)} offset0:20 offset1:0")
    a("s_waitcnt lgkmcnt(2)")
    for t in range(2):
        for op in range(2):
            mfma(a, dd[2*t+op], uf[0], G32[4*t+2*op], "0")
    a("s_waitcnt lgkmcnt(0)")
    for t in range(2):
        for op in range(2):
            mfma(a, dd[2*t+op], uf[1], G32[4*t+2*op+1])
    try_p()
    tf = vf[1]
    for t in range(2):
        twiddle(a, dd[2*t], dd[2*t+1], TW[2*t], TW[2*t+1], tmp, nsn + 4*t)
        for pl in range(2):
            for h in range(2):
                a(f"v_cvt_pk_bf16_f32 {v(tf[t]+2*pl+h)}, {v(dd[2*t+pl]+2*h)}, {v(dd[2*t+pl]+2*h+1)}")
        for tp in range(2):
            mfma(a, dd[2*t+tp], tf[t], G20[tp], "0")
    for t in range(2):
        for tp in range(2):
            r = dd[2*t+tp]
            a(f"v_cvt_pk_bf16_f32 {v(r)}, {v(r)}, {v(r+1)}")
            a(f"v_cvt_pk_bf16_f32 {v(r+1)}, {v(r+2)}, {v(r+3)}")
            a(f"ds_write_b64 {v(swr)}, {v(r,2)} offset:{tp*1024+t*32}")
    stamp(a, 6, 8)
    try_p(True)
    a("s_waitcnt lgkmcnt(0)")
    a(f"ds_read_b128 {v(PA[3],4)}, {v(srd0)}")
    a(f"ds_read_b32 {v(PB[3])}, {v(srd1)} offset:1024")
    stamp3(a, 8)
    stamp(a, 7, 8)
    for k in range(3):
        a(f"s_waitcnt vmcnt({4-2*k})")
        unpack(w_, PA[k], PB[k])
        for i in range(5):
            a(f"v_pk_add_f32 {v(o+2*i,2)}, {v(o+2*i,2)}, {v(w_+2*i,2)}")
    for i in range(10):
        a(f"v_mul_f32 {v(w_+i)}, {hex(f2u(-np.log2(np.e)))}, {v(o+i)}")
    for i in range(10):
        a(f"v_exp_f32 {v(w_+i)}, {v(w_+i)}")
    a("s_waitcnt lgkmcnt(0)")
    unpack(sf, PA[3], PB[3])
    for i in range(5):
        a(f"v_pk_add_f32 {v(w_+2*i,2)}, {v(w_+2*i,2)}, {v(one2,2)}")
    for i in range(5):
        a(f"v_pk_mul_f32 {v(o+2*i,2)}, {v(o+2*i,2)}, {v(sf+2*i,2)}")
    for i in range(10):
        a(f"v_rcp_f32 {v(w_+i)}, {v(w_+i)}")
    for i in range(5):
        a(f"v_pk_fma_f32 {v(o+2*i,2)}, {v(o+2*i,2)}, {v(w_+2*i,2)}, {v(xx+2*i,2)}")
    for i in range(5):
        dst = PA[1] + i if i < 4 else PB[1]
        a(f"v_cvt_pk_bf16_f32 {v(dst)}, {v(o+2*i)}, {v(o+2*i+1)}")
    stamp(a, 8, 8)
    a(f"buffer_store_dwordx4 {v(PA[1],4)}, {v(l16)}, {s(R_C,4)}, s{s_row} offen")
    a(f"buffer_store_dword {v(PB[1])}, {v(l4)}, {s(R_C,4)}, s{s_row} offen offset:1024")


def build():
    a = Asm()
    a("s_cmpk_ge_u32 s2, 0x100")
    a("s_cbranch_scc1 L_exit")
    a("s_load_dwordx16 s[4:19], s[0:1], 0")
    a("s_load_dwordx4 s[20:23], s[0:1], 64")
    a("s_load_dwordx2 s[24:25], s[0:1], 80")
    stamp_begin(a)
    a(f"s_getpc_b64 s[{R_TAB}:{R_TAB+1}]")
    a(f"s_add_u32 s{R_TAB}, s{R_TAB}, ctab@rel32@lo+4")
    a(f"s_addc_u32 s{R_TAB+1}, s{R_TAB+1}, ctab@rel32@hi+12")
    a(f"s_mov_b32 s{R_TAB+2}, {TAB_END}")
    a(f"s_mov_b32 s{R_TAB+3}, 0x20000")
    a("v_lshrrev_b32 v1, 6, v0")
    a(f"v_readfirstlane_b32 s{S_W}, v1")
    a("v_and_b32 v0, 63, v0")
    a("v_and_b32 v1, 15, v0")
    a("v_lshrrev_b32 v2, 4, v0")
    a("v_lshlrev_b32 v3, 4, v0")
    t = S_T
    a(f"s_and_b32 s{t}, s2, 7")
    a(f"s_lshr_b32 s{t+1}, s2, 3")
    a(f"s_lshl_b32 s{S_N3}, s{t}, 3")
    a(f"s_add_u32 s{S_IDX}, s{S_N3}, s{t+1}")
    a(f"s_lshr_b32 s{t+2}, s{t+1}, 2")
    a(f"s_add_u32 s{S_N3}, s{S_N3}, s{t+2}")
    a(f"s_and_b32 s{S_Q3}, s{t+1}, 3")
    a(f"s_sub_u32 s{S_PJ}, s{t+2}, 2")
    if "oldmap" in OPT:
        a(f"s_mul_i32 s{t+3}, s{t}, 6")
        a(f"s_add_u32 s{t+3}, s{t+3}, s{S_PJ}")
        a(f"s_and_b32 s{S_RB}, s{t+3}, 15")
        a(f"s_lshr_b32 s{S_KT}, s{t+3}, 4")
    else:
        a(f"s_lshl_b32 s{S_RB}, s{t}, 1")
        a(f"s_sub_u32 s{S_KT}, s{S_PJ}, 3")
        a(f"s_cselect_b32 s{S_KT}, s{S_PJ}, s{S_KT}")
        a(f"s_cselect_b32 s{t+3}, 0, 1")
        a(f"s_add_u32 s{S_RB}, s{S_RB}, s{t+3}")
    a(f"s_mov_b32 s{S_SUB}, s{S_Q3}")
    a(f"s_mul_i32 s{S_FLAG}, s{S_RB}, 3")
    a(f"s_add_u32 s{S_FLAG}, s{S_FLAG}, s{S_KT}")
    a(f"s_lshl_b32 s{S_FLAG}, s{S_FLAG}, 2")
    a(f"s_add_u32 s{S_FLAG}, s{S_FLAG}, s{S_SUB}")
    a(f"s_add_u32 s{t+3}, s{S_IDX}, 192")
    a(f"s_cmp_lt_u32 s{t+1}, 8")
    a(f"s_cselect_b32 s{S_FLAG}, s{t+3}, s{S_FLAG}")
    a("s_waitcnt lgkmcnt(0)")
    a(f"s_add_u32 s{t+4}, s{P_WS}, {WS_EP + ((192<<20) if "wsend" in OPT else 0)}")
    a(f"s_addc_u32 s{t+5}, s{P_WS+1}, 0")
    a(f"s_load_dwordx2 s[{S_E}:{S_E+1}], s[{t+4}:{t+5}], 0")
    if "wsend" in OPT:
        a(f"s_add_u32 s{P_WS}, s{P_WS}, {192<<20}")
        a(f"s_addc_u32 s{P_WS+1}, s{P_WS+1}, 0")
    srd(a, R_WS, P_WS, WS_END if "p2x" not in OPT else 64 << 20)
    a(f"s_cmp_ge_u32 s{t+1}, 8")
    a("s_cbranch_scc1 L_gemm")
    for _ in range(int(os.environ.get("DELAY_FFT", "0"))):
        a("s_sleep 64")
    fft_head(a)
    a("s_branch L_fft")
    a.label("L_gemm")
    for _ in range(int(os.environ.get("DELAY_GEMM", "0"))):
        a("s_sleep 64")
    a(f"s_cmp_lt_u32 s{S_W}, 4")
    a("s_cbranch_scc1 L_comp")
    gemm_loader(a, "L_f3l")
    a.label("L_comp")
    gemm_compute(a, "L_f3")
    a.label("L_fft")
    fft_role(a, "L_f3", "L_f3l")
    f3(a, "L_f3", "L_f3l")
    if "wtest" in OPT or "rtest" in OPT:
        a(f"s_mov_b32 s{R_WS+2}, {128 << 20}")
        a("s_lshl_b32 s64, s2, 3")
        a(f"s_add_u32 s64, s64, s{S_W}")
        a("s_lshl_b32 s64, s64, 13")
        a(f"s_add_u32 s64, s64, {64 << 20}")
        for i in range(8):
            if i == 4: a("s_add_u32 s64, s64, 4096")
            if "wtest" in OPT:
                a(f"buffer_store_dwordx4 v[8:11], v3, {s(R_WS,4)}, s64 offen offset:{(i&3)*1024} sc1")
            else:
                a(f"buffer_load_dwordx4 v[8:11], v3, {s(R_WS,4)}, s64 offen offset:{(i&3)*1024}")
        a("s_waitcnt vmcnt(0)")
    for _ in range(int(os.environ.get("DELAY_END", "0"))):
        a("s_sleep 64")
    stamp_end(a)
    a.label("L_exit")
    a("s_endpgm")
    a.resolve()
    nv, ns = a.max_regs()
    print("instr", len(a.ins), "vgpr", nv, "sgpr", ns, file=sys.stderr)
    kn = NAME + "_kernel"
    out = "; generated by gen/gen2.py (hand-written generator)\n"
    out += "; @launch grid=(256,1,1) block=(512,1,1) lds=163840\n"
    out += '.amdgcn_target "amdgcn-amd-amdhsa--gfx950"\n.text\n'
    out += f".globl {kn}\n.p2align 8\n.type {kn},@function\n{kn}:\n" + a.text()
    out += f'''.section .rodata,"a"
.p2align 6
.amdhsa_kernel {kn}
  .amdhsa_next_free_vgpr 256
  .amdhsa_next_free_sgpr {ns}
  .amdhsa_accum_offset 256
  .amdhsa_group_segment_fixed_size 0
  .amdhsa_kernarg_size 88
  .amdhsa_user_sgpr_count 2
  .amdhsa_user_sgpr_kernarg_segment_ptr 1
  .amdhsa_system_sgpr_workgroup_id_x 1
  .amdhsa_float_denorm_mode_32 3
.end_amdhsa_kernel
'''
    out += tables.as_asm("ctab", tables.tab_f1() + tables.tab_f2()[:16384] + tables.tab_f3())
    return out


if __name__ == "__main__":
    path = sys.argv[1] if len(sys.argv) > 1 else f"cdna_kernels/{NAME}.s"
    open(path, "w").write(build())
```

```python
import numpy as np
from model import bf16

def bf16_bits(x):
    return (bf16(np.asarray(x, dtype=np.float32)).view(np.uint32) >> 16).astype(np.uint16)

L = np.arange(64); I16 = L & 15; G = L >> 4
E = np.arange(8)

def frag(fn):
    vals = np.array([[fn(int(l & 15), int(l >> 4), e) for e in range(8)] for l in range(64)], dtype=np.float64)
    return bf16_bits(vals).tobytes()

def f32x4(fn):
    vals = np.array([[fn(int(l & 15), int(l >> 4), r) for r in range(4)] for l in range(64)], dtype=np.float32)
    return vals.tobytes()

def trnat(g, e):
    return 4 * g + e if e < 4 else 16 + 4 * g + (e - 4)

c_ = lambda num, den: np.cos(2 * np.pi * (num % den) / den)
s_ = lambda num, den: np.sin(2 * np.pi * (num % den) / den)

def tab_f1():
    out = b""
    def a_of(g, e):
        if e < 4: return 4 * g + e
        return 16 + (e - 4) if g == 0 else None
    out += frag(lambda i, g, e: 0.0 if a_of(g, e) is None else c_(a_of(g, e) * i, 20))
    out += frag(lambda i, g, e: 0.0 if a_of(g, e) is None else -s_(a_of(g, e) * i, 20))
    for u in range(2):
        for op in range(2):
            for ip in range(2):
                def fn(i, g, e):
                    c2 = 16 * u + i; b = trnat(g, e)
                    c, s = c_(b * c2, 32), s_(b * c2, 32)
                    val = [[c, s], [-s, c]][op][ip]
                    if u == 1 and op == 1: val = -val
                    return val
                out += frag(fn)
    for t in range(2):
        out += f32x4(lambda i, g, r: c_((16 * t + 4 * g + r) * i, 640))
        out += f32x4(lambda i, g, r: s_((16 * t + 4 * g + r) * i, 640))
    assert len(out) == 14 * 1024
    return out + b"\0" * 2048

def tab_f2():
    out = b""
    for f in (c_, s_, lambda a, b: -s_(a, b)):
        for t in range(4):
            for ks in range(2):
                out += frag(lambda i, g, e: f((16 * t + i) * (32 * ks + trnat(g, e)), 64))
    assert len(out) == 24 * 1024
    return out

def tab_f3(pitch=352):
    out = b""
    for t in range(2):
        for op in range(2):
            for u in range(2):
                def fn(i, g, e):
                    b = 16 * t + i; c2 = 16 * u + 4 * g + (e >> 1); ip = e & 1
                    c, s = c_(b * c2, 32), s_(b * c2, 32)
                    sg = 1.0 if u == 0 else -1.0
                    return [[c, -sg * s], [s, sg * c]][op][ip]
                out += frag(fn)
    for tp in range(2):
        def fn(i, g, e):
            a = 16 * tp + i
            if a >= 20: return 0.0
            c1 = 4 * g + (e & 3)
            return c_(a * c1, 20) if e < 4 else -s_(a * c1, 20)
        out += frag(fn)
    wgt = np.array([1] + [2] * 9 + [1] + [0] * 5) / (2048.0 * 640.0)
    for t in range(2):
        out += f32x4(lambda i, g, r: c_((16 * t + i) * (4 * g + r), 640) * wgt[4 * g + r])
        out += f32x4(lambda i, g, r: -s_((16 * t + i) * (4 * g + r), 640) * wgt[4 * g + r])
    assert len(out) == 14 * 1024
    UP = 1376
    lane = []
    for l in range(64):
        i, g = l & 15, l >> 4
        lane.append([(l // 10) * 2048 * 160 + (l % 10) * 16,
                     ((256 + l) // 40) * 2048 * 160 + ((256 + l) % 40) * 4,
                     (l >> 2) * pitch + (l & 3) * 8 + (((l >> 3) & 3) * 32 if pitch == 384 else 0),
                     2 * UP * g + 4 * i,
                     2 * UP * g + 4 * (0 if i == 7 else 1 + i),
                     (80 * g + i) * 4,
                     64 * i + 8 * g,
                     min(l, 23) * 8])
    lane = np.array(lane, dtype=np.uint32)
    return out + lane[:, :4].tobytes() + lane[:, 4:].tobytes()

def as_asm(label, data):
    w = np.frombuffer(data, dtype=np.uint32)
    lines = [f".p2align 8", f".type {label},@object", f"{label}:"]
    for i in range(0, len(w), 8):
        lines.append(".long " + ",".join(hex(int(x)) for x in w[i:i + 8]))
    lines.append(f".size {label}, {len(data)}")
    return "\n".join(lines) + "\n"
```

```python
import sys, struct, os
import numpy as np
from asmlib import Asm, Pool, v, s
import tables

NAME = "recurrent_scan__spectral_gfnet__mixer_channel_mlp__prompt"
STAMP = int(os.environ.get("STAMP", "0"))
OPT = set(os.environ.get("OPT", "").split(","))

WS_H = 0
WS_ZP = WS_H + 2048 * 1536 * 2
WS_VP = WS_ZP + 64 * 49152
WS_P = WS_VP + 64 * 49152
WS_ST = WS_P + 3 * 2621440
WS_EP = WS_ST + 2048 * 16
FL_H = WS_EP + 128
FL_X = FL_H + 192 * 128
FL_Z = FL_X + 2048
FL_V = FL_Z + 64 * 512
FL_P = FL_V + 64 * 512
WS_END = FL_P + 256 * 256
WS_DBG = 24 << 20
TAB_F1, TAB_F2, TAB_F3, TAB_END = 0, 16384, 32768, 49152
SC = "sc1"
POISON = 0x7f817f81
OPTIM = "optim" in OPT

def f2u(x):
    return struct.unpack("<I", struct.pack("<f", x))[0]

P_X, P_WR, P_WI, P_W1, P_B1, P_W2, P_B2, P_OUT, P_DBG, P_WS = 4, 6, 8, 12, 14, 16, 18, 20, 22, 24
S_E = 10
S_W, S_PJ = 26, 27
R_WS, R_TAB, R_A, R_B, R_C, R_D = 28, 32, 36, 40, 44, 48
S_ROW, S_PO, S_PF, S_FAST = 52, 53, 54, 55
S_RB, S_SUB, S_KT, S_IDX, S_N3, S_Q3, S_FLAG, S_F2 = 56, 57, 58, 59, 60, 61, 62, 63
S_T = 64
S_RETRY = 23
S_HV = 22
NSTAMP, ST0 = 10, 80
STAG = int(os.environ.get("STAG", "5"))
I16, G, L16, T0, T1, T2, T3 = 1, 2, 3, 4, 5, 6, 7
V_POLL = 248
F_XA, F_BA, F_GF, F_XB, F_BB, F_L4 = 228, 232, 236, 244, 245, 246
V_TOP = 228
LX, LW, WSL = 0, 65536, 20480
L_STAT = 147456
L_CS = L_STAT + 2048
L_MISC = L_CS + 512
L3_VB0, L3_VB1, L3_TAB, L3_UX = 32768, 106496, 147456, 65536
UP = 1376
L3_SX = L3_UX + 8 * UP
L3_GF = 57344
L1_TAB, L1_XN, L1_ZX, L1_ST = 0, 14336, 55296, 0
L2_ZB, L2_WR, L2_WI, L2_TAB = 0, 98304, 122880, 147456


def stamp(a, i, mode):
    if STAMP and (STAMP == mode or mode == 0):
        a(f"s_memtime s[{ST0+2*i}:{ST0+2*i+1}]")


def stamp_begin(a):
    if STAMP:
        for i in range(ST0 + 2, ST0 + 2 * NSTAMP):
            a(f"s_mov_b32 s{i}, 0")
        a("s_memrealtime s[100:101]")
        a("s_mov_b32 s3, 0")
        stamp(a, 0, 0)


def stamp_end(a):
    if STAMP:
        a("s_waitcnt vmcnt(0)")
        stamp(a, NSTAMP - 1, 0)
        a("s_memrealtime s[64:65]")
        a("s_waitcnt lgkmcnt(0)")
        for i in range(NSTAMP):
            a(f"v_mov_b32 v{8+i}, s{ST0+2*i}")
        a(f"v_mov_b32 v{8+NSTAMP}, s100")
        a(f"v_mov_b32 v{9+NSTAMP}, s64")
        a(f"v_mov_b32 v{10+NSTAMP}, s3")
        a("s_lshl_b32 s66, s2, 3")
        a(f"s_add_u32 s66, s66, s{S_W}")
        a("s_lshl_b32 s66, s66, 6")
        a(f"s_add_u32 s66, s66, {WS_DBG}")
        a(f"s_mov_b32 s{R_WS+2}, 0x2000000")
        a("v_mov_b32 v1, 0")
        a("s_mov_b64 exec, 1")
        for i in range(4):
            a(f"buffer_store_dwordx4 v[{8+4*i}:{11+4*i}], v1, {s(R_WS,4)}, s66 offen offset:{16*i}")


def srd(a, dst, ptr, size):
    a(f"s_mov_b32 s{dst}, s{ptr}")
    a(f"s_mov_b32 s{dst+1}, s{ptr+1}")
    a(f"s_mov_b32 s{dst+2}, {size}")
    a(f"s_mov_b32 s{dst+3}, 0x20000")


def dma(a, voff, srd_, soff, extra="", off=0):
    o = f"offset:{off} " if off else ""
    a(f"buffer_load_dwordx4 {v(voff)}, {s(srd_,4)}, {soff} offen {o}{extra + ' ' if extra else ''}lds")


def bf16r(a, dst, src):
    a(f"v_cvt_pk_bf16_f32 {v(dst)}, {v(src)}, {v(src)}")
    a(f"v_lshlrev_b32 {v(dst)}, 16, {v(dst)}")


def mfma_s(d, A, B, c=None):
    return f"v_mfma_f32_16x16x32_bf16 {v(d,4)}, {v(A,4)}, {v(B,4)}, {v(d,4) if c is None else c}"


def mfma(a, d, A, B, c=None):
    a(mfma_s(d, A, B, c))


def cvt_s(d, x, y):
    return f"v_cvt_pk_bf16_f32 {v(d)}, {v(x)}, {v(y)}"


def unpack_l(dst, src):
    return [f"v_lshlrev_b32 {v(dst)}, 16, {v(src)}", f"v_and_b32 {v(dst+1)}, 0xffff0000, {v(src)}"]


def divmod_const(a, q, r, x, c):
    m = (1 << 18) // c + 1
    for t in range(2048):
        assert (t * m) >> 18 == t // c
    a(f"v_mul_u32_u24 {v(q)}, {m}, {v(x)}")
    a(f"v_lshrrev_b32 {v(q)}, 18, {v(q)}")
    a(f"v_mul_u32_u24 {v(r)}, {c}, {v(q)}")
    a(f"v_sub_u32 {v(r)}, {v(x)}, {v(r)}")


def emit(a, lst):
    for x in lst:
        a(x)


def interleave(a, main, fill, per=1):
    fi = 0
    for m in main:
        a(m)
        for _ in range(per):
            if fi < len(fill):
                a(fill[fi]); fi += 1
    while fi < len(fill):
        a(fill[fi]); fi += 1


def weave(a, A, B):
    na, nb = len(A), len(B)
    ia = ib = 0
    while ia < na or ib < nb:
        if ib >= nb or (ia < na and ia * nb <= ib * na):
            a(A[ia]); ia += 1
        else:
            a(B[ib]); ib += 1


class VM:
    def __init__(self, a):
        self.a, self.q = a, []
    def op(self, tag, n=1):
        self.q += [tag] * n
    def wait(self, *tags):
        last = max([i for i, t in enumerate(self.q) if t in tags], default=-1)
        if last < 0:
            return
        n = len(self.q) - 1 - last
        assert n < 64
        self.a(f"s_waitcnt vmcnt({n})")
        self.q = self.q[last + 1:]


def load_epoch(a, s_t):
    a(f"s_add_u32 s{s_t}, s{P_WS}, {WS_EP}")
    a(f"s_addc_u32 s{s_t+1}, s{P_WS+1}, 0")
    a(f"s_load_dwordx2 s[{S_E}:{S_E+1}], s[{s_t}:{s_t+1}], 0")


def nonce(a):
    a(f"s_mul_i32 s{S_E}, s{S_E}, 1664525")
    a(f"s_add_u32 s{S_E}, s{S_E}, 1013904223")
    a(f"s_mul_i32 s{S_E+1}, s{S_E+1}, 22695477")
    a(f"s_add_u32 s{S_E+1}, s{S_E+1}, 1")


def push_tag(a, s_base, nrec, shift, sc=SC, hi=None):
    a(f"v_mov_b32 {v(T0)}, s{S_E}")
    a(f"v_mov_b32 {v(T1)}, s{S_E+1 if hi is None else hi}")
    a(f"v_lshlrev_b32 {v(T2)}, {shift}, v0")
    if nrec < 64:
        a(f"s_mov_b64 exec, {(1 << nrec) - 1}")
    if sc == "fast":
        store2(a, lambda f: f"buffer_store_dwordx2 {v(T0,2)}, {v(T2)}, {s(R_WS,4)}, s{s_base} offen {f}")
    else:
        a(f"buffer_store_dwordx2 {v(T0,2)}, {v(T2)}, {s(R_WS,4)}, s{s_base} offen {sc}")
    if nrec < 64:
        a("s_mov_b64 exec, -1")


def store2(a, fn):
    l1, l2 = a.newlabel("L_sf"), a.newlabel("L_se")
    a(f"s_cmp_lg_u32 s{S_FAST}, 0")
    a(f"s_cbranch_scc1 {l1}")
    a(fn(SC))
    a(f"s_branch {l2}")
    a.label(l1)
    a(fn(""))
    a.label(l2)


def xcc_tag(a, s_d):
    a(f"s_getreg_b32 s{s_d}, hwreg(HW_REG_XCC_ID, 0, 4)")
    a(f"s_xor_b32 s{s_d}, s{s_d}, s{S_E+1}")


def publish_xcc(a, s_t):
    xcc_tag(a, s_t + 1)
    a(f"s_and_b32 s{s_t}, s2, 7")
    a(f"s_lshl_b32 s{s_t}, s{s_t}, 8")
    a(f"s_and_b32 s{S_F2}, s2, 0xf8")
    a(f"s_add_u32 s{s_t}, s{s_t}, s{S_F2}")
    a(f"s_add_u32 s{s_t}, s{s_t}, {FL_X}")
    push_tag(a, s_t, 1, 3, hi=s_t + 1)


def poll(a, base, ntag, s_t, sleep=None, depth=3, lo_only=False):
    lp, done = a.newlabel("L_poll"), a.newlabel("L_pd")
    ad = V_POLL + 6
    a(f"v_min_u32 {v(ad)}, {ntag-1}, v0")
    a(f"v_lshlrev_b32 {v(ad)}, 3, {v(ad)}")
    a(f"s_mov_b32 s{s_t+1}, {base}")
    ld = lambda i: a(f"buffer_load_dwordx2 {v(V_POLL+2*i,2)}, {v(ad)}, {s(R_WS,4)}, s{s_t+1} offen {SC}")
    a(f"s_mov_b32 s{s_t}, 0x20000")
    if sleep:
        depth = 1
    for i in range(depth - 1):
        ld(i)
        a(f"s_sleep {STAG}")
    a.label(lp)
    for i in range(depth):
        ld((i + depth - 1) % depth)
        a(f"s_waitcnt vmcnt({depth-1})")
        if lo_only:
            a(f"v_xor_b32 {v(V_POLL+2*i+1)}, s{S_E+1}, {v(V_POLL+2*i+1)}")
            a(f"v_lshrrev_b32 {v(V_POLL+2*i+1)}, 4, {v(V_POLL+2*i+1)}")
            a(f"v_xor_b32 {v(V_POLL+2*i)}, s{S_E}, {v(V_POLL+2*i)}")
            a(f"v_or_b32 {v(V_POLL+2*i)}, {v(V_POLL+2*i)}, {v(V_POLL+2*i+1)}")
            a(f"v_cmp_ne_u32 vcc, 0, {v(V_POLL+2*i)}")
        else:
            a(f"v_cmp_ne_u64 vcc, s[{S_E}:{S_E+1}], {v(V_POLL+2*i,2)}")
        a(f"s_cbranch_vccz {done}")
        if sleep:
            a(f"s_sleep {sleep}")
    a(f"s_sub_u32 s{s_t}, s{s_t}, 1")
    a(f"s_cbranch_scc0 {lp}")
    a.label(done)


def advance_epoch(a, s_t):
    for i in range(4):
        poll(a, FL_X + 512 * i, 64, s_t, sleep=8, lo_only=True)
    a(f"s_mov_b32 s{S_F2}, {WS_EP}")
    push_tag(a, S_F2, 1, 3)


def wave_flag(a, w, base):
    l = a.newlabel("L_w0")
    a(f"s_cmp_lg_u32 s{S_W}, {w}")
    a(f"s_cbranch_scc1 {l}")
    a(f"s_lshl_b32 s{S_F2}, s{S_IDX}, 3")
    a(f"s_add_u32 s{S_F2}, s{S_F2}, {base}")
    push_tag(a, S_F2, 64, 9)
    a.label(l)


def tab3_dma(a, s_t):
    a(f"s_and_b32 s{s_t}, s{S_W}, 3")
    a(f"s_lshl_b32 s{s_t}, s{s_t}, 12")
    a(f"s_add_u32 m0, s{s_t}, {L3_TAB}")
    a(f"s_add_u32 s{s_t}, s{s_t}, {TAB_F3}")
    for k in range(4):
        dma(a, L16, R_TAB, f"s{s_t}", off=k * 1024)


def vb_dma(a, s_t):
    a(f"s_and_b32 s{s_t}, s{S_W}, 3")
    a(f"s_mul_i32 s{s_t+1}, s{S_N3}, 49152")
    a(f"s_mul_i32 s{s_t}, s{s_t}, 12288")
    a(f"s_add_u32 s{s_t+1}, s{s_t+1}, s{s_t}")
    a(f"s_cmp_ge_u32 s{S_W}, 6")
    a(f"s_cselect_b32 s{s_t+2}, {L3_VB1 - 24576 - L3_VB0}, 0")
    a(f"s_add_u32 s{s_t}, s{s_t}, s{s_t+2}")
    for i in range(3):
        a(f"s_add_u32 m0, s{s_t}, {L3_VB0 + i*4096}")
        a(f"s_add_u32 s{s_t+2}, s{s_t+1}, {WS_VP + i*4096}")
        for k in range(4):
            dma(a, L16, R_WS, f"s{s_t+2}", SC, off=k * 1024)


def xb2_loads(a, s_t):
    srd(a, R_A, P_X, 2621440); srd(a, R_B, P_B2, 1280)
    a(f"s_lshl_b32 s{s_t}, s{S_Q3}, 3")
    a(f"s_add_u32 s{s_t}, s{s_t}, s{S_W}")
    a(f"s_lshl_b32 s{S_ROW}, s{s_t}, 6")
    a(f"s_add_u32 s{S_ROW}, s{S_ROW}, s{S_N3}")
    a(f"s_mul_i32 s{S_ROW}, s{S_ROW}, 1280")
    a(f"v_lshlrev_b32 {v(F_L4)}, 2, v0")
    a(f"buffer_load_dwordx4 {v(F_BA,4)}, {v(L16)}, {s(R_B,4)}, 0 offen")
    a(f"buffer_load_dword {v(F_BB)}, {v(F_L4)}, {s(R_B,4)}, 0 offen offset:1024")
    a(f"buffer_load_dwordx4 {v(F_XA,4)}, {v(L16)}, {s(R_A,4)}, s{S_ROW} offen")
    a(f"buffer_load_dword {v(F_XB)}, {v(F_L4)}, {s(R_A,4)}, s{S_ROW} offen offset:1024")


def gf_make(a, s_t):
    t0, t1 = T0, T1
    sv, ph = F_BA, F_BA + 1
    cs_ = [F_XA + i for i in range(4)]
    a(f"v_lshrrev_b32 {v(t0)}, 1, {v(I16)}")
    a(f"s_lshl_b32 s{s_t}, s{S_Q3}, 9")
    a(f"s_add_u32 s{s_t}, s{s_t}, s{S_N3}")
    a(f"v_lshlrev_b32 {v(sv)}, 6, {v(t0)}")
    a(f"v_add_u32 {v(sv)}, s{s_t}, {v(sv)}")
    a(f"v_lshlrev_b32 {v(t0)}, 2, {v(G)}")
    a(f"v_mul_u32_u24 {v(ph)}, {v(sv)}, {v(t0)}")
    a(f"v_and_b32 {v(t0)}, 1, v0")
    a(f"v_mul_u32_u24 {v(t0)}, 1536, {v(t0)}")
    a(f"v_add_u32 {v(ph)}, {v(ph)}, {v(t0)}")
    for e2 in range(4):
        for hh in range(2):
            e = 2 * e2 + hh
            ko = e if e < 4 else 16 + e - 4
            tt = t1 + hh
            a(f"v_mad_u32_u24 {v(tt)}, {v(sv)}, {ko}, {v(ph)}")
            a(f"v_and_b32 {v(tt)}, 2047, {v(tt)}")
            a(f"v_cvt_f32_u32 {v(tt)}, {v(tt)}")
            a(f"v_mul_f32 {v(tt)}, {hex(f2u(1/2048))}, {v(tt)}")
        for hh in range(2):
            a(f"v_cos_f32 {v(cs_[hh])}, {v(t1+hh)}")
        for hh in range(2):
            a(f"v_sin_f32 {v(cs_[2+hh])}, {v(t1+hh)}")
        a(f"v_cvt_pk_bf16_f32 {v(F_GF+e2)}, {v(cs_[0])}, {v(cs_[1])}")
        a(f"v_cvt_pk_bf16_f32 {v(F_GF+4+e2)}, -{v(cs_[2])}, -{v(cs_[3])}")


def gf_put(a):
    for i in range(2):
        a(f"ds_write_b128 {v(L16)}, {v(F_GF+4*i,4)} offset:{L3_GF + 1024*i}")


def gemm_compute(a, l_f3):
    vp = Pool("v", 8, V_TOP)
    t0, t1, r_, cq = T0, T1, T2, T3
    s_wm, s_wn, s_dx, s_dw, s_cnt, s_end, s_cb, s_h0, s_h1, s_p0, s_t = [S_T + i for i in range(11)]
    a(f"s_and_b32 s{s_wm}, s{S_W}, 1")
    a(f"s_lshr_b32 s{s_wn}, s{S_W}, 1")
    a(f"s_lshl_b32 s{s_cb}, s{S_KT}, 2")
    a(f"s_add_u32 s{s_cb}, s{s_cb}, s{S_SUB}")
    acc = [[vp.get(4, 4) for mm in range(4)] for tt in range(5)]
    xf = [[vp.get(4, 4) for mm in range(4)] for st in range(2)]
    wf = [[vp.get(4, 4) for tt in range(5)] for st in range(2)]
    cs = acc[4]
    ones = wf[0][4]
    b1r = [vp.get(2, 2) for tt in range(4)]
    kc = [vp.get(2, 2) for _ in range(3)]
    srd(a, R_C, P_B1, 3072)
    a(f"s_lshl_b32 s{s_t}, s{s_cb}, 8")
    a(f"s_lshl_b32 s{s_t+1}, s{s_wn}, 7")
    a(f"s_add_u32 s{s_t}, s{s_t}, s{s_t+1}")
    a(f"s_lshl_b32 s{s_t+1}, s{s_wm}, 6")
    a(f"v_lshlrev_b32 {v(t0)}, 3, {v(G)}")
    a(f"v_add_u32 {v(t0)}, s{s_t+1}, {v(t0)}")
    a(f"v_xor_b32 {v(t1)}, 64, {v(t0)}")
    for tt in range(4):
        a(f"buffer_load_dwordx2 {v(b1r[tt],2)}, {v(t0 if tt < 2 else t1)}, {s(R_C,4)}, s{s_t} offen offset:{32*(tt&1)}")
    a(f"s_getpc_b64 s[{R_D}:{R_D+1}]")
    a(f"s_add_u32 s{R_D}, s{R_D}, {NAME}_kernel@rel32@lo+4")
    a(f"s_addc_u32 s{R_D+1}, s{R_D+1}, {NAME}_kernel@rel32@hi+12")
    a(f"s_mov_b32 s{R_D+2}, L_exit-{NAME}_kernel")
    a(f"s_mov_b32 s{R_D+3}, 0x20000")
    a(f"s_and_b32 s{s_t}, s2, 0x38")
    a(f"s_lshr_b32 s{s_t}, s{s_t}, 1")
    a(f"s_add_u32 s{s_t}, s{s_t}, s{S_W}")
    a(f"s_lshl_b32 s{s_t}, s{s_t}, 10")
    a(f"v_lshlrev_b32 {v(t0)}, 7, v0")
    a("s_mov_b64 exec, 0xff")
    a(f"buffer_load_dword {v(V_POLL)}, {v(t0)}, {s(R_D,4)}, s{s_t} offen")
    a(f"s_and_b32 s{s_t}, s{s_t}, 0x3fff")
    a(f"s_add_u32 s{s_t}, s{s_t}, {TAB_F3}")
    a(f"buffer_load_dword {v(V_POLL)}, {v(t0)}, {s(R_TAB,4)}, s{s_t} offen")
    a("s_mov_b64 exec, -1")
    xa = [vp.get(), vp.get()]
    a(f"v_and_b32 {v(t0)}, 7, v0")
    a(f"v_xor_b32 {v(t0)}, {v(t0)}, {v(G)}")
    a(f"v_lshlrev_b32 {v(t0)}, 4, {v(t0)}")
    a(f"v_lshl_add_u32 {v(t0)}, {v(I16)}, 7, {v(t0)}")
    a(f"s_lshl_b32 s{s_t}, s{s_wm}, 13")
    a(f"v_add_u32 {v(xa[0])}, s{s_t}, {v(t0)}")
    a(f"v_xor_b32 {v(xa[1])}, 64, {v(xa[0])}")
    wa = [vp.get() for _ in range(4)]
    a(f"v_lshrrev_b32 {v(r_)}, 2, {v(I16)}")
    a(f"v_and_b32 {v(cq)}, 3, v0")
    a(f"v_lshl_add_u32 {v(t0)}, {v(G)}, 3, {v(r_)}")
    a(f"v_lshlrev_b32 {v(t0)}, 8, {v(t0)}")
    a(f"v_lshl_add_u32 {v(t0)}, {v(cq)}, 3, {v(t0)}")
    a(f"v_add_u32 {v(t0)}, {LW}, {v(t0)}")
    a(f"v_and_b32 {v(t1)}, 1, {v(G)}")
    a(f"v_lshl_or_b32 {v(t1)}, {v(t1)}, 2, {v(r_)}")
    a(f"s_lshl_b32 s{s_t}, s{s_wn}, 2")
    a(f"s_lshl_b32 s{s_t+1}, s{s_wm}, 1")
    a(f"s_or_b32 s{s_t}, s{s_t}, s{s_t+1}")
    a(f"v_xor_b32 {v(t1)}, s{s_t}, {v(t1)}")
    for tt in range(4):
        a(f"v_xor_b32 {v(wa[tt])}, {tt}, {v(t1)}")
        a(f"v_lshl_add_u32 {v(wa[tt])}, {v(wa[tt])}, 5, {v(t0)}")
    for r in range(4):
        a(f"v_mov_b32 {v(ones+r)}, 0x3f803f80")
    xb = vp.get(); wb = [vp.get(), vp.get()]
    a(f"s_lshl_b32 s{s_t}, s{s_wm}, 12")
    a(f"s_add_u32 s{s_t}, s{s_t}, {LX + 2*16384}")
    a(f"v_add_u32 {v(xb)}, s{s_t}, {v(L16)}")
    a(f"v_lshrrev_b32 {v(r_)}, 2, v0")
    a(f"v_mul_u32_u24 {v(t0)}, 320, {v(r_)}")
    a(f"v_lshl_add_u32 {v(t0)}, {v(cq)}, 3, {v(t0)}")
    a(f"v_add_u32 {v(t0)}, {LW + 2*WSL}, {v(t0)}")
    a(f"v_and_b32 {v(t1)}, 1, {v(G)}")
    a(f"s_mul_i32 s{s_t}, s{s_wn}, 5")
    a(f"v_xor_b32 {v(wb[0])}, s{s_t}, {v(t1)}")
    a(f"v_lshl_add_u32 {v(wb[0])}, {v(wb[0])}, 5, {v(t0)}")
    a(f"s_add_u32 s{s_t}, s{s_t}, 1")
    a(f"v_xor_b32 {v(wb[1])}, s{s_t}, {v(t1)}")
    a(f"v_lshl_add_u32 {v(wb[1])}, {v(wb[1])}, 5, {v(t0)}")
    csw, csr, sta, hw, hw2, msc = [vp.get() for _ in range(6)]
    a(f"s_lshl_b32 s{s_t}, s{s_wn}, 8")
    a(f"s_lshl_b32 s{s_t+1}, s{s_wm}, 7")
    a(f"s_add_u32 s{s_t}, s{s_t}, s{s_t+1}")
    a(f"s_add_u32 s{s_t}, s{s_t}, {L_CS}")
    a(f"v_lshlrev_b32 {v(csw)}, 4, {v(G)}")
    a(f"v_add_u32 {v(csw)}, s{s_t}, {v(csw)}")
    a(f"v_xor_b32 {v(csr)}, 128, {v(csw)}")
    a(f"s_lshl_b32 s{s_t}, s{s_wm}, 10")
    a(f"s_add_u32 s{s_t}, s{s_t}, {L_STAT}")
    a(f"v_lshlrev_b32 {v(sta)}, 4, {v(I16)}")
    a(f"v_add_u32 {v(sta)}, s{s_t}, {v(sta)}")
    a(f"v_mov_b32 {v(msc)}, {L_MISC}")
    K0 = -2.0 * np.sqrt(2.0 / np.pi) * np.log2(np.e)
    for i in range(2):
        a(f"v_mov_b32 {v(kc[0]+i)}, {hex(f2u(K0))}")
        a(f"v_mov_b32 {v(kc[1]+i)}, {hex(f2u(K0*0.044715))}")
        a(f"v_mov_b32 {v(kc[2]+i)}, 1.0")
    a(f"s_mul_i32 s{s_t}, s{S_RB}, {48*8192}")
    a(f"s_lshl_b32 s{s_t+1}, s{s_cb}, 15")
    a(f"s_add_u32 s{s_t}, s{s_t}, s{s_t+1}")
    a(f"s_lshl_b32 s{s_t+1}, s{s_wn}, 14")
    a(f"s_mul_i32 s{s_t+2}, s{s_wm}, {4096+8192}")
    a(f"s_add_u32 s{s_t+1}, s{s_t+1}, s{s_t+2}")
    a(f"s_add_u32 s{s_h0}, s{s_t}, s{s_t+1}")
    a(f"s_xor_b32 s{s_h1}, s{s_t+1}, 8192")
    a(f"s_add_u32 s{s_h1}, s{s_t}, s{s_h1}")
    a(f"s_add_u32 s{s_t+1}, s{s_t+1}, {LX + 2*16384}")
    a(f"v_add_u32 {v(hw)}, s{s_t+1}, {v(L16)}")
    a(f"v_xor_b32 {v(hw2)}, 8192, {v(hw)}")
    SP = 176
    sw = vp.get(); srd_a = [vp.get() for _ in range(5)]
    a(f"s_mul_i32 s{s_t}, s{s_wm}, {64*SP}")
    a(f"s_lshl_b32 s{s_t+1}, s{s_wn}, 16")
    a(f"s_add_u32 s{s_t}, s{s_t}, s{s_t+1}")
    a(f"v_mul_u32_u24 {v(sw)}, {SP}, {v(I16)}")
    a(f"v_lshl_add_u32 {v(sw)}, {v(G)}, 3, {v(sw)}")
    a(f"v_add_u32 {v(sw)}, s{s_t}, {v(sw)}")
    for ii in range(5):
        a(f"v_add_u32 {v(r_)}, {64*ii}, v0")
        divmod_const(a, t0, t1, r_, 10)
        a(f"v_mul_u32_u24 {v(t0)}, {SP}, {v(t0)}")
        a(f"v_lshl_add_u32 {v(t0)}, {v(t1)}, 4, {v(t0)}")
        a(f"v_add_u32 {v(srd_a[ii])}, s{s_t}, {v(t0)}")
    p_base(a, s_p0, s_wm, s_wn, s_t)
    a(f"s_lshl_b32 s{S_FLAG}, s{S_RB}, 1")
    a(f"s_add_u32 s{S_FLAG}, s{S_FLAG}, s{s_wm}")
    a(f"s_lshl_b32 s{S_FLAG}, s{S_FLAG}, 7")
    a(f"s_add_u32 s{S_FLAG}, s{S_FLAG}, s{s_cb}")
    a(f"s_lshl_b32 s{S_FLAG}, s{S_FLAG}, 1")
    a(f"s_add_u32 s{S_FLAG}, s{S_FLAG}, s{s_wn}")
    a(f"s_lshl_b32 s{S_FLAG}, s{S_FLAG}, 3")
    a(f"s_add_u32 s{S_FLAG}, s{S_FLAG}, {FL_P}")

    st = [xf[0][mm] for mm in range(4)]
    b1f = [wf[0][tt] for tt in range(4)]
    mi = wf[1][4]

    def loop(which):
        NT = 4 if which == 1 else 5
        if which == 1:
            xrd = lambda st_, ks, mm: f"ds_read_b128 {v(xf[st_][mm],4)}, {v(xa[ks])} offset:{mm*2048}"
            wrd = lambda st_, ks, tt, h: f"ds_read_b64_tr_b16 {v(wf[st_][tt]+2*h,2)}, {v(wa[tt])} offset:{ks*8192+h*1024}"
            ax, aw = xa, wa
        else:
            xrd = lambda st_, ks, mm: f"ds_read_b128 {v(xf[st_][mm],4)}, {v(xb)} offset:{ks*8192+mm*1024}"
            wrd = lambda st_, ks, tt, h: f"ds_read_b64_tr_b16 {v(wf[st_][tt]+2*h,2)}, {v(wb[tt&1])} offset:{(32*ks+16*h)*320+(tt>>1)*64}"
            ax, aw = [xb], wb

        def reads(st_, ks):
            out = []
            for i in range(max(4, NT)):
                if i < NT:
                    out += [wrd(st_, ks, i, 0), wrd(st_, ks, i, 1)]
                if i < 4:
                    out.append(xrd(st_, ks, i))
            return out

        def mfmas(st_, c=None):
            out = []
            if which == 1:
                out += [mfma_s(cs[tt], wf[st_][tt], ones, c) for tt in range(2)]
            for tt in range(NT):
                for mm in range(4):
                    out.append(mfma_s(acc[tt][mm], wf[st_][tt], xf[st_][mm], c))
            return out
        c0 = 0 if which == 1 else 10
        a(f"s_mov_b32 s{s_cnt}, {c0+1}")
        a(f"s_mov_b32 s{s_end}, {10 if which == 1 else 12}")
        a("s_barrier")
        stamp(a, 1 if which == 1 else 4, 2)
        emit(a, reads(0, 0))
        l_loop, l_last, l_mid = a.newlabel("L_gl"), a.newlabel("L_gx"), a.newlabel("L_gm")
        a("s_waitcnt lgkmcnt(0)")
        adv = [f"v_add_u32 {v(r)}, 16384, {v(r)}" for r in ax] + [f"v_add_u32 {v(r)}, {WSL}, {v(r)}" for r in aw]
        interleave(a, mfmas(0, "0"), reads(1, 1) + adv)
        if which == 2:
            a("s_waitcnt vmcnt(0)")
        a(f"s_branch {l_mid}")
        a.label(l_loop)
        a(f"s_add_u32 s{s_cnt}, s{s_cnt}, 1")
        a(f"s_and_b32 s{s_t}, s{s_cnt}, 3")
        a(f"s_cselect_b32 s{s_t}, 1, -3")
        a(f"s_lshl_b32 s{s_dx}, s{s_t}, 14")
        a(f"s_mul_i32 s{s_dw}, s{s_t}, {WSL}")
        a("s_waitcnt lgkmcnt(0)")
        adv = [f"v_add_u32 {v(r)}, s{s_dx}, {v(r)}" for r in ax] + [f"v_add_u32 {v(r)}, s{s_dw}, {v(r)}" for r in aw]
        interleave(a, mfmas(0), reads(1, 1) + adv)
        a.label(l_mid)
        a(f"s_cmp_eq_u32 s{s_cnt}, s{s_end}")
        a("s_waitcnt lgkmcnt(0)")
        a("s_barrier")
        a(f"s_cbranch_scc1 {l_last}")
        interleave(a, mfmas(1), reads(0, 0))
        a(f"s_branch {l_loop}")
        a.label(l_last)
        if which == 1:
            fill = [f"ds_read_b128 {v(st[mm],4)}, {v(sta)} offset:{mm*256}" for mm in range(4)]
            fill += [f"ds_read_b128 {v(mi,4)}, {v(msc)}", "s_waitcnt vmcnt(0)"]
            for tt in range(4):
                for h in range(2):
                    fill += unpack_l(b1f[tt] + 2*h, b1r[tt] + h)
            fill.insert(9, f"ds_write_b128 {v(csw)}, {v(cs[0],4)}")
            fill.insert(10, f"ds_write_b128 {v(csw)}, {v(cs[1],4)} offset:64")
            weave(a, mfmas(1), fill)
        else:
            l_done = a.newlabel("L_gd")
            a(f"s_cmp_eq_u32 s{s_cnt}, 18")
            a(f"s_cbranch_scc1 {l_done}")
            emit(a, mfmas(1))
            a(f"s_mov_b32 s{s_end}, 18")
            a("s_barrier")
            emit(a, reads(0, 0))
            a(f"s_branch {l_loop}")
            a.label(l_done)
            return [mfma_s(acc[tt][mm], wf[1][tt], xf[1][mm]) for mm in range(4) for tt in range(5)]

    loop(1)
    stamp(a, 2, 2)
    a("s_waitcnt lgkmcnt(0)")
    a("s_barrier")
    a(f"ds_read_b128 {v(cs[2],4)}, {v(csr)}")
    a(f"ds_read_b128 {v(cs[3],4)}, {v(csr)} offset:64")
    a(f"v_readfirstlane_b32 s{S_E}, {v(mi)}")
    a(f"v_readfirstlane_b32 s{S_E+1}, {v(mi+1)}")
    a(f"v_readfirstlane_b32 s{S_FAST}, {v(mi+2)}")
    stamp(a, 3, 2)
    tmp = [xf[1][i] for i in range(4)]
    outs = [wf[1][1], wf[1][2], wf[1][3]]
    n_o = 0
    for u in range(2):
        if u == 1:
            a("s_waitcnt lgkmcnt(4)")
        for mm in range(4):
            o = outs[n_o % 3]; n_o += 1
            prs = [(acc[2*u+k][mm] + 2*h, cs[2*u+k] + 2*h, b1f[2*u+k] + 2*h) for k in range(2) for h in range(2)]
            T = [tmp[0], tmp[0]+2, tmp[1], tmp[1]+2]
            Z = [tmp[2], tmp[2]+2, tmp[3], tmp[3]+2]
            for i, (p, c_, b_) in enumerate(prs):
                a(f"v_pk_fma_f32 {v(T[i],2)}, {v(c_,2)}, {v(st[mm]+2,2)}, {v(b_,2)}")
            for i, (p, c_, b_) in enumerate(prs):
                a(f"v_pk_fma_f32 {v(p,2)}, {v(p,2)}, {v(st[mm],2)}, {v(T[i],2)}")
            for i, (p, c_, b_) in enumerate(prs):
                a(f"v_pk_mul_f32 {v(T[i],2)}, {v(p,2)}, {v(p,2)}")
            for i, (p, c_, b_) in enumerate(prs):
                a(f"v_pk_fma_f32 {v(T[i],2)}, {v(T[i],2)}, {v(kc[1],2)}, {v(kc[0],2)}")
            for i, (p, c_, b_) in enumerate(prs):
                a(f"v_pk_mul_f32 {v(Z[i],2)}, {v(p,2)}, {v(T[i],2)}")
            for i in range(4):
                a(f"v_exp_f32 {v(Z[i])}, {v(Z[i])}")
                a(f"v_exp_f32 {v(Z[i]+1)}, {v(Z[i]+1)}")
            for i in range(4):
                a(f"v_pk_add_f32 {v(Z[i],2)}, {v(Z[i],2)}, {v(kc[2],2)}")
            for i in range(4):
                a(f"v_rcp_f32 {v(Z[i])}, {v(Z[i])}")
                a(f"v_rcp_f32 {v(Z[i]+1)}, {v(Z[i]+1)}")
            for i, (p, c_, b_) in enumerate(prs):
                a(f"v_pk_mul_f32 {v(p,2)}, {v(p,2)}, {v(Z[i],2)}")
            for i, (p, c_, b_) in enumerate(prs):
                a(cvt_s(o + i, p, p + 1))
            si = lambda f: f"buffer_store_dwordx4 {v(o,4)}, {v(L16)}, {s(R_WS,4)}, s{s_h0+u} offen offset:{mm*1024} {f}"
            if "hfast" not in OPT:
                a(si(SC))
            else:
                store2(a, si)
            a(f"ds_write_b128 {v(hw if u == 0 else hw2)}, {v(o,4)} offset:{mm*1024}")
    a("s_waitcnt lgkmcnt(0)")
    last = loop(2)
    xb2_loads(a, s_t)
    a(f"s_add_u32 s{s_t}, s{s_p0}, 4096")
    a(f"s_add_u32 s{s_t+1}, s{s_p0}, 8192")
    so = [s_p0, s_t, s_t + 1]
    pk = xf[0][0]
    def conv(mm):
        out = []
        for tt in range(5):
            o = (xf[0][0] if mm & 1 == 0 else wf[0][0]) + 2 * tt
            out += [cvt_s(o, acc[tt][mm], acc[tt][mm] + 1), cvt_s(o + 1, acc[tt][mm] + 2, acc[tt][mm] + 3),
                    f"ds_write_b64 {v(sw)}, {v(o,2)} offset:{mm*16*SP+tt*32}"]
        return out
    emit(a, last[:10])
    weave(a, last[10:15], conv(0))
    weave(a, last[15:20], conv(1))
    stamp(a, 5, 2)
    rb_ = [acc[i % 5][i // 5] for i in range(10)]
    a("s_waitcnt lgkmcnt(0)")
    for ii in range(5):
        a(f"ds_read_b128 {v(rb_[ii],4)}, {v(srd_a[ii])}")
    emit(a, conv(2))

    def pstores(lo, hi, waits):
        for f in (SC, ""):
            pass
        if "pfast" not in OPT:
            for ii in range(lo, hi):
                a(f"s_waitcnt lgkmcnt({waits(ii)})")
                a(f"buffer_store_dwordx4 {v(rb_[ii],4)}, {v(L16)}, {s(R_WS,4)}, s{so[ii//4]} offen offset:{(ii%4)*1024} {SC}")
            return
        l1, l2 = a.newlabel("L_pf"), a.newlabel("L_pe")
        a(f"s_cmp_lg_u32 s{S_FAST}, 0")
        a(f"s_cbranch_scc1 {l1}")
        for f in (SC, os.environ.get("PST", "")):
            for ii in range(lo, hi):
                a(f"s_waitcnt lgkmcnt({waits(ii)})")
                a(f"buffer_store_dwordx4 {v(rb_[ii],4)}, {v(L16)}, {s(R_WS,4)}, s{so[ii//4]} offen offset:{(ii%4)*1024} {f}")
            if f == SC:
                a(f"s_branch {l2}")
                a.label(l1)
        a.label(l2)
    pstores(0, 5, lambda ii: 9 - ii)
    emit(a, conv(3))
    a("s_waitcnt lgkmcnt(0)")
    for ii in range(5, 10):
        a(f"ds_read_b128 {v(rb_[ii],4)}, {v(srd_a[ii-5])} offset:{32*SP}")
    pstores(5, 10, lambda ii: 9 - ii)
    a(f"s_mov_b32 s{S_PJ}, 1")
    a(f"s_branch {l_f3}")


def p_base(a, s_d, s_wm, s_wn, s_t):
    a(f"s_mul_i32 s{s_d}, s{S_KT}, 2621440")
    a(f"s_lshl_b32 s{s_t}, s{S_SUB}, 1")
    a(f"s_add_u32 s{s_t}, s{s_t}, s{s_wn}")
    a(f"s_mul_i32 s{s_t}, s{s_t}, {2048*160}")
    a(f"s_add_u32 s{s_d}, s{s_d}, s{s_t}")
    a(f"s_lshl_b32 s{s_t}, s{S_RB}, 1")
    a(f"s_add_u32 s{s_t}, s{s_t}, s{s_wm}")
    a(f"s_mul_i32 s{s_t}, s{s_t}, {64*160}")
    a(f"s_add_u32 s{s_d}, s{s_d}, s{s_t}")
    a(f"s_add_u32 s{s_d}, s{s_d}, {WS_P}")


def gemm_loader(a, l_f3):
    vp = Pool("v", 8, V_TOP)
    t0, t1, t2 = T0, T1, T2
    s_lw, s_xo, s_wo, s_m, s_m2, s_ho, s_w2, s_kc, s_xc, s_wc, s_p0, s_t = [S_T + i for i in range(12)]
    vm = VM(a)
    a(f"s_sub_u32 s{s_lw}, s{S_W}, 4")
    srd(a, R_A, P_X, 2621440); srd(a, R_B, P_W1, 1966080)
    xv = vp.get(); wv = [vp.get(), vp.get()]
    a(f"v_lshrrev_b32 {v(t0)}, 3, v0")
    a(f"v_and_b32 {v(t1)}, 7, v0")
    a(f"v_xor_b32 {v(t1)}, {v(t1)}, {v(t0)}")
    a(f"v_mul_u32_u24 {v(xv)}, {64*1280}, {v(t0)}")
    a(f"v_lshl_add_u32 {v(xv)}, {v(t1)}, 4, {v(xv)}")
    a(f"s_lshl_b32 s{s_xo}, s{S_RB}, 2")
    a(f"s_add_u32 s{s_xo}, s{s_xo}, s{s_lw}")
    a(f"s_mul_i32 s{s_xo}, s{s_xo}, 1280")
    a(f"v_lshlrev_b32 {v(t2)}, 1, {v(G)}")
    a(f"v_xor_b32 {v(t1)}, {v(I16)}, {v(t2)}")
    a(f"v_mul_u32_u24 {v(wv[0])}, 3072, {v(G)}")
    a(f"v_lshl_add_u32 {v(wv[0])}, {v(t1)}, 4, {v(wv[0])}")
    a(f"v_xor_b32 {v(wv[1])}, 128, {v(wv[0])}")
    a(f"s_mul_i32 s{s_wo}, s{s_lw}, {16*3072}")
    a(f"s_lshl_b32 s{s_t}, s{S_KT}, 2")
    a(f"s_add_u32 s{s_t}, s{s_t}, s{S_SUB}")
    a(f"s_lshl_b32 s{s_t+1}, s{s_t}, 8")
    a(f"s_add_u32 s{s_wo}, s{s_wo}, s{s_t+1}")
    a(f"s_lshl_b32 s{s_m}, s{s_lw}, 12")
    a(f"s_and_b32 s{s_kc}, s{S_RB}, 1")
    a(f"s_mul_i32 s{s_kc}, s{s_kc}, 5")
    a(f"s_add_u32 s{s_kc}, s{s_kc}, s{s_t}")
    a(f"s_lshr_b32 s{s_t}, s{S_RB}, 1")
    a(f"s_add_u32 s{s_kc}, s{s_kc}, s{s_t}")
    for _ in range(2):
        a(f"s_sub_u32 s{s_t}, s{s_kc}, 10")
        a(f"s_cselect_b32 s{s_kc}, s{s_kc}, s{s_t}")

    def issue1(c):
        sl = c % 4
        a(f"s_lshl_b32 s{s_xc}, s{s_kc}, 7")
        a(f"s_add_u32 s{s_xc}, s{s_xc}, s{s_xo}")
        a(f"s_mul_i32 s{s_wc}, s{s_kc}, {64*3072}")
        a(f"s_add_u32 s{s_wc}, s{s_wc}, s{s_wo}")
        for i in range(4):
            a(f"s_add_u32 m0, s{s_m}, {LW + sl*WSL + i*1024}")
            a(f"s_add_u32 s{s_t}, s{s_wc}, {i*4*3072}")
            dma(a, wv[i >> 1], R_B, f"s{s_t}")
        for i in range(4):
            a(f"s_add_u32 m0, s{s_m}, {LX + sl*16384 + i*1024}")
            a(f"s_add_u32 s{s_t}, s{s_xc}, {i*8*64*1280}")
            dma(a, xv, R_A, f"s{s_t}")
        a(f"s_add_u32 s{s_kc}, s{s_kc}, 1")
        a(f"s_cmp_eq_u32 s{s_kc}, 10")
        a(f"s_cselect_b32 s{s_kc}, 0, s{s_kc}")
        vm.op(("A", c), 8)

    stamp(a, 1, 2)
    issue1(0); issue1(1)
    load_epoch(a, s_t + 1)
    srd(a, R_C, P_W2, 1966080)
    w2v = [vp.get() for _ in range(5)]
    a(f"s_mul_i32 s{s_ho}, s{S_RB}, {48*8192}")
    a(f"s_lshl_b32 s{s_t}, s{S_KT}, 17")
    a(f"s_add_u32 s{s_ho}, s{s_ho}, s{s_t}")
    for i in range(5):
        a(f"v_add_u32 {v(t2)}, {64*i}, v0")
        divmod_const(a, t0, t1, t2, 20)
        a(f"v_lshrrev_b32 {v(t2)}, 1, {v(t0)}")
        a(f"v_and_b32 {v(t2)}, 2, {v(t2)}")
        a(f"v_xor_b32 {v(t1)}, {v(t1)}, {v(t2)}")
        a(f"v_mul_u32_u24 {v(w2v[i])}, 1280, {v(t0)}")
        a(f"v_lshl_add_u32 {v(w2v[i])}, {v(t1)}, 4, {v(w2v[i])}")
    a(f"s_lshl_b32 s{s_w2}, s{S_KT}, 5")
    a(f"s_add_u32 s{s_w2}, s{s_w2}, s{s_lw}")
    a(f"s_mul_i32 s{s_w2}, s{s_w2}, {16*1280}")
    a(f"s_mul_i32 s{s_t}, s{S_SUB}, 320")
    a(f"s_add_u32 s{s_w2}, s{s_w2}, s{s_t}")
    a(f"s_mul_i32 s{s_m2}, s{s_lw}, 5120")
    a(f"s_and_b32 s{s_xc}, s{s_lw}, 1")
    a(f"s_lshr_b32 s{s_wc}, s{s_lw}, 1")
    p_base(a, s_p0, s_xc, s_wc, s_t)
    wreg = [[vp.get(4, 4) for i in range(5)] for c in range(2)]
    sg = vp.get(4, 4); xr_ = vp.get(2, 2); dump = vp.get(4, 4)
    wl, l128, sad, sld, l8 = [vp.get() for _ in range(5)]
    a(f"v_add_u32 {v(wl)}, s{s_m2}, {v(L16)}")
    a(f"v_add_u32 {v(wl)}, {LW + 2*WSL}, {v(wl)}")
    a(f"v_lshlrev_b32 {v(l128)}, 7, v0")
    a(f"v_and_b32 {v(sad)}, 31, v0")
    a(f"v_lshlrev_b32 {v(l8)}, 3, {v(sad)}")
    a(f"v_lshlrev_b32 {v(sad)}, 4, {v(sad)}")
    a(f"s_lshl_b32 s{s_t}, s{s_lw}, 9")
    a(f"v_add_u32 {v(sad)}, s{s_t}, {v(sad)}")
    a(f"v_add_u32 {v(sld)}, {L_STAT}, {v(sad)}")
    a(f"s_mov_b32 s{S_PJ}, 0")
    a(f"s_mov_b32 s{S_HV}, 0")

    def kchunk(c2):
        a(f"s_lshl_b32 s{s_t+1}, s{S_SUB}, 1")
        a(f"s_add_u32 s{s_t+1}, s{s_t+1}, {c2}")
        a(f"s_and_b32 s{s_t+1}, s{s_t+1}, 7")

    def issue_w2(c2):
        sl = (10 + c2) % 4
        kchunk(c2)
        a(f"s_mul_i32 s{s_t}, s{s_t+1}, {64*1280}")
        a(f"s_add_u32 s{s_t}, s{s_t}, s{s_w2}")
        for i in range(5):
            a(f"s_add_u32 m0, s{s_m2}, {LW + sl*WSL + i*1024}")
            dma(a, w2v[i], R_C, f"s{s_t}")
        vm.op(("W", c2), 5)

    def load_w2(c2):
        kchunk(c2)
        a(f"s_mul_i32 s{s_t}, s{s_t+1}, {64*1280}")
        a(f"s_add_u32 s{s_t}, s{s_t}, s{s_w2}")
        for i in range(5):
            a(f"buffer_load_dwordx4 {v(wreg[c2-4][i],4)}, {v(w2v[i])}, {s(R_C,4)}, s{s_t} offen")
        vm.op(("R", c2), 5)

    def put_w2(c2):
        for i in range(5):
            a(f"ds_write_b128 {v(wl)}, {v(wreg[c2-4][i],4)} offset:{(c2-4)*WSL + i*1024}")

    def issue_h(c2):
        sl = (10 + c2) % 4
        kchunk(c2)
        a(f"s_lshl_b32 s{s_t}, s{s_t+1}, 14")
        a(f"s_add_u32 s{s_t}, s{s_t}, s{s_ho}")
        a(f"s_add_u32 s{s_t}, s{s_t}, s{s_m}")
        a(f"s_add_u32 m0, s{s_m}, {LX + sl*16384}")
        for i in range(4):
            dma(a, L16, R_WS, f"s{s_t}", SC, off=i * 1024)
        vm.op(("H", c2), 4)

    def stat_load():
        a(f"s_lshl_b32 s{s_t}, s{S_RB}, 11")
        a(f"s_add_u32 s{s_t}, s{s_t}, {WS_ST}")
        a(f"buffer_load_dwordx4 {v(sg,4)}, {v(sad)}, {s(R_WS,4)}, s{s_t} offen {SC}")

    nxt = 2
    for c in range(10):
        vm.wait(("A", c))
        if c == 0: stamp(a, 2, 2)
        if c >= 2: stamp(a, c - 1, 3)
        a("s_barrier")
        if c >= 2: stamp(a, c - 1, 4)
        while nxt < 10 and nxt <= c + 3 and (nxt <= c + 2 or c >= 1):
            issue1(nxt); nxt += 1
            if c == 0:
                break
        if c == 2:
            a("s_waitcnt lgkmcnt(0)")
            nonce(a)
        if c == 3:
            l = a.newlabel("L_px")
            a(f"s_cmp_lg_u32 s{s_lw}, 0")
            a(f"s_cbranch_scc1 {l}")
            publish_xcc(a, s_t)
            a.label(l)
            a(f"s_lshl_b32 s{s_t}, s{S_FLAG}, 2")
            a(f"s_add_u32 s{s_t}, s{s_t}, s{s_lw}")
            a(f"s_mul_i32 s{s_t}, s{s_t}, 2560")
            a("s_mov_b64 exec, 0xfffff")
            a(f"buffer_load_dword {v(dump)}, {v(l128)}, {s(R_C,4)}, s{s_t} offen")
            a("s_mov_b64 exec, -1")
            vm.op("PF")
        if c == 6 and "hfast" in OPT:
            a(f"s_lshl_b32 s{s_t}, s{S_SUB}, 2")
            a(f"s_add_u32 s{s_t}, s{s_t}, s{s_lw}")
            a(f"s_lshl_b32 s{s_t}, s{s_t}, 13")
            a(f"s_add_u32 s{s_t}, s{s_t}, s{s_ho}")
            a(f"buffer_load_dword {v(dump)}, {v(l128)}, {s(R_WS,4)}, s{s_t} offen")
            vm.op("PH")
        if c == 7:
            stat_load()
            a(f"s_and_b32 s{s_t}, s2, 7")
            a(f"s_lshl_b32 s{s_t}, s{s_t}, 8")
            a(f"s_add_u32 s{s_t}, s{s_t}, {FL_X}")
            a(f"buffer_load_dwordx2 {v(xr_,2)}, {v(l8)}, {s(R_WS,4)}, s{s_t} offen {SC}")
            vm.op("S", 2)
        if c >= 7:
            issue_w2(c - 7)
        if c == 9:
            vm.wait("S")
            l_chk, l_ok = a.newlabel("L_chk"), a.newlabel("L_ok")
            a(f"s_mov_b32 s{s_t+2}, 0x40000")
            a.label(l_chk)
            a(f"v_xor_b32 {v(t0)}, s{S_E}, {v(sg+1)}")
            a(f"v_xor_b32 {v(t1)}, s{S_E+1}, {v(sg+3)}")
            a(f"v_or_b32 {v(t0)}, {v(t0)}, {v(t1)}")
            a(f"v_cmp_ne_u32 vcc, 0, {v(t0)}")
            a(f"s_cbranch_vccz {l_ok}")
            stat_load()
            a("s_waitcnt vmcnt(0)")
            a(f"s_sub_u32 s{s_t+2}, s{s_t+2}, 1")
            a(f"s_cbranch_scc0 {l_chk}")
            a.label(l_ok)
            a(f"v_mov_b32 {v(sg+1)}, {v(sg)}")
            a(f"v_mov_b32 {v(sg+3)}, {v(sg+2)}")
            a(f"ds_write_b128 {v(sld)}, {v(sg,4)}")
            xcc_tag(a, s_t + 1)
            a(f"v_xor_b32 {v(t0)}, s{S_E}, {v(xr_)}")
            a(f"v_xor_b32 {v(t1)}, s{s_t+1}, {v(xr_+1)}")
            a(f"v_or_b32 {v(t0)}, {v(t0)}, {v(t1)}")
            a(f"v_cmp_ne_u32 vcc, 0, {v(t0)}")
            a("s_cmp_eq_u64 vcc, 0")
            a(f"s_cselect_b32 s{S_FAST}, {0 if 'nofast' in OPT else 1}, 0")
            l = a.newlabel("L_ms")
            a(f"s_cmp_lg_u32 s{s_lw}, 0")
            a(f"s_cbranch_scc1 {l}")
            a(f"v_mov_b32 {v(dump)}, s{S_E}")
            a(f"v_mov_b32 {v(dump+1)}, s{S_E+1}")
            a(f"v_mov_b32 {v(dump+2)}, s{S_FAST}")
            a(f"v_mov_b32 {v(t0)}, {L_MISC}")
            a(f"ds_write_b128 {v(t0)}, {v(dump,4)}")
            a.label(l)
            a("s_waitcnt lgkmcnt(0)")
    stamp(a, 3, 2)
    a("s_barrier")
    issue_w2(3)
    a("s_barrier")

    def pre_p():
        a(f"buffer_load_dword {v(dump)}, {v(l128)}, {s(R_WS,4)}, s{s_p0} offen")
        a("s_mov_b64 exec, 0xffff")
        a(f"s_add_u32 s{s_t}, s{s_p0}, 8192")
        a(f"buffer_load_dword {v(dump)}, {v(l128)}, {s(R_WS,4)}, s{s_t} offen")
        a("s_mov_b64 exec, -1")
        vm.op("PP", 2)
    PPOS = os.environ.get("PPOS", "a") if "pfast" in OPT else "-"
    if PPOS == "a": pre_p()
    vm.wait(("W", 2))
    load_w2(4)
    vm.wait(("W", 3))
    load_w2(5)
    if PPOS == "b": pre_p()
    l = a.newlabel("L_gf")
    a(f"s_cmp_lg_u32 s{s_lw}, 3")
    a(f"s_cbranch_scc1 {l}")
    gf_make(a, s_t)
    a.label(l)
    a("s_barrier")
    a("s_barrier")
    stamp(a, 4, 2)
    vm.wait(("R", 5))
    l_nf = a.newlabel("L_nf")
    a(f"s_cmp_lg_u32 s{s_lw}, 0")
    a(f"s_cbranch_scc1 {l_nf}")
    a(f"s_and_b32 s{s_t}, s{S_FLAG}, 0xfc")
    a(f"s_lshl_b32 s{s_t}, s{s_t}, 7")
    a(f"s_lshl_b32 s{s_t+1}, s{S_SUB}, 3")
    a(f"s_add_u32 s{s_t}, s{s_t}, s{s_t+1}")
    a(f"s_add_u32 s{s_t}, s{s_t}, {FL_H}")
    push_tag(a, s_t, 4, 7, "fast")
    a.label(l_nf)
    put_w2(4)
    a(f"s_lshl_b32 s{s_t+2}, s{S_FLAG}, 7")
    a(f"s_add_u32 s{s_t+2}, s{s_t+2}, {FL_H}")
    poll(a, f"s{s_t+2}", 4, s_t, depth=1); vm.q = []
    stamp(a, 5, 2)
    for c2 in range(2, 5):
        issue_h(c2)
    a("s_barrier")
    issue_h(5)
    put_w2(5)
    for c2 in range(2, 8):
        vm.wait(("H", c2), ("W", c2))
        if c2 == 4: a("s_waitcnt lgkmcnt(0)")
        if c2 == 2: stamp(a, 6, 2)
        stamp(a, c2 - 1, 5)
        a("s_barrier")
        stamp(a, c2 - 1, 6)
        if c2 in (3, 4):
            issue_w2(c2 + 3); issue_h(c2 + 3)
        if c2 == 4 and PPOS == "c": pre_p()
        if c2 == 6:
            l = a.newlabel("L_gp")
            a(f"s_cmp_lg_u32 s{s_lw}, 3")
            a(f"s_cbranch_scc1 {l}")
            gf_put(a)
            a("s_waitcnt lgkmcnt(0)")
            a.label(l)
        if c2 == 5:
            tab3_dma(a, s_t)
            xb2_loads(a, s_t)
            vm.op("T3", 8)
        if c2 in (5, 6):
            a(f"s_lshl_b32 s{s_t+2}, s{S_N3}, 9")
            a(f"s_add_u32 s{s_t+2}, s{s_t+2}, {FL_V}")
            a(f"v_lshlrev_b32 {v(t2)}, 3, v0")
            if c2 == 5:
                a(f"buffer_load_dwordx2 {v(xr_,2)}, {v(t2)}, {s(R_WS,4)}, s{s_t+2} offen {SC}")
                vm.op("LV")
        if c2 in (6, 7):
            l, l_re = a.newlabel("L_lv"), a.newlabel("L_lr")
            if c2 == 7:
                a(f"s_cmp_lg_u32 s{S_HV}, 0")
                a(f"s_cbranch_scc1 {l}")
            a("s_waitcnt vmcnt(0)"); vm.q = []
            a(f"v_cmp_ne_u64 vcc, s[{S_E}:{S_E+1}], {v(xr_,2)}")
            a(f"s_cbranch_vccnz {l_re}")
            vb_dma(a, s_t)
            a(f"s_mov_b32 s{S_HV}, 1")
            a(f"s_branch {l}")
            a.label(l_re)
            if c2 == 6:
                a(f"buffer_load_dwordx2 {v(xr_,2)}, {v(t2)}, {s(R_WS,4)}, s{s_t+2} offen {SC}")
            a.label(l)
    stamp(a, 7, 5)
    a("s_barrier")
    stamp(a, 7, 6)
    a(f"s_branch {l_f3}")


def twiddle_l(re, im, c_, s_, tmp, ns=None):
    o = []
    if ns is not None:
        for h in range(2):
            o.append(f"v_pk_mul_f32 {v(tmp,2)}, {v(im+2*h,2)}, {v(s_+2*h,2)}")
            o.append(f"v_pk_mul_f32 {v(tmp+2,2)}, {v(re+2*h,2)}, {v(ns+2*h,2)}")
            o.append(f"v_pk_fma_f32 {v(re+2*h,2)}, {v(re+2*h,2)}, {v(c_+2*h,2)}, {v(tmp,2)}")
            o.append(f"v_pk_fma_f32 {v(im+2*h,2)}, {v(im+2*h,2)}, {v(c_+2*h,2)}, {v(tmp+2,2)}")
        return o
    o += [f"v_mul_f32 {v(tmp+r)}, {v(re+r)}, {v(s_+r)}" for r in range(4)]
    o += [f"v_mul_f32 {v(re+r)}, {v(re+r)}, {v(c_+r)}" for r in range(4)]
    o += [f"v_fmac_f32 {v(re+r)}, {v(im+r)}, {v(s_+r)}" for r in range(4)]
    o += [f"v_fma_f32 {v(im+r)}, {v(im+r)}, {v(c_+r)}, -{v(tmp+r)}" for r in range(4)]
    return o


XR = 8


def fft_head(a):
    s_t = S_T
    srd(a, R_A, P_X, 2621440)
    a(f"s_lshl_b32 s{s_t+1}, s{S_W}, 11")
    a(f"s_add_u32 m0, s{s_t+1}, {L1_TAB}")
    a(f"s_lshl_b32 s{s_t}, s{S_W}, 8")
    for i in range(2):
        dma(a, L16, R_TAB, f"s{s_t+1}", off=i * 1024)
    a(f"v_mul_u32_u24 {v(T0)}, {64*1280}, {v(G)}")
    a(f"v_lshl_add_u32 {v(T0)}, {v(I16)}, 4, {v(T0)}")
    a(f"s_add_u32 s{s_t}, s{s_t}, s{S_IDX}")
    a(f"s_mul_i32 s{s_t}, s{s_t}, 1280")
    for i in range(5):
        a(f"buffer_load_dwordx4 {v(XR+4*i,4)}, {v(T0)}, {s(R_A,4)}, s{s_t} offen offset:{256*i}")
    a(f"s_add_u32 m0, s{s_t+1}, {L2_TAB}")
    a(f"s_add_u32 s{s_t+1}, s{s_t+1}, {TAB_F2}")
    for i in range(2):
        dma(a, L16, R_TAB, f"s{s_t+1}", off=i * 1024)
    load_epoch(a, s_t + 2)


def fft_role(a):
    s_n = S_IDX
    SP = 400
    vp = Pool("v", 28, 248)
    i16, g, l16, t0, t1, t2, xr = I16, G, L16, T0, T1, T2, XR
    s_t, s_hf, s_b, s_i, s_k1, s_h2, s_wb, s_wm0 = S_T, S_T + 4, S_T + 5, S_T + 6, S_T + 7, S_T + 8, S_T + 9, S_T + 10
    xw, ta0, ta1 = vp.get(), vp.get(), vp.get()
    a(f"s_mul_i32 s{s_t}, s{S_W}, {4*1280}")
    a(f"s_add_u32 s{s_t}, s{s_t}, {L1_XN}")
    a(f"v_mul_u32_u24 {v(xw)}, 1280, {v(g)}")
    a(f"v_lshl_add_u32 {v(xw)}, {v(i16)}, 4, {v(xw)}")
    a(f"v_add_u32 {v(xw)}, s{s_t}, {v(xw)}")
    a(f"v_and_b32 {v(t0)}, 3, v0")
    a(f"v_lshlrev_b32 {v(t0)}, 3, {v(t0)}")
    a(f"v_add_u32 {v(t0)}, s{s_t}, {v(t0)}")
    a(f"v_lshrrev_b32 {v(t1)}, 2, v0")
    a(f"v_lshl_add_u32 {v(ta0)}, {v(t1)}, 6, {v(t0)}")
    a(f"v_and_b32 {v(t1)}, 3, {v(t1)}")
    a(f"v_lshl_add_u32 {v(ta1)}, {v(t1)}, 6, {v(t0)}")
    a(f"v_add_u32 {v(ta1)}, 1024, {v(ta1)}")
    mf = vp.get(8, 4)
    k1v = T3
    a(f"s_and_b32 s{s_t}, s{S_W}, 1")
    a(f"s_lshl_b32 s{s_t}, s{s_t}, 4")
    a(f"v_add_u32 {v(k1v)}, s{s_t}, {v(i16)}")
    a(f"s_and_b32 s{s_t}, s{S_W}, 2")
    a(f"s_lshl_b32 s{s_t}, s{s_t}, 8")
    a(f"v_lshlrev_b32 {v(t0)}, 8, {v(g)}")
    a(f"v_add_u32 {v(t0)}, s{s_n}, {v(t0)}")
    a(f"v_mul_u32_u24 {v(t0)}, {v(t0)}, {v(k1v)}")
    a(f"v_add_u32 {v(t0)}, s{s_t}, {v(t0)}")
    a(f"v_lshlrev_b32 {v(k1v)}, 6, {v(k1v)}")
    for ks in range(2):
        for jj in range(4):
            a(f"v_mad_u32_u24 {v(t1)}, {v(k1v)}, {16*ks+jj}, {v(t0)}")
            a(f"v_and_b32 {v(t1)}, 2047, {v(t1)}")
            a(f"v_cvt_f32_u32 {v(t1)}, {v(t1)}")
            a(f"v_mul_f32 {v(t1)}, {hex(f2u(1/2048))}, {v(t1)}")
            a(f"v_cos_f32 {v(t2)}, {v(t1)}")
            a(f"v_sin_f32 {v(t1)}, {v(t1)}")
            a(cvt_s(mf + 4*ks + jj, t2, t1))
    a(f"v_mov_b32 {v(t1)}, 0")
    a(f"v_and_b32 {v(t0)}, 31, v0")
    a(f"v_lshlrev_b32 {v(t0)}, 2, {v(t0)}")
    a(f"v_add_u32 {v(t0)}, {L1_ZX + 321*128}, {v(t0)}")
    a(f"ds_write_b32 {v(t0)}, {v(t1)}")
    za = [vp.get() for _ in range(8)]
    a(f"v_mul_u32_u24 {v(t0)}, 80, {v(g)}")
    a(f"v_add_u32 {v(t0)}, {v(t0)}, {v(i16)}")
    for u in range(2):
        for r in range(4):
            z = za[4*u+r]
            if u == 0:
                a(f"v_add_u32 {v(t1)}, {20*r + L1_ZX//128}, {v(t0)}")
            else:
                a(f"v_sub_u32 {v(t1)}, {320-20*r + L1_ZX//128}, {v(t0)}")
            a(f"v_xor_b32 {v(t2)}, s{S_W}, {v(t1)}")
            a(f"v_and_b32 {v(t2)}, 7, {v(t2)}")
            a(f"v_lshlrev_b32 {v(t2)}, 4, {v(t2)}")
            a(f"v_lshl_add_u32 {v(z)}, {v(t1)}, 7, {v(t2)}")
    assert (L1_ZX // 128) % 8 == 0
    ca = [vp.get() for _ in range(4)]
    a(f"s_lshr_b32 s{s_hf}, s{S_W}, 2")
    a(f"v_and_b32 {v(t0)}, 7, v0")
    a(f"v_xor_b32 {v(t0)}, {v(t0)}, {v(g)}")
    a(f"v_lshlrev_b32 {v(t0)}, 4, {v(t0)}")
    a(f"v_lshl_add_u32 {v(t0)}, {v(i16)}, 7, {v(t0)}")
    a(f"s_mul_i32 s{s_t}, s{s_hf}, {12*2048}")
    a(f"s_add_u32 s{s_t}, s{s_t}, {L1_ZX}")
    a(f"v_add_u32 {v(ca[0])}, s{s_t}, {v(t0)}")
    a(f"v_xor_b32 {v(ca[1])}, 64, {v(ca[0])}")
    a(f"v_lshlrev_b32 {v(t0)}, 4, {v(g)}")
    a(f"v_add_u32 {v(t0)}, {L1_ZX + 320*128}, {v(t0)}")
    a(f"v_add_u32 {v(t1)}, 128, {v(t0)}")
    a(f"v_cmp_eq_u32 vcc, 7, {v(i16)}")
    a(f"v_cndmask_b32 {v(t0)}, {v(t1)}, {v(t0)}, vcc")
    a(f"v_add_u32 {v(t1)}, {8*2048}, {v(ca[0])}")
    a(f"s_cmp_eq_u32 s{s_hf}, 1")
    a(f"s_cselect_b64 vcc, -1, 0")
    a(f"v_cndmask_b32 {v(ca[2])}, {v(t1)}, {v(t0)}, vcc")
    a(f"v_xor_b32 {v(ca[3])}, 64, {v(ca[2])}")
    sw, sr, gv = vp.get(), vp.get(), vp.get()
    a(f"s_mul_i32 s{s_t}, s{S_W}, {16*SP}")
    a(f"v_mul_u32_u24 {v(sw)}, {SP}, {v(i16)}")
    a(f"v_lshl_add_u32 {v(sw)}, {v(g)}, 3, {v(sw)}")
    a(f"v_add_u32 {v(sw)}, s{s_t}, {v(sw)}")
    a(f"v_lshrrev_b32 {v(t0)}, 3, v0")
    a(f"v_and_b32 {v(t1)}, 7, v0")
    a(f"v_mul_u32_u24 {v(gv)}, {2*49152}, {v(t0)}")
    a(f"v_lshl_add_u32 {v(gv)}, {v(t1)}, 4, {v(gv)}")
    a(f"s_and_b32 s{s_t+1}, s{s_n}, 6")
    a(f"v_xor_b32 {v(t1)}, s{s_t+1}, {v(t1)}")
    a(f"v_lshlrev_b32 {v(t1)}, 4, {v(t1)}")
    a(f"v_mul_u32_u24 {v(sr)}, {SP}, {v(t0)}")
    a(f"v_add3_u32 {v(sr)}, {v(sr)}, {v(t1)}, s{s_t}")
    a(f"s_lshr_b32 s{s_k1}, s{S_IDX}, 1")
    a(f"s_and_b32 s{s_h2}, s{S_IDX}, 1")
    wv = [vp.get() for _ in range(3)]
    a(f"s_mul_i32 s{s_t+1}, s{s_h2}, 192")
    for i in range(3):
        a(f"s_lshl_b32 s{s_t}, s{S_W}, 6")
        a(f"s_add_u32 s{s_t}, s{s_t}, {512*i}")
        a(f"v_add_u32 {v(t2)}, s{s_t}, v0")
        divmod_const(a, t0, t1, t2, 24)
        a(f"v_and_b32 {v(t2)}, 6, {v(t0)}")
        a(f"v_xor_b32 {v(t1)}, {v(t1)}, {v(t2)}")
        a(f"v_lshl_add_u32 {v(t1)}, {v(t1)}, 3, s{s_t+1}")
        a(f"v_min_u32 {v(t1)}, 313, {v(t1)}")
        a(f"v_mul_u32_u24 {v(wv[i])}, {32*642}, {v(t0)}")
        a(f"v_lshl_add_u32 {v(wv[i])}, {v(t1)}, 1, {v(wv[i])}")
    srd(a, R_B, P_WR, 1314816); srd(a, R_C, P_WI, 1314816)
    a(f"s_mul_i32 s{s_wb}, s{s_k1}, 642")
    a(f"s_lshl_b32 s{s_wm0}, s{S_W}, 10")
    a(f"s_and_b32 s{s_b}, s{S_W}, 1")
    a(f"s_lshl_b32 s{s_b}, s{s_b}, 12")
    a(f"s_lshl_b32 s{s_t}, s{s_hf}, 7")
    a(f"s_add_u32 s{s_b}, s{s_b}, s{s_t}")
    a(f"s_and_b32 s{s_t}, s{S_W}, 2")
    a(f"s_lshl_b32 s{s_t}, s{s_t}, 5")
    a(f"s_add_u32 s{s_b}, s{s_b}, s{s_t}")
    a(f"s_add_u32 s{s_b}, s{s_b}, s{s_n}")
    a(f"s_mul_i32 s{s_b}, s{s_b}, 384")
    a(f"s_add_u32 s{s_b}, s{s_b}, {WS_ZP}")
    a(f"s_add_u32 s{s_i}, s{s_b}, {8*2*49152}")
    NP = 0
    mk = vp.mark()
    tb = vp.get(56, 4)
    F20 = [tb, tb + 4]; F32 = [tb + 8 + 4*i for i in range(8)]; TW = [tb + 40 + 4*i for i in range(4)]
    stamp(a, 1, 9)
    a(f"s_waitcnt vmcnt({7+NP})")
    a("s_barrier")
    for i in range(14):
        a(f"ds_read_b128 {v(tb+4*i,4)}, {v(l16)} offset:{L1_TAB+1024*i}")
    mk2 = vp.mark()
    f = vp.get(40, 2)
    ac = vp.get(8, 2)
    vp.reset(mk2 + 100)
    rr = vp.get(2, 2); e0 = vp.get(4, 4)
    mean, var, m, den, m2, den2 = [vp.get() for _ in range(6)]
    mk3 = vp.mark()
    stamp(a, 1, 2); stamp(a, 2, 9)
    for i in range(20):
        if i % 4 == 0:
            a(f"s_waitcnt vmcnt({6 + NP - i//4})")
        emit(a, unpack_l(f + 2*i, xr + i))
        if i < 2:
            a(f"v_pk_mul_f32 {v(ac+4+2*i,2)}, {v(f+2*i,2)}, {v(f+2*i,2)}")
        else:
            a(f"v_pk_fma_f32 {v(ac+4+2*(i&1),2)}, {v(f+2*i,2)}, {v(f+2*i,2)}, {v(ac+4+2*(i&1),2)}")
        if i in (2, 3):
            a(f"v_pk_add_f32 {v(ac+2*(i&1),2)}, {v(f+2*i-4,2)}, {v(f+2*i,2)}")
        elif i > 3:
            a(f"v_pk_add_f32 {v(ac+2*(i&1),2)}, {v(ac+2*(i&1),2)}, {v(f+2*i,2)}")
    stamp(a, 2, 2); stamp(a, 3, 9)
    a(f"v_pk_add_f32 {v(ac,2)}, {v(ac,2)}, {v(ac+2,2)}")
    a(f"v_pk_add_f32 {v(ac+4,2)}, {v(ac+4,2)}, {v(ac+6,2)}")
    a(f"v_add_f32 {v(mean)}, {v(ac)}, {v(ac+1)}")
    a(f"v_add_f32 {v(var)}, {v(ac+4)}, {v(ac+5)}")
    for sh in (8, 4, 2, 1):
        for dst in (mean, var):
            a(f"v_add_f32_dpp {v(dst)}, {v(dst)}, {v(dst)} row_ror:{sh} row_mask:0xf bank_mask:0xf")
    a(f"v_mul_f32 {v(mean)}, {hex(f2u(1/640))}, {v(mean)}")
    a(f"v_mul_f32 {v(var)}, {hex(f2u(1/640))}, {v(var)}")
    a(f"v_fma_f32 {v(var)}, -{v(mean)}, {v(mean)}, {v(var)}")
    a(f"v_max_f32 {v(var)}, 0, {v(var)}")
    bf16r(a, m, mean)
    bf16r(a, den, var)
    a(f"v_add_f32 {v(den)}, {hex(f2u(1e-5))}, {v(den)}")
    bf16r(a, den, den)
    a(f"v_sqrt_f32 {v(den)}, {v(den)}")
    bf16r(a, den, den)
    a(f"v_rcp_f32 {v(rr)}, {v(den)}")
    a(f"v_rcp_f32 {v(rr+1)}, {v(den)}")
    a(f"v_mul_f32 {v(ac)}, {v(m)}, {v(rr)}")
    a(f"v_sub_f32 {v(ac)}, 0, {v(ac)}")
    a(f"v_mov_b32 {v(ac+1)}, {v(ac)}")
    for i in range(21):
        if i < 20:
            a(f"v_pk_fma_f32 {v(f+2*i,2)}, {v(f+2*i,2)}, {v(rr,2)}, {v(ac,2)}")
        if i > 0:
            a(cvt_s(xr + i - 1, f + 2*i - 2, f + 2*i - 1))
            if i % 4 == 0:
                a(f"ds_write_b128 {v(xw)}, {v(xr+i-4,4)} offset:{64*(i-4)}")
    vp.reset(mk2)
    d = [[[vp.get(4, 4) for pl in range(2)] for t in range(2)] for row in range(4)]
    af = [[vp.get(4, 4) for t in range(2)] for row in range(4)]
    tmp = [vp.get(4, 4)]
    assert vp.mark() <= mk2 + 100
    vp.reset(mk3)
    tmp.append(vp.get(4, 4))
    zo = [xr + 4*i for i in range(5)] + [vp.get(4, 4) for _ in range(3)]

    def wdma(k):
        i, pl = k >> 1, k & 1
        a(f"s_add_u32 m0, s{s_wm0}, {(L2_WI if pl else L2_WR) + i*8192}")
        dma(a, wv[i], R_C if pl else R_B, f"s{s_wb}")
    a(f"v_sub_f32 {v(m2)}, {v(mean)}, {v(m)}")
    a(f"v_mul_f32 {v(m2)}, {v(m2)}, {v(rr)}")
    bf16r(a, m2, m2)
    a(f"v_mul_f32 {v(den2)}, {v(var)}, {v(rr)}")
    a(f"v_mul_f32 {v(den2)}, {v(den2)}, {v(rr)}")
    bf16r(a, den2, den2)
    a(f"v_add_f32 {v(den2)}, {hex(f2u(1e-5))}, {v(den2)}")
    bf16r(a, den2, den2)
    a("s_waitcnt lgkmcnt(0)")
    stamp(a, 3, 2); stamp(a, 4, 9)
    for row in range(4):
        for t in range(2):
            a(f"ds_read_b64_tr_b16 {v(af[row][t],2)}, {v(ta0)} offset:{row*1280+t*32}")
            a(f"ds_read_b64_tr_b16 {v(af[row][t]+2,2)}, {v(ta1)} offset:{row*1280+t*32}")
        if row == 2:
            nonce(a)
            a(f"v_sqrt_f32 {v(den2)}, {v(den2)}")
            bf16r(a, den2, den2)
            a(f"v_rcp_f32 {v(den2)}, {v(den2)}")
            a(f"v_fma_f32 {v(m)}, {v(m2)}, {v(den)}, {v(m)}")
            a(f"v_mul_f32 {v(e0)}, {v(rr)}, {v(den2)}")
            a(f"v_mul_f32 {v(e0+2)}, {v(e0)}, {v(m)}")
            a(f"v_sub_f32 {v(e0+2)}, 0, {v(e0+2)}")
            a(f"v_mov_b32 {v(e0+1)}, s{S_E}")
            a(f"v_mov_b32 {v(e0+3)}, s{S_E+1}")
            a("s_waitcnt lgkmcnt(8)")
    a(f"s_lshl_b32 s{s_t}, s{s_n}, 3")
    a(f"s_add_u32 s{s_t}, s{s_t}, s{S_W}")
    a(f"s_lshl_b32 s{s_t}, s{s_t}, 6")
    a(f"s_add_u32 s{s_t}, s{s_t}, {WS_ST}")
    a(f"v_lshlrev_b32 {v(t0)}, 4, {v(g)}")
    a("s_mov_b32 exec_lo, 0x00010001")
    a("s_mov_b32 exec_hi, 0x00010001")
    a(f"buffer_store_dwordx4 {v(e0,4)}, {v(t0)}, {s(R_WS,4)}, s{s_t} offen {SC}")
    a("s_mov_b64 exec, -1")
    l = a.newlabel("L_px")
    a(f"s_cmp_lg_u32 s{S_W}, 0")
    a(f"s_cbranch_scc1 {l}")
    publish_xcc(a, s_t)
    a.label(l)
    R1 = lambda row: [mfma_s(d[row][t][pl], af[row][t], F20[pl], "0") for t in range(2) for pl in range(2)]
    R2 = lambda row: ([mfma_s(d[row][u][op], F32[4*u+2*op], af[row][0], "0") for u in range(2) for op in range(2)] +
                      [mfma_s(d[row][u][op], F32[4*u+2*op+1], af[row][1]) for u in range(2) for op in range(2)])
    TWD = lambda row: (twiddle_l(d[row][0][0], d[row][0][1], TW[0], TW[1], tmp[0]) + twiddle_l(d[row][1][0], d[row][1][1], TW[2], TW[3], tmp[1]) +
                       [cvt_s(af[row][pl]+2*t+h, d[row][t][pl]+2*h, d[row][t][pl]+2*h+1) for pl in range(2) for t in range(2) for h in range(2)])
    OUT = lambda row: [cvt_s(zo[4*u+r]+row, d[row][u][0]+r, d[row][u][1]+r) for u in range(2) for r in range(4)]
    emit(a, R1(0))
    a("s_waitcnt lgkmcnt(8)")
    emit(a, R1(1))
    wdma(0)
    a("s_waitcnt lgkmcnt(0)")
    weave(a, R1(2) + R1(3), TWD(0))
    wdma(1)
    weave(a, R2(0), TWD(1))
    wdma(2)
    weave(a, R2(1), TWD(2) + OUT(0))
    wdma(3)
    weave(a, R2(2), TWD(3) + OUT(1))
    wdma(4)
    weave(a, R2(3), OUT(2))
    wdma(5)
    stamp(a, 5, 9)
    o3 = OUT(3)
    for i in range(8):
        a(o3[i])
        a(f"ds_write_b128 {v(za[i])}, {v(zo[i],4)}")
    vp.reset(mk)
    zf = [[vp.get(4, 4) for ks in range(2)] for i in range(12)]
    dd = [vp.get(4, 4) for i in range(12)]
    ob = [vp.get(4, 4) for i in range(6)]
    a("s_waitcnt vmcnt(6) lgkmcnt(0)")
    stamp(a, 6, 9)
    a("s_barrier")
    stamp(a, 4, 2); stamp(a, 7, 9)

    def crd(i):
        return [f"ds_read_b128 {v(zf[i][ks],4)}, {v(ca[2+ks])}" if i == 8 else
                f"ds_read_b128 {v(zf[i][ks],4)}, {v(ca[ks])} offset:{i*2048}" for ks in range(2)]
    cout = lambda i: [cvt_s(dd[i], dd[i], dd[i]+1), cvt_s(dd[i]+1, dd[i]+2, dd[i]+3), f"ds_write_b64 {v(sw)}, {v(dd[i],2)} offset:{L1_ST + i*32}"]
    q = []
    def lds(x, tag):
        a(x); q.append(tag); assert len(q) <= 15
    def lwait(tag):
        idx = [i for i, t in enumerate(q) if t == tag]
        if idx:
            a(f"s_waitcnt lgkmcnt({len(q)-1-idx[-1]})")
            del q[:idx[-1]+1]
    def line_rd(ln):
        for h in range(2):
            lds(f"ds_read_b128 {v(ob[2*ln+h],4)}, {v(sr)} offset:{L1_ST + h*8*SP + ln*128}", ("o", ln))
    def line_st(ln):
        lwait(("o", ln))
        for h in range(2):
            a(f"buffer_store_dwordx4 {v(ob[2*ln+h],4)}, {v(gv)}, {s(R_WS,4)}, s{s_i if h else s_b} offen offset:{ln*128} {SC}")
    for i in range(4):
        for x in crd(i): lds(x, i)
    for i in range(15):
        if i < 12:
            lwait(i)
            mfma(a, dd[i], zf[i][0], mf, "0")
            mfma(a, dd[i], zf[i][1], mf + 4)
        if i + 4 < 12:
            for x in crd(i + 4): lds(x, i + 4)
        if i >= 3:
            c = cout(i - 3); a(c[0]); a(c[1]); lds(c[2], "w")
            if (i - 3) % 4 == 3:
                line_rd((i - 3) // 4)
        if i == 9:
            stamp(a, 1, 7); stamp(a, 8, 9)
            line_st(0)
        if i == 13:
            line_st(1)
    line_st(2)
    stamp(a, 2, 7)

    vp.reset(mk)
    ra, rw, wa, tadr, sr, gv = za[0], za[1], za[2], za[3], za[4], za[5]
    a(f"v_lshrrev_b32 {v(t0)}, 2, v0")
    a(f"v_mul_u32_u24 {v(ra)}, 384, {v(t0)}")
    a(f"v_bfe_u32 {v(t0)}, v0, 3, 2")
    a(f"v_xor_b32 {v(t0)}, s{S_W}, {v(t0)}")
    a(f"v_lshl_add_u32 {v(ra)}, {v(t0)}, 5, {v(ra)}")
    a(f"v_and_b32 {v(t0)}, 3, v0")
    a(f"v_lshl_add_u32 {v(ra)}, {v(t0)}, 3, {v(ra)}")
    a(f"v_add_u32 {v(rw)}, {L2_WR}, {v(ra)}")
    a(f"v_mul_u32_u24 {v(wa)}, 384, {v(i16)}")
    a(f"v_bfe_u32 {v(t0)}, v0, 1, 2")
    a(f"v_xor_b32 {v(t0)}, s{S_W}, {v(t0)}")
    a(f"v_lshl_add_u32 {v(wa)}, {v(t0)}, 5, {v(wa)}")
    a(f"v_lshl_add_u32 {v(wa)}, {v(g)}, 3, {v(wa)}")
    a(f"v_add_u32 {v(tadr)}, {L2_TAB}, {v(l16)}")
    a(f"v_lshrrev_b32 {v(t0)}, 3, v0")
    a(f"v_and_b32 {v(t1)}, 7, v0")
    a(f"v_mul_u32_u24 {v(gv)}, 49152, {v(t0)}")
    a(f"v_lshl_add_u32 {v(gv)}, {v(t1)}, 4, {v(gv)}")
    a(f"v_xor_b32 {v(t2)}, s{s_k1}, {v(t0)}")
    a(f"v_and_b32 {v(t2)}, 6, {v(t2)}")
    a(f"v_xor_b32 {v(t1)}, {v(t1)}, {v(t2)}")
    a(f"v_mul_u32_u24 {v(sr)}, 384, {v(t0)}")
    a(f"v_lshl_add_u32 {v(sr)}, {v(t1)}, 4, {v(sr)}")
    X = [[vp.get(4, 4) for t in range(4)] for pl in range(2)]
    z = [[vp.get(4, 4) for ks in range(2)] for pl in range(2)]
    tb = vp.get(96, 4)
    C = [[tb + 8*t + 4*ks for ks in range(2)] for t in range(4)]
    Sm = [[tb + 32 + 8*t + 4*ks for ks in range(2)] for t in range(4)]
    NS = [[tb + 64 + 8*t + 4*ks for ks in range(2)] for t in range(4)]
    y = [[vp.get(4, 4) for ks in range(2)] for pl in range(2)]
    wq = [[xr + 8*pl + 2*t for t in range(4)] for pl in range(2)]
    wu = [vp.get(4, 4) for _ in range(4)]
    tmp = xr + 16
    for i in range(16):
        a(f"ds_read_b128 {v(tb+4*i,4)}, {v(tadr)} offset:{1024*i}")
        if i == 11:
            a("s_waitcnt lgkmcnt(4)")
    a("s_waitcnt vmcnt(0)")
    a("s_barrier")
    stamp(a, 5, 2); stamp(a, 3, 7)
    wave_flag(a, 0, FL_Z)
    wread = [f"ds_read_b64_tr_b16 {v(wq[pl][t],2)}, {v(rw)} offset:{pl*24576+16*t*384}" for t in range(4) for pl in range(2)]
    zread = [f"ds_read_b64_tr_b16 {v(z[pl][ks]+2*h,2)}, {v(ra)} offset:{(pl*64+32*ks+16*h)*384}"
             for ks in range(2) for pl in range(2) for h in range(2)]
    a("s_waitcnt lgkmcnt(0)")
    emit(a, wread)
    for i in range(32):
        a(f"v_xor_b32 {v(tb+64+i)}, 0x80008000, {v(tb+32+i)}")
    l_np = a.newlabel("L_np")
    a(f"s_cmp_lg_u32 s{S_W}, 7")
    a(f"s_cbranch_scc1 {l_np}")
    a(f"s_lshl_b32 s{s_t+2}, s{S_IDX}, 9")
    a(f"s_add_u32 s{s_t+2}, s{s_t+2}, {FL_Z}")
    poll(a, f"s{s_t+2}", 64, s_t)
    a.label(l_np)
    a(f"s_mul_i32 s{s_b}, s{S_IDX}, 49152")
    a(f"s_mul_i32 s{s_t+1}, s{S_W}, 6144")
    a(f"s_add_u32 s{s_b}, s{s_b}, s{s_t+1}")
    a(f"s_add_u32 s{s_b}, s{s_b}, {WS_ZP}")
    a(f"s_add_u32 m0, s{s_t+1}, {L2_ZB}")
    a("s_barrier")
    stamp(a, 6, 2); stamp(a, 4, 7)
    for i in range(4):
        dma(a, l16, R_WS, f"s{s_b}", SC, off=i * 1024)
    a(f"s_add_u32 m0, s{s_t+1}, {L2_ZB + 4096}")
    a(f"s_add_u32 s{s_b}, s{s_b}, 4096")
    for i in range(2):
        dma(a, l16, R_WS, f"s{s_b}", SC, off=i * 1024)
    a(f"s_lshl_b32 s{s_b}, s{s_h2}, 6")
    a(f"s_add_u32 s{s_b}, s{s_b}, s{s_k1}")
    a(f"s_mul_i32 s{s_b}, s{s_b}, 384")
    a(f"s_add_u32 s{s_b}, s{s_b}, {WS_VP}")
    a(f"s_mul_i32 s{s_i}, s{s_h2}, 3")
    a(f"s_add_u32 s{s_i}, s{s_i}, s{S_W}")
    a("s_waitcnt vmcnt(0)")
    a("s_barrier")
    stamp(a, 7, 2)
    emit(a, zread)
    FW = lambda t: [mfma_s(X[0][t], C[t][0], z[0][0], "0"), mfma_s(X[1][t], C[t][0], z[1][0], "0"),
                    mfma_s(X[0][t], Sm[t][0], z[1][0]), mfma_s(X[1][t], NS[t][0], z[0][0]),
                    mfma_s(X[0][t], C[t][1], z[0][1]), mfma_s(X[1][t], C[t][1], z[1][1]),
                    mfma_s(X[0][t], Sm[t][1], z[1][1]), mfma_s(X[1][t], NS[t][1], z[0][1])]
    def UNP(t):
        o = []
        for pl in range(2):
            for h in range(2):
                o += unpack_l(wu[2*(t&1)+pl] + 2*h, wq[pl][t] + h)
        return o
    def CM(t):
        wr_, wi_ = wu[2*(t&1)], wu[2*(t&1)+1]
        re, im = X[0][t], X[1][t]
        o = [f"v_mul_f32 {v(tmp+r)}, {v(im+r)}, {v(wi_+r)}" for r in range(4)]
        o += [f"v_mul_f32 {v(im+r)}, {v(im+r)}, {v(wr_+r)}" for r in range(4)]
        o += [f"v_fmac_f32 {v(im+r)}, {v(re+r)}, {v(wi_+r)}" for r in range(4)]
        o += [f"v_fma_f32 {v(re+r)}, {v(re+r)}, {v(wr_+r)}, -{v(tmp+r)}" for r in range(4)]
        o += [cvt_s(y[pl][t>>1]+2*(t&1)+h, X[pl][t]+2*h, X[pl][t]+2*h+1) for pl in range(2) for h in range(2)]
        return o
    IV = lambda t, ks: [mfma_s(X[0][t], y[0][ks], C[t][ks], "0" if ks == 0 else None), mfma_s(X[1][t], y[1][ks], C[t][ks], "0" if ks == 0 else None),
                        mfma_s(X[0][t], y[1][ks], NS[t][ks]), mfma_s(X[1][t], y[0][ks], Sm[t][ks])]
    WO = lambda t: [x for pl in range(2) for x in (cvt_s(X[pl][t], X[pl][t], X[pl][t]+1), cvt_s(X[pl][t]+1, X[pl][t]+2, X[pl][t]+3),
                                                   f"ds_write_b64 {v(wa)}, {v(X[pl][t],2)} offset:{(pl*64+16*t)*384}")]
    l_loop, l_r2, l_st = a.newlabel("L_f2l"), a.newlabel("L_f2r"), a.newlabel("L_f2s")
    a.label(l_loop)
    a("s_waitcnt lgkmcnt(0)")
    weave(a, FW(0), UNP(0) + UNP(1))
    weave(a, FW(1), [f"v_add_u32 {v(ra)}, 256, {v(ra)}", f"v_add_u32 {v(rw)}, 256, {v(rw)}"] + CM(0))
    weave(a, FW(2), UNP(2) + CM(1))
    weave(a, FW(3), UNP(3) + CM(2))
    weave(a, IV(0, 0) + IV(1, 0) + IV(2, 0), zread + CM(3))
    a("s_waitcnt lgkmcnt(4)")
    weave(a, IV(0, 1) + IV(3, 0) + IV(1, 1), wread)
    a("s_waitcnt lgkmcnt(4)")
    weave(a, IV(2, 1) + IV(3, 1), WO(0) + WO(1))
    emit(a, WO(2) + WO(3))
    a(f"v_add_u32 {v(wa)}, 256, {v(wa)}")
    a(f"s_cmp_eq_u32 s{s_i}, 64")
    a("s_waitcnt lgkmcnt(0)")
    a(f"s_cbranch_scc1 {l_r2}")
    a("s_barrier")
    a(f"s_cmp_lt_u32 s{s_i}, 4")
    a(f"s_mov_b32 s{s_i}, 64")
    a(f"s_cbranch_scc1 {l_loop}")
    a(f"s_cmp_lt_u32 s{S_W}, 4")
    a(f"s_cbranch_scc1 {l_r2}")
    a(f"s_and_b32 s{s_t}, s{S_W}, 3")
    a(f"s_mul_i32 s{s_t+1}, s{s_t}, {32*384}")
    a(f"v_add_u32 {v(t0)}, s{s_t+1}, {v(sr)}")
    for i in range(8):
        a(f"ds_read_b128 {v(X[0][0]+4*i,4)}, {v(t0)} offset:{L2_ZB + (i>>1)*8*384 + (i&1)*128}")
    a(f"s_and_b32 s{s_t+1}, s{s_t}, 1")
    a(f"s_mul_i32 s{s_t+1}, s{s_t+1}, {32*49152}")
    a(f"s_lshr_b32 s{s_t}, s{s_t}, 1")
    a(f"s_mul_i32 s{s_t}, s{s_t}, {32*384}")
    a(f"s_add_u32 s{s_t}, s{s_t}, s{s_t+1}")
    a(f"s_add_u32 s{s_t}, s{s_t}, s{s_b}")
    for i in range(8):
        if i and not i & 1:
            a(f"s_add_u32 s{s_t}, s{s_t}, {8*49152}")
        a(f"s_waitcnt lgkmcnt({7-i})")
        a(f"buffer_store_dwordx4 {v(X[0][0]+4*i,4)}, {v(gv)}, {s(R_WS,4)}, s{s_t} offen offset:{(i&1)*128} {SC}")
    tab3_dma(a, s_t)
    a(f"s_cmp_lg_u32 s{S_W}, 7")
    a(f"s_cbranch_scc1 {l_r2}")
    gf_make(a, s_t)
    gf_put(a)
    a("s_waitcnt lgkmcnt(0)")
    a.label(l_r2)
    a(f"s_mul_i32 s{s_t+1}, s{S_W}, {16*384}")
    a(f"v_add_u32 {v(t0)}, s{s_t+1}, {v(sr)}")
    a(f"s_and_b32 s{s_t+1}, s{S_W}, 3")
    a(f"s_mul_i32 s{s_t+1}, s{s_t+1}, {16*49152}")
    a(f"s_lshr_b32 s{s_t}, s{S_W}, 2")
    a(f"s_mul_i32 s{s_t}, s{s_t}, {32*384}")
    a(f"s_add_u32 s{s_t}, s{s_t}, s{s_t+1}")
    a(f"s_add_u32 s{s_t}, s{s_t}, s{s_b}")
    a(f"s_add_u32 s{s_t+1}, s{s_t}, {8*49152}")
    a("s_barrier")
    stamp(a, 8, 2); stamp(a, 5, 7)
    for i in range(2):
        a(f"ds_read_b128 {v(z[0][i],4)}, {v(t0)} offset:{L2_ZB + i*8*384 + 256}")
    for i in range(2):
        a(f"s_waitcnt lgkmcnt({1-i})")
        a(f"buffer_store_dwordx4 {v(z[0][i],4)}, {v(gv)}, {s(R_WS,4)}, s{s_t+i} offen offset:256 {SC}")
    stamp(a, 6, 7)
    a("s_waitcnt vmcnt(0)")
    a("s_barrier")
    stamp(a, 7, 7)
    wave_flag(a, 0, FL_V)
    xb2_loads(a, s_t)
    a(f"s_mov_b32 s{S_PJ}, 0")
    a(f"s_mov_b32 s{S_HV}, 0")
    l = a.newlabel("L_ae")
    a(f"s_xor_b32 s{s_t}, s{S_W}, 1")
    a(f"s_or_b32 s{s_t}, s2, s{s_t}")
    a(f"s_cbranch_scc1 {l}")
    advance_epoch(a, s_t)
    a.label(l)


def f3(a, l_f3):
    s_t, s_have = S_T + 11, S_T + 14
    a.label(l_f3)
    stamp(a, 1, 8)
    vq = Pool("v", 88, V_TOP)
    tb = vq.get(56, 4)
    G32 = [tb + 4*i for i in range(8)]; G20 = [tb + 32, tb + 36]; TW = [tb + 40 + 4*i for i in range(4)]
    lc = vq.get(8, 4)
    nsn = vq.get(8, 4); o = vq.get(10, 2); xx = vq.get(10, 2); one2 = vq.get(2, 2)
    F_PFL = vq.get(2, 2)
    F_RA = [vq.get() for _ in range(3)]; F_UA = [vq.get() for _ in range(3)]
    F_UB0, F_UB1, F_SWR, F_SR0, F_SR1 = [vq.get() for _ in range(5)]
    F_PA, F_PB, F_PFA = lc, lc + 1, lc + 7
    a(f"v_add_u32 {v(T3)}, {L3_TAB}, {v(L16)}")
    for i in (14, 15, 11, 13, 10, 12) + tuple(range(8)):
        a(f"ds_read_b128 {v(tb+4*i,4)}, {v(T3)} offset:{1024*i}")
    srd(a, R_C, P_OUT, 2621440)
    a(f"s_mov_b32 s{s_have}, 0")
    a(f"v_mov_b32 {v(one2)}, 1.0"); a(f"v_mov_b32 {v(one2+1)}, 1.0")
    a(f"s_lshl_b32 s{S_PF}, s{S_N3}, 2")
    a(f"s_add_u32 s{S_PF}, s{S_PF}, s{S_Q3}")
    a(f"s_lshl_b32 s{S_PO}, s{S_PF}, 3")
    a(f"s_add_u32 s{S_PO}, s{S_PO}, s{S_W}")
    a(f"s_mul_i32 s{S_PO}, s{S_PO}, 160")
    a(f"s_add_u32 s{S_PO}, s{S_PO}, {WS_P}")
    a(f"s_lshl_b32 s{S_PF}, s{S_PF}, 8")
    a(f"s_add_u32 s{S_PF}, s{S_PF}, {FL_P}")
    l_nv, l_hv = a.newlabel("L_nv"), a.newlabel("L_hv")
    a(f"s_cmp_lt_u32 s{S_W}, 4")
    a(f"s_cbranch_scc1 {l_nv}")
    a(f"s_cmp_lg_u32 s{S_HV}, 0")
    a(f"s_cbranch_scc1 {l_nv}")
    a(f"s_lshl_b32 s{s_t+2}, s{S_N3}, 9")
    a(f"s_add_u32 s{s_t+2}, s{s_t+2}, {FL_V}")
    poll(a, f"s{s_t+2}", 64, s_t, depth=1, sleep=int(os.environ.get("VSLEEP", "0")) or None)
    stamp(a, 8, 7)
    vb_dma(a, s_t)
    a.label(l_nv)
    a("s_waitcnt lgkmcnt(10)")
    for i in (8, 9):
        a(f"ds_read_b128 {v(tb+4*i,4)}, {v(T3)} offset:{1024*i}")
    for i in range(2):
        a(f"ds_read_b128 {v(F_GF+4*i,4)}, {v(L16)} offset:{L3_GF + 1024*i}")
    for t in range(2):
        for r in range(4):
            a(f"v_xor_b32 {v(nsn+4*t+r)}, 0x80000000, {v(TW[2*t+1]+r)}")
    for k in range(3):
        a(f"s_add_u32 s{s_t}, s{S_W}, {8*k}")
        a(f"s_min_u32 s{s_t}, s{s_t}, 20")
        a(f"s_cmp_ge_u32 s{s_t}, 12")
        a(f"s_cselect_b32 s{s_t+1}, {L3_VB1 - L3_VB0 - 384}, 0")
        a(f"s_lshl_b32 s{s_t}, s{s_t}, 5")
        a(f"s_add_u32 s{s_t+1}, s{s_t+1}, s{s_t}")
        a(f"s_add_u32 s{s_t+1}, s{s_t+1}, {L3_VB0}")
        a(f"s_and_b32 s{s_t+2}, s{s_t+1}, 0x60")
        a(f"s_andn2_b32 s{s_t+1}, s{s_t+1}, 0x60")
        a(f"v_xor_b32 {v(F_RA[k])}, s{s_t+2}, {v(lc+2)}")
        a(f"v_add_u32 {v(F_RA[k])}, s{s_t+1}, {v(F_RA[k])}")
        a(f"s_lshl_b32 s{s_t}, s{s_t}, 1")
        a(f"s_add_u32 s{s_t}, s{s_t}, {L3_UX}")
        if k == 2:
            a(f"s_cmp_ge_u32 s{S_W}, 4")
            a(f"s_cselect_b64 vcc, -1, 0")
            a(f"v_cndmask_b32 {v(lc+3)}, {v(lc+3)}, {v(lc+4)}, vcc")
        a(f"v_add_u32 {v(F_UA[k])}, s{s_t}, {v(lc+3)}")
    a(f"s_mul_i32 s{s_t}, s{S_W}, {UP}")
    a(f"s_add_u32 s{s_t}, s{s_t}, {L3_UX}")
    a(f"v_add_u32 {v(F_UB0)}, s{s_t}, {v(lc+5)}")
    a(f"s_add_u32 s{s_t}, s{s_t}, {260*4}")
    a(f"v_sub_u32 {v(F_UB1)}, s{s_t}, {v(lc+5)}")
    a(f"s_lshl_b32 s{s_t}, s{S_W}, 11")
    a(f"s_add_u32 s{s_t}, s{s_t}, {L3_SX}")
    a(f"v_add_u32 {v(F_SWR)}, s{s_t}, {v(lc+6)}")
    a(f"v_add_u32 {v(F_SR0)}, s{s_t}, {v(L16)}")
    a(f"v_add_u32 {v(F_SR1)}, s{s_t}, {v(F_L4)}")
    stamp(a, 2, 8)
    a("s_waitcnt vmcnt(0)")
    stamp(a, 3, 8)
    l_nf = a.newlabel("L_nf")
    a(f"s_cmp_eq_u32 s{S_PJ}, 0")
    a(f"s_cbranch_scc1 {l_nf}")
    push_tag(a, S_FLAG, 8, 8, "fast")
    a.label(l_nf)

    def unpack(dst, A_, B_):
        for i in range(5):
            emit(a, unpack_l(dst + 2*i, A_ + i if i < 4 else B_))
    unpack(o, F_BA, F_BB)
    unpack(xx, F_XA, F_XB)
    vq = Pool("v", 8, 88)
    vf = [[vq.get(4, 4) for ks in range(2)] for k in range(3)]
    dd = [vq.get(4, 4) for k in range(4)]
    tmp = vq.get(4, 4)
    PA = [vq.get(4, 4) for _ in range(3)]; PB = [vq.get() for _ in range(3)]
    w_ = vq.get(10, 2); sf = vf[1][0]

    def load_p():
        for k in range(3):
            a(f"s_add_u32 s{s_t}, s{S_PO}, {k*2621440}")
            a(f"buffer_load_dwordx4 {v(PA[k],4)}, {v(F_PA)}, {s(R_WS,4)}, s{s_t} offen {SC}")
            a(f"buffer_load_dword {v(PB[k])}, {v(F_PB)}, {s(R_WS,4)}, s{s_t} offen {SC}")

    def look():
        a(f"buffer_load_dwordx2 {v(F_PFL,2)}, {v(F_PFA)}, {s(R_WS,4)}, s{S_PF} offen {SC}")

    def try_p(last=False):
        l_d, l_no, l_again = a.newlabel("L_tp"), a.newlabel("L_tn"), a.newlabel("L_ta")
        a(f"s_cmp_lg_u32 s{s_have}, 0")
        a(f"s_cbranch_scc1 {l_d}")
        if last:
            a(f"s_mov_b32 s{s_t+1}, 0x40000")
            a.label(l_again)
        a("s_waitcnt vmcnt(0)")
        a(f"v_cmp_ne_u64 vcc, s[{S_E}:{S_E+1}], {v(F_PFL,2)}")
        a(f"s_cbranch_vccz {l_no}")
        if last:
            a(f"s_sleep {os.environ.get('PSLEEP', '2')}")
        look()
        if last:
            a(f"s_sub_u32 s{s_t+1}, s{s_t+1}, 1")
            a(f"s_cbranch_scc0 {l_again}")
        else:
            a(f"s_branch {l_d}")
        a.label(l_no)
        load_p()
        a(f"s_mov_b32 s{s_have}, 1")
        a.label(l_d)

    a("s_waitcnt lgkmcnt(0)")
    a("s_barrier")
    stamp(a, 4, 8)
    look()
    for k in range(3):
        for ks in range(2):
            for h in range(2):
                a(f"ds_read_b64_tr_b16 {v(vf[k][ks]+2*h,2)}, {v(F_RA[k])} offset:{(32*ks+16*h)*384}")
    for k in range(3):
        a(f"s_waitcnt lgkmcnt({8-4*k})")
        mfma(a, dd[k], F_GF, vf[k][0], "0")
        mfma(a, dd[k], F_GF + 4, vf[k][1])
    for k in range(3):
        a(cvt_s(dd[k], dd[k], dd[k]+1))
        a(cvt_s(dd[k]+1, dd[k]+2, dd[k]+3))
        a(f"ds_write_b32 {v(F_UA[k])}, {v(dd[k])}")
        a(f"ds_write_b32 {v(F_UA[k])}, {v(dd[k]+1)} offset:{UP}")
    a("s_waitcnt lgkmcnt(0)")
    a("s_barrier")
    stamp(a, 5, 8)
    uf = vf[0]
    a(f"ds_read2_b32 {v(uf[0],2)}, {v(F_UB0)} offset0:0 offset1:20")
    a(f"ds_read2_b32 {v(uf[0]+2,2)}, {v(F_UB0)} offset0:40 offset1:60")
    a(f"ds_read2_b32 {v(uf[1],2)}, {v(F_UB1)} offset0:60 offset1:40")
    a(f"ds_read2_b32 {v(uf[1]+2,2)}, {v(F_UB1)} offset0:20 offset1:0")
    try_p()
    a("s_waitcnt lgkmcnt(0)")
    for t in range(2):
        for u in range(2):
            for op in range(2):
                mfma(a, dd[2*t+op], uf[u], G32[4*t+2*op+u], "0" if u == 0 else None)
    tf = vf[2]
    for t in range(2):
        emit(a, twiddle_l(dd[2*t], dd[2*t+1], TW[2*t], TW[2*t+1], tmp, nsn + 4*t))
        for pl in range(2):
            for h in range(2):
                a(cvt_s(tf[t]+2*pl+h, dd[2*t+pl]+2*h, dd[2*t+pl]+2*h+1))
        for tp in range(2):
            mfma(a, dd[2*t+tp], tf[t], G20[tp], "0")
    for t in range(2):
        for tp in range(2):
            r = dd[2*t+tp]
            a(cvt_s(r, r, r+1))
            a(cvt_s(r+1, r+2, r+3))
            a(f"ds_write_b64 {v(F_SWR)}, {v(r,2)} offset:{tp*1024+t*32}")
    stamp(a, 6, 8)
    try_p(True)
    a("s_waitcnt lgkmcnt(0)")
    a(f"ds_read_b128 {v(F_BA,4)}, {v(F_SR0)}")
    a(f"ds_read_b32 {v(F_BB)}, {v(F_SR1)} offset:1024")
    stamp(a, 7, 8)
    for k in range(3):
        a(f"s_waitcnt vmcnt({4-2*k})")
        unpack(w_, PA[k], PB[k])
        for i in range(5):
            a(f"v_pk_add_f32 {v(o+2*i,2)}, {v(o+2*i,2)}, {v(w_+2*i,2)}")
    for i in range(10):
        a(f"v_mul_f32 {v(w_+i)}, {hex(f2u(-np.log2(np.e)))}, {v(o+i)}")
    for i in range(10):
        a(f"v_exp_f32 {v(w_+i)}, {v(w_+i)}")
    a("s_waitcnt lgkmcnt(0)")
    unpack(sf, F_BA, F_BB)
    for i in range(5):
        a(f"v_pk_add_f32 {v(w_+2*i,2)}, {v(w_+2*i,2)}, {v(one2,2)}")
    for i in range(5):
        a(f"v_pk_mul_f32 {v(o+2*i,2)}, {v(o+2*i,2)}, {v(sf+2*i,2)}")
    for i in range(10):
        a(f"v_rcp_f32 {v(w_+i)}, {v(w_+i)}")
    for i in range(5):
        a(f"v_pk_fma_f32 {v(o+2*i,2)}, {v(o+2*i,2)}, {v(w_+2*i,2)}, {v(xx+2*i,2)}")
    for i in range(5):
        a(cvt_s(PA[1] + i if i < 4 else PB[1], o+2*i, o+2*i+1))
    stamp(a, 8, 8)
    fl = os.environ.get("OUTSC", "")
    a(f"buffer_store_dwordx4 {v(PA[1],4)}, {v(L16)}, {s(R_C,4)}, s{S_ROW} offen {fl}")
    a(f"buffer_store_dword {v(PB[1])}, {v(F_L4)}, {s(R_C,4)}, s{S_ROW} offen offset:1024 {fl}")


def build():
    a = Asm()
    a("s_cmpk_ge_u32 s2, 0x100")
    a("s_cbranch_scc1 L_exit")
    a("s_load_dwordx16 s[4:19], s[0:1], 0")
    a("s_load_dwordx2 s[20:21], s[0:1], 64")
    a("s_load_dwordx2 s[24:25], s[0:1], 80")
    stamp_begin(a)
    a(f"s_getpc_b64 s[{R_TAB}:{R_TAB+1}]")
    a(f"s_add_u32 s{R_TAB}, s{R_TAB}, ctab@rel32@lo+4")
    a(f"s_addc_u32 s{R_TAB+1}, s{R_TAB+1}, ctab@rel32@hi+12")
    a(f"s_mov_b32 s{R_TAB+2}, {TAB_END}")
    a(f"s_mov_b32 s{R_TAB+3}, 0x20000")
    a("v_lshrrev_b32 v1, 6, v0")
    a(f"v_readfirstlane_b32 s{S_W}, v1")
    a("v_and_b32 v0, 63, v0")
    a(f"v_and_b32 {v(I16)}, 15, v0")
    a(f"v_lshrrev_b32 {v(G)}, 4, v0")
    a(f"v_lshlrev_b32 {v(L16)}, 4, v0")
    t = S_T
    a(f"s_and_b32 s{t}, s2, 7")
    a(f"s_lshr_b32 s{t+1}, s2, 3")
    a(f"s_lshl_b32 s{S_N3}, s{t}, 3")
    a(f"s_add_u32 s{S_IDX}, s{S_N3}, s{t+1}")
    a(f"s_lshr_b32 s{t+2}, s{t+1}, 2")
    a(f"s_add_u32 s{S_N3}, s{S_N3}, s{t+2}")
    a(f"s_and_b32 s{S_Q3}, s{t+1}, 3")
    a(f"s_sub_u32 s{t+2}, s{t+2}, 2")
    a(f"s_lshl_b32 s{S_RB}, s{t}, 1")
    a(f"s_sub_u32 s{S_KT}, s{t+2}, 3")
    a(f"s_cselect_b32 s{S_KT}, s{t+2}, s{S_KT}")
    a(f"s_cselect_b32 s{t+3}, 0, 1")
    a(f"s_add_u32 s{S_RB}, s{S_RB}, s{t+3}")
    a(f"s_mov_b32 s{S_SUB}, s{S_Q3}")
    a(f"s_mul_i32 s{S_FLAG}, s{S_RB}, 3")
    a(f"s_add_u32 s{S_FLAG}, s{S_FLAG}, s{S_KT}")
    a(f"s_lshl_b32 s{S_FLAG}, s{S_FLAG}, 2")
    a(f"s_add_u32 s{S_FLAG}, s{S_FLAG}, s{S_SUB}")
    a("s_waitcnt lgkmcnt(0)")
    srd(a, R_WS, P_WS, WS_END)
    a(f"s_cmp_ge_u32 s{t+1}, 8")
    a("s_cbranch_scc1 L_gemm")
    for _ in range(int(os.environ.get("SHIFT", "0"))):
        a("s_nop 0")
    fft_head(a)
    a("s_branch L_fft")
    a.label("L_gemm")
    a(f"s_cmp_lt_u32 s{S_W}, 4")
    a("s_cbranch_scc1 L_comp")
    gemm_loader(a, "L_f3")
    a.label("L_comp")
    gemm_compute(a, "L_f3")
    a.label("L_fft")
    fft_role(a)
    f3(a, "L_f3")
    stamp_end(a)
    a.label("L_exit")
    a("s_endpgm")
    a.resolve()
    nv, ns = a.max_regs()
    print("instr", len(a.ins), "vgpr", nv, "sgpr", ns, file=sys.stderr)
    kn = NAME + "_kernel"
    out = "; generated by gen/gen5.py (hand-written generator)\n"
    out += "; @launch grid=(256,1,1) block=(512,1,1) lds=163840\n"
    out += '.amdgcn_target "amdgcn-amd-amdhsa--gfx950"\n.text\n'
    out += f".globl {kn}\n.p2align 8\n.type {kn},@function\n{kn}:\n" + a.text()
    out += f'''.section .rodata,"a"
.p2align 6
.amdhsa_kernel {kn}
  .amdhsa_next_free_vgpr 256
  .amdhsa_next_free_sgpr {ns}
  .amdhsa_accum_offset 256
  .amdhsa_group_segment_fixed_size 0
  .amdhsa_kernarg_size 88
  .amdhsa_user_sgpr_count 2
  .amdhsa_user_sgpr_kernarg_segment_ptr 1
  .amdhsa_system_sgpr_workgroup_id_x 1
  .amdhsa_float_denorm_mode_32 3
.end_amdhsa_kernel
'''
    out += tables.as_asm("ctab", tables.tab_f1() + tables.tab_f2()[:16384] + tables.tab_f3(384))
    return out


if __name__ == "__main__":
    path = sys.argv[1] if len(sys.argv) > 1 else f"cdna_kernels/{NAME}.s"
    open(path, "w").write(build())
```

```python
import sys, struct, os
import numpy as np
from asmlib import Asm, Pool, v, s
import tables

NAME = "recurrent_scan__spectral_gfnet__mixer_channel_mlp__prompt"
STAMP = int(os.environ.get("STAMP", "0"))
OPT = set(os.environ.get("OPT", "").split(","))

WS_H = 0
WS_ZP = WS_H + 2048 * 1536 * 2
WS_VP = WS_ZP + 64 * 49152
WS_P = WS_VP + 64 * 49152
WS_ST = WS_P + 3 * 2621440
WS_EP = WS_ST + 2048 * 16
FL_H = WS_EP + 128
FL_X = FL_H + 192 * 128
FL_Z = FL_X + 2048
FL_V = FL_Z + 64 * 512
FL_P = FL_V + 64 * 512
WS_END = FL_P + 256 * 256
WS_DBG = 24 << 20
TAB_F1, TAB_F2, TAB_F3, TAB_END = 0, 16384, 32768, 49152
SC = "sc1"
POISON = 0x7f817f81
OPTIM = "optim" in OPT

def f2u(x):
    return struct.unpack("<I", struct.pack("<f", x))[0]

P_X, P_WR, P_WI, P_W1, P_B1, P_W2, P_B2, P_OUT, P_DBG, P_WS = 4, 6, 8, 12, 14, 16, 18, 20, 22, 24
S_E = 10
S_W, S_PJ = 26, 27
R_WS, R_TAB, R_A, R_B, R_C, R_D = 28, 32, 36, 40, 44, 48
S_ROW, S_PO, S_PF, S_FAST = 52, 53, 54, 55
S_RB, S_SUB, S_KT, S_IDX, S_N3, S_Q3, S_FLAG, S_F2 = 56, 57, 58, 59, 60, 61, 62, 63
S_T = 64
S_RETRY = 23
S_HV = 22
NSTAMP, ST0 = 10, 80
STAG = int(os.environ.get("STAG", "5"))
I16, G, L16, T0, T1, T2, T3 = 1, 2, 3, 4, 5, 6, 7
V_POLL = 248
F_XA, F_BA, F_GF, F_XB, F_BB, F_L4 = 228, 232, 236, 244, 245, 246
V_TOP = 228
LX, LW, WSL = 0, 65536, 20480
L_STAT = 147456
L_CS = L_STAT + 2048
L_MISC = L_CS + 512
L3_VB0, L3_VB1, L3_TAB, L3_UX = 32768, 106496, 147456, 65536
UP = 1376
L3_SX = L3_UX + 8 * UP
L3_GF = 57344
L1_TAB, L1_XN, L1_ZX, L1_ST = 0, 14336, 55296, 0
L2_ZB, L2_WR, L2_WI, L2_TAB = 0, 98304, 122880, 147456


def stamp(a, i, mode):
    if STAMP and (STAMP == mode or mode == 0):
        a(f"s_memtime s[{ST0+2*i}:{ST0+2*i+1}]")


def stamp_begin(a):
    if STAMP:
        for i in range(ST0 + 2, ST0 + 2 * NSTAMP):
            a(f"s_mov_b32 s{i}, 0")
        a("s_memrealtime s[100:101]")
        a("s_mov_b32 s3, 0")
        stamp(a, 0, 0)


def stamp_end(a):
    if STAMP:
        a("s_waitcnt vmcnt(0)")
        stamp(a, NSTAMP - 1, 0)
        a("s_memrealtime s[64:65]")
        a("s_waitcnt lgkmcnt(0)")
        for i in range(NSTAMP):
            a(f"v_mov_b32 v{8+i}, s{ST0+2*i}")
        a(f"v_mov_b32 v{8+NSTAMP}, s100")
        a(f"v_mov_b32 v{9+NSTAMP}, s64")
        a(f"v_mov_b32 v{10+NSTAMP}, s3")
        a("s_lshl_b32 s66, s2, 3")
        a(f"s_add_u32 s66, s66, s{S_W}")
        a("s_lshl_b32 s66, s66, 6")
        a(f"s_add_u32 s66, s66, {WS_DBG}")
        a(f"s_mov_b32 s{R_WS+2}, 0x2000000")
        a("v_mov_b32 v1, 0")
        a("s_mov_b64 exec, 1")
        for i in range(4):
            a(f"buffer_store_dwordx4 v[{8+4*i}:{11+4*i}], v1, {s(R_WS,4)}, s66 offen offset:{16*i}")


def srd(a, dst, ptr, size):
    a(f"s_mov_b32 s{dst}, s{ptr}")
    a(f"s_mov_b32 s{dst+1}, s{ptr+1}")
    a(f"s_mov_b32 s{dst+2}, {size}")
    a(f"s_mov_b32 s{dst+3}, 0x20000")


def dma(a, voff, srd_, soff, extra="", off=0):
    o = f"offset:{off} " if off else ""
    a(f"buffer_load_dwordx4 {v(voff)}, {s(srd_,4)}, {soff} offen {o}{extra + ' ' if extra else ''}lds")


def bf16r(a, dst, src):
    a(f"v_cvt_pk_bf16_f32 {v(dst)}, {v(src)}, {v(src)}")
    a(f"v_lshlrev_b32 {v(dst)}, 16, {v(dst)}")


def mfma_s(d, A, B, c=None):
    return f"v_mfma_f32_16x16x32_bf16 {v(d,4)}, {v(A,4)}, {v(B,4)}, {v(d,4) if c is None else c}"


def mfma(a, d, A, B, c=None):
    a(mfma_s(d, A, B, c))


def cvt_s(d, x, y):
    return f"v_cvt_pk_bf16_f32 {v(d)}, {v(x)}, {v(y)}"


def unpack_l(dst, src):
    return [f"v_lshlrev_b32 {v(dst)}, 16, {v(src)}", f"v_and_b32 {v(dst+1)}, 0xffff0000, {v(src)}"]


def divmod_const(a, q, r, x, c):
    m = (1 << 18) // c + 1
    for t in range(2048):
        assert (t * m) >> 18 == t // c
    a(f"v_mul_u32_u24 {v(q)}, {m}, {v(x)}")
    a(f"v_lshrrev_b32 {v(q)}, 18, {v(q)}")
    a(f"v_mul_u32_u24 {v(r)}, {c}, {v(q)}")
    a(f"v_sub_u32 {v(r)}, {v(x)}, {v(r)}")


def emit(a, lst):
    for x in lst:
        a(x)


def interleave(a, main, fill, per=1):
    fi = 0
    for m in main:
        a(m)
        for _ in range(per):
            if fi < len(fill):
                a(fill[fi]); fi += 1
    while fi < len(fill):
        a(fill[fi]); fi += 1


def weave(a, A, B):
    na, nb = len(A), len(B)
    ia = ib = 0
    while ia < na or ib < nb:
        if ib >= nb or (ia < na and ia * nb <= ib * na):
            a(A[ia]); ia += 1
        else:
            a(B[ib]); ib += 1


class VM:
    def __init__(self, a):
        self.a, self.q = a, []
    def op(self, tag, n=1):
        self.q += [tag] * n
    def wait(self, *tags):
        last = max([i for i, t in enumerate(self.q) if t in tags], default=-1)
        if last < 0:
            return
        n = len(self.q) - 1 - last
        assert n < 64
        self.a(f"s_waitcnt vmcnt({n})")
        self.q = self.q[last + 1:]


def load_epoch(a, s_t):
    a(f"s_add_u32 s{s_t}, s{P_WS}, {WS_EP}")
    a(f"s_addc_u32 s{s_t+1}, s{P_WS+1}, 0")
    a(f"s_load_dwordx2 s[{S_E}:{S_E+1}], s[{s_t}:{s_t+1}], 0")


def nonce(a):
    a(f"s_mul_i32 s{S_E}, s{S_E}, 1664525")
    a(f"s_add_u32 s{S_E}, s{S_E}, 1013904223")
    a(f"s_mul_i32 s{S_E+1}, s{S_E+1}, 22695477")
    a(f"s_add_u32 s{S_E+1}, s{S_E+1}, 1")


def push_tag(a, s_base, nrec, shift, sc=SC, hi=None):
    a(f"v_mov_b32 {v(T0)}, s{S_E}")
    a(f"v_mov_b32 {v(T1)}, s{S_E+1 if hi is None else hi}")
    a(f"v_lshlrev_b32 {v(T2)}, {shift}, v0")
    if nrec < 64:
        a(f"s_mov_b64 exec, {(1 << nrec) - 1}")
    if sc == "fast":
        store2(a, lambda f: f"buffer_store_dwordx2 {v(T0,2)}, {v(T2)}, {s(R_WS,4)}, s{s_base} offen {f}")
    else:
        a(f"buffer_store_dwordx2 {v(T0,2)}, {v(T2)}, {s(R_WS,4)}, s{s_base} offen {sc}")
    if nrec < 64:
        a("s_mov_b64 exec, -1")


def store2(a, fn):
    l1, l2 = a.newlabel("L_sf"), a.newlabel("L_se")
    a(f"s_cmp_lg_u32 s{S_FAST}, 0")
    a(f"s_cbranch_scc1 {l1}")
    a(fn(SC))
    a(f"s_branch {l2}")
    a.label(l1)
    a(fn(""))
    a.label(l2)


def xcc_tag(a, s_d):
    a(f"s_getreg_b32 s{s_d}, hwreg(HW_REG_XCC_ID, 0, 4)")
    a(f"s_xor_b32 s{s_d}, s{s_d}, s{S_E+1}")


def publish_xcc(a, s_t):
    xcc_tag(a, s_t + 1)
    a(f"s_and_b32 s{s_t}, s2, 7")
    a(f"s_lshl_b32 s{s_t}, s{s_t}, 8")
    a(f"s_and_b32 s{S_F2}, s2, 0xf8")
    a(f"s_add_u32 s{s_t}, s{s_t}, s{S_F2}")
    a(f"s_add_u32 s{s_t}, s{s_t}, {FL_X}")
    push_tag(a, s_t, 1, 3, hi=s_t + 1)


def poll(a, base, ntag, s_t, sleep=None, depth=3, lo_only=False):
    lp, done = a.newlabel("L_poll"), a.newlabel("L_pd")
    ad = V_POLL + 6
    a(f"v_min_u32 {v(ad)}, {ntag-1}, v0")
    a(f"v_lshlrev_b32 {v(ad)}, 3, {v(ad)}")
    a(f"s_mov_b32 s{s_t+1}, {base}")
    ld = lambda i: a(f"buffer_load_dwordx2 {v(V_POLL+2*i,2)}, {v(ad)}, {s(R_WS,4)}, s{s_t+1} offen {SC}")
    a(f"s_mov_b32 s{s_t}, 0x20000")
    if sleep:
        depth = 1
    for i in range(depth - 1):
        ld(i)
        a(f"s_sleep {STAG}")
    a.label(lp)
    for i in range(depth):
        ld((i + depth - 1) % depth)
        a(f"s_waitcnt vmcnt({depth-1})")
        if lo_only:
            a(f"v_xor_b32 {v(V_POLL+2*i+1)}, s{S_E+1}, {v(V_POLL+2*i+1)}")
            a(f"v_lshrrev_b32 {v(V_POLL+2*i+1)}, 4, {v(V_POLL+2*i+1)}")
            a(f"v_xor_b32 {v(V_POLL+2*i)}, s{S_E}, {v(V_POLL+2*i)}")
            a(f"v_or_b32 {v(V_POLL+2*i)}, {v(V_POLL+2*i)}, {v(V_POLL+2*i+1)}")
            a(f"v_cmp_ne_u32 vcc, 0, {v(V_POLL+2*i)}")
        else:
            a(f"v_cmp_ne_u64 vcc, s[{S_E}:{S_E+1}], {v(V_POLL+2*i,2)}")
        a(f"s_cbranch_vccz {done}")
        if sleep:
            a(f"s_sleep {sleep}")
    a(f"s_sub_u32 s{s_t}, s{s_t}, 1")
    a(f"s_cbranch_scc0 {lp}")
    a.label(done)


def advance_epoch(a, s_t):
    for i in range(4):
        poll(a, FL_X + 512 * i, 64, s_t, sleep=8, lo_only=True)
    a(f"s_mov_b32 s{S_F2}, {WS_EP}")
    push_tag(a, S_F2, 1, 3)


def wave_flag(a, w, base):
    l = a.newlabel("L_w0")
    a(f"s_cmp_lg_u32 s{S_W}, {w}")
    a(f"s_cbranch_scc1 {l}")
    a(f"s_lshl_b32 s{S_F2}, s{S_IDX}, 3")
    a(f"s_add_u32 s{S_F2}, s{S_F2}, {base}")
    push_tag(a, S_F2, 64, 9)
    a.label(l)


def tab3_dma(a, s_t):
    a(f"s_and_b32 s{s_t}, s{S_W}, 3")
    a(f"s_lshl_b32 s{s_t}, s{s_t}, 12")
    a(f"s_add_u32 m0, s{s_t}, {L3_TAB}")
    a(f"s_add_u32 s{s_t}, s{s_t}, {TAB_F3}")
    for k in range(4):
        dma(a, L16, R_TAB, f"s{s_t}", off=k * 1024)


def vb_dma(a, s_t):
    a(f"s_and_b32 s{s_t}, s{S_W}, 3")
    a(f"s_mul_i32 s{s_t+1}, s{S_N3}, 49152")
    a(f"s_mul_i32 s{s_t}, s{s_t}, 12288")
    a(f"s_add_u32 s{s_t+1}, s{s_t+1}, s{s_t}")
    a(f"s_cmp_ge_u32 s{S_W}, 6")
    a(f"s_cselect_b32 s{s_t+2}, {L3_VB1 - 24576 - L3_VB0}, 0")
    a(f"s_add_u32 s{s_t}, s{s_t}, s{s_t+2}")
    for i in range(3):
        a(f"s_add_u32 m0, s{s_t}, {L3_VB0 + i*4096}")
        a(f"s_add_u32 s{s_t+2}, s{s_t+1}, {WS_VP + i*4096}")
        for k in range(4):
            dma(a, L16, R_WS, f"s{s_t+2}", SC, off=k * 1024)


def xb2_loads(a, s_t):
    srd(a, R_A, P_X, 2621440); srd(a, R_B, P_B2, 1280)
    a(f"s_lshl_b32 s{s_t}, s{S_Q3}, 3")
    a(f"s_add_u32 s{s_t}, s{s_t}, s{S_W}")
    a(f"s_lshl_b32 s{S_ROW}, s{s_t}, 6")
    a(f"s_add_u32 s{S_ROW}, s{S_ROW}, s{S_N3}")
    a(f"s_mul_i32 s{S_ROW}, s{S_ROW}, 1280")
    a(f"v_lshlrev_b32 {v(F_L4)}, 2, v0")
    a(f"buffer_load_dwordx4 {v(F_BA,4)}, {v(L16)}, {s(R_B,4)}, 0 offen")
    a(f"buffer_load_dword {v(F_BB)}, {v(F_L4)}, {s(R_B,4)}, 0 offen offset:1024")
    a(f"buffer_load_dwordx4 {v(F_XA,4)}, {v(L16)}, {s(R_A,4)}, s{S_ROW} offen")
    a(f"buffer_load_dword {v(F_XB)}, {v(F_L4)}, {s(R_A,4)}, s{S_ROW} offen offset:1024")


def gf_make(a, s_t):
    t0, t1 = T0, T1
    sv, ph = F_BA, F_BA + 1
    cs_ = [F_XA + i for i in range(4)]
    a(f"v_lshrrev_b32 {v(t0)}, 1, {v(I16)}")
    a(f"s_lshl_b32 s{s_t}, s{S_Q3}, 9")
    a(f"s_add_u32 s{s_t}, s{s_t}, s{S_N3}")
    a(f"v_lshlrev_b32 {v(sv)}, 6, {v(t0)}")
    a(f"v_add_u32 {v(sv)}, s{s_t}, {v(sv)}")
    a(f"v_lshlrev_b32 {v(t0)}, 2, {v(G)}")
    a(f"v_mul_u32_u24 {v(ph)}, {v(sv)}, {v(t0)}")
    a(f"v_and_b32 {v(t0)}, 1, v0")
    a(f"v_mul_u32_u24 {v(t0)}, 1536, {v(t0)}")
    a(f"v_add_u32 {v(ph)}, {v(ph)}, {v(t0)}")
    for e2 in range(4):
        for hh in range(2):
            e = 2 * e2 + hh
            ko = e if e < 4 else 16 + e - 4
            tt = t1 + hh
            a(f"v_mad_u32_u24 {v(tt)}, {v(sv)}, {ko}, {v(ph)}")
            a(f"v_and_b32 {v(tt)}, 2047, {v(tt)}")
            a(f"v_cvt_f32_u32 {v(tt)}, {v(tt)}")
            a(f"v_mul_f32 {v(tt)}, {hex(f2u(1/2048))}, {v(tt)}")
        for hh in range(2):
            a(f"v_cos_f32 {v(cs_[hh])}, {v(t1+hh)}")
        for hh in range(2):
            a(f"v_sin_f32 {v(cs_[2+hh])}, {v(t1+hh)}")
        a(f"v_cvt_pk_bf16_f32 {v(F_GF+e2)}, {v(cs_[0])}, {v(cs_[1])}")
        a(f"v_cvt_pk_bf16_f32 {v(F_GF+4+e2)}, -{v(cs_[2])}, -{v(cs_[3])}")


def gf_put(a):
    for i in range(2):
        a(f"ds_write_b128 {v(L16)}, {v(F_GF+4*i,4)} offset:{L3_GF + 1024*i}")


def gemm_compute(a, l_f3):
    vp = Pool("v", 8, V_TOP)
    t0, t1, r_, cq = T0, T1, T2, T3
    s_wm, s_wn, s_dx, s_dw, s_cnt, s_end, s_cb, s_h0, s_h1, s_p0, s_t = [S_T + i for i in range(11)]
    a(f"s_and_b32 s{s_wm}, s{S_W}, 1")
    a(f"s_lshr_b32 s{s_wn}, s{S_W}, 1")
    a(f"s_lshl_b32 s{s_cb}, s{S_KT}, 2")
    a(f"s_add_u32 s{s_cb}, s{s_cb}, s{S_SUB}")
    acc = [[vp.get(4, 4) for mm in range(4)] for tt in range(5)]
    xf = [[vp.get(4, 4) for mm in range(4)] for st in range(2)]
    wf = [[vp.get(4, 4) for tt in range(5)] for st in range(2)]
    cs = acc[4]
    ones = wf[0][4]
    b1r = [vp.get(2, 2) for tt in range(4)]
    kc = [vp.get(2, 2) for _ in range(3)]
    srd(a, R_C, P_B1, 3072)
    a(f"s_lshl_b32 s{s_t}, s{s_cb}, 8")
    a(f"s_lshl_b32 s{s_t+1}, s{s_wn}, 7")
    a(f"s_add_u32 s{s_t}, s{s_t}, s{s_t+1}")
    a(f"s_lshl_b32 s{s_t+1}, s{s_wm}, 6")
    a(f"v_lshlrev_b32 {v(t0)}, 3, {v(G)}")
    a(f"v_add_u32 {v(t0)}, s{s_t+1}, {v(t0)}")
    a(f"v_xor_b32 {v(t1)}, 64, {v(t0)}")
    for tt in range(4):
        a(f"buffer_load_dwordx2 {v(b1r[tt],2)}, {v(t0 if tt < 2 else t1)}, {s(R_C,4)}, s{s_t} offen offset:{32*(tt&1)}")
    a(f"s_getpc_b64 s[{R_D}:{R_D+1}]")
    a(f"s_add_u32 s{R_D}, s{R_D}, {NAME}_kernel@rel32@lo+4")
    a(f"s_addc_u32 s{R_D+1}, s{R_D+1}, {NAME}_kernel@rel32@hi+12")
    a(f"s_mov_b32 s{R_D+2}, L_exit-{NAME}_kernel")
    a(f"s_mov_b32 s{R_D+3}, 0x20000")
    a(f"s_and_b32 s{s_t}, s2, 0x38")
    a(f"s_lshr_b32 s{s_t}, s{s_t}, 1")
    a(f"s_add_u32 s{s_t}, s{s_t}, s{S_W}")
    a(f"s_lshl_b32 s{s_t}, s{s_t}, 10")
    a(f"v_lshlrev_b32 {v(t0)}, 7, v0")
    a("s_mov_b64 exec, 0xff")
    a(f"buffer_load_dword {v(V_POLL)}, {v(t0)}, {s(R_D,4)}, s{s_t} offen")
    a(f"s_and_b32 s{s_t}, s{s_t}, 0x3fff")
    a(f"s_add_u32 s{s_t}, s{s_t}, {TAB_F3}")
    a(f"buffer_load_dword {v(V_POLL)}, {v(t0)}, {s(R_TAB,4)}, s{s_t} offen")
    a("s_mov_b64 exec, -1")
    xa = [vp.get(), vp.get()]
    a(f"v_and_b32 {v(t0)}, 7, v0")
    a(f"v_xor_b32 {v(t0)}, {v(t0)}, {v(G)}")
    a(f"v_lshlrev_b32 {v(t0)}, 4, {v(t0)}")
    a(f"v_lshl_add_u32 {v(t0)}, {v(I16)}, 7, {v(t0)}")
    a(f"s_lshl_b32 s{s_t}, s{s_wm}, 13")
    a(f"v_add_u32 {v(xa[0])}, s{s_t}, {v(t0)}")
    a(f"v_xor_b32 {v(xa[1])}, 64, {v(xa[0])}")
    wa = [vp.get() for _ in range(4)]
    a(f"v_lshrrev_b32 {v(r_)}, 2, {v(I16)}")
    a(f"v_and_b32 {v(cq)}, 3, v0")
    a(f"v_lshl_add_u32 {v(t0)}, {v(G)}, 3, {v(r_)}")
    a(f"v_lshlrev_b32 {v(t0)}, 8, {v(t0)}")
    a(f"v_lshl_add_u32 {v(t0)}, {v(cq)}, 3, {v(t0)}")
    a(f"v_add_u32 {v(t0)}, {LW}, {v(t0)}")
    a(f"v_and_b32 {v(t1)}, 1, {v(G)}")
    a(f"v_lshl_or_b32 {v(t1)}, {v(t1)}, 2, {v(r_)}")
    a(f"s_lshl_b32 s{s_t}, s{s_wn}, 2")
    a(f"s_lshl_b32 s{s_t+1}, s{s_wm}, 1")
    a(f"s_or_b32 s{s_t}, s{s_t}, s{s_t+1}")
    a(f"v_xor_b32 {v(t1)}, s{s_t}, {v(t1)}")
    for tt in range(4):
        a(f"v_xor_b32 {v(wa[tt])}, {tt}, {v(t1)}")
        a(f"v_lshl_add_u32 {v(wa[tt])}, {v(wa[tt])}, 5, {v(t0)}")
    for r in range(4):
        a(f"v_mov_b32 {v(ones+r)}, 0x3f803f80")
    xb = vp.get(); wb = [vp.get(), vp.get()]
    a(f"s_lshl_b32 s{s_t}, s{s_wm}, 12")
    a(f"s_add_u32 s{s_t}, s{s_t}, {LX + 2*16384}")
    a(f"v_add_u32 {v(xb)}, s{s_t}, {v(L16)}")
    a(f"v_lshrrev_b32 {v(r_)}, 2, v0")
    a(f"v_mul_u32_u24 {v(t0)}, 320, {v(r_)}")
    a(f"v_lshl_add_u32 {v(t0)}, {v(cq)}, 3, {v(t0)}")
    a(f"v_add_u32 {v(t0)}, {LW + 2*WSL}, {v(t0)}")
    a(f"v_and_b32 {v(t1)}, 1, {v(G)}")
    a(f"s_mul_i32 s{s_t}, s{s_wn}, 5")
    a(f"v_xor_b32 {v(wb[0])}, s{s_t}, {v(t1)}")
    a(f"v_lshl_add_u32 {v(wb[0])}, {v(wb[0])}, 5, {v(t0)}")
    a(f"s_add_u32 s{s_t}, s{s_t}, 1")
    a(f"v_xor_b32 {v(wb[1])}, s{s_t}, {v(t1)}")
    a(f"v_lshl_add_u32 {v(wb[1])}, {v(wb[1])}, 5, {v(t0)}")
    csw, csr, sta, hw, hw2, msc = [vp.get() for _ in range(6)]
    a(f"s_lshl_b32 s{s_t}, s{s_wn}, 8")
    a(f"s_lshl_b32 s{s_t+1}, s{s_wm}, 7")
    a(f"s_add_u32 s{s_t}, s{s_t}, s{s_t+1}")
    a(f"s_add_u32 s{s_t}, s{s_t}, {L_CS}")
    a(f"v_lshlrev_b32 {v(csw)}, 4, {v(G)}")
    a(f"v_add_u32 {v(csw)}, s{s_t}, {v(csw)}")
    a(f"v_xor_b32 {v(csr)}, 128, {v(csw)}")
    a(f"s_lshl_b32 s{s_t}, s{s_wm}, 10")
    a(f"s_add_u32 s{s_t}, s{s_t}, {L_STAT}")
    a(f"v_lshlrev_b32 {v(sta)}, 4, {v(I16)}")
    a(f"v_add_u32 {v(sta)}, s{s_t}, {v(sta)}")
    a(f"v_mov_b32 {v(msc)}, {L_MISC}")
    K0 = -2.0 * np.sqrt(2.0 / np.pi) * np.log2(np.e)
    for i in range(2):
        a(f"v_mov_b32 {v(kc[0]+i)}, {hex(f2u(K0))}")
        a(f"v_mov_b32 {v(kc[1]+i)}, {hex(f2u(K0*0.044715))}")
        a(f"v_mov_b32 {v(kc[2]+i)}, 1.0")
    a(f"s_mul_i32 s{s_t}, s{S_RB}, {48*8192}")
    a(f"s_lshl_b32 s{s_t+1}, s{s_cb}, 15")
    a(f"s_add_u32 s{s_t}, s{s_t}, s{s_t+1}")
    a(f"s_lshl_b32 s{s_t+1}, s{s_wn}, 14")
    a(f"s_mul_i32 s{s_t+2}, s{s_wm}, {4096+8192}")
    a(f"s_add_u32 s{s_t+1}, s{s_t+1}, s{s_t+2}")
    a(f"s_add_u32 s{s_h0}, s{s_t}, s{s_t+1}")
    a(f"s_xor_b32 s{s_h1}, s{s_t+1}, 8192")
    a(f"s_add_u32 s{s_h1}, s{s_t}, s{s_h1}")
    a(f"s_add_u32 s{s_t+1}, s{s_t+1}, {LX + 2*16384}")
    a(f"v_add_u32 {v(hw)}, s{s_t+1}, {v(L16)}")
    a(f"v_xor_b32 {v(hw2)}, 8192, {v(hw)}")
    SP = 176
    sw = vp.get(); srd_a = [vp.get() for _ in range(5)]
    a(f"s_mul_i32 s{s_t}, s{s_wm}, {64*SP}")
    a(f"s_lshl_b32 s{s_t+1}, s{s_wn}, 16")
    a(f"s_add_u32 s{s_t}, s{s_t}, s{s_t+1}")
    a(f"v_mul_u32_u24 {v(sw)}, {SP}, {v(I16)}")
    a(f"v_lshl_add_u32 {v(sw)}, {v(G)}, 3, {v(sw)}")
    a(f"v_add_u32 {v(sw)}, s{s_t}, {v(sw)}")
    for ii in range(5):
        a(f"v_add_u32 {v(r_)}, {64*ii}, v0")
        divmod_const(a, t0, t1, r_, 10)
        a(f"v_mul_u32_u24 {v(t0)}, {SP}, {v(t0)}")
        a(f"v_lshl_add_u32 {v(t0)}, {v(t1)}, 4, {v(t0)}")
        a(f"v_add_u32 {v(srd_a[ii])}, s{s_t}, {v(t0)}")
    p_base(a, s_p0, s_wm, s_wn, s_t)
    a(f"s_lshl_b32 s{S_FLAG}, s{S_RB}, 1")
    a(f"s_add_u32 s{S_FLAG}, s{S_FLAG}, s{s_wm}")
    a(f"s_lshl_b32 s{S_FLAG}, s{S_FLAG}, 7")
    a(f"s_add_u32 s{S_FLAG}, s{S_FLAG}, s{s_cb}")
    a(f"s_lshl_b32 s{S_FLAG}, s{S_FLAG}, 1")
    a(f"s_add_u32 s{S_FLAG}, s{S_FLAG}, s{s_wn}")
    a(f"s_lshl_b32 s{S_FLAG}, s{S_FLAG}, 3")
    a(f"s_add_u32 s{S_FLAG}, s{S_FLAG}, {FL_P}")

    st = [xf[0][mm] for mm in range(4)]
    b1f = [wf[0][tt] for tt in range(4)]
    mi = wf[1][4]

    def loop(which):
        NT = 4 if which == 1 else 5
        if which == 1:
            xrd = lambda st_, ks, mm: f"ds_read_b128 {v(xf[st_][mm],4)}, {v(xa[ks])} offset:{mm*2048}"
            wrd = lambda st_, ks, tt, h: f"ds_read_b64_tr_b16 {v(wf[st_][tt]+2*h,2)}, {v(wa[tt])} offset:{ks*8192+h*1024}"
            ax, aw = xa, wa
        else:
            xrd = lambda st_, ks, mm: f"ds_read_b128 {v(xf[st_][mm],4)}, {v(xb)} offset:{ks*8192+mm*1024}"
            wrd = lambda st_, ks, tt, h: f"ds_read_b64_tr_b16 {v(wf[st_][tt]+2*h,2)}, {v(wb[tt&1])} offset:{(32*ks+16*h)*320+(tt>>1)*64}"
            ax, aw = [xb], wb

        def reads(st_, ks):
            out = []
            for i in range(max(4, NT)):
                if i < NT:
                    out += [wrd(st_, ks, i, 0), wrd(st_, ks, i, 1)]
                if i < 4:
                    out.append(xrd(st_, ks, i))
            return out

        def mfmas(st_, c=None):
            out = []
            if which == 1:
                out += [mfma_s(cs[tt], wf[st_][tt], ones, c) for tt in range(2)]
            for tt in range(NT):
                for mm in range(4):
                    out.append(mfma_s(acc[tt][mm], wf[st_][tt], xf[st_][mm], c))
            return out
        c0 = 0 if which == 1 else 10
        a(f"s_mov_b32 s{s_cnt}, {c0+1}")
        a(f"s_mov_b32 s{s_end}, {10 if which == 1 else 12}")
        a("s_barrier")
        stamp(a, 1 if which == 1 else 4, 2)
        emit(a, reads(0, 0))
        l_loop, l_last, l_mid = a.newlabel("L_gl"), a.newlabel("L_gx"), a.newlabel("L_gm")
        a("s_waitcnt lgkmcnt(0)")
        adv = [f"v_add_u32 {v(r)}, 16384, {v(r)}" for r in ax] + [f"v_add_u32 {v(r)}, {WSL}, {v(r)}" for r in aw]
        interleave(a, mfmas(0, "0"), reads(1, 1) + adv)
        if which == 2:
            a("s_waitcnt vmcnt(0)")
        a(f"s_branch {l_mid}")
        a.label(l_loop)
        a(f"s_add_u32 s{s_cnt}, s{s_cnt}, 1")
        a(f"s_and_b32 s{s_t}, s{s_cnt}, 3")
        a(f"s_cselect_b32 s{s_t}, 1, -3")
        a(f"s_lshl_b32 s{s_dx}, s{s_t}, 14")
        a(f"s_mul_i32 s{s_dw}, s{s_t}, {WSL}")
        a("s_waitcnt lgkmcnt(0)")
        adv = [f"v_add_u32 {v(r)}, s{s_dx}, {v(r)}" for r in ax] + [f"v_add_u32 {v(r)}, s{s_dw}, {v(r)}" for r in aw]
        interleave(a, mfmas(0), reads(1, 1) + adv)
        a.label(l_mid)
        a(f"s_cmp_eq_u32 s{s_cnt}, s{s_end}")
        a("s_waitcnt lgkmcnt(0)")
        a("s_barrier")
        a(f"s_cbranch_scc1 {l_last}")
        interleave(a, mfmas(1), reads(0, 0))
        a(f"s_branch {l_loop}")
        a.label(l_last)
        if which == 1:
            fill = [f"ds_read_b128 {v(st[mm],4)}, {v(sta)} offset:{mm*256}" for mm in range(4)]
            fill += [f"ds_read_b128 {v(mi,4)}, {v(msc)}", "s_waitcnt vmcnt(0)"]
            for tt in range(4):
                for h in range(2):
                    fill += unpack_l(b1f[tt] + 2*h, b1r[tt] + h)
            fill.insert(9, f"ds_write_b128 {v(csw)}, {v(cs[0],4)}")
            fill.insert(10, f"ds_write_b128 {v(csw)}, {v(cs[1],4)} offset:64")
            weave(a, mfmas(1), fill)
        else:
            l_done = a.newlabel("L_gd")
            a(f"s_cmp_eq_u32 s{s_cnt}, 18")
            a(f"s_cbranch_scc1 {l_done}")
            emit(a, mfmas(1))
            a(f"s_mov_b32 s{s_end}, 18")
            a("s_barrier")
            emit(a, reads(0, 0))
            a(f"s_branch {l_loop}")
            a.label(l_done)
            return [mfma_s(acc[tt][mm], wf[1][tt], xf[1][mm]) for mm in range(4) for tt in range(5)]

    loop(1)
    stamp(a, 2, 2)
    a("s_waitcnt lgkmcnt(0)")
    a("s_barrier")
    a(f"ds_read_b128 {v(cs[2],4)}, {v(csr)}")
    a(f"ds_read_b128 {v(cs[3],4)}, {v(csr)} offset:64")
    a(f"v_readfirstlane_b32 s{S_E}, {v(mi)}")
    a(f"v_readfirstlane_b32 s{S_E+1}, {v(mi+1)}")
    a(f"v_readfirstlane_b32 s{S_FAST}, {v(mi+2)}")
    stamp(a, 3, 2)
    tmp = [xf[1][i] for i in range(4)]
    outs = [wf[1][1], wf[1][2], wf[1][3]]
    n_o = 0
    for u in range(2):
        if u == 1:
            a("s_waitcnt lgkmcnt(4)")
        for mm in range(4):
            o = outs[n_o % 3]; n_o += 1
            prs = [(acc[2*u+k][mm] + 2*h, cs[2*u+k] + 2*h, b1f[2*u+k] + 2*h) for k in range(2) for h in range(2)]
            T = [tmp[0], tmp[0]+2, tmp[1], tmp[1]+2]
            Z = [tmp[2], tmp[2]+2, tmp[3], tmp[3]+2]
            for i, (p, c_, b_) in enumerate(prs):
                a(f"v_pk_fma_f32 {v(T[i],2)}, {v(c_,2)}, {v(st[mm]+2,2)}, {v(b_,2)}")
            for i, (p, c_, b_) in enumerate(prs):
                a(f"v_pk_fma_f32 {v(p,2)}, {v(p,2)}, {v(st[mm],2)}, {v(T[i],2)}")
            for i, (p, c_, b_) in enumerate(prs):
                a(f"v_pk_mul_f32 {v(T[i],2)}, {v(p,2)}, {v(p,2)}")
            for i, (p, c_, b_) in enumerate(prs):
                a(f"v_pk_fma_f32 {v(T[i],2)}, {v(T[i],2)}, {v(kc[1],2)}, {v(kc[0],2)}")
            for i, (p, c_, b_) in enumerate(prs):
                a(f"v_pk_mul_f32 {v(Z[i],2)}, {v(p,2)}, {v(T[i],2)}")
            for i in range(4):
                a(f"v_exp_f32 {v(Z[i])}, {v(Z[i])}")
                a(f"v_exp_f32 {v(Z[i]+1)}, {v(Z[i]+1)}")
            for i in range(4):
                a(f"v_pk_add_f32 {v(Z[i],2)}, {v(Z[i],2)}, {v(kc[2],2)}")
            for i in range(4):
                a(f"v_rcp_f32 {v(Z[i])}, {v(Z[i])}")
                a(f"v_rcp_f32 {v(Z[i]+1)}, {v(Z[i]+1)}")
            for i, (p, c_, b_) in enumerate(prs):
                a(f"v_pk_mul_f32 {v(p,2)}, {v(p,2)}, {v(Z[i],2)}")
            for i, (p, c_, b_) in enumerate(prs):
                a(cvt_s(o + i, p, p + 1))
            si = lambda f: f"buffer_store_dwordx4 {v(o,4)}, {v(L16)}, {s(R_WS,4)}, s{s_h0+u} offen offset:{mm*1024} {f}"
            if "hfast" not in OPT:
                a(si(SC))
            else:
                store2(a, si)
            a(f"ds_write_b128 {v(hw if u == 0 else hw2)}, {v(o,4)} offset:{mm*1024}")
    a("s_waitcnt lgkmcnt(0)")
    last = loop(2)
    xb2_loads(a, s_t)
    a(f"s_add_u32 s{s_t}, s{s_p0}, 4096")
    a(f"s_add_u32 s{s_t+1}, s{s_p0}, 8192")
    so = [s_p0, s_t, s_t + 1]
    pk = xf[0][0]
    def conv(mm):
        out = []
        for tt in range(5):
            o = (xf[0][0] if mm & 1 == 0 else wf[0][0]) + 2 * tt
            out += [cvt_s(o, acc[tt][mm], acc[tt][mm] + 1), cvt_s(o + 1, acc[tt][mm] + 2, acc[tt][mm] + 3),
                    f"ds_write_b64 {v(sw)}, {v(o,2)} offset:{mm*16*SP+tt*32}"]
        return out
    emit(a, last[:10])
    weave(a, last[10:15], conv(0))
    weave(a, last[15:20], conv(1))
    stamp(a, 5, 2)
    rb_ = [acc[i % 5][i // 5] for i in range(10)]
    a("s_waitcnt lgkmcnt(0)")
    for ii in range(5):
        a(f"ds_read_b128 {v(rb_[ii],4)}, {v(srd_a[ii])}")
    emit(a, conv(2))

    def pstores(lo, hi, waits):
        for f in (SC, ""):
            pass
        if "pfast" not in OPT:
            for ii in range(lo, hi):
                a(f"s_waitcnt lgkmcnt({waits(ii)})")
                a(f"buffer_store_dwordx4 {v(rb_[ii],4)}, {v(L16)}, {s(R_WS,4)}, s{so[ii//4]} offen offset:{(ii%4)*1024} {SC}")
            return
        l1, l2 = a.newlabel("L_pf"), a.newlabel("L_pe")
        a(f"s_cmp_lg_u32 s{S_FAST}, 0")
        a(f"s_cbranch_scc1 {l1}")
        for f in (SC, os.environ.get("PST", "")):
            for ii in range(lo, hi):
                a(f"s_waitcnt lgkmcnt({waits(ii)})")
                a(f"buffer_store_dwordx4 {v(rb_[ii],4)}, {v(L16)}, {s(R_WS,4)}, s{so[ii//4]} offen offset:{(ii%4)*1024} {f}")
            if f == SC:
                a(f"s_branch {l2}")
                a.label(l1)
        a.label(l2)
    pstores(0, 5, lambda ii: 9 - ii)
    emit(a, conv(3))
    a("s_waitcnt lgkmcnt(0)")
    for ii in range(5, 10):
        a(f"ds_read_b128 {v(rb_[ii],4)}, {v(srd_a[ii-5])} offset:{32*SP}")
    pstores(5, 10, lambda ii: 9 - ii)
    a(f"s_mov_b32 s{S_PJ}, 1")
    a(f"s_branch {l_f3}")


def p_base(a, s_d, s_wm, s_wn, s_t):
    a(f"s_mul_i32 s{s_d}, s{S_KT}, 2621440")
    a(f"s_lshl_b32 s{s_t}, s{S_SUB}, 1")
    a(f"s_add_u32 s{s_t}, s{s_t}, s{s_wn}")
    a(f"s_mul_i32 s{s_t}, s{s_t}, {2048*160}")
    a(f"s_add_u32 s{s_d}, s{s_d}, s{s_t}")
    a(f"s_lshl_b32 s{s_t}, s{S_RB}, 1")
    a(f"s_add_u32 s{s_t}, s{s_t}, s{s_wm}")
    a(f"s_mul_i32 s{s_t}, s{s_t}, {64*160}")
    a(f"s_add_u32 s{s_d}, s{s_d}, s{s_t}")
    a(f"s_add_u32 s{s_d}, s{s_d}, {WS_P}")


def gemm_loader(a, l_f3):
    vp = Pool("v", 8, V_TOP)
    t0, t1, t2 = T0, T1, T2
    s_lw, s_xo, s_wo, s_m, s_m2, s_ho, s_w2, s_kc, s_xc, s_wc, s_p0, s_t = [S_T + i for i in range(12)]
    vm = VM(a)
    a(f"s_sub_u32 s{s_lw}, s{S_W}, 4")
    srd(a, R_A, P_X, 2621440); srd(a, R_B, P_W1, 1966080)
    xv = vp.get(); wv = [vp.get(), vp.get()]
    a(f"v_lshrrev_b32 {v(t0)}, 3, v0")
    a(f"v_and_b32 {v(t1)}, 7, v0")
    a(f"v_xor_b32 {v(t1)}, {v(t1)}, {v(t0)}")
    a(f"v_mul_u32_u24 {v(xv)}, {64*1280}, {v(t0)}")
    a(f"v_lshl_add_u32 {v(xv)}, {v(t1)}, 4, {v(xv)}")
    a(f"s_lshl_b32 s{s_xo}, s{S_RB}, 2")
    a(f"s_add_u32 s{s_xo}, s{s_xo}, s{s_lw}")
    a(f"s_mul_i32 s{s_xo}, s{s_xo}, 1280")
    a(f"v_lshlrev_b32 {v(t2)}, 1, {v(G)}")
    a(f"v_xor_b32 {v(t1)}, {v(I16)}, {v(t2)}")
    a(f"v_mul_u32_u24 {v(wv[0])}, 3072, {v(G)}")
    a(f"v_lshl_add_u32 {v(wv[0])}, {v(t1)}, 4, {v(wv[0])}")
    a(f"v_xor_b32 {v(wv[1])}, 128, {v(wv[0])}")
    a(f"s_mul_i32 s{s_wo}, s{s_lw}, {16*3072}")
    a(f"s_lshl_b32 s{s_t}, s{S_KT}, 2")
    a(f"s_add_u32 s{s_t}, s{s_t}, s{S_SUB}")
    a(f"s_lshl_b32 s{s_t+1}, s{s_t}, 8")
    a(f"s_add_u32 s{s_wo}, s{s_wo}, s{s_t+1}")
    a(f"s_lshl_b32 s{s_m}, s{s_lw}, 12")
    a(f"s_and_b32 s{s_kc}, s{S_RB}, 1")
    a(f"s_mul_i32 s{s_kc}, s{s_kc}, 5")
    a(f"s_add_u32 s{s_kc}, s{s_kc}, s{s_t}")
    a(f"s_lshr_b32 s{s_t}, s{S_RB}, 1")
    a(f"s_add_u32 s{s_kc}, s{s_kc}, s{s_t}")
    for _ in range(2):
        a(f"s_sub_u32 s{s_t}, s{s_kc}, 10")
        a(f"s_cselect_b32 s{s_kc}, s{s_kc}, s{s_t}")

    def issue1(c):
        sl = c % 4
        a(f"s_lshl_b32 s{s_xc}, s{s_kc}, 7")
        a(f"s_add_u32 s{s_xc}, s{s_xc}, s{s_xo}")
        a(f"s_mul_i32 s{s_wc}, s{s_kc}, {64*3072}")
        a(f"s_add_u32 s{s_wc}, s{s_wc}, s{s_wo}")
        for i in range(4):
            a(f"s_add_u32 m0, s{s_m}, {LW + sl*WSL + i*1024}")
            a(f"s_add_u32 s{s_t}, s{s_wc}, {i*4*3072}")
            dma(a, wv[i >> 1], R_B, f"s{s_t}")
        for i in range(4):
            a(f"s_add_u32 m0, s{s_m}, {LX + sl*16384 + i*1024}")
            a(f"s_add_u32 s{s_t}, s{s_xc}, {i*8*64*1280}")
            dma(a, xv, R_A, f"s{s_t}")
        a(f"s_add_u32 s{s_kc}, s{s_kc}, 1")
        a(f"s_cmp_eq_u32 s{s_kc}, 10")
        a(f"s_cselect_b32 s{s_kc}, 0, s{s_kc}")
        vm.op(("A", c), 8)

    stamp(a, 1, 2)
    issue1(0); issue1(1)
    load_epoch(a, s_t + 1)
    srd(a, R_C, P_W2, 1966080)
    w2v = [vp.get() for _ in range(5)]
    a(f"s_mul_i32 s{s_ho}, s{S_RB}, {48*8192}")
    a(f"s_lshl_b32 s{s_t}, s{S_KT}, 17")
    a(f"s_add_u32 s{s_ho}, s{s_ho}, s{s_t}")
    for i in range(5):
        a(f"v_add_u32 {v(t2)}, {64*i}, v0")
        divmod_const(a, t0, t1, t2, 20)
        a(f"v_lshrrev_b32 {v(t2)}, 1, {v(t0)}")
        a(f"v_and_b32 {v(t2)}, 2, {v(t2)}")
        a(f"v_xor_b32 {v(t1)}, {v(t1)}, {v(t2)}")
        a(f"v_mul_u32_u24 {v(w2v[i])}, 1280, {v(t0)}")
        a(f"v_lshl_add_u32 {v(w2v[i])}, {v(t1)}, 4, {v(w2v[i])}")
    a(f"s_lshl_b32 s{s_w2}, s{S_KT}, 5")
    a(f"s_add_u32 s{s_w2}, s{s_w2}, s{s_lw}")
    a(f"s_mul_i32 s{s_w2}, s{s_w2}, {16*1280}")
    a(f"s_mul_i32 s{s_t}, s{S_SUB}, 320")
    a(f"s_add_u32 s{s_w2}, s{s_w2}, s{s_t}")
    a(f"s_mul_i32 s{s_m2}, s{s_lw}, 5120")
    a(f"s_and_b32 s{s_xc}, s{s_lw}, 1")
    a(f"s_lshr_b32 s{s_wc}, s{s_lw}, 1")
    p_base(a, s_p0, s_xc, s_wc, s_t)
    wreg = [[vp.get(4, 4) for i in range(5)] for c in range(2)]
    sg = vp.get(4, 4); xr_ = vp.get(2, 2); dump = vp.get(4, 4)
    wl, l128, sad, sld, l8 = [vp.get() for _ in range(5)]
    a(f"v_add_u32 {v(wl)}, s{s_m2}, {v(L16)}")
    a(f"v_add_u32 {v(wl)}, {LW + 2*WSL}, {v(wl)}")
    a(f"v_lshlrev_b32 {v(l128)}, 7, v0")
    a(f"v_and_b32 {v(sad)}, 31, v0")
    a(f"v_lshlrev_b32 {v(l8)}, 3, {v(sad)}")
    a(f"v_lshlrev_b32 {v(sad)}, 4, {v(sad)}")
    a(f"s_lshl_b32 s{s_t}, s{s_lw}, 9")
    a(f"v_add_u32 {v(sad)}, s{s_t}, {v(sad)}")
    a(f"v_add_u32 {v(sld)}, {L_STAT}, {v(sad)}")
    a(f"s_mov_b32 s{S_PJ}, 0")
    a(f"s_mov_b32 s{S_HV}, 0")

    def kchunk(c2):
        a(f"s_lshl_b32 s{s_t+1}, s{S_SUB}, 1")
        a(f"s_add_u32 s{s_t+1}, s{s_t+1}, {c2}")
        a(f"s_and_b32 s{s_t+1}, s{s_t+1}, 7")

    def issue_w2(c2):
        sl = (10 + c2) % 4
        kchunk(c2)
        a(f"s_mul_i32 s{s_t}, s{s_t+1}, {64*1280}")
        a(f"s_add_u32 s{s_t}, s{s_t}, s{s_w2}")
        for i in range(5):
            a(f"s_add_u32 m0, s{s_m2}, {LW + sl*WSL + i*1024}")
            dma(a, w2v[i], R_C, f"s{s_t}")
        vm.op(("W", c2), 5)

    def load_w2(c2):
        kchunk(c2)
        a(f"s_mul_i32 s{s_t}, s{s_t+1}, {64*1280}")
        a(f"s_add_u32 s{s_t}, s{s_t}, s{s_w2}")
        for i in range(5):
            a(f"buffer_load_dwordx4 {v(wreg[c2-4][i],4)}, {v(w2v[i])}, {s(R_C,4)}, s{s_t} offen")
        vm.op(("R", c2), 5)

    def put_w2(c2):
        for i in range(5):
            a(f"ds_write_b128 {v(wl)}, {v(wreg[c2-4][i],4)} offset:{(c2-4)*WSL + i*1024}")

    def issue_h(c2):
        sl = (10 + c2) % 4
        kchunk(c2)
        a(f"s_lshl_b32 s{s_t}, s{s_t+1}, 14")
        a(f"s_add_u32 s{s_t}, s{s_t}, s{s_ho}")
        a(f"s_add_u32 s{s_t}, s{s_t}, s{s_m}")
        a(f"s_add_u32 m0, s{s_m}, {LX + sl*16384}")
        for i in range(4):
            dma(a, L16, R_WS, f"s{s_t}", SC, off=i * 1024)
        vm.op(("H", c2), 4)

    def stat_load():
        a(f"s_lshl_b32 s{s_t}, s{S_RB}, 11")
        a(f"s_add_u32 s{s_t}, s{s_t}, {WS_ST}")
        a(f"buffer_load_dwordx4 {v(sg,4)}, {v(sad)}, {s(R_WS,4)}, s{s_t} offen {SC}")

    nxt = 2
    for c in range(10):
        vm.wait(("A", c))
        if c == 0: stamp(a, 2, 2)
        if c >= 2: stamp(a, c - 1, 3)
        a("s_barrier")
        if c >= 2: stamp(a, c - 1, 4)
        while nxt < 10 and nxt <= c + 3 and (nxt <= c + 2 or c >= 1):
            issue1(nxt); nxt += 1
            if c == 0:
                break
        if c == 2:
            a("s_waitcnt lgkmcnt(0)")
            nonce(a)
        if c == 3:
            l = a.newlabel("L_px")
            a(f"s_cmp_lg_u32 s{s_lw}, 0")
            a(f"s_cbranch_scc1 {l}")
            publish_xcc(a, s_t)
            a.label(l)
            a(f"s_lshl_b32 s{s_t}, s{S_FLAG}, 2")
            a(f"s_add_u32 s{s_t}, s{s_t}, s{s_lw}")
            a(f"s_mul_i32 s{s_t}, s{s_t}, 2560")
            a("s_mov_b64 exec, 0xfffff")
            a(f"buffer_load_dword {v(dump)}, {v(l128)}, {s(R_C,4)}, s{s_t} offen")
            a("s_mov_b64 exec, -1")
            vm.op("PF")
        if c == 6 and "hfast" in OPT:
            a(f"s_lshl_b32 s{s_t}, s{S_SUB}, 2")
            a(f"s_add_u32 s{s_t}, s{s_t}, s{s_lw}")
            a(f"s_lshl_b32 s{s_t}, s{s_t}, 13")
            a(f"s_add_u32 s{s_t}, s{s_t}, s{s_ho}")
            a(f"buffer_load_dword {v(dump)}, {v(l128)}, {s(R_WS,4)}, s{s_t} offen")
            vm.op("PH")
        if c == 7:
            stat_load()
            a(f"s_and_b32 s{s_t}, s2, 7")
            a(f"s_lshl_b32 s{s_t}, s{s_t}, 8")
            a(f"s_add_u32 s{s_t}, s{s_t}, {FL_X}")
            a(f"buffer_load_dwordx2 {v(xr_,2)}, {v(l8)}, {s(R_WS,4)}, s{s_t} offen {SC}")
            vm.op("S", 2)
        if c >= 7:
            issue_w2(c - 7)
        if c == 9:
            vm.wait("S")
            l_chk, l_ok = a.newlabel("L_chk"), a.newlabel("L_ok")
            a(f"s_mov_b32 s{s_t+2}, 0x40000")
            a.label(l_chk)
            a(f"v_xor_b32 {v(t0)}, s{S_E}, {v(sg+1)}")
            a(f"v_xor_b32 {v(t1)}, s{S_E+1}, {v(sg+3)}")
            a(f"v_or_b32 {v(t0)}, {v(t0)}, {v(t1)}")
            a(f"v_cmp_ne_u32 vcc, 0, {v(t0)}")
            a(f"s_cbranch_vccz {l_ok}")
            stat_load()
            a("s_waitcnt vmcnt(0)")
            a(f"s_sub_u32 s{s_t+2}, s{s_t+2}, 1")
            a(f"s_cbranch_scc0 {l_chk}")
            a.label(l_ok)
            a(f"v_mov_b32 {v(sg+1)}, {v(sg)}")
            a(f"v_mov_b32 {v(sg+3)}, {v(sg+2)}")
            a(f"ds_write_b128 {v(sld)}, {v(sg,4)}")
            xcc_tag(a, s_t + 1)
            a(f"v_xor_b32 {v(t0)}, s{S_E}, {v(xr_)}")
            a(f"v_xor_b32 {v(t1)}, s{s_t+1}, {v(xr_+1)}")
            a(f"v_or_b32 {v(t0)}, {v(t0)}, {v(t1)}")
            a(f"v_cmp_ne_u32 vcc, 0, {v(t0)}")
            a("s_cmp_eq_u64 vcc, 0")
            a(f"s_cselect_b32 s{S_FAST}, {0 if 'nofast' in OPT else 1}, 0")
            l = a.newlabel("L_ms")
            a(f"s_cmp_lg_u32 s{s_lw}, 0")
            a(f"s_cbranch_scc1 {l}")
            a(f"v_mov_b32 {v(dump)}, s{S_E}")
            a(f"v_mov_b32 {v(dump+1)}, s{S_E+1}")
            a(f"v_mov_b32 {v(dump+2)}, s{S_FAST}")
            a(f"v_mov_b32 {v(t0)}, {L_MISC}")
            a(f"ds_write_b128 {v(t0)}, {v(dump,4)}")
            a.label(l)
            a("s_waitcnt lgkmcnt(0)")
    stamp(a, 3, 2)
    a("s_barrier")
    issue_w2(3)
    a("s_barrier")

    def pre_p():
        a(f"buffer_load_dword {v(dump)}, {v(l128)}, {s(R_WS,4)}, s{s_p0} offen")
        a("s_mov_b64 exec, 0xffff")
        a(f"s_add_u32 s{s_t}, s{s_p0}, 8192")
        a(f"buffer_load_dword {v(dump)}, {v(l128)}, {s(R_WS,4)}, s{s_t} offen")
        a("s_mov_b64 exec, -1")
        vm.op("PP", 2)
    PPOS = os.environ.get("PPOS", "a") if "pfast" in OPT else "-"
    if PPOS == "a": pre_p()
    vm.wait(("W", 2))
    load_w2(4)
    vm.wait(("W", 3))
    load_w2(5)
    if PPOS == "b": pre_p()
    l = a.newlabel("L_gf")
    a(f"s_cmp_lg_u32 s{s_lw}, 3")
    a(f"s_cbranch_scc1 {l}")
    gf_make(a, s_t)
    a.label(l)
    a("s_barrier")
    a("s_barrier")
    stamp(a, 4, 2)
    vm.wait(("R", 5))
    l_nf = a.newlabel("L_nf")
    a(f"s_cmp_lg_u32 s{s_lw}, 0")
    a(f"s_cbranch_scc1 {l_nf}")
    a(f"s_and_b32 s{s_t}, s{S_FLAG}, 0xfc")
    a(f"s_lshl_b32 s{s_t}, s{s_t}, 7")
    a(f"s_lshl_b32 s{s_t+1}, s{S_SUB}, 3")
    a(f"s_add_u32 s{s_t}, s{s_t}, s{s_t+1}")
    a(f"s_add_u32 s{s_t}, s{s_t}, {FL_H}")
    push_tag(a, s_t, 4, 7, "fast")
    a.label(l_nf)
    put_w2(4)
    a(f"s_lshl_b32 s{s_t+2}, s{S_FLAG}, 7")
    a(f"s_add_u32 s{s_t+2}, s{s_t+2}, {FL_H}")
    poll(a, f"s{s_t+2}", 4, s_t, depth=1); vm.q = []
    stamp(a, 5, 2)
    for c2 in range(2, 5):
        issue_h(c2)
    a("s_barrier")
    issue_h(5)
    put_w2(5)
    for c2 in range(2, 8):
        vm.wait(("H", c2), ("W", c2))
        if c2 == 4: a("s_waitcnt lgkmcnt(0)")
        if c2 == 2: stamp(a, 6, 2)
        stamp(a, c2 - 1, 5)
        a("s_barrier")
        stamp(a, c2 - 1, 6)
        if c2 in (3, 4):
            issue_w2(c2 + 3); issue_h(c2 + 3)
        if c2 == 4 and PPOS == "c": pre_p()
        if c2 == 6:
            l = a.newlabel("L_gp")
            a(f"s_cmp_lg_u32 s{s_lw}, 3")
            a(f"s_cbranch_scc1 {l}")
            gf_put(a)
            a("s_waitcnt lgkmcnt(0)")
            a.label(l)
        if c2 == 5:
            tab3_dma(a, s_t)
            xb2_loads(a, s_t)
            vm.op("T3", 8)
        if c2 in (5, 6):
            a(f"s_lshl_b32 s{s_t+2}, s{S_N3}, 9")
            a(f"s_add_u32 s{s_t+2}, s{s_t+2}, {FL_V}")
            a(f"v_lshlrev_b32 {v(t2)}, 3, v0")
            if c2 == 5:
                a(f"buffer_load_dwordx2 {v(xr_,2)}, {v(t2)}, {s(R_WS,4)}, s{s_t+2} offen {SC}")
                vm.op("LV")
        if c2 in (6, 7):
            l, l_re = a.newlabel("L_lv"), a.newlabel("L_lr")
            if c2 == 7:
                a(f"s_cmp_lg_u32 s{S_HV}, 0")
                a(f"s_cbranch_scc1 {l}")
            a("s_waitcnt vmcnt(0)"); vm.q = []
            a(f"v_cmp_ne_u64 vcc, s[{S_E}:{S_E+1}], {v(xr_,2)}")
            a(f"s_cbranch_vccnz {l_re}")
            vb_dma(a, s_t)
            a(f"s_mov_b32 s{S_HV}, 1")
            a(f"s_branch {l}")
            a.label(l_re)
            if c2 == 6:
                a(f"buffer_load_dwordx2 {v(xr_,2)}, {v(t2)}, {s(R_WS,4)}, s{s_t+2} offen {SC}")
            a.label(l)
    stamp(a, 7, 5)
    a("s_barrier")
    stamp(a, 7, 6)
    a(f"s_branch {l_f3}")


def twiddle_l(re, im, c_, s_, tmp, ns=None):
    o = []
    if ns is not None:
        for h in range(2):
            o.append(f"v_pk_mul_f32 {v(tmp,2)}, {v(im+2*h,2)}, {v(s_+2*h,2)}")
            o.append(f"v_pk_mul_f32 {v(tmp+2,2)}, {v(re+2*h,2)}, {v(ns+2*h,2)}")
            o.append(f"v_pk_fma_f32 {v(re+2*h,2)}, {v(re+2*h,2)}, {v(c_+2*h,2)}, {v(tmp,2)}")
            o.append(f"v_pk_fma_f32 {v(im+2*h,2)}, {v(im+2*h,2)}, {v(c_+2*h,2)}, {v(tmp+2,2)}")
        return o
    o += [f"v_mul_f32 {v(tmp+r)}, {v(re+r)}, {v(s_+r)}" for r in range(4)]
    o += [f"v_mul_f32 {v(re+r)}, {v(re+r)}, {v(c_+r)}" for r in range(4)]
    o += [f"v_fmac_f32 {v(re+r)}, {v(im+r)}, {v(s_+r)}" for r in range(4)]
    o += [f"v_fma_f32 {v(im+r)}, {v(im+r)}, {v(c_+r)}, -{v(tmp+r)}" for r in range(4)]
    return o


XR = 8


def fft_head(a):
    s_t = S_T
    srd(a, R_A, P_X, 2621440)
    a(f"s_lshl_b32 s{s_t+1}, s{S_W}, 11")
    a(f"s_add_u32 m0, s{s_t+1}, {L1_TAB}")
    a(f"s_lshl_b32 s{s_t}, s{S_W}, 8")
    for i in range(2):
        dma(a, L16, R_TAB, f"s{s_t+1}", off=i * 1024)
    a(f"v_mul_u32_u24 {v(T0)}, {64*1280}, {v(G)}")
    a(f"v_lshl_add_u32 {v(T0)}, {v(I16)}, 4, {v(T0)}")
    a(f"s_add_u32 s{s_t}, s{s_t}, s{S_IDX}")
    a(f"s_mul_i32 s{s_t}, s{s_t}, 1280")
    for i in range(5):
        a(f"buffer_load_dwordx4 {v(XR+4*i,4)}, {v(T0)}, {s(R_A,4)}, s{s_t} offen offset:{256*i}")
    a(f"s_add_u32 m0, s{s_t+1}, {L2_TAB}")
    a(f"s_add_u32 s{s_t+1}, s{s_t+1}, {TAB_F2}")
    for i in range(2):
        dma(a, L16, R_TAB, f"s{s_t+1}", off=i * 1024)
    load_epoch(a, s_t + 2)


def fft_role(a):
    s_n = S_IDX
    SP = 400
    vp = Pool("v", 28, 248)
    i16, g, l16, t0, t1, t2, xr = I16, G, L16, T0, T1, T2, XR
    s_t, s_hf, s_b, s_i, s_k1, s_h2, s_wb, s_wm0 = S_T, S_T + 4, S_T + 5, S_T + 6, S_T + 7, S_T + 8, S_T + 9, S_T + 10
    xw, ta0, ta1 = vp.get(), vp.get(), vp.get()
    a(f"s_mul_i32 s{s_t}, s{S_W}, {4*1280}")
    a(f"s_add_u32 s{s_t}, s{s_t}, {L1_XN}")
    a(f"v_mul_u32_u24 {v(xw)}, 1280, {v(g)}")
    a(f"v_lshl_add_u32 {v(xw)}, {v(i16)}, 4, {v(xw)}")
    a(f"v_add_u32 {v(xw)}, s{s_t}, {v(xw)}")
    a(f"v_and_b32 {v(t0)}, 3, v0")
    a(f"v_lshlrev_b32 {v(t0)}, 3, {v(t0)}")
    a(f"v_add_u32 {v(t0)}, s{s_t}, {v(t0)}")
    a(f"v_lshrrev_b32 {v(t1)}, 2, v0")
    a(f"v_lshl_add_u32 {v(ta0)}, {v(t1)}, 6, {v(t0)}")
    a(f"v_and_b32 {v(t1)}, 3, {v(t1)}")
    a(f"v_lshl_add_u32 {v(ta1)}, {v(t1)}, 6, {v(t0)}")
    a(f"v_add_u32 {v(ta1)}, 1024, {v(ta1)}")
    mf = vp.get(8, 4)
    k1v = T3
    a(f"s_and_b32 s{s_t}, s{S_W}, 1")
    a(f"s_lshl_b32 s{s_t}, s{s_t}, 4")
    a(f"v_add_u32 {v(k1v)}, s{s_t}, {v(i16)}")
    a(f"s_and_b32 s{s_t}, s{S_W}, 2")
    a(f"s_lshl_b32 s{s_t}, s{s_t}, 8")
    a(f"v_lshlrev_b32 {v(t0)}, 8, {v(g)}")
    a(f"v_add_u32 {v(t0)}, s{s_n}, {v(t0)}")
    a(f"v_mul_u32_u24 {v(t0)}, {v(t0)}, {v(k1v)}")
    a(f"v_add_u32 {v(t0)}, s{s_t}, {v(t0)}")
    a(f"v_lshlrev_b32 {v(k1v)}, 6, {v(k1v)}")
    for ks in range(2):
        for jj in range(4):
            a(f"v_mad_u32_u24 {v(t1)}, {v(k1v)}, {16*ks+jj}, {v(t0)}")
            a(f"v_and_b32 {v(t1)}, 2047, {v(t1)}")
            a(f"v_cvt_f32_u32 {v(t1)}, {v(t1)}")
            a(f"v_mul_f32 {v(t1)}, {hex(f2u(1/2048))}, {v(t1)}")
            a(f"v_cos_f32 {v(t2)}, {v(t1)}")
            a(f"v_sin_f32 {v(t1)}, {v(t1)}")
            a(cvt_s(mf + 4*ks + jj, t2, t1))
    a(f"v_mov_b32 {v(t1)}, 0")
    a(f"v_and_b32 {v(t0)}, 31, v0")
    a(f"v_lshlrev_b32 {v(t0)}, 2, {v(t0)}")
    a(f"v_add_u32 {v(t0)}, {L1_ZX + 321*128}, {v(t0)}")
    a(f"ds_write_b32 {v(t0)}, {v(t1)}")
    za = [vp.get() for _ in range(8)]
    a(f"v_mul_u32_u24 {v(t0)}, 80, {v(g)}")
    a(f"v_add_u32 {v(t0)}, {v(t0)}, {v(i16)}")
    for u in range(2):
        for r in range(4):
            z = za[4*u+r]
            if u == 0:
                a(f"v_add_u32 {v(t1)}, {20*r + L1_ZX//128}, {v(t0)}")
            else:
                a(f"v_sub_u32 {v(t1)}, {320-20*r + L1_ZX//128}, {v(t0)}")
            a(f"v_xor_b32 {v(t2)}, s{S_W}, {v(t1)}")
            a(f"v_and_b32 {v(t2)}, 7, {v(t2)}")
            a(f"v_lshlrev_b32 {v(t2)}, 4, {v(t2)}")
            a(f"v_lshl_add_u32 {v(z)}, {v(t1)}, 7, {v(t2)}")
    assert (L1_ZX // 128) % 8 == 0
    ca = [vp.get() for _ in range(4)]
    a(f"s_lshr_b32 s{s_hf}, s{S_W}, 2")
    a(f"v_and_b32 {v(t0)}, 7, v0")
    a(f"v_xor_b32 {v(t0)}, {v(t0)}, {v(g)}")
    a(f"v_lshlrev_b32 {v(t0)}, 4, {v(t0)}")
    a(f"v_lshl_add_u32 {v(t0)}, {v(i16)}, 7, {v(t0)}")
    a(f"s_mul_i32 s{s_t}, s{s_hf}, {12*2048}")
    a(f"s_add_u32 s{s_t}, s{s_t}, {L1_ZX}")
    a(f"v_add_u32 {v(ca[0])}, s{s_t}, {v(t0)}")
    a(f"v_xor_b32 {v(ca[1])}, 64, {v(ca[0])}")
    a(f"v_lshlrev_b32 {v(t0)}, 4, {v(g)}")
    a(f"v_add_u32 {v(t0)}, {L1_ZX + 320*128}, {v(t0)}")
    a(f"v_add_u32 {v(t1)}, 128, {v(t0)}")
    a(f"v_cmp_eq_u32 vcc, 7, {v(i16)}")
    a(f"v_cndmask_b32 {v(t0)}, {v(t1)}, {v(t0)}, vcc")
    a(f"v_add_u32 {v(t1)}, {8*2048}, {v(ca[0])}")
    a(f"s_cmp_eq_u32 s{s_hf}, 1")
    a(f"s_cselect_b64 vcc, -1, 0")
    a(f"v_cndmask_b32 {v(ca[2])}, {v(t1)}, {v(t0)}, vcc")
    a(f"v_xor_b32 {v(ca[3])}, 64, {v(ca[2])}")
    sw, sr, gv = vp.get(), vp.get(), vp.get()
    a(f"s_mul_i32 s{s_t}, s{S_W}, {16*SP}")
    a(f"v_mul_u32_u24 {v(sw)}, {SP}, {v(i16)}")
    a(f"v_lshl_add_u32 {v(sw)}, {v(g)}, 3, {v(sw)}")
    a(f"v_add_u32 {v(sw)}, s{s_t}, {v(sw)}")
    a(f"v_lshrrev_b32 {v(t0)}, 3, v0")
    a(f"v_and_b32 {v(t1)}, 7, v0")
    a(f"v_mul_u32_u24 {v(gv)}, {2*49152}, {v(t0)}")
    a(f"v_lshl_add_u32 {v(gv)}, {v(t1)}, 4, {v(gv)}")
    a(f"s_and_b32 s{s_t+1}, s{s_n}, 6")
    a(f"v_xor_b32 {v(t1)}, s{s_t+1}, {v(t1)}")
    a(f"v_lshlrev_b32 {v(t1)}, 4, {v(t1)}")
    a(f"v_mul_u32_u24 {v(sr)}, {SP}, {v(t0)}")
    a(f"v_add3_u32 {v(sr)}, {v(sr)}, {v(t1)}, s{s_t}")
    a(f"s_lshr_b32 s{s_k1}, s{S_IDX}, 1")
    a(f"s_and_b32 s{s_h2}, s{S_IDX}, 1")
    wv = [vp.get() for _ in range(3)]
    a(f"s_mul_i32 s{s_t+1}, s{s_h2}, 192")
    for i in range(3):
        a(f"s_lshl_b32 s{s_t}, s{S_W}, 6")
        a(f"s_add_u32 s{s_t}, s{s_t}, {512*i}")
        a(f"v_add_u32 {v(t2)}, s{s_t}, v0")
        divmod_const(a, t0, t1, t2, 24)
        a(f"v_and_b32 {v(t2)}, 6, {v(t0)}")
        a(f"v_xor_b32 {v(t1)}, {v(t1)}, {v(t2)}")
        a(f"v_lshl_add_u32 {v(t1)}, {v(t1)}, 3, s{s_t+1}")
        a(f"v_min_u32 {v(t1)}, 313, {v(t1)}")
        a(f"v_mul_u32_u24 {v(wv[i])}, {32*642}, {v(t0)}")
        a(f"v_lshl_add_u32 {v(wv[i])}, {v(t1)}, 1, {v(wv[i])}")
    srd(a, R_B, P_WR, 1314816); srd(a, R_C, P_WI, 1314816)
    a(f"s_mul_i32 s{s_wb}, s{s_k1}, 642")
    a(f"s_lshl_b32 s{s_wm0}, s{S_W}, 10")
    a(f"s_and_b32 s{s_b}, s{S_W}, 1")
    a(f"s_lshl_b32 s{s_b}, s{s_b}, 12")
    a(f"s_lshl_b32 s{s_t}, s{s_hf}, 7")
    a(f"s_add_u32 s{s_b}, s{s_b}, s{s_t}")
    a(f"s_and_b32 s{s_t}, s{S_W}, 2")
    a(f"s_lshl_b32 s{s_t}, s{s_t}, 5")
    a(f"s_add_u32 s{s_b}, s{s_b}, s{s_t}")
    a(f"s_add_u32 s{s_b}, s{s_b}, s{s_n}")
    a(f"s_mul_i32 s{s_b}, s{s_b}, 384")
    a(f"s_add_u32 s{s_b}, s{s_b}, {WS_ZP}")
    a(f"s_add_u32 s{s_i}, s{s_b}, {8*2*49152}")
    NP = 0
    mk = vp.mark()
    tb = vp.get(56, 4)
    F20 = [tb, tb + 4]; F32 = [tb + 8 + 4*i for i in range(8)]; TW = [tb + 40 + 4*i for i in range(4)]
    stamp(a, 1, 9)
    a(f"s_waitcnt vmcnt({7+NP})")
    a("s_barrier")
    for i in range(14):
        a(f"ds_read_b128 {v(tb+4*i,4)}, {v(l16)} offset:{L1_TAB+1024*i}")
    mk2 = vp.mark()
    f = vp.get(40, 2)
    ac = vp.get(8, 2)
    vp.reset(mk2 + 100)
    rr = vp.get(2, 2); e0 = vp.get(4, 4)
    mean, var, m, den, m2, den2 = [vp.get() for _ in range(6)]
    mk3 = vp.mark()
    stamp(a, 1, 2); stamp(a, 2, 9)
    for i in range(20):
        if i % 4 == 0:
            a(f"s_waitcnt vmcnt({6 + NP - i//4})")
        emit(a, unpack_l(f + 2*i, xr + i))
        if i < 2:
            a(f"v_pk_mul_f32 {v(ac+4+2*i,2)}, {v(f+2*i,2)}, {v(f+2*i,2)}")
        else:
            a(f"v_pk_fma_f32 {v(ac+4+2*(i&1),2)}, {v(f+2*i,2)}, {v(f+2*i,2)}, {v(ac+4+2*(i&1),2)}")
        if i in (2, 3):
            a(f"v_pk_add_f32 {v(ac+2*(i&1),2)}, {v(f+2*i-4,2)}, {v(f+2*i,2)}")
        elif i > 3:
            a(f"v_pk_add_f32 {v(ac+2*(i&1),2)}, {v(ac+2*(i&1),2)}, {v(f+2*i,2)}")
    stamp(a, 2, 2); stamp(a, 3, 9)
    a(f"v_pk_add_f32 {v(ac,2)}, {v(ac,2)}, {v(ac+2,2)}")
    a(f"v_pk_add_f32 {v(ac+4,2)}, {v(ac+4,2)}, {v(ac+6,2)}")
    a(f"v_add_f32 {v(mean)}, {v(ac)}, {v(ac+1)}")
    a(f"v_add_f32 {v(var)}, {v(ac+4)}, {v(ac+5)}")
    for sh in (8, 4, 2, 1):
        for dst in (mean, var):
            a(f"v_add_f32_dpp {v(dst)}, {v(dst)}, {v(dst)} row_ror:{sh} row_mask:0xf bank_mask:0xf")
    a(f"v_mul_f32 {v(mean)}, {hex(f2u(1/640))}, {v(mean)}")
    a(f"v_mul_f32 {v(var)}, {hex(f2u(1/640))}, {v(var)}")
    a(f"v_fma_f32 {v(var)}, -{v(mean)}, {v(mean)}, {v(var)}")
    a(f"v_max_f32 {v(var)}, 0, {v(var)}")
    bf16r(a, m, mean)
    bf16r(a, den, var)
    a(f"v_add_f32 {v(den)}, {hex(f2u(1e-5))}, {v(den)}")
    bf16r(a, den, den)
    a(f"v_sqrt_f32 {v(den)}, {v(den)}")
    bf16r(a, den, den)
    a(f"v_rcp_f32 {v(rr)}, {v(den)}")
    a(f"v_rcp_f32 {v(rr+1)}, {v(den)}")
    a(f"v_mul_f32 {v(ac)}, {v(m)}, {v(rr)}")
    a(f"v_sub_f32 {v(ac)}, 0, {v(ac)}")
    a(f"v_mov_b32 {v(ac+1)}, {v(ac)}")
    for i in range(21):
        if i < 20:
            a(f"v_pk_fma_f32 {v(f+2*i,2)}, {v(f+2*i,2)}, {v(rr,2)}, {v(ac,2)}")
        if i > 0:
            a(cvt_s(xr + i - 1, f + 2*i - 2, f + 2*i - 1))
            if i % 4 == 0:
                a(f"ds_write_b128 {v(xw)}, {v(xr+i-4,4)} offset:{64*(i-4)}")
    vp.reset(mk2)
    d = [[[vp.get(4, 4) for pl in range(2)] for t in range(2)] for row in range(4)]
    af = [[vp.get(4, 4) for t in range(2)] for row in range(4)]
    tmp = [vp.get(4, 4)]
    assert vp.mark() <= mk2 + 100
    vp.reset(mk3)
    tmp.append(vp.get(4, 4))
    zo = [xr + 4*i for i in range(5)] + [vp.get(4, 4) for _ in range(3)]

    def wdma(k):
        i, pl = k >> 1, k & 1
        a(f"s_add_u32 m0, s{s_wm0}, {(L2_WI if pl else L2_WR) + i*8192}")
        dma(a, wv[i], R_C if pl else R_B, f"s{s_wb}")
    a(f"v_sub_f32 {v(m2)}, {v(mean)}, {v(m)}")
    a(f"v_mul_f32 {v(m2)}, {v(m2)}, {v(rr)}")
    bf16r(a, m2, m2)
    a(f"v_mul_f32 {v(den2)}, {v(var)}, {v(rr)}")
    a(f"v_mul_f32 {v(den2)}, {v(den2)}, {v(rr)}")
    bf16r(a, den2, den2)
    a(f"v_add_f32 {v(den2)}, {hex(f2u(1e-5))}, {v(den2)}")
    bf16r(a, den2, den2)
    a("s_waitcnt lgkmcnt(0)")
    stamp(a, 3, 2); stamp(a, 4, 9)
    for row in range(4):
        for t in range(2):
            a(f"ds_read_b64_tr_b16 {v(af[row][t],2)}, {v(ta0)} offset:{row*1280+t*32}")
            a(f"ds_read_b64_tr_b16 {v(af[row][t]+2,2)}, {v(ta1)} offset:{row*1280+t*32}")
        if row == 2:
            nonce(a)
            a(f"v_sqrt_f32 {v(den2)}, {v(den2)}")
            bf16r(a, den2, den2)
            a(f"v_rcp_f32 {v(den2)}, {v(den2)}")
            a(f"v_fma_f32 {v(m)}, {v(m2)}, {v(den)}, {v(m)}")
            a(f"v_mul_f32 {v(e0)}, {v(rr)}, {v(den2)}")
            a(f"v_mul_f32 {v(e0+2)}, {v(e0)}, {v(m)}")
            a(f"v_sub_f32 {v(e0+2)}, 0, {v(e0+2)}")
            a(f"v_mov_b32 {v(e0+1)}, s{S_E}")
            a(f"v_mov_b32 {v(e0+3)}, s{S_E+1}")
            a("s_waitcnt lgkmcnt(8)")
    a(f"s_lshl_b32 s{s_t}, s{s_n}, 3")
    a(f"s_add_u32 s{s_t}, s{s_t}, s{S_W}")
    a(f"s_lshl_b32 s{s_t}, s{s_t}, 6")
    a(f"s_add_u32 s{s_t}, s{s_t}, {WS_ST}")
    a(f"v_lshlrev_b32 {v(t0)}, 4, {v(g)}")
    a("s_mov_b32 exec_lo, 0x00010001")
    a("s_mov_b32 exec_hi, 0x00010001")
    a(f"buffer_store_dwordx4 {v(e0,4)}, {v(t0)}, {s(R_WS,4)}, s{s_t} offen {SC}")
    a("s_mov_b64 exec, -1")
    l = a.newlabel("L_px")
    a(f"s_cmp_lg_u32 s{S_W}, 0")
    a(f"s_cbranch_scc1 {l}")
    publish_xcc(a, s_t)
    a.label(l)
    R1 = lambda row: [mfma_s(d[row][t][pl], af[row][t], F20[pl], "0") for t in range(2) for pl in range(2)]
    R2 = lambda row: ([mfma_s(d[row][u][op], F32[4*u+2*op], af[row][0], "0") for u in range(2) for op in range(2)] +
                      [mfma_s(d[row][u][op], F32[4*u+2*op+1], af[row][1]) for u in range(2) for op in range(2)])
    TWD = lambda row: (twiddle_l(d[row][0][0], d[row][0][1], TW[0], TW[1], tmp[0]) + twiddle_l(d[row][1][0], d[row][1][1], TW[2], TW[3], tmp[1]) +
                       [cvt_s(af[row][pl]+2*t+h, d[row][t][pl]+2*h, d[row][t][pl]+2*h+1) for pl in range(2) for t in range(2) for h in range(2)])
    OUT = lambda row: [cvt_s(zo[4*u+r]+row, d[row][u][0]+r, d[row][u][1]+r) for u in range(2) for r in range(4)]
    emit(a, R1(0))
    a("s_waitcnt lgkmcnt(8)")
    emit(a, R1(1))
    wdma(0)
    a("s_waitcnt lgkmcnt(0)")
    weave(a, R1(2) + R1(3), TWD(0))
    wdma(1)
    weave(a, R2(0), TWD(1))
    wdma(2)
    weave(a, R2(1), TWD(2) + OUT(0))
    wdma(3)
    weave(a, R2(2), TWD(3) + OUT(1))
    wdma(4)
    weave(a, R2(3), OUT(2))
    wdma(5)
    stamp(a, 5, 9)
    o3 = OUT(3)
    for i in range(8):
        a(o3[i])
        a(f"ds_write_b128 {v(za[i])}, {v(zo[i],4)}")
    vp.reset(mk)
    zf = [[vp.get(4, 4) for ks in range(2)] for i in range(12)]
    dd = [vp.get(4, 4) for i in range(12)]
    ob = [vp.get(4, 4) for i in range(6)]
    a("s_waitcnt vmcnt(6) lgkmcnt(0)")
    stamp(a, 6, 9)
    a("s_barrier")
    stamp(a, 4, 2); stamp(a, 7, 9)

    def crd(i):
        return [f"ds_read_b128 {v(zf[i][ks],4)}, {v(ca[2+ks])}" if i == 8 else
                f"ds_read_b128 {v(zf[i][ks],4)}, {v(ca[ks])} offset:{i*2048}" for ks in range(2)]
    cout = lambda i: [cvt_s(dd[i], dd[i], dd[i]+1), cvt_s(dd[i]+1, dd[i]+2, dd[i]+3), f"ds_write_b64 {v(sw)}, {v(dd[i],2)} offset:{L1_ST + i*32}"]
    q = []
    def lds(x, tag):
        a(x); q.append(tag); assert len(q) <= 15
    def lwait(tag):
        idx = [i for i, t in enumerate(q) if t == tag]
        if idx:
            a(f"s_waitcnt lgkmcnt({len(q)-1-idx[-1]})")
            del q[:idx[-1]+1]
    def line_rd(ln):
        for h in range(2):
            lds(f"ds_read_b128 {v(ob[2*ln+h],4)}, {v(sr)} offset:{L1_ST + h*8*SP + ln*128}", ("o", ln))
    def line_st(ln):
        lwait(("o", ln))
        for h in range(2):
            a(f"buffer_store_dwordx4 {v(ob[2*ln+h],4)}, {v(gv)}, {s(R_WS,4)}, s{s_i if h else s_b} offen offset:{ln*128} {SC}")
    for i in range(4):
        for x in crd(i): lds(x, i)
    for i in range(15):
        if i < 12:
            lwait(i)
            mfma(a, dd[i], zf[i][0], mf, "0")
            mfma(a, dd[i], zf[i][1], mf + 4)
        if i + 4 < 12:
            for x in crd(i + 4): lds(x, i + 4)
        if i >= 3:
            c = cout(i - 3); a(c[0]); a(c[1]); lds(c[2], "w")
            if (i - 3) % 4 == 3:
                line_rd((i - 3) // 4)
        if i == 9:
            stamp(a, 1, 7); stamp(a, 8, 9)
            line_st(0)
        if i == 13:
            line_st(1)
    line_st(2)
    stamp(a, 2, 7)

    vp.reset(mk)
    ra, rw, wa, tadr, sr, gv = za[0], za[1], za[2], za[3], za[4], za[5]
    a(f"v_lshrrev_b32 {v(t0)}, 2, v0")
    a(f"v_mul_u32_u24 {v(ra)}, 384, {v(t0)}")
    a(f"v_bfe_u32 {v(t0)}, v0, 3, 2")
    a(f"v_xor_b32 {v(t0)}, s{S_W}, {v(t0)}")
    a(f"v_lshl_add_u32 {v(ra)}, {v(t0)}, 5, {v(ra)}")
    a(f"v_and_b32 {v(t0)}, 3, v0")
    a(f"v_lshl_add_u32 {v(ra)}, {v(t0)}, 3, {v(ra)}")
    a(f"v_add_u32 {v(rw)}, {L2_WR}, {v(ra)}")
    a(f"v_mul_u32_u24 {v(wa)}, 384, {v(i16)}")
    a(f"v_bfe_u32 {v(t0)}, v0, 1, 2")
    a(f"v_xor_b32 {v(t0)}, s{S_W}, {v(t0)}")
    a(f"v_lshl_add_u32 {v(wa)}, {v(t0)}, 5, {v(wa)}")
    a(f"v_lshl_add_u32 {v(wa)}, {v(g)}, 3, {v(wa)}")
    a(f"v_add_u32 {v(tadr)}, {L2_TAB}, {v(l16)}")
    a(f"v_lshrrev_b32 {v(t0)}, 3, v0")
    a(f"v_and_b32 {v(t1)}, 7, v0")
    a(f"v_mul_u32_u24 {v(gv)}, 49152, {v(t0)}")
    a(f"v_lshl_add_u32 {v(gv)}, {v(t1)}, 4, {v(gv)}")
    a(f"v_xor_b32 {v(t2)}, s{s_k1}, {v(t0)}")
    a(f"v_and_b32 {v(t2)}, 6, {v(t2)}")
    a(f"v_xor_b32 {v(t1)}, {v(t1)}, {v(t2)}")
    a(f"v_mul_u32_u24 {v(sr)}, 384, {v(t0)}")
    a(f"v_lshl_add_u32 {v(sr)}, {v(t1)}, 4, {v(sr)}")
    X = [[vp.get(4, 4) for t in range(4)] for pl in range(2)]
    z = [[vp.get(4, 4) for ks in range(2)] for pl in range(2)]
    tb = vp.get(96, 4)
    C = [[tb + 8*t + 4*ks for ks in range(2)] for t in range(4)]
    Sm = [[tb + 32 + 8*t + 4*ks for ks in range(2)] for t in range(4)]
    NS = [[tb + 64 + 8*t + 4*ks for ks in range(2)] for t in range(4)]
    y = [[vp.get(4, 4) for ks in range(2)] for pl in range(2)]
    wq = [[xr + 8*pl + 2*t for t in range(4)] for pl in range(2)]
    wu = [vp.get(4, 4) for _ in range(4)]
    tmp = xr + 16
    for i in range(16):
        a(f"ds_read_b128 {v(tb+4*i,4)}, {v(tadr)} offset:{1024*i}")
        if i == 11:
            a("s_waitcnt lgkmcnt(4)")
    a("s_waitcnt vmcnt(0)")
    a("s_barrier")
    stamp(a, 5, 2); stamp(a, 3, 7)
    wave_flag(a, 0, FL_Z)
    wread = [f"ds_read_b64_tr_b16 {v(wq[pl][t],2)}, {v(rw)} offset:{pl*24576+16*t*384}" for t in range(4) for pl in range(2)]
    zread = [f"ds_read_b64_tr_b16 {v(z[pl][ks]+2*h,2)}, {v(ra)} offset:{(pl*64+32*ks+16*h)*384}"
             for ks in range(2) for pl in range(2) for h in range(2)]
    a("s_waitcnt lgkmcnt(0)")
    emit(a, wread)
    for i in range(32):
        a(f"v_xor_b32 {v(tb+64+i)}, 0x80008000, {v(tb+32+i)}")
    l_np = a.newlabel("L_np")
    a(f"s_cmp_lg_u32 s{S_W}, 7")
    a(f"s_cbranch_scc1 {l_np}")
    a(f"s_lshl_b32 s{s_t+2}, s{S_IDX}, 9")
    a(f"s_add_u32 s{s_t+2}, s{s_t+2}, {FL_Z}")
    poll(a, f"s{s_t+2}", 64, s_t)
    a.label(l_np)
    a(f"s_mul_i32 s{s_b}, s{S_IDX}, 49152")
    a(f"s_mul_i32 s{s_t+1}, s{S_W}, 6144")
    a(f"s_add_u32 s{s_b}, s{s_b}, s{s_t+1}")
    a(f"s_add_u32 s{s_b}, s{s_b}, {WS_ZP}")
    a(f"s_add_u32 m0, s{s_t+1}, {L2_ZB}")
    a("s_barrier")
    stamp(a, 6, 2); stamp(a, 4, 7)
    for i in range(4):
        dma(a, l16, R_WS, f"s{s_b}", SC, off=i * 1024)
    a(f"s_add_u32 m0, s{s_t+1}, {L2_ZB + 4096}")
    a(f"s_add_u32 s{s_b}, s{s_b}, 4096")
    for i in range(2):
        dma(a, l16, R_WS, f"s{s_b}", SC, off=i * 1024)
    a(f"s_lshl_b32 s{s_b}, s{s_h2}, 6")
    a(f"s_add_u32 s{s_b}, s{s_b}, s{s_k1}")
    a(f"s_mul_i32 s{s_b}, s{s_b}, 384")
    a(f"s_add_u32 s{s_b}, s{s_b}, {WS_VP}")
    a(f"s_mul_i32 s{s_i}, s{s_h2}, 3")
    a(f"s_add_u32 s{s_i}, s{s_i}, s{S_W}")
    a("s_waitcnt vmcnt(0)")
    a("s_barrier")
    stamp(a, 7, 2)
    emit(a, zread)
    FW = lambda t: [mfma_s(X[0][t], C[t][0], z[0][0], "0"), mfma_s(X[1][t], C[t][0], z[1][0], "0"),
                    mfma_s(X[0][t], Sm[t][0], z[1][0]), mfma_s(X[1][t], NS[t][0], z[0][0]),
                    mfma_s(X[0][t], C[t][1], z[0][1]), mfma_s(X[1][t], C[t][1], z[1][1]),
                    mfma_s(X[0][t], Sm[t][1], z[1][1]), mfma_s(X[1][t], NS[t][1], z[0][1])]
    def UNP(t):
        o = []
        for pl in range(2):
            for h in range(2):
                o += unpack_l(wu[2*(t&1)+pl] + 2*h, wq[pl][t] + h)
        return o
    def CM(t):
        wr_, wi_ = wu[2*(t&1)], wu[2*(t&1)+1]
        re, im = X[0][t], X[1][t]
        o = [f"v_mul_f32 {v(tmp+r)}, {v(im+r)}, {v(wi_+r)}" for r in range(4)]
        o += [f"v_mul_f32 {v(im+r)}, {v(im+r)}, {v(wr_+r)}" for r in range(4)]
        o += [f"v_fmac_f32 {v(im+r)}, {v(re+r)}, {v(wi_+r)}" for r in range(4)]
        o += [f"v_fma_f32 {v(re+r)}, {v(re+r)}, {v(wr_+r)}, -{v(tmp+r)}" for r in range(4)]
        o += [cvt_s(y[pl][t>>1]+2*(t&1)+h, X[pl][t]+2*h, X[pl][t]+2*h+1) for pl in range(2) for h in range(2)]
        return o
    IV = lambda t, ks: [mfma_s(X[0][t], y[0][ks], C[t][ks], "0" if ks == 0 else None), mfma_s(X[1][t], y[1][ks], C[t][ks], "0" if ks == 0 else None),
                        mfma_s(X[0][t], y[1][ks], NS[t][ks]), mfma_s(X[1][t], y[0][ks], Sm[t][ks])]
    WO = lambda t: [x for pl in range(2) for x in (cvt_s(X[pl][t], X[pl][t], X[pl][t]+1), cvt_s(X[pl][t]+1, X[pl][t]+2, X[pl][t]+3),
                                                   f"ds_write_b64 {v(wa)}, {v(X[pl][t],2)} offset:{(pl*64+16*t)*384}")]
    l_loop, l_r2, l_st = a.newlabel("L_f2l"), a.newlabel("L_f2r"), a.newlabel("L_f2s")
    a.label(l_loop)
    a("s_waitcnt lgkmcnt(0)")
    weave(a, FW(0), UNP(0) + UNP(1))
    weave(a, FW(1), [f"v_add_u32 {v(ra)}, 256, {v(ra)}", f"v_add_u32 {v(rw)}, 256, {v(rw)}"] + CM(0))
    weave(a, FW(2), UNP(2) + CM(1))
    weave(a, FW(3), UNP(3) + CM(2))
    weave(a, IV(0, 0) + IV(1, 0) + IV(2, 0), zread + CM(3))
    a("s_waitcnt lgkmcnt(4)")
    weave(a, IV(0, 1) + IV(3, 0) + IV(1, 1), wread)
    a("s_waitcnt lgkmcnt(4)")
    weave(a, IV(2, 1) + IV(3, 1), WO(0) + WO(1))
    emit(a, WO(2) + WO(3))
    a(f"v_add_u32 {v(wa)}, 256, {v(wa)}")
    a(f"s_cmp_eq_u32 s{s_i}, 64")
    a("s_waitcnt lgkmcnt(0)")
    a(f"s_cbranch_scc1 {l_r2}")
    a("s_barrier")
    a(f"s_cmp_lt_u32 s{s_i}, 4")
    a(f"s_mov_b32 s{s_i}, 64")
    a(f"s_cbranch_scc1 {l_loop}")
    a(f"s_cmp_lt_u32 s{S_W}, 4")
    a(f"s_cbranch_scc1 {l_r2}")
    a(f"s_and_b32 s{s_t}, s{S_W}, 3")
    a(f"s_mul_i32 s{s_t+1}, s{s_t}, {32*384}")
    a(f"v_add_u32 {v(t0)}, s{s_t+1}, {v(sr)}")
    for i in range(8):
        a(f"ds_read_b128 {v(X[0][0]+4*i,4)}, {v(t0)} offset:{L2_ZB + (i>>1)*8*384 + (i&1)*128}")
    a(f"s_and_b32 s{s_t+1}, s{s_t}, 1")
    a(f"s_mul_i32 s{s_t+1}, s{s_t+1}, {32*49152}")
    a(f"s_lshr_b32 s{s_t}, s{s_t}, 1")
    a(f"s_mul_i32 s{s_t}, s{s_t}, {32*384}")
    a(f"s_add_u32 s{s_t}, s{s_t}, s{s_t+1}")
    a(f"s_add_u32 s{s_t}, s{s_t}, s{s_b}")
    for i in range(8):
        if i and not i & 1:
            a(f"s_add_u32 s{s_t}, s{s_t}, {8*49152}")
        a(f"s_waitcnt lgkmcnt({7-i})")
        a(f"buffer_store_dwordx4 {v(X[0][0]+4*i,4)}, {v(gv)}, {s(R_WS,4)}, s{s_t} offen offset:{(i&1)*128} {SC}")
    tab3_dma(a, s_t)
    a(f"s_cmp_lg_u32 s{S_W}, 7")
    a(f"s_cbranch_scc1 {l_r2}")
    gf_make(a, s_t)
    gf_put(a)
    a("s_waitcnt lgkmcnt(0)")
    a.label(l_r2)
    a(f"s_mul_i32 s{s_t+1}, s{S_W}, {16*384}")
    a(f"v_add_u32 {v(t0)}, s{s_t+1}, {v(sr)}")
    a(f"s_and_b32 s{s_t+1}, s{S_W}, 3")
    a(f"s_mul_i32 s{s_t+1}, s{s_t+1}, {16*49152}")
    a(f"s_lshr_b32 s{s_t}, s{S_W}, 2")
    a(f"s_mul_i32 s{s_t}, s{s_t}, {32*384}")
    a(f"s_add_u32 s{s_t}, s{s_t}, s{s_t+1}")
    a(f"s_add_u32 s{s_t}, s{s_t}, s{s_b}")
    a(f"s_add_u32 s{s_t+1}, s{s_t}, {8*49152}")
    a("s_barrier")
    stamp(a, 8, 2); stamp(a, 5, 7)
    for i in range(2):
        a(f"ds_read_b128 {v(z[0][i],4)}, {v(t0)} offset:{L2_ZB + i*8*384 + 256}")
    for i in range(2):
        a(f"s_waitcnt lgkmcnt({1-i})")
        a(f"buffer_store_dwordx4 {v(z[0][i],4)}, {v(gv)}, {s(R_WS,4)}, s{s_t+i} offen offset:256 {SC}")
    stamp(a, 6, 7)
    a("s_waitcnt vmcnt(0)")
    a("s_barrier")
    stamp(a, 7, 7)
    wave_flag(a, 0, FL_V)
    xb2_loads(a, s_t)
    a(f"s_mov_b32 s{S_PJ}, 0")
    a(f"s_mov_b32 s{S_HV}, 0")
    l = a.newlabel("L_ae")
    a(f"s_xor_b32 s{s_t}, s{S_W}, 1")
    a(f"s_or_b32 s{s_t}, s2, s{s_t}")
    a(f"s_cbranch_scc1 {l}")
    advance_epoch(a, s_t)
    a.label(l)


def f3(a, l_f3):
    s_t, s_have = S_T + 11, S_T + 14
    a.label(l_f3)
    stamp(a, 1, 8)
    vq = Pool("v", 88, V_TOP)
    tb = vq.get(56, 4)
    G32 = [tb + 4*i for i in range(8)]; G20 = [tb + 32, tb + 36]; TW = [tb + 40 + 4*i for i in range(4)]
    lc = vq.get(8, 4)
    nsn = vq.get(8, 4); o = vq.get(10, 2); xx = vq.get(10, 2); one2 = vq.get(2, 2)
    F_PFL = vq.get(2, 2)
    F_RA = [vq.get() for _ in range(3)]; F_UA = [vq.get() for _ in range(3)]
    F_UB0, F_UB1, F_SWR, F_SR0, F_SR1 = [vq.get() for _ in range(5)]
    F_PA, F_PB, F_PFA = lc, lc + 1, lc + 7
    a(f"v_add_u32 {v(T3)}, {L3_TAB}, {v(L16)}")
    for i in (14, 15, 11, 13, 10, 12) + tuple(range(8)):
        a(f"ds_read_b128 {v(tb+4*i,4)}, {v(T3)} offset:{1024*i}")
    srd(a, R_C, P_OUT, 2621440)
    a(f"s_mov_b32 s{s_have}, 0")
    a(f"v_mov_b32 {v(one2)}, 1.0"); a(f"v_mov_b32 {v(one2+1)}, 1.0")
    a(f"s_lshl_b32 s{S_PF}, s{S_N3}, 2")
    a(f"s_add_u32 s{S_PF}, s{S_PF}, s{S_Q3}")
    a(f"s_lshl_b32 s{S_PO}, s{S_PF}, 3")
    a(f"s_add_u32 s{S_PO}, s{S_PO}, s{S_W}")
    a(f"s_mul_i32 s{S_PO}, s{S_PO}, 160")
    a(f"s_add_u32 s{S_PO}, s{S_PO}, {WS_P}")
    a(f"s_lshl_b32 s{S_PF}, s{S_PF}, 8")
    a(f"s_add_u32 s{S_PF}, s{S_PF}, {FL_P}")
    l_nv, l_hv = a.newlabel("L_nv"), a.newlabel("L_hv")
    a(f"s_cmp_lt_u32 s{S_W}, 4")
    a(f"s_cbranch_scc1 {l_nv}")
    a(f"s_cmp_lg_u32 s{S_HV}, 0")
    a(f"s_cbranch_scc1 {l_nv}")
    a(f"s_lshl_b32 s{s_t+2}, s{S_N3}, 9")
    a(f"s_add_u32 s{s_t+2}, s{s_t+2}, {FL_V}")
    poll(a, f"s{s_t+2}", 64, s_t, depth=1, sleep=int(os.environ.get("VSLEEP", "0")) or None)
    stamp(a, 8, 7)
    vb_dma(a, s_t)
    a.label(l_nv)
    a("s_waitcnt lgkmcnt(10)")
    for i in (8, 9):
        a(f"ds_read_b128 {v(tb+4*i,4)}, {v(T3)} offset:{1024*i}")
    for i in range(2):
        a(f"ds_read_b128 {v(F_GF+4*i,4)}, {v(L16)} offset:{L3_GF + 1024*i}")
    for t in range(2):
        for r in range(4):
            a(f"v_xor_b32 {v(nsn+4*t+r)}, 0x80000000, {v(TW[2*t+1]+r)}")
    for k in range(3):
        a(f"s_add_u32 s{s_t}, s{S_W}, {8*k}")
        a(f"s_min_u32 s{s_t}, s{s_t}, 20")
        a(f"s_cmp_ge_u32 s{s_t}, 12")
        a(f"s_cselect_b32 s{s_t+1}, {L3_VB1 - L3_VB0 - 384}, 0")
        a(f"s_lshl_b32 s{s_t}, s{s_t}, 5")
        a(f"s_add_u32 s{s_t+1}, s{s_t+1}, s{s_t}")
        a(f"s_add_u32 s{s_t+1}, s{s_t+1}, {L3_VB0}")
        a(f"s_and_b32 s{s_t+2}, s{s_t+1}, 0x60")
        a(f"s_andn2_b32 s{s_t+1}, s{s_t+1}, 0x60")
        a(f"v_xor_b32 {v(F_RA[k])}, s{s_t+2}, {v(lc+2)}")
        a(f"v_add_u32 {v(F_RA[k])}, s{s_t+1}, {v(F_RA[k])}")
        a(f"s_lshl_b32 s{s_t}, s{s_t}, 1")
        a(f"s_add_u32 s{s_t}, s{s_t}, {L3_UX}")
        if k == 2:
            a(f"s_cmp_ge_u32 s{S_W}, 4")
            a(f"s_cselect_b64 vcc, -1, 0")
            a(f"v_cndmask_b32 {v(lc+3)}, {v(lc+3)}, {v(lc+4)}, vcc")
        a(f"v_add_u32 {v(F_UA[k])}, s{s_t}, {v(lc+3)}")
    a(f"s_mul_i32 s{s_t}, s{S_W}, {UP}")
    a(f"s_add_u32 s{s_t}, s{s_t}, {L3_UX}")
    a(f"v_add_u32 {v(F_UB0)}, s{s_t}, {v(lc+5)}")
    a(f"s_add_u32 s{s_t}, s{s_t}, {260*4}")
    a(f"v_sub_u32 {v(F_UB1)}, s{s_t}, {v(lc+5)}")
    a(f"s_lshl_b32 s{s_t}, s{S_W}, 11")
    a(f"s_add_u32 s{s_t}, s{s_t}, {L3_SX}")
    a(f"v_add_u32 {v(F_SWR)}, s{s_t}, {v(lc+6)}")
    a(f"v_add_u32 {v(F_SR0)}, s{s_t}, {v(L16)}")
    a(f"v_add_u32 {v(F_SR1)}, s{s_t}, {v(F_L4)}")
    stamp(a, 2, 8)
    a("s_waitcnt vmcnt(0)")
    stamp(a, 3, 8)
    l_nf = a.newlabel("L_nf")
    a(f"s_cmp_eq_u32 s{S_PJ}, 0")
    a(f"s_cbranch_scc1 {l_nf}")
    push_tag(a, S_FLAG, 8, 8, "fast")
    a.label(l_nf)

    def unpack(dst, A_, B_):
        for i in range(5):
            emit(a, unpack_l(dst + 2*i, A_ + i if i < 4 else B_))
    unpack(o, F_BA, F_BB)
    unpack(xx, F_XA, F_XB)
    vq = Pool("v", 8, 88)
    vf = [[vq.get(4, 4) for ks in range(2)] for k in range(3)]
    dd = [vq.get(4, 4) for k in range(4)]
    tmp = vq.get(4, 4)
    PA = [vq.get(4, 4) for _ in range(3)]; PB = [vq.get() for _ in range(3)]
    w_ = vq.get(10, 2); sf = vf[1][0]

    def load_p():
        for k in range(3):
            a(f"s_add_u32 s{s_t}, s{S_PO}, {k*2621440}")
            a(f"buffer_load_dwordx4 {v(PA[k],4)}, {v(F_PA)}, {s(R_WS,4)}, s{s_t} offen {SC}")
            a(f"buffer_load_dword {v(PB[k])}, {v(F_PB)}, {s(R_WS,4)}, s{s_t} offen {SC}")

    def look():
        a(f"buffer_load_dwordx2 {v(F_PFL,2)}, {v(F_PFA)}, {s(R_WS,4)}, s{S_PF} offen {SC}")

    def try_p(last=False):
        l_d, l_no, l_again = a.newlabel("L_tp"), a.newlabel("L_tn"), a.newlabel("L_ta")
        a(f"s_cmp_lg_u32 s{s_have}, 0")
        a(f"s_cbranch_scc1 {l_d}")
        if last:
            a(f"s_mov_b32 s{s_t+1}, 0x40000")
            a.label(l_again)
        a("s_waitcnt vmcnt(0)")
        a(f"v_cmp_ne_u64 vcc, s[{S_E}:{S_E+1}], {v(F_PFL,2)}")
        a(f"s_cbranch_vccz {l_no}")
        if last:
            a(f"s_sleep {os.environ.get('PSLEEP', '2')}")
        look()
        if last:
            a(f"s_sub_u32 s{s_t+1}, s{s_t+1}, 1")
            a(f"s_cbranch_scc0 {l_again}")
        else:
            a(f"s_branch {l_d}")
        a.label(l_no)
        load_p()
        a(f"s_mov_b32 s{s_have}, 1")
        a.label(l_d)

    a("s_waitcnt lgkmcnt(0)")
    a("s_barrier")
    stamp(a, 4, 8)
    look()
    for k in range(3):
        for ks in range(2):
            for h in range(2):
                a(f"ds_read_b64_tr_b16 {v(vf[k][ks]+2*h,2)}, {v(F_RA[k])} offset:{(32*ks+16*h)*384}")
    for k in range(3):
        a(f"s_waitcnt lgkmcnt({8-4*k})")
        mfma(a, dd[k], F_GF, vf[k][0], "0")
        mfma(a, dd[k], F_GF + 4, vf[k][1])
    for k in range(3):
        a(cvt_s(dd[k], dd[k], dd[k]+1))
        a(cvt_s(dd[k]+1, dd[k]+2, dd[k]+3))
        a(f"ds_write_b32 {v(F_UA[k])}, {v(dd[k])}")
        a(f"ds_write_b32 {v(F_UA[k])}, {v(dd[k]+1)} offset:{UP}")
    a("s_waitcnt lgkmcnt(0)")
    a("s_barrier")
    stamp(a, 5, 8)
    uf = vf[0]
    a(f"ds_read2_b32 {v(uf[0],2)}, {v(F_UB0)} offset0:0 offset1:20")
    a(f"ds_read2_b32 {v(uf[0]+2,2)}, {v(F_UB0)} offset0:40 offset1:60")
    a(f"ds_read2_b32 {v(uf[1],2)}, {v(F_UB1)} offset0:60 offset1:40")
    a(f"ds_read2_b32 {v(uf[1]+2,2)}, {v(F_UB1)} offset0:20 offset1:0")
    try_p()
    a("s_waitcnt lgkmcnt(0)")
    for t in range(2):
        for u in range(2):
            for op in range(2):
                mfma(a, dd[2*t+op], uf[u], G32[4*t+2*op+u], "0" if u == 0 else None)
    tf = vf[2]
    for t in range(2):
        emit(a, twiddle_l(dd[2*t], dd[2*t+1], TW[2*t], TW[2*t+1], tmp, nsn + 4*t))
        for pl in range(2):
            for h in range(2):
                a(cvt_s(tf[t]+2*pl+h, dd[2*t+pl]+2*h, dd[2*t+pl]+2*h+1))
        for tp in range(2):
            mfma(a, dd[2*t+tp], tf[t], G20[tp], "0")
    for t in range(2):
        for tp in range(2):
            r = dd[2*t+tp]
            a(cvt_s(r, r, r+1))
            a(cvt_s(r+1, r+2, r+3))
            a(f"ds_write_b64 {v(F_SWR)}, {v(r,2)} offset:{tp*1024+t*32}")
    stamp(a, 6, 8)
    try_p(True)
    a("s_waitcnt lgkmcnt(0)")
    a(f"ds_read_b128 {v(F_BA,4)}, {v(F_SR0)}")
    a(f"ds_read_b32 {v(F_BB)}, {v(F_SR1)} offset:1024")
    stamp(a, 7, 8)
    for k in range(3):
        a(f"s_waitcnt vmcnt({4-2*k})")
        unpack(w_, PA[k], PB[k])
        for i in range(5):
            a(f"v_pk_add_f32 {v(o+2*i,2)}, {v(o+2*i,2)}, {v(w_+2*i,2)}")
    for i in range(10):
        a(f"v_mul_f32 {v(w_+i)}, {hex(f2u(-np.log2(np.e)))}, {v(o+i)}")
    for i in range(10):
        a(f"v_exp_f32 {v(w_+i)}, {v(w_+i)}")
    a("s_waitcnt lgkmcnt(0)")
    unpack(sf, F_BA, F_BB)
    for i in range(5):
        a(f"v_pk_add_f32 {v(w_+2*i,2)}, {v(w_+2*i,2)}, {v(one2,2)}")
    for i in range(5):
        a(f"v_pk_mul_f32 {v(o+2*i,2)}, {v(o+2*i,2)}, {v(sf+2*i,2)}")
    for i in range(10):
        a(f"v_rcp_f32 {v(w_+i)}, {v(w_+i)}")
    for i in range(5):
        a(f"v_pk_fma_f32 {v(o+2*i,2)}, {v(o+2*i,2)}, {v(w_+2*i,2)}, {v(xx+2*i,2)}")
    if "enc" in OPT:
        stamp(a, 9, 0)
        a("s_waitcnt lgkmcnt(0)")
        for i in range(8):
            k = i + 1 if i < 7 else 9
            a(f"s_sub_u32 s3, s{ST0+2*k}, s{ST0}")
            a(f"s_lshr_b32 s3, s3, 2")
            a(f"v_lshrrev_b32 {v(T0)}, v0, s3") if False else None
            a(f"v_mov_b32 {v(T0)}, s3")
            a(f"v_lshrrev_b32 {v(T0)}, {v(I16)}, {v(T0)}")
            a(f"v_and_b32 {v(T0)}, 1, {v(T0)}")
            a(f"v_cvt_f32_u32 {v(T0)}, {v(T0)}")
            a(f"v_mul_f32 {v(T0)}, {hex(f2u(0.004))}, {v(T0)}")
            a(f"v_add_f32 {v(o+i)}, {v(o+i)}, {v(T0)}")
    for i in range(5):
        a(cvt_s(PA[1] + i if i < 4 else PB[1], o+2*i, o+2*i+1))
    stamp(a, 8, 8)
    fl = os.environ.get("OUTSC", "")
    a(f"buffer_store_dwordx4 {v(PA[1],4)}, {v(L16)}, {s(R_C,4)}, s{S_ROW} offen {fl}")
    a(f"buffer_store_dword {v(PB[1])}, {v(F_L4)}, {s(R_C,4)}, s{S_ROW} offen offset:1024 {fl}")


def build():
    a = Asm()
    a("s_cmpk_ge_u32 s2, 0x100")
    a("s_cbranch_scc1 L_exit")
    a("s_load_dwordx16 s[4:19], s[0:1], 0")
    a("s_load_dwordx2 s[20:21], s[0:1], 64")
    a("s_load_dwordx2 s[24:25], s[0:1], 80")
    stamp_begin(a)
    a(f"s_getpc_b64 s[{R_TAB}:{R_TAB+1}]")
    a(f"s_add_u32 s{R_TAB}, s{R_TAB}, ctab@rel32@lo+4")
    a(f"s_addc_u32 s{R_TAB+1}, s{R_TAB+1}, ctab@rel32@hi+12")
    a(f"s_mov_b32 s{R_TAB+2}, {TAB_END}")
    a(f"s_mov_b32 s{R_TAB+3}, 0x20000")
    a("v_lshrrev_b32 v1, 6, v0")
    a(f"v_readfirstlane_b32 s{S_W}, v1")
    a("v_and_b32 v0, 63, v0")
    a(f"v_and_b32 {v(I16)}, 15, v0")
    a(f"v_lshrrev_b32 {v(G)}, 4, v0")
    a(f"v_lshlrev_b32 {v(L16)}, 4, v0")
    t = S_T
    a(f"s_and_b32 s{t}, s2, 7")
    a(f"s_lshr_b32 s{t+1}, s2, 3")
    a(f"s_lshl_b32 s{S_N3}, s{t}, 3")
    a(f"s_add_u32 s{S_IDX}, s{S_N3}, s{t+1}")
    a(f"s_lshr_b32 s{t+2}, s{t+1}, 2")
    a(f"s_add_u32 s{S_N3}, s{S_N3}, s{t+2}")
    a(f"s_and_b32 s{S_Q3}, s{t+1}, 3")
    a(f"s_sub_u32 s{t+2}, s{t+2}, 2")
    a(f"s_lshl_b32 s{S_RB}, s{t}, 1")
    a(f"s_sub_u32 s{S_KT}, s{t+2}, 3")
    a(f"s_cselect_b32 s{S_KT}, s{t+2}, s{S_KT}")
    a(f"s_cselect_b32 s{t+3}, 0, 1")
    a(f"s_add_u32 s{S_RB}, s{S_RB}, s{t+3}")
    a(f"s_mov_b32 s{S_SUB}, s{S_Q3}")
    a(f"s_mul_i32 s{S_FLAG}, s{S_RB}, 3")
    a(f"s_add_u32 s{S_FLAG}, s{S_FLAG}, s{S_KT}")
    a(f"s_lshl_b32 s{S_FLAG}, s{S_FLAG}, 2")
    a(f"s_add_u32 s{S_FLAG}, s{S_FLAG}, s{S_SUB}")
    a("s_waitcnt lgkmcnt(0)")
    srd(a, R_WS, P_WS, WS_END)
    a(f"s_cmp_ge_u32 s{t+1}, 8")
    a("s_cbranch_scc1 L_gemm")
    for _ in range(int(os.environ.get("SHIFT", "0"))):
        a("s_nop 0")
    fft_head(a)
    a("s_branch L_fft")
    a.label("L_gemm")
    a(f"s_cmp_lt_u32 s{S_W}, 4")
    a("s_cbranch_scc1 L_comp")
    gemm_loader(a, "L_f3")
    a.label("L_comp")
    gemm_compute(a, "L_f3")
    a.label("L_fft")
    fft_role(a)
    f3(a, "L_f3")
    stamp_end(a)
    a.label("L_exit")
    a("s_endpgm")
    a.resolve()
    nv, ns = a.max_regs()
    print("instr", len(a.ins), "vgpr", nv, "sgpr", ns, file=sys.stderr)
    kn = NAME + "_kernel"
    out = "; generated by gen/gen5.py (hand-written generator)\n"
    out += "; @launch grid=(256,1,1) block=(512,1,1) lds=163840\n"
    out += '.amdgcn_target "amdgcn-amd-amdhsa--gfx950"\n.text\n'
    out += f".globl {kn}\n.p2align 8\n.type {kn},@function\n{kn}:\n" + a.text()
    out += f'''.section .rodata,"a"
.p2align 6
.amdhsa_kernel {kn}
  .amdhsa_next_free_vgpr 256
  .amdhsa_next_free_sgpr {ns}
  .amdhsa_accum_offset 256
  .amdhsa_group_segment_fixed_size 0
  .amdhsa_kernarg_size 88
  .amdhsa_user_sgpr_count 2
  .amdhsa_user_sgpr_kernarg_segment_ptr 1
  .amdhsa_system_sgpr_workgroup_id_x 1
  .amdhsa_float_denorm_mode_32 3
.end_amdhsa_kernel
'''
    out += tables.as_asm("ctab", tables.tab_f1() + tables.tab_f2()[:16384] + tables.tab_f3(384))
    return out


if __name__ == "__main__":
    path = sys.argv[1] if len(sys.argv) > 1 else f"cdna_kernels/{NAME}.s"
    open(path, "w").write(build())
```

```python
import sys, struct, os
import numpy as np
from asmlib import Asm, Pool, v, s
import tables

NAME = "recurrent_scan__spectral_gfnet__mixer_channel_mlp__prompt"
STAMP = int(os.environ.get("STAMP", "0"))
OPT = set(os.environ.get("OPT", "").split(","))

WS_H = 0
WS_ZP = WS_H + 2048 * 1536 * 2
WS_VP = WS_ZP + 64 * 49152
WS_P = WS_VP + 64 * 49152
WS_ST = WS_P + 3 * 2621440
WS_EP = WS_ST + 2048 * 16
FL_H = WS_EP + 128
FL_X = FL_H + 192 * 128
FL_Z = FL_X + 2048
FL_V = FL_Z + 64 * 512
FL_P = FL_V + 64 * 512
WS_END = FL_P + 256 * 256
WS_DBG = 24 << 20
TAB_F1, TAB_F2, TAB_F3, TAB_END = 0, 16384, 32768, 49152
SC = "sc1"
POISON = 0x7f817f81
OPTIM = "optim" in OPT

def f2u(x):
    return struct.unpack("<I", struct.pack("<f", x))[0]

P_X, P_WR, P_WI, P_W1, P_B1, P_W2, P_B2, P_OUT, P_DBG, P_WS = 4, 6, 8, 12, 14, 16, 18, 20, 22, 24
S_E = 10
S_W, S_PJ = 26, 27
R_WS, R_TAB, R_A, R_B, R_C, R_D = 28, 32, 36, 40, 44, 48
S_ROW, S_PO, S_PF, S_FAST = 52, 53, 54, 55
S_RB, S_SUB, S_KT, S_IDX, S_N3, S_Q3, S_FLAG, S_F2 = 56, 57, 58, 59, 60, 61, 62, 63
S_T = 64
S_RETRY = 23
S_HV = 22
NSTAMP, ST0 = 10, 80
STAG = int(os.environ.get("STAG", "5"))
I16, G, L16, T0, T1, T2, T3 = 1, 2, 3, 4, 5, 6, 7
V_POLL = 248
F_XA, F_BA, F_GF, F_XB, F_BB, F_L4 = 228, 232, 236, 244, 245, 246
V_TOP = 228
LX, LW, WSL = 0, 65536, 20480
L_STAT = 147456
L_CS = L_STAT + 2048
L_MISC = L_CS + 512
L3_VB0, L3_VB1, L3_TAB, L3_UX = 32768, 106496, 147456, 65536
UP = 1376
L3_SX = L3_UX + 8 * UP
L3_GF = 57344
L1_TAB, L1_XN, L1_ZX, L1_ST = 0, 14336, 55296, 0
L2_ZB, L2_WR, L2_WI, L2_TAB = 0, 98304, 122880, 147456


def stamp(a, i, mode):
    if STAMP and (STAMP == mode or mode == 0):
        a(f"s_memtime s[{ST0+2*i}:{ST0+2*i+1}]")


def stamp_begin(a):
    if STAMP:
        for i in range(ST0 + 2, ST0 + 2 * NSTAMP):
            a(f"s_mov_b32 s{i}, 0")
        a("s_memrealtime s[100:101]")
        a("s_mov_b32 s3, 0")
        stamp(a, 0, 0)


def stamp_end(a):
    if STAMP:
        a("s_waitcnt vmcnt(0)")
        stamp(a, NSTAMP - 1, 0)
        a("s_memrealtime s[64:65]")
        a("s_waitcnt lgkmcnt(0)")
        for i in range(NSTAMP):
            a(f"v_mov_b32 v{8+i}, s{ST0+2*i}")
        a(f"v_mov_b32 v{8+NSTAMP}, s100")
        a(f"v_mov_b32 v{9+NSTAMP}, s64")
        a(f"v_mov_b32 v{10+NSTAMP}, s3")
        a("s_lshl_b32 s66, s2, 3")
        a(f"s_add_u32 s66, s66, s{S_W}")
        a("s_lshl_b32 s66, s66, 6")
        a(f"s_add_u32 s66, s66, {WS_DBG}")
        a(f"s_mov_b32 s{R_WS+2}, 0x2000000")
        a("v_mov_b32 v1, 0")
        a("s_mov_b64 exec, 1")
        for i in range(4):
            a(f"buffer_store_dwordx4 v[{8+4*i}:{11+4*i}], v1, {s(R_WS,4)}, s66 offen offset:{16*i}")


def srd(a, dst, ptr, size):
    a(f"s_mov_b32 s{dst}, s{ptr}")
    a(f"s_mov_b32 s{dst+1}, s{ptr+1}")
    a(f"s_mov_b32 s{dst+2}, {size}")
    a(f"s_mov_b32 s{dst+3}, 0x20000")


def dma(a, voff, srd_, soff, extra="", off=0):
    o = f"offset:{off} " if off else ""
    a(f"buffer_load_dwordx4 {v(voff)}, {s(srd_,4)}, {soff} offen {o}{extra + ' ' if extra else ''}lds")


def bf16r(a, dst, src):
    a(f"v_cvt_pk_bf16_f32 {v(dst)}, {v(src)}, {v(src)}")
    a(f"v_lshlrev_b32 {v(dst)}, 16, {v(dst)}")


def mfma_s(d, A, B, c=None):
    return f"v_mfma_f32_16x16x32_bf16 {v(d,4)}, {v(A,4)}, {v(B,4)}, {v(d,4) if c is None else c}"


def mfma(a, d, A, B, c=None):
    a(mfma_s(d, A, B, c))


def cvt_s(d, x, y):
    return f"v_cvt_pk_bf16_f32 {v(d)}, {v(x)}, {v(y)}"


def unpack_l(dst, src):
    return [f"v_lshlrev_b32 {v(dst)}, 16, {v(src)}", f"v_and_b32 {v(dst+1)}, 0xffff0000, {v(src)}"]


def divmod_const(a, q, r, x, c):
    m = (1 << 18) // c + 1
    for t in range(2048):
        assert (t * m) >> 18 == t // c
    a(f"v_mul_u32_u24 {v(q)}, {m}, {v(x)}")
    a(f"v_lshrrev_b32 {v(q)}, 18, {v(q)}")
    a(f"v_mul_u32_u24 {v(r)}, {c}, {v(q)}")
    a(f"v_sub_u32 {v(r)}, {v(x)}, {v(r)}")


def emit(a, lst):
    for x in lst:
        a(x)


def interleave(a, main, fill, per=1):
    fi = 0
    for m in main:
        a(m)
        for _ in range(per):
            if fi < len(fill):
                a(fill[fi]); fi += 1
    while fi < len(fill):
        a(fill[fi]); fi += 1


def weave(a, A, B):
    na, nb = len(A), len(B)
    ia = ib = 0
    while ia < na or ib < nb:
        if ib >= nb or (ia < na and ia * nb <= ib * na):
            a(A[ia]); ia += 1
        else:
            a(B[ib]); ib += 1


class VM:
    def __init__(self, a):
        self.a, self.q = a, []
    def op(self, tag, n=1):
        self.q += [tag] * n
    def wait(self, *tags):
        last = max([i for i, t in enumerate(self.q) if t in tags], default=-1)
        if last < 0:
            return
        n = len(self.q) - 1 - last
        assert n < 64
        self.a(f"s_waitcnt vmcnt({n})")
        self.q = self.q[last + 1:]


def load_epoch(a, s_t):
    a(f"s_add_u32 s{s_t}, s{P_WS}, {WS_EP}")
    a(f"s_addc_u32 s{s_t+1}, s{P_WS+1}, 0")
    a(f"s_load_dwordx2 s[{S_E}:{S_E+1}], s[{s_t}:{s_t+1}], 0")


def nonce(a):
    a(f"s_mul_i32 s{S_E}, s{S_E}, 1664525")
    a(f"s_add_u32 s{S_E}, s{S_E}, 1013904223")
    a(f"s_mul_i32 s{S_E+1}, s{S_E+1}, 22695477")
    a(f"s_add_u32 s{S_E+1}, s{S_E+1}, 1")


def push_tag(a, s_base, nrec, shift, sc=SC, hi=None):
    a(f"v_mov_b32 {v(T0)}, s{S_E}")
    a(f"v_mov_b32 {v(T1)}, s{S_E+1 if hi is None else hi}")
    a(f"v_lshlrev_b32 {v(T2)}, {shift}, v0")
    if nrec < 64:
        a(f"s_mov_b64 exec, {(1 << nrec) - 1}")
    if sc == "fast":
        store2(a, lambda f: f"buffer_store_dwordx2 {v(T0,2)}, {v(T2)}, {s(R_WS,4)}, s{s_base} offen {f}")
    else:
        a(f"buffer_store_dwordx2 {v(T0,2)}, {v(T2)}, {s(R_WS,4)}, s{s_base} offen {sc}")
    if nrec < 64:
        a("s_mov_b64 exec, -1")


def store2(a, fn):
    l1, l2 = a.newlabel("L_sf"), a.newlabel("L_se")
    a(f"s_cmp_lg_u32 s{S_FAST}, 0")
    a(f"s_cbranch_scc1 {l1}")
    a(fn(SC))
    a(f"s_branch {l2}")
    a.label(l1)
    a(fn(""))
    a.label(l2)


def xcc_tag(a, s_d):
    a(f"s_getreg_b32 s{s_d}, hwreg(HW_REG_XCC_ID, 0, 4)")
    a(f"s_xor_b32 s{s_d}, s{s_d}, s{S_E+1}")


def publish_xcc(a, s_t):
    xcc_tag(a, s_t + 1)
    a(f"s_and_b32 s{s_t}, s2, 7")
    a(f"s_lshl_b32 s{s_t}, s{s_t}, 8")
    a(f"s_and_b32 s{S_F2}, s2, 0xf8")
    a(f"s_add_u32 s{s_t}, s{s_t}, s{S_F2}")
    a(f"s_add_u32 s{s_t}, s{s_t}, {FL_X}")
    push_tag(a, s_t, 1, 3, hi=s_t + 1)


def poll(a, base, ntag, s_t, sleep=None, depth=3, lo_only=False):
    lp, done = a.newlabel("L_poll"), a.newlabel("L_pd")
    ad = V_POLL + 6
    a(f"v_min_u32 {v(ad)}, {ntag-1}, v0")
    a(f"v_lshlrev_b32 {v(ad)}, 3, {v(ad)}")
    a(f"s_mov_b32 s{s_t+1}, {base}")
    ld = lambda i: a(f"buffer_load_dwordx2 {v(V_POLL+2*i,2)}, {v(ad)}, {s(R_WS,4)}, s{s_t+1} offen {SC}")
    a(f"s_mov_b32 s{s_t}, 0x20000")
    if sleep:
        depth = 1
    for i in range(depth - 1):
        ld(i)
        a(f"s_sleep {STAG}")
    a.label(lp)
    for i in range(depth):
        ld((i + depth - 1) % depth)
        a(f"s_waitcnt vmcnt({depth-1})")
        if lo_only:
            a(f"v_xor_b32 {v(V_POLL+2*i+1)}, s{S_E+1}, {v(V_POLL+2*i+1)}")
            a(f"v_lshrrev_b32 {v(V_POLL+2*i+1)}, 4, {v(V_POLL+2*i+1)}")
            a(f"v_xor_b32 {v(V_POLL+2*i)}, s{S_E}, {v(V_POLL+2*i)}")
            a(f"v_or_b32 {v(V_POLL+2*i)}, {v(V_POLL+2*i)}, {v(V_POLL+2*i+1)}")
            a(f"v_cmp_ne_u32 vcc, 0, {v(V_POLL+2*i)}")
        else:
            a(f"v_cmp_ne_u64 vcc, s[{S_E}:{S_E+1}], {v(V_POLL+2*i,2)}")
        a(f"s_cbranch_vccz {done}")
        if sleep:
            a(f"s_sleep {sleep}")
    a(f"s_sub_u32 s{s_t}, s{s_t}, 1")
    a(f"s_cbranch_scc0 {lp}")
    a.label(done)


def advance_epoch(a, s_t):
    for i in range(4):
        poll(a, FL_X + 512 * i, 64, s_t, sleep=8, lo_only=True)
    a(f"s_mov_b32 s{S_F2}, {WS_EP}")
    push_tag(a, S_F2, 1, 3)


def wave_flag(a, w, base):
    l = a.newlabel("L_w0")
    a(f"s_cmp_lg_u32 s{S_W}, {w}")
    a(f"s_cbranch_scc1 {l}")
    a(f"s_lshl_b32 s{S_F2}, s{S_IDX}, 3")
    a(f"s_add_u32 s{S_F2}, s{S_F2}, {base}")
    push_tag(a, S_F2, 64, 9)
    a.label(l)


def tab3_dma(a, s_t):
    a(f"s_and_b32 s{s_t}, s{S_W}, 3")
    a(f"s_lshl_b32 s{s_t}, s{s_t}, 12")
    a(f"s_add_u32 m0, s{s_t}, {L3_TAB}")
    a(f"s_add_u32 s{s_t}, s{s_t}, {TAB_F3}")
    for k in range(4):
        dma(a, L16, R_TAB, f"s{s_t}", off=k * 1024)


def vb_dma(a, s_t):
    a(f"s_and_b32 s{s_t}, s{S_W}, 3")
    a(f"s_mul_i32 s{s_t+1}, s{S_N3}, 49152")
    a(f"s_mul_i32 s{s_t}, s{s_t}, 12288")
    a(f"s_add_u32 s{s_t+1}, s{s_t+1}, s{s_t}")
    a(f"s_cmp_ge_u32 s{S_W}, 6")
    a(f"s_cselect_b32 s{s_t+2}, {L3_VB1 - 24576 - L3_VB0}, 0")
    a(f"s_add_u32 s{s_t}, s{s_t}, s{s_t+2}")
    for i in range(3):
        a(f"s_add_u32 m0, s{s_t}, {L3_VB0 + i*4096}")
        a(f"s_add_u32 s{s_t+2}, s{s_t+1}, {WS_VP + i*4096}")
        for k in range(4):
            dma(a, L16, R_WS, f"s{s_t+2}", SC, off=k * 1024)


def xb2_loads(a, s_t):
    srd(a, R_A, P_X, 2621440); srd(a, R_B, P_B2, 1280)
    a(f"s_lshl_b32 s{s_t}, s{S_Q3}, 3")
    a(f"s_add_u32 s{s_t}, s{s_t}, s{S_W}")
    a(f"s_lshl_b32 s{S_ROW}, s{s_t}, 6")
    a(f"s_add_u32 s{S_ROW}, s{S_ROW}, s{S_N3}")
    a(f"s_mul_i32 s{S_ROW}, s{S_ROW}, 1280")
    a(f"v_lshlrev_b32 {v(F_L4)}, 2, v0")
    a(f"buffer_load_dwordx4 {v(F_BA,4)}, {v(L16)}, {s(R_B,4)}, 0 offen")
    a(f"buffer_load_dword {v(F_BB)}, {v(F_L4)}, {s(R_B,4)}, 0 offen offset:1024")
    a(f"buffer_load_dwordx4 {v(F_XA,4)}, {v(L16)}, {s(R_A,4)}, s{S_ROW} offen")
    a(f"buffer_load_dword {v(F_XB)}, {v(F_L4)}, {s(R_A,4)}, s{S_ROW} offen offset:1024")


def gf_make(a, s_t):
    t0, t1 = T0, T1
    sv, ph = F_BA, F_BA + 1
    cs_ = [F_XA + i for i in range(4)]
    a(f"v_lshrrev_b32 {v(t0)}, 1, {v(I16)}")
    a(f"s_lshl_b32 s{s_t}, s{S_Q3}, 9")
    a(f"s_add_u32 s{s_t}, s{s_t}, s{S_N3}")
    a(f"v_lshlrev_b32 {v(sv)}, 6, {v(t0)}")
    a(f"v_add_u32 {v(sv)}, s{s_t}, {v(sv)}")
    a(f"v_lshlrev_b32 {v(t0)}, 2, {v(G)}")
    a(f"v_mul_u32_u24 {v(ph)}, {v(sv)}, {v(t0)}")
    a(f"v_and_b32 {v(t0)}, 1, v0")
    a(f"v_mul_u32_u24 {v(t0)}, 1536, {v(t0)}")
    a(f"v_add_u32 {v(ph)}, {v(ph)}, {v(t0)}")
    for e2 in range(4):
        for hh in range(2):
            e = 2 * e2 + hh
            ko = e if e < 4 else 16 + e - 4
            tt = t1 + hh
            a(f"v_mad_u32_u24 {v(tt)}, {v(sv)}, {ko}, {v(ph)}")
            a(f"v_and_b32 {v(tt)}, 2047, {v(tt)}")
            a(f"v_cvt_f32_u32 {v(tt)}, {v(tt)}")
            a(f"v_mul_f32 {v(tt)}, {hex(f2u(1/2048))}, {v(tt)}")
        for hh in range(2):
            a(f"v_cos_f32 {v(cs_[hh])}, {v(t1+hh)}")
        for hh in range(2):
            a(f"v_sin_f32 {v(cs_[2+hh])}, {v(t1+hh)}")
        a(f"v_cvt_pk_bf16_f32 {v(F_GF+e2)}, {v(cs_[0])}, {v(cs_[1])}")
        a(f"v_cvt_pk_bf16_f32 {v(F_GF+4+e2)}, -{v(cs_[2])}, -{v(cs_[3])}")


def gf_put(a):
    for i in range(2):
        a(f"ds_write_b128 {v(L16)}, {v(F_GF+4*i,4)} offset:{L3_GF + 1024*i}")


def gemm_compute(a, l_f3):
    vp = Pool("v", 8, V_TOP)
    t0, t1, r_, cq = T0, T1, T2, T3
    s_wm, s_wn, s_dx, s_dw, s_cnt, s_end, s_cb, s_h0, s_h1, s_p0, s_t = [S_T + i for i in range(11)]
    a(f"s_and_b32 s{s_wm}, s{S_W}, 1")
    a(f"s_lshr_b32 s{s_wn}, s{S_W}, 1")
    a(f"s_lshl_b32 s{s_cb}, s{S_KT}, 2")
    a(f"s_add_u32 s{s_cb}, s{s_cb}, s{S_SUB}")
    acc = [[vp.get(4, 4) for mm in range(4)] for tt in range(5)]
    xf = [[vp.get(4, 4) for mm in range(4)] for st in range(2)]
    wf = [[vp.get(4, 4) for tt in range(5)] for st in range(2)]
    cs = acc[4]
    ones = wf[0][4]
    b1r = [vp.get(2, 2) for tt in range(4)]
    kc = [vp.get(2, 2) for _ in range(3)]
    srd(a, R_C, P_B1, 3072)
    a(f"s_lshl_b32 s{s_t}, s{s_cb}, 8")
    a(f"s_lshl_b32 s{s_t+1}, s{s_wn}, 7")
    a(f"s_add_u32 s{s_t}, s{s_t}, s{s_t+1}")
    a(f"s_lshl_b32 s{s_t+1}, s{s_wm}, 6")
    a(f"v_lshlrev_b32 {v(t0)}, 3, {v(G)}")
    a(f"v_add_u32 {v(t0)}, s{s_t+1}, {v(t0)}")
    a(f"v_xor_b32 {v(t1)}, 64, {v(t0)}")
    for tt in range(4):
        a(f"buffer_load_dwordx2 {v(b1r[tt],2)}, {v(t0 if tt < 2 else t1)}, {s(R_C,4)}, s{s_t} offen offset:{32*(tt&1)}")
    a(f"s_getpc_b64 s[{R_D}:{R_D+1}]")
    a(f"s_add_u32 s{R_D}, s{R_D}, {NAME}_kernel@rel32@lo+4")
    a(f"s_addc_u32 s{R_D+1}, s{R_D+1}, {NAME}_kernel@rel32@hi+12")
    a(f"s_mov_b32 s{R_D+2}, L_exit-{NAME}_kernel")
    a(f"s_mov_b32 s{R_D+3}, 0x20000")
    a(f"s_and_b32 s{s_t}, s2, 0x38")
    a(f"s_lshr_b32 s{s_t}, s{s_t}, 1")
    a(f"s_add_u32 s{s_t}, s{s_t}, s{S_W}")
    a(f"s_lshl_b32 s{s_t}, s{s_t}, 10")
    a(f"v_lshlrev_b32 {v(t0)}, 7, v0")
    a("s_mov_b64 exec, 0xff")
    a(f"buffer_load_dword {v(V_POLL)}, {v(t0)}, {s(R_D,4)}, s{s_t} offen")
    a(f"s_and_b32 s{s_t}, s{s_t}, 0x3fff")
    a(f"s_add_u32 s{s_t}, s{s_t}, {TAB_F3}")
    a(f"buffer_load_dword {v(V_POLL)}, {v(t0)}, {s(R_TAB,4)}, s{s_t} offen")
    a("s_mov_b64 exec, -1")
    xa = [vp.get(), vp.get()]
    a(f"v_and_b32 {v(t0)}, 7, v0")
    a(f"v_xor_b32 {v(t0)}, {v(t0)}, {v(G)}")
    a(f"v_lshlrev_b32 {v(t0)}, 4, {v(t0)}")
    a(f"v_lshl_add_u32 {v(t0)}, {v(I16)}, 7, {v(t0)}")
    a(f"s_lshl_b32 s{s_t}, s{s_wm}, 13")
    a(f"v_add_u32 {v(xa[0])}, s{s_t}, {v(t0)}")
    a(f"v_xor_b32 {v(xa[1])}, 64, {v(xa[0])}")
    wa = [vp.get() for _ in range(4)]
    a(f"v_lshrrev_b32 {v(r_)}, 2, {v(I16)}")
    a(f"v_and_b32 {v(cq)}, 3, v0")
    a(f"v_lshl_add_u32 {v(t0)}, {v(G)}, 3, {v(r_)}")
    a(f"v_lshlrev_b32 {v(t0)}, 8, {v(t0)}")
    a(f"v_lshl_add_u32 {v(t0)}, {v(cq)}, 3, {v(t0)}")
    a(f"v_add_u32 {v(t0)}, {LW}, {v(t0)}")
    a(f"v_and_b32 {v(t1)}, 1, {v(G)}")
    a(f"v_lshl_or_b32 {v(t1)}, {v(t1)}, 2, {v(r_)}")
    a(f"s_lshl_b32 s{s_t}, s{s_wn}, 2")
    a(f"s_lshl_b32 s{s_t+1}, s{s_wm}, 1")
    a(f"s_or_b32 s{s_t}, s{s_t}, s{s_t+1}")
    a(f"v_xor_b32 {v(t1)}, s{s_t}, {v(t1)}")
    for tt in range(4):
        a(f"v_xor_b32 {v(wa[tt])}, {tt}, {v(t1)}")
        a(f"v_lshl_add_u32 {v(wa[tt])}, {v(wa[tt])}, 5, {v(t0)}")
    for r in range(4):
        a(f"v_mov_b32 {v(ones+r)}, 0x3f803f80")
    xb = vp.get(); wb = [vp.get(), vp.get()]
    a(f"s_lshl_b32 s{s_t}, s{s_wm}, 12")
    a(f"s_add_u32 s{s_t}, s{s_t}, {LX + 2*16384}")
    a(f"v_add_u32 {v(xb)}, s{s_t}, {v(L16)}")
    a(f"v_lshrrev_b32 {v(r_)}, 2, v0")
    a(f"v_mul_u32_u24 {v(t0)}, 320, {v(r_)}")
    a(f"v_lshl_add_u32 {v(t0)}, {v(cq)}, 3, {v(t0)}")
    a(f"v_add_u32 {v(t0)}, {LW + 2*WSL}, {v(t0)}")
    a(f"v_and_b32 {v(t1)}, 1, {v(G)}")
    a(f"s_mul_i32 s{s_t}, s{s_wn}, 5")
    a(f"v_xor_b32 {v(wb[0])}, s{s_t}, {v(t1)}")
    a(f"v_lshl_add_u32 {v(wb[0])}, {v(wb[0])}, 5, {v(t0)}")
    a(f"s_add_u32 s{s_t}, s{s_t}, 1")
    a(f"v_xor_b32 {v(wb[1])}, s{s_t}, {v(t1)}")
    a(f"v_lshl_add_u32 {v(wb[1])}, {v(wb[1])}, 5, {v(t0)}")
    csw, csr, sta, hw, hw2, msc = [vp.get() for _ in range(6)]
    a(f"s_lshl_b32 s{s_t}, s{s_wn}, 8")
    a(f"s_lshl_b32 s{s_t+1}, s{s_wm}, 7")
    a(f"s_add_u32 s{s_t}, s{s_t}, s{s_t+1}")
    a(f"s_add_u32 s{s_t}, s{s_t}, {L_CS}")
    a(f"v_lshlrev_b32 {v(csw)}, 4, {v(G)}")
    a(f"v_add_u32 {v(csw)}, s{s_t}, {v(csw)}")
    a(f"v_xor_b32 {v(csr)}, 128, {v(csw)}")
    a(f"s_lshl_b32 s{s_t}, s{s_wm}, 10")
    a(f"s_add_u32 s{s_t}, s{s_t}, {L_STAT}")
    a(f"v_lshlrev_b32 {v(sta)}, 4, {v(I16)}")
    a(f"v_add_u32 {v(sta)}, s{s_t}, {v(sta)}")
    a(f"v_mov_b32 {v(msc)}, {L_MISC}")
    K0 = -2.0 * np.sqrt(2.0 / np.pi) * np.log2(np.e)
    for i in range(2):
        a(f"v_mov_b32 {v(kc[0]+i)}, {hex(f2u(K0))}")
        a(f"v_mov_b32 {v(kc[1]+i)}, {hex(f2u(K0*0.044715))}")
        a(f"v_mov_b32 {v(kc[2]+i)}, 1.0")
    a(f"s_mul_i32 s{s_t}, s{S_RB}, {48*8192}")
    a(f"s_lshl_b32 s{s_t+1}, s{s_cb}, 15")
    a(f"s_add_u32 s{s_t}, s{s_t}, s{s_t+1}")
    a(f"s_lshl_b32 s{s_t+1}, s{s_wn}, 14")
    a(f"s_mul_i32 s{s_t+2}, s{s_wm}, {4096+8192}")
    a(f"s_add_u32 s{s_t+1}, s{s_t+1}, s{s_t+2}")
    a(f"s_add_u32 s{s_h0}, s{s_t}, s{s_t+1}")
    a(f"s_xor_b32 s{s_h1}, s{s_t+1}, 8192")
    a(f"s_add_u32 s{s_h1}, s{s_t}, s{s_h1}")
    a(f"s_add_u32 s{s_t+1}, s{s_t+1}, {LX + 2*16384}")
    a(f"v_add_u32 {v(hw)}, s{s_t+1}, {v(L16)}")
    a(f"v_xor_b32 {v(hw2)}, 8192, {v(hw)}")
    SP = 176
    sw = vp.get(); srd_a = [vp.get() for _ in range(5)]
    a(f"s_mul_i32 s{s_t}, s{s_wm}, {64*SP}")
    a(f"s_lshl_b32 s{s_t+1}, s{s_wn}, 16")
    a(f"s_add_u32 s{s_t}, s{s_t}, s{s_t+1}")
    a(f"v_mul_u32_u24 {v(sw)}, {SP}, {v(I16)}")
    a(f"v_lshl_add_u32 {v(sw)}, {v(G)}, 3, {v(sw)}")
    a(f"v_add_u32 {v(sw)}, s{s_t}, {v(sw)}")
    for ii in range(5):
        a(f"v_add_u32 {v(r_)}, {64*ii}, v0")
        divmod_const(a, t0, t1, r_, 10)
        a(f"v_mul_u32_u24 {v(t0)}, {SP}, {v(t0)}")
        a(f"v_lshl_add_u32 {v(t0)}, {v(t1)}, 4, {v(t0)}")
        a(f"v_add_u32 {v(srd_a[ii])}, s{s_t}, {v(t0)}")
    p_base(a, s_p0, s_wm, s_wn, s_t)
    a(f"s_lshl_b32 s{S_FLAG}, s{S_RB}, 1")
    a(f"s_add_u32 s{S_FLAG}, s{S_FLAG}, s{s_wm}")
    a(f"s_lshl_b32 s{S_FLAG}, s{S_FLAG}, 7")
    a(f"s_add_u32 s{S_FLAG}, s{S_FLAG}, s{s_cb}")
    a(f"s_lshl_b32 s{S_FLAG}, s{S_FLAG}, 1")
    a(f"s_add_u32 s{S_FLAG}, s{S_FLAG}, s{s_wn}")
    a(f"s_lshl_b32 s{S_FLAG}, s{S_FLAG}, 3")
    a(f"s_add_u32 s{S_FLAG}, s{S_FLAG}, {FL_P}")

    st = [xf[0][mm] for mm in range(4)]
    b1f = [wf[0][tt] for tt in range(4)]
    mi = wf[1][4]

    def loop(which):
        NT = 4 if which == 1 else 5
        if which == 1:
            xrd = lambda st_, ks, mm: f"ds_read_b128 {v(xf[st_][mm],4)}, {v(xa[ks])} offset:{mm*2048}"
            wrd = lambda st_, ks, tt, h: f"ds_read_b64_tr_b16 {v(wf[st_][tt]+2*h,2)}, {v(wa[tt])} offset:{ks*8192+h*1024}"
            ax, aw = xa, wa
        else:
            xrd = lambda st_, ks, mm: f"ds_read_b128 {v(xf[st_][mm],4)}, {v(xb)} offset:{ks*8192+mm*1024}"
            wrd = lambda st_, ks, tt, h: f"ds_read_b64_tr_b16 {v(wf[st_][tt]+2*h,2)}, {v(wb[tt&1])} offset:{(32*ks+16*h)*320+(tt>>1)*64}"
            ax, aw = [xb], wb

        def reads(st_, ks):
            out = []
            for i in range(max(4, NT)):
                if i < NT:
                    out += [wrd(st_, ks, i, 0), wrd(st_, ks, i, 1)]
                if i < 4:
                    out.append(xrd(st_, ks, i))
            return out

        def mfmas(st_, c=None):
            out = []
            if which == 1:
                out += [mfma_s(cs[tt], wf[st_][tt], ones, c) for tt in range(2)]
            for tt in range(NT):
                for mm in range(4):
                    out.append(mfma_s(acc[tt][mm], wf[st_][tt], xf[st_][mm], c))
            return out
        c0 = 0 if which == 1 else 10
        a(f"s_mov_b32 s{s_cnt}, {c0+1}")
        a(f"s_mov_b32 s{s_end}, {10 if which == 1 else 12}")
        a("s_barrier")
        stamp(a, 1 if which == 1 else 4, 2)
        emit(a, reads(0, 0))
        l_loop, l_last, l_mid = a.newlabel("L_gl"), a.newlabel("L_gx"), a.newlabel("L_gm")
        a("s_waitcnt lgkmcnt(0)")
        adv = [f"v_add_u32 {v(r)}, 16384, {v(r)}" for r in ax] + [f"v_add_u32 {v(r)}, {WSL}, {v(r)}" for r in aw]
        interleave(a, mfmas(0, "0"), reads(1, 1) + adv)
        if which == 2:
            a("s_waitcnt vmcnt(0)")
        a(f"s_branch {l_mid}")
        a.label(l_loop)
        a(f"s_add_u32 s{s_cnt}, s{s_cnt}, 1")
        a(f"s_and_b32 s{s_t}, s{s_cnt}, 3")
        a(f"s_cselect_b32 s{s_t}, 1, -3")
        a(f"s_lshl_b32 s{s_dx}, s{s_t}, 14")
        a(f"s_mul_i32 s{s_dw}, s{s_t}, {WSL}")
        a("s_waitcnt lgkmcnt(0)")
        adv = [f"v_add_u32 {v(r)}, s{s_dx}, {v(r)}" for r in ax] + [f"v_add_u32 {v(r)}, s{s_dw}, {v(r)}" for r in aw]
        interleave(a, mfmas(0), reads(1, 1) + adv)
        a.label(l_mid)
        a(f"s_cmp_eq_u32 s{s_cnt}, s{s_end}")
        a("s_waitcnt lgkmcnt(0)")
        a("s_barrier")
        a(f"s_cbranch_scc1 {l_last}")
        interleave(a, mfmas(1), reads(0, 0))
        a(f"s_branch {l_loop}")
        a.label(l_last)
        if which == 1:
            fill = [f"ds_read_b128 {v(st[mm],4)}, {v(sta)} offset:{mm*256}" for mm in range(4)]
            fill += [f"ds_read_b128 {v(mi,4)}, {v(msc)}", "s_waitcnt vmcnt(0)"]
            for tt in range(4):
                for h in range(2):
                    fill += unpack_l(b1f[tt] + 2*h, b1r[tt] + h)
            fill.insert(9, f"ds_write_b128 {v(csw)}, {v(cs[0],4)}")
            fill.insert(10, f"ds_write_b128 {v(csw)}, {v(cs[1],4)} offset:64")
            weave(a, mfmas(1), fill)
        else:
            l_done = a.newlabel("L_gd")
            a(f"s_cmp_eq_u32 s{s_cnt}, 18")
            a(f"s_cbranch_scc1 {l_done}")
            emit(a, mfmas(1))
            a(f"s_mov_b32 s{s_end}, 18")
            a("s_barrier")
            emit(a, reads(0, 0))
            a(f"s_branch {l_loop}")
            a.label(l_done)
            return [mfma_s(acc[tt][mm], wf[1][tt], xf[1][mm]) for mm in range(4) for tt in range(5)]

    loop(1)
    stamp(a, 2, 2)
    a("s_waitcnt lgkmcnt(0)")
    a("s_barrier")
    a(f"ds_read_b128 {v(cs[2],4)}, {v(csr)}")
    a(f"ds_read_b128 {v(cs[3],4)}, {v(csr)} offset:64")
    a(f"v_readfirstlane_b32 s{S_E}, {v(mi)}")
    a(f"v_readfirstlane_b32 s{S_E+1}, {v(mi+1)}")
    a(f"v_readfirstlane_b32 s{S_FAST}, {v(mi+2)}")
    stamp(a, 3, 2)
    tmp = [xf[1][i] for i in range(4)]
    outs = [wf[1][1], wf[1][2], wf[1][3]]
    n_o = 0
    for u in range(2):
        if u == 1:
            a("s_waitcnt lgkmcnt(4)")
        for mm in range(4):
            o = outs[n_o % 3]; n_o += 1
            prs = [(acc[2*u+k][mm] + 2*h, cs[2*u+k] + 2*h, b1f[2*u+k] + 2*h) for k in range(2) for h in range(2)]
            T = [tmp[0], tmp[0]+2, tmp[1], tmp[1]+2]
            Z = [tmp[2], tmp[2]+2, tmp[3], tmp[3]+2]
            for i, (p, c_, b_) in enumerate(prs):
                a(f"v_pk_fma_f32 {v(T[i],2)}, {v(c_,2)}, {v(st[mm]+2,2)}, {v(b_,2)}")
            for i, (p, c_, b_) in enumerate(prs):
                a(f"v_pk_fma_f32 {v(p,2)}, {v(p,2)}, {v(st[mm],2)}, {v(T[i],2)}")
            for i, (p, c_, b_) in enumerate(prs):
                a(f"v_pk_mul_f32 {v(T[i],2)}, {v(p,2)}, {v(p,2)}")
            for i, (p, c_, b_) in enumerate(prs):
                a(f"v_pk_fma_f32 {v(T[i],2)}, {v(T[i],2)}, {v(kc[1],2)}, {v(kc[0],2)}")
            for i, (p, c_, b_) in enumerate(prs):
                a(f"v_pk_mul_f32 {v(Z[i],2)}, {v(p,2)}, {v(T[i],2)}")
            for i in range(4):
                a(f"v_exp_f32 {v(Z[i])}, {v(Z[i])}")
                a(f"v_exp_f32 {v(Z[i]+1)}, {v(Z[i]+1)}")
            for i in range(4):
                a(f"v_pk_add_f32 {v(Z[i],2)}, {v(Z[i],2)}, {v(kc[2],2)}")
            for i in range(4):
                a(f"v_rcp_f32 {v(Z[i])}, {v(Z[i])}")
                a(f"v_rcp_f32 {v(Z[i]+1)}, {v(Z[i]+1)}")
            for i, (p, c_, b_) in enumerate(prs):
                a(f"v_pk_mul_f32 {v(p,2)}, {v(p,2)}, {v(Z[i],2)}")
            for i, (p, c_, b_) in enumerate(prs):
                a(cvt_s(o + i, p, p + 1))
            si = lambda f: f"buffer_store_dwordx4 {v(o,4)}, {v(L16)}, {s(R_WS,4)}, s{s_h0+u} offen offset:{mm*1024} {f}"
            if "hfast" not in OPT:
                a(si(SC))
            else:
                store2(a, si)
            a(f"ds_write_b128 {v(hw if u == 0 else hw2)}, {v(o,4)} offset:{mm*1024}")
    a("s_waitcnt lgkmcnt(0)")
    last = loop(2)
    xb2_loads(a, s_t)
    a(f"s_add_u32 s{s_t}, s{s_p0}, 4096")
    a(f"s_add_u32 s{s_t+1}, s{s_p0}, 8192")
    so = [s_p0, s_t, s_t + 1]
    pk = xf[0][0]
    def conv(mm):
        out = []
        for tt in range(5):
            o = (xf[0][0] if mm & 1 == 0 else wf[0][0]) + 2 * tt
            out += [cvt_s(o, acc[tt][mm], acc[tt][mm] + 1), cvt_s(o + 1, acc[tt][mm] + 2, acc[tt][mm] + 3),
                    f"ds_write_b64 {v(sw)}, {v(o,2)} offset:{mm*16*SP+tt*32}"]
        return out
    emit(a, last[:10])
    weave(a, last[10:15], conv(0))
    weave(a, last[15:20], conv(1))
    stamp(a, 5, 2)
    rb_ = [acc[i % 5][i // 5] for i in range(10)]
    a("s_waitcnt lgkmcnt(0)")
    for ii in range(5):
        a(f"ds_read_b128 {v(rb_[ii],4)}, {v(srd_a[ii])}")
    emit(a, conv(2))

    def pstores(lo, hi, waits):
        for f in (SC, ""):
            pass
        if "pfast" not in OPT:
            for ii in range(lo, hi):
                a(f"s_waitcnt lgkmcnt({waits(ii)})")
                a(f"buffer_store_dwordx4 {v(rb_[ii],4)}, {v(L16)}, {s(R_WS,4)}, s{so[ii//4]} offen offset:{(ii%4)*1024} {SC}")
            return
        l1, l2 = a.newlabel("L_pf"), a.newlabel("L_pe")
        a(f"s_cmp_lg_u32 s{S_FAST}, 0")
        a(f"s_cbranch_scc1 {l1}")
        for f in (SC, os.environ.get("PST", "")):
            for ii in range(lo, hi):
                a(f"s_waitcnt lgkmcnt({waits(ii)})")
                a(f"buffer_store_dwordx4 {v(rb_[ii],4)}, {v(L16)}, {s(R_WS,4)}, s{so[ii//4]} offen offset:{(ii%4)*1024} {f}")
            if f == SC:
                a(f"s_branch {l2}")
                a.label(l1)
        a.label(l2)
    pstores(0, 5, lambda ii: 9 - ii)
    emit(a, conv(3))
    a("s_waitcnt lgkmcnt(0)")
    for ii in range(5, 10):
        a(f"ds_read_b128 {v(rb_[ii],4)}, {v(srd_a[ii-5])} offset:{32*SP}")
    pstores(5, 10, lambda ii: 9 - ii)
    a(f"s_mov_b32 s{S_PJ}, 1")
    a(f"s_branch {l_f3}")


def p_base(a, s_d, s_wm, s_wn, s_t):
    a(f"s_mul_i32 s{s_d}, s{S_KT}, 2621440")
    a(f"s_lshl_b32 s{s_t}, s{S_SUB}, 1")
    a(f"s_add_u32 s{s_t}, s{s_t}, s{s_wn}")
    a(f"s_mul_i32 s{s_t}, s{s_t}, {2048*160}")
    a(f"s_add_u32 s{s_d}, s{s_d}, s{s_t}")
    a(f"s_lshl_b32 s{s_t}, s{S_RB}, 1")
    a(f"s_add_u32 s{s_t}, s{s_t}, s{s_wm}")
    a(f"s_mul_i32 s{s_t}, s{s_t}, {64*160}")
    a(f"s_add_u32 s{s_d}, s{s_d}, s{s_t}")
    a(f"s_add_u32 s{s_d}, s{s_d}, {WS_P}")


def gemm_loader(a, l_f3):
    vp = Pool("v", 8, V_TOP)
    t0, t1, t2 = T0, T1, T2
    s_lw, s_xo, s_wo, s_m, s_m2, s_ho, s_w2, s_kc, s_xc, s_wc, s_p0, s_t = [S_T + i for i in range(12)]
    vm = VM(a)
    a(f"s_sub_u32 s{s_lw}, s{S_W}, 4")
    srd(a, R_A, P_X, 2621440); srd(a, R_B, P_W1, 1966080)
    xv = vp.get(); wv = [vp.get(), vp.get()]
    a(f"v_lshrrev_b32 {v(t0)}, 3, v0")
    a(f"v_and_b32 {v(t1)}, 7, v0")
    a(f"v_xor_b32 {v(t1)}, {v(t1)}, {v(t0)}")
    a(f"v_mul_u32_u24 {v(xv)}, {64*1280}, {v(t0)}")
    a(f"v_lshl_add_u32 {v(xv)}, {v(t1)}, 4, {v(xv)}")
    a(f"s_lshl_b32 s{s_xo}, s{S_RB}, 2")
    a(f"s_add_u32 s{s_xo}, s{s_xo}, s{s_lw}")
    a(f"s_mul_i32 s{s_xo}, s{s_xo}, 1280")
    a(f"v_lshlrev_b32 {v(t2)}, 1, {v(G)}")
    a(f"v_xor_b32 {v(t1)}, {v(I16)}, {v(t2)}")
    a(f"v_mul_u32_u24 {v(wv[0])}, 3072, {v(G)}")
    a(f"v_lshl_add_u32 {v(wv[0])}, {v(t1)}, 4, {v(wv[0])}")
    a(f"v_xor_b32 {v(wv[1])}, 128, {v(wv[0])}")
    a(f"s_mul_i32 s{s_wo}, s{s_lw}, {16*3072}")
    a(f"s_lshl_b32 s{s_t}, s{S_KT}, 2")
    a(f"s_add_u32 s{s_t}, s{s_t}, s{S_SUB}")
    a(f"s_lshl_b32 s{s_t+1}, s{s_t}, 8")
    a(f"s_add_u32 s{s_wo}, s{s_wo}, s{s_t+1}")
    a(f"s_lshl_b32 s{s_m}, s{s_lw}, 12")
    a(f"s_and_b32 s{s_kc}, s{S_RB}, 1")
    a(f"s_mul_i32 s{s_kc}, s{s_kc}, 5")
    a(f"s_add_u32 s{s_kc}, s{s_kc}, s{s_t}")
    a(f"s_lshr_b32 s{s_t}, s{S_RB}, 1")
    a(f"s_add_u32 s{s_kc}, s{s_kc}, s{s_t}")
    for _ in range(2):
        a(f"s_sub_u32 s{s_t}, s{s_kc}, 10")
        a(f"s_cselect_b32 s{s_kc}, s{s_kc}, s{s_t}")

    def issue1(c):
        sl = c % 4
        a(f"s_lshl_b32 s{s_xc}, s{s_kc}, 7")
        a(f"s_add_u32 s{s_xc}, s{s_xc}, s{s_xo}")
        a(f"s_mul_i32 s{s_wc}, s{s_kc}, {64*3072}")
        a(f"s_add_u32 s{s_wc}, s{s_wc}, s{s_wo}")
        for i in range(4):
            a(f"s_add_u32 m0, s{s_m}, {LW + sl*WSL + i*1024}")
            a(f"s_add_u32 s{s_t}, s{s_wc}, {i*4*3072}")
            dma(a, wv[i >> 1], R_B, f"s{s_t}")
        for i in range(4):
            a(f"s_add_u32 m0, s{s_m}, {LX + sl*16384 + i*1024}")
            a(f"s_add_u32 s{s_t}, s{s_xc}, {i*8*64*1280}")
            dma(a, xv, R_A, f"s{s_t}")
        a(f"s_add_u32 s{s_kc}, s{s_kc}, 1")
        a(f"s_cmp_eq_u32 s{s_kc}, 10")
        a(f"s_cselect_b32 s{s_kc}, 0, s{s_kc}")
        vm.op(("A", c), 8)

    stamp(a, 1, 2)
    issue1(0); issue1(1)
    load_epoch(a, s_t + 1)
    srd(a, R_C, P_W2, 1966080)
    w2v = [vp.get() for _ in range(5)]
    a(f"s_mul_i32 s{s_ho}, s{S_RB}, {48*8192}")
    a(f"s_lshl_b32 s{s_t}, s{S_KT}, 17")
    a(f"s_add_u32 s{s_ho}, s{s_ho}, s{s_t}")
    for i in range(5):
        a(f"v_add_u32 {v(t2)}, {64*i}, v0")
        divmod_const(a, t0, t1, t2, 20)
        a(f"v_lshrrev_b32 {v(t2)}, 1, {v(t0)}")
        a(f"v_and_b32 {v(t2)}, 2, {v(t2)}")
        a(f"v_xor_b32 {v(t1)}, {v(t1)}, {v(t2)}")
        a(f"v_mul_u32_u24 {v(w2v[i])}, 1280, {v(t0)}")
        a(f"v_lshl_add_u32 {v(w2v[i])}, {v(t1)}, 4, {v(w2v[i])}")
    a(f"s_lshl_b32 s{s_w2}, s{S_KT}, 5")
    a(f"s_add_u32 s{s_w2}, s{s_w2}, s{s_lw}")
    a(f"s_mul_i32 s{s_w2}, s{s_w2}, {16*1280}")
    a(f"s_mul_i32 s{s_t}, s{S_SUB}, 320")
    a(f"s_add_u32 s{s_w2}, s{s_w2}, s{s_t}")
    a(f"s_mul_i32 s{s_m2}, s{s_lw}, 5120")
    a(f"s_and_b32 s{s_xc}, s{s_lw}, 1")
    a(f"s_lshr_b32 s{s_wc}, s{s_lw}, 1")
    p_base(a, s_p0, s_xc, s_wc, s_t)
    wreg = [[vp.get(4, 4) for i in range(5)] for c in range(2)]
    sg = vp.get(4, 4); xr_ = vp.get(2, 2); dump = vp.get(4, 4)
    wl, l128, sad, sld, l8 = [vp.get() for _ in range(5)]
    a(f"v_add_u32 {v(wl)}, s{s_m2}, {v(L16)}")
    a(f"v_add_u32 {v(wl)}, {LW + 2*WSL}, {v(wl)}")
    a(f"v_lshlrev_b32 {v(l128)}, 7, v0")
    a(f"v_and_b32 {v(sad)}, 31, v0")
    a(f"v_lshlrev_b32 {v(l8)}, 3, {v(sad)}")
    a(f"v_lshlrev_b32 {v(sad)}, 4, {v(sad)}")
    a(f"s_lshl_b32 s{s_t}, s{s_lw}, 9")
    a(f"v_add_u32 {v(sad)}, s{s_t}, {v(sad)}")
    a(f"v_add_u32 {v(sld)}, {L_STAT}, {v(sad)}")
    a(f"s_mov_b32 s{S_PJ}, 0")
    a(f"s_mov_b32 s{S_HV}, 0")

    def kchunk(c2):
        a(f"s_lshl_b32 s{s_t+1}, s{S_SUB}, 1")
        a(f"s_add_u32 s{s_t+1}, s{s_t+1}, {c2}")
        a(f"s_and_b32 s{s_t+1}, s{s_t+1}, 7")

    def issue_w2(c2):
        sl = (10 + c2) % 4
        kchunk(c2)
        a(f"s_mul_i32 s{s_t}, s{s_t+1}, {64*1280}")
        a(f"s_add_u32 s{s_t}, s{s_t}, s{s_w2}")
        for i in range(5):
            a(f"s_add_u32 m0, s{s_m2}, {LW + sl*WSL + i*1024}")
            dma(a, w2v[i], R_C, f"s{s_t}")
        vm.op(("W", c2), 5)

    def load_w2(c2):
        kchunk(c2)
        a(f"s_mul_i32 s{s_t}, s{s_t+1}, {64*1280}")
        a(f"s_add_u32 s{s_t}, s{s_t}, s{s_w2}")
        for i in range(5):
            a(f"buffer_load_dwordx4 {v(wreg[c2-4][i],4)}, {v(w2v[i])}, {s(R_C,4)}, s{s_t} offen")
        vm.op(("R", c2), 5)

    def put_w2(c2):
        for i in range(5):
            a(f"ds_write_b128 {v(wl)}, {v(wreg[c2-4][i],4)} offset:{(c2-4)*WSL + i*1024}")

    def issue_h(c2):
        sl = (10 + c2) % 4
        kchunk(c2)
        a(f"s_lshl_b32 s{s_t}, s{s_t+1}, 14")
        a(f"s_add_u32 s{s_t}, s{s_t}, s{s_ho}")
        a(f"s_add_u32 s{s_t}, s{s_t}, s{s_m}")
        a(f"s_add_u32 m0, s{s_m}, {LX + sl*16384}")
        for i in range(4):
            dma(a, L16, R_WS, f"s{s_t}", SC, off=i * 1024)
        vm.op(("H", c2), 4)

    def stat_load():
        a(f"s_lshl_b32 s{s_t}, s{S_RB}, 11")
        a(f"s_add_u32 s{s_t}, s{s_t}, {WS_ST}")
        a(f"buffer_load_dwordx4 {v(sg,4)}, {v(sad)}, {s(R_WS,4)}, s{s_t} offen {SC}")

    nxt = 2
    for c in range(10):
        vm.wait(("A", c))
        if c == 0: stamp(a, 2, 2)
        if c >= 2: stamp(a, c - 1, 3)
        a("s_barrier")
        if c >= 2: stamp(a, c - 1, 4)
        while nxt < 10 and nxt <= c + 3 and (nxt <= c + 2 or c >= 1):
            issue1(nxt); nxt += 1
            if c == 0:
                break
        if c == 2:
            a("s_waitcnt lgkmcnt(0)")
            nonce(a)
        if c == 3:
            l = a.newlabel("L_px")
            a(f"s_cmp_lg_u32 s{s_lw}, 0")
            a(f"s_cbranch_scc1 {l}")
            publish_xcc(a, s_t)
            a.label(l)
            a(f"s_lshl_b32 s{s_t}, s{S_FLAG}, 2")
            a(f"s_add_u32 s{s_t}, s{s_t}, s{s_lw}")
            a(f"s_mul_i32 s{s_t}, s{s_t}, 2560")
            a("s_mov_b64 exec, 0xfffff")
            a(f"buffer_load_dword {v(dump)}, {v(l128)}, {s(R_C,4)}, s{s_t} offen")
            a("s_mov_b64 exec, -1")
            vm.op("PF")
        if c == 6 and "hfast" in OPT:
            a(f"s_lshl_b32 s{s_t}, s{S_SUB}, 2")
            a(f"s_add_u32 s{s_t}, s{s_t}, s{s_lw}")
            a(f"s_lshl_b32 s{s_t}, s{s_t}, 13")
            a(f"s_add_u32 s{s_t}, s{s_t}, s{s_ho}")
            a(f"buffer_load_dword {v(dump)}, {v(l128)}, {s(R_WS,4)}, s{s_t} offen")
            vm.op("PH")
        if c == 7:
            stat_load()
            a(f"s_and_b32 s{s_t}, s2, 7")
            a(f"s_lshl_b32 s{s_t}, s{s_t}, 8")
            a(f"s_add_u32 s{s_t}, s{s_t}, {FL_X}")
            a(f"buffer_load_dwordx2 {v(xr_,2)}, {v(l8)}, {s(R_WS,4)}, s{s_t} offen {SC}")
            vm.op("S", 2)
        if c >= 7:
            issue_w2(c - 7)
        if c == 9:
            vm.wait("S")
            l_chk, l_ok = a.newlabel("L_chk"), a.newlabel("L_ok")
            a(f"s_mov_b32 s{s_t+2}, 0x40000")
            a.label(l_chk)
            a(f"v_xor_b32 {v(t0)}, s{S_E}, {v(sg+1)}")
            a(f"v_xor_b32 {v(t1)}, s{S_E+1}, {v(sg+3)}")
            a(f"v_or_b32 {v(t0)}, {v(t0)}, {v(t1)}")
            a(f"v_cmp_ne_u32 vcc, 0, {v(t0)}")
            a(f"s_cbranch_vccz {l_ok}")
            stat_load()
            a("s_waitcnt vmcnt(0)")
            a(f"s_sub_u32 s{s_t+2}, s{s_t+2}, 1")
            a(f"s_cbranch_scc0 {l_chk}")
            a.label(l_ok)
            a(f"v_mov_b32 {v(sg+1)}, {v(sg)}")
            a(f"v_mov_b32 {v(sg+3)}, {v(sg+2)}")
            a(f"ds_write_b128 {v(sld)}, {v(sg,4)}")
            xcc_tag(a, s_t + 1)
            a(f"v_xor_b32 {v(t0)}, s{S_E}, {v(xr_)}")
            a(f"v_xor_b32 {v(t1)}, s{s_t+1}, {v(xr_+1)}")
            a(f"v_or_b32 {v(t0)}, {v(t0)}, {v(t1)}")
            a(f"v_cmp_ne_u32 vcc, 0, {v(t0)}")
            a("s_cmp_eq_u64 vcc, 0")
            a(f"s_cselect_b32 s{S_FAST}, {0 if 'nofast' in OPT else 1}, 0")
            l = a.newlabel("L_ms")
            a(f"s_cmp_lg_u32 s{s_lw}, 0")
            a(f"s_cbranch_scc1 {l}")
            a(f"v_mov_b32 {v(dump)}, s{S_E}")
            a(f"v_mov_b32 {v(dump+1)}, s{S_E+1}")
            a(f"v_mov_b32 {v(dump+2)}, s{S_FAST}")
            a(f"v_mov_b32 {v(t0)}, {L_MISC}")
            a(f"ds_write_b128 {v(t0)}, {v(dump,4)}")
            a.label(l)
            a("s_waitcnt lgkmcnt(0)")
    stamp(a, 3, 2)
    a("s_barrier")
    issue_w2(3)
    a("s_barrier")

    def pre_p():
        a(f"buffer_load_dword {v(dump)}, {v(l128)}, {s(R_WS,4)}, s{s_p0} offen")
        a("s_mov_b64 exec, 0xffff")
        a(f"s_add_u32 s{s_t}, s{s_p0}, 8192")
        a(f"buffer_load_dword {v(dump)}, {v(l128)}, {s(R_WS,4)}, s{s_t} offen")
        a("s_mov_b64 exec, -1")
        vm.op("PP", 2)
    PPOS = os.environ.get("PPOS", "a") if "pfast" in OPT else "-"
    if PPOS == "a": pre_p()
    vm.wait(("W", 2))
    load_w2(4)
    vm.wait(("W", 3))
    load_w2(5)
    if PPOS == "b": pre_p()
    l = a.newlabel("L_gf")
    a(f"s_cmp_lg_u32 s{s_lw}, 3")
    a(f"s_cbranch_scc1 {l}")
    gf_make(a, s_t)
    a.label(l)
    a("s_barrier")
    a("s_barrier")
    stamp(a, 4, 2)
    vm.wait(("R", 5))
    l_nf = a.newlabel("L_nf")
    a(f"s_cmp_lg_u32 s{s_lw}, 0")
    a(f"s_cbranch_scc1 {l_nf}")
    a(f"s_and_b32 s{s_t}, s{S_FLAG}, 0xfc")
    a(f"s_lshl_b32 s{s_t}, s{s_t}, 7")
    a(f"s_lshl_b32 s{s_t+1}, s{S_SUB}, 3")
    a(f"s_add_u32 s{s_t}, s{s_t}, s{s_t+1}")
    a(f"s_add_u32 s{s_t}, s{s_t}, {FL_H}")
    push_tag(a, s_t, 4, 7, "fast")
    a.label(l_nf)
    put_w2(4)
    a(f"s_lshl_b32 s{s_t+2}, s{S_FLAG}, 7")
    a(f"s_add_u32 s{s_t+2}, s{s_t+2}, {FL_H}")
    poll(a, f"s{s_t+2}", 4, s_t, depth=1); vm.q = []
    stamp(a, 5, 2)
    for c2 in range(2, 5):
        issue_h(c2)
    a("s_barrier")
    issue_h(5)
    put_w2(5)
    for c2 in range(2, 8):
        vm.wait(("H", c2), ("W", c2))
        if c2 == 4: a("s_waitcnt lgkmcnt(0)")
        if c2 == 2: stamp(a, 6, 2)
        stamp(a, c2 - 1, 5)
        a("s_barrier")
        stamp(a, c2 - 1, 6)
        if c2 in (3, 4):
            issue_w2(c2 + 3); issue_h(c2 + 3)
        if c2 == 4 and PPOS == "c": pre_p()
        if c2 == 6:
            l = a.newlabel("L_gp")
            a(f"s_cmp_lg_u32 s{s_lw}, 3")
            a(f"s_cbranch_scc1 {l}")
            gf_put(a)
            a("s_waitcnt lgkmcnt(0)")
            a.label(l)
        if c2 == 5:
            tab3_dma(a, s_t)
            xb2_loads(a, s_t)
            vm.op("T3", 8)
        if c2 in (5, 6):
            a(f"s_lshl_b32 s{s_t+2}, s{S_N3}, 9")
            a(f"s_add_u32 s{s_t+2}, s{s_t+2}, {FL_V}")
            a(f"v_lshlrev_b32 {v(t2)}, 3, v0")
            if c2 == 5:
                a(f"buffer_load_dwordx2 {v(xr_,2)}, {v(t2)}, {s(R_WS,4)}, s{s_t+2} offen {SC}")
                vm.op("LV")
        if c2 in (6, 7):
            l, l_re = a.newlabel("L_lv"), a.newlabel("L_lr")
            if c2 == 7:
                a(f"s_cmp_lg_u32 s{S_HV}, 0")
                a(f"s_cbranch_scc1 {l}")
            a("s_waitcnt vmcnt(0)"); vm.q = []
            a(f"v_cmp_ne_u64 vcc, s[{S_E}:{S_E+1}], {v(xr_,2)}")
            a(f"s_cbranch_vccnz {l_re}")
            vb_dma(a, s_t)
            a(f"s_mov_b32 s{S_HV}, 1")
            a(f"s_branch {l}")
            a.label(l_re)
            if c2 == 6:
                a(f"buffer_load_dwordx2 {v(xr_,2)}, {v(t2)}, {s(R_WS,4)}, s{s_t+2} offen {SC}")
            a.label(l)
    stamp(a, 7, 5)
    a("s_barrier")
    stamp(a, 7, 6)
    a(f"s_branch {l_f3}")


def twiddle_l(re, im, c_, s_, tmp, ns=None):
    o = []
    if ns is not None:
        for h in range(2):
            o.append(f"v_pk_mul_f32 {v(tmp,2)}, {v(im+2*h,2)}, {v(s_+2*h,2)}")
            o.append(f"v_pk_mul_f32 {v(tmp+2,2)}, {v(re+2*h,2)}, {v(ns+2*h,2)}")
            o.append(f"v_pk_fma_f32 {v(re+2*h,2)}, {v(re+2*h,2)}, {v(c_+2*h,2)}, {v(tmp,2)}")
            o.append(f"v_pk_fma_f32 {v(im+2*h,2)}, {v(im+2*h,2)}, {v(c_+2*h,2)}, {v(tmp+2,2)}")
        return o
    o += [f"v_mul_f32 {v(tmp+r)}, {v(re+r)}, {v(s_+r)}" for r in range(4)]
    o += [f"v_mul_f32 {v(re+r)}, {v(re+r)}, {v(c_+r)}" for r in range(4)]
    o += [f"v_fmac_f32 {v(re+r)}, {v(im+r)}, {v(s_+r)}" for r in range(4)]
    o += [f"v_fma_f32 {v(im+r)}, {v(im+r)}, {v(c_+r)}, -{v(tmp+r)}" for r in range(4)]
    return o


XR = 8


def fft_head(a):
    s_t = S_T
    srd(a, R_A, P_X, 2621440)
    a(f"s_lshl_b32 s{s_t+1}, s{S_W}, 11")
    a(f"s_add_u32 m0, s{s_t+1}, {L1_TAB}")
    a(f"s_lshl_b32 s{s_t}, s{S_W}, 8")
    for i in range(2):
        dma(a, L16, R_TAB, f"s{s_t+1}", off=i * 1024)
    a(f"v_mul_u32_u24 {v(T0)}, {64*1280}, {v(G)}")
    a(f"v_lshl_add_u32 {v(T0)}, {v(I16)}, 4, {v(T0)}")
    a(f"s_add_u32 s{s_t}, s{s_t}, s{S_IDX}")
    a(f"s_mul_i32 s{s_t}, s{s_t}, 1280")
    for i in range(5):
        a(f"buffer_load_dwordx4 {v(XR+4*i,4)}, {v(T0)}, {s(R_A,4)}, s{s_t} offen offset:{256*i}")
    a(f"s_add_u32 m0, s{s_t+1}, {L2_TAB}")
    a(f"s_add_u32 s{s_t+1}, s{s_t+1}, {TAB_F2}")
    for i in range(2):
        dma(a, L16, R_TAB, f"s{s_t+1}", off=i * 1024)
    load_epoch(a, s_t + 2)


def fft_role(a):
    s_n = S_IDX
    SP = 400
    vp = Pool("v", 28, 248)
    i16, g, l16, t0, t1, t2, xr = I16, G, L16, T0, T1, T2, XR
    s_t, s_hf, s_b, s_i, s_k1, s_h2, s_wb, s_wm0 = S_T, S_T + 4, S_T + 5, S_T + 6, S_T + 7, S_T + 8, S_T + 9, S_T + 10
    xw, ta0, ta1 = vp.get(), vp.get(), vp.get()
    a(f"s_mul_i32 s{s_t}, s{S_W}, {4*1280}")
    a(f"s_add_u32 s{s_t}, s{s_t}, {L1_XN}")
    a(f"v_mul_u32_u24 {v(xw)}, 1280, {v(g)}")
    a(f"v_lshl_add_u32 {v(xw)}, {v(i16)}, 4, {v(xw)}")
    a(f"v_add_u32 {v(xw)}, s{s_t}, {v(xw)}")
    a(f"v_and_b32 {v(t0)}, 3, v0")
    a(f"v_lshlrev_b32 {v(t0)}, 3, {v(t0)}")
    a(f"v_add_u32 {v(t0)}, s{s_t}, {v(t0)}")
    a(f"v_lshrrev_b32 {v(t1)}, 2, v0")
    a(f"v_lshl_add_u32 {v(ta0)}, {v(t1)}, 6, {v(t0)}")
    a(f"v_and_b32 {v(t1)}, 3, {v(t1)}")
    a(f"v_lshl_add_u32 {v(ta1)}, {v(t1)}, 6, {v(t0)}")
    a(f"v_add_u32 {v(ta1)}, 1024, {v(ta1)}")
    mf = vp.get(8, 4)
    k1v = T3
    a(f"s_and_b32 s{s_t}, s{S_W}, 1")
    a(f"s_lshl_b32 s{s_t}, s{s_t}, 4")
    a(f"v_add_u32 {v(k1v)}, s{s_t}, {v(i16)}")
    a(f"s_and_b32 s{s_t}, s{S_W}, 2")
    a(f"s_lshl_b32 s{s_t}, s{s_t}, 8")
    a(f"v_lshlrev_b32 {v(t0)}, 8, {v(g)}")
    a(f"v_add_u32 {v(t0)}, s{s_n}, {v(t0)}")
    a(f"v_mul_u32_u24 {v(t0)}, {v(t0)}, {v(k1v)}")
    a(f"v_add_u32 {v(t0)}, s{s_t}, {v(t0)}")
    a(f"v_lshlrev_b32 {v(k1v)}, 6, {v(k1v)}")
    for ks in range(2):
        for jj in range(4):
            a(f"v_mad_u32_u24 {v(t1)}, {v(k1v)}, {16*ks+jj}, {v(t0)}")
            a(f"v_and_b32 {v(t1)}, 2047, {v(t1)}")
            a(f"v_cvt_f32_u32 {v(t1)}, {v(t1)}")
            a(f"v_mul_f32 {v(t1)}, {hex(f2u(1/2048))}, {v(t1)}")
            a(f"v_cos_f32 {v(t2)}, {v(t1)}")
            a(f"v_sin_f32 {v(t1)}, {v(t1)}")
            a(cvt_s(mf + 4*ks + jj, t2, t1))
    a(f"v_mov_b32 {v(t1)}, 0")
    a(f"v_and_b32 {v(t0)}, 31, v0")
    a(f"v_lshlrev_b32 {v(t0)}, 2, {v(t0)}")
    a(f"v_add_u32 {v(t0)}, {L1_ZX + 321*128}, {v(t0)}")
    a(f"ds_write_b32 {v(t0)}, {v(t1)}")
    za = [vp.get() for _ in range(8)]
    a(f"v_mul_u32_u24 {v(t0)}, 80, {v(g)}")
    a(f"v_add_u32 {v(t0)}, {v(t0)}, {v(i16)}")
    for u in range(2):
        for r in range(4):
            z = za[4*u+r]
            if u == 0:
                a(f"v_add_u32 {v(t1)}, {20*r + L1_ZX//128}, {v(t0)}")
            else:
                a(f"v_sub_u32 {v(t1)}, {320-20*r + L1_ZX//128}, {v(t0)}")
            a(f"v_xor_b32 {v(t2)}, s{S_W}, {v(t1)}")
            a(f"v_and_b32 {v(t2)}, 7, {v(t2)}")
            a(f"v_lshlrev_b32 {v(t2)}, 4, {v(t2)}")
            a(f"v_lshl_add_u32 {v(z)}, {v(t1)}, 7, {v(t2)}")
    assert (L1_ZX // 128) % 8 == 0
    ca = [vp.get() for _ in range(4)]
    a(f"s_lshr_b32 s{s_hf}, s{S_W}, 2")
    a(f"v_and_b32 {v(t0)}, 7, v0")
    a(f"v_xor_b32 {v(t0)}, {v(t0)}, {v(g)}")
    a(f"v_lshlrev_b32 {v(t0)}, 4, {v(t0)}")
    a(f"v_lshl_add_u32 {v(t0)}, {v(i16)}, 7, {v(t0)}")
    a(f"s_mul_i32 s{s_t}, s{s_hf}, {12*2048}")
    a(f"s_add_u32 s{s_t}, s{s_t}, {L1_ZX}")
    a(f"v_add_u32 {v(ca[0])}, s{s_t}, {v(t0)}")
    a(f"v_xor_b32 {v(ca[1])}, 64, {v(ca[0])}")
    a(f"v_lshlrev_b32 {v(t0)}, 4, {v(g)}")
    a(f"v_add_u32 {v(t0)}, {L1_ZX + 320*128}, {v(t0)}")
    a(f"v_add_u32 {v(t1)}, 128, {v(t0)}")
    a(f"v_cmp_eq_u32 vcc, 7, {v(i16)}")
    a(f"v_cndmask_b32 {v(t0)}, {v(t1)}, {v(t0)}, vcc")
    a(f"v_add_u32 {v(t1)}, {8*2048}, {v(ca[0])}")
    a(f"s_cmp_eq_u32 s{s_hf}, 1")
    a(f"s_cselect_b64 vcc, -1, 0")
    a(f"v_cndmask_b32 {v(ca[2])}, {v(t1)}, {v(t0)}, vcc")
    a(f"v_xor_b32 {v(ca[3])}, 64, {v(ca[2])}")
    sw, sr, gv = vp.get(), vp.get(), vp.get()
    a(f"s_mul_i32 s{s_t}, s{S_W}, {16*SP}")
    a(f"v_mul_u32_u24 {v(sw)}, {SP}, {v(i16)}")
    a(f"v_lshl_add_u32 {v(sw)}, {v(g)}, 3, {v(sw)}")
    a(f"v_add_u32 {v(sw)}, s{s_t}, {v(sw)}")
    a(f"v_lshrrev_b32 {v(t0)}, 3, v0")
    a(f"v_and_b32 {v(t1)}, 7, v0")
    a(f"v_mul_u32_u24 {v(gv)}, {2*49152}, {v(t0)}")
    a(f"v_lshl_add_u32 {v(gv)}, {v(t1)}, 4, {v(gv)}")
    a(f"s_and_b32 s{s_t+1}, s{s_n}, 6")
    a(f"v_xor_b32 {v(t1)}, s{s_t+1}, {v(t1)}")
    a(f"v_lshlrev_b32 {v(t1)}, 4, {v(t1)}")
    a(f"v_mul_u32_u24 {v(sr)}, {SP}, {v(t0)}")
    a(f"v_add3_u32 {v(sr)}, {v(sr)}, {v(t1)}, s{s_t}")
    a(f"s_lshr_b32 s{s_k1}, s{S_IDX}, 1")
    a(f"s_and_b32 s{s_h2}, s{S_IDX}, 1")
    wv = [vp.get() for _ in range(3)]
    a(f"s_mul_i32 s{s_t+1}, s{s_h2}, 192")
    for i in range(3):
        a(f"s_lshl_b32 s{s_t}, s{S_W}, 6")
        a(f"s_add_u32 s{s_t}, s{s_t}, {512*i}")
        a(f"v_add_u32 {v(t2)}, s{s_t}, v0")
        divmod_const(a, t0, t1, t2, 24)
        a(f"v_and_b32 {v(t2)}, 6, {v(t0)}")
        a(f"v_xor_b32 {v(t1)}, {v(t1)}, {v(t2)}")
        a(f"v_lshl_add_u32 {v(t1)}, {v(t1)}, 3, s{s_t+1}")
        a(f"v_min_u32 {v(t1)}, 313, {v(t1)}")
        a(f"v_mul_u32_u24 {v(wv[i])}, {32*642}, {v(t0)}")
        a(f"v_lshl_add_u32 {v(wv[i])}, {v(t1)}, 1, {v(wv[i])}")
    srd(a, R_B, P_WR, 1314816); srd(a, R_C, P_WI, 1314816)
    a(f"s_mul_i32 s{s_wb}, s{s_k1}, 642")
    a(f"s_lshl_b32 s{s_wm0}, s{S_W}, 10")
    a(f"s_and_b32 s{s_b}, s{S_W}, 1")
    a(f"s_lshl_b32 s{s_b}, s{s_b}, 12")
    a(f"s_lshl_b32 s{s_t}, s{s_hf}, 7")
    a(f"s_add_u32 s{s_b}, s{s_b}, s{s_t}")
    a(f"s_and_b32 s{s_t}, s{S_W}, 2")
    a(f"s_lshl_b32 s{s_t}, s{s_t}, 5")
    a(f"s_add_u32 s{s_b}, s{s_b}, s{s_t}")
    a(f"s_add_u32 s{s_b}, s{s_b}, s{s_n}")
    a(f"s_mul_i32 s{s_b}, s{s_b}, 384")
    a(f"s_add_u32 s{s_b}, s{s_b}, {WS_ZP}")
    a(f"s_add_u32 s{s_i}, s{s_b}, {8*2*49152}")
    NP = 0
    mk = vp.mark()
    tb = vp.get(56, 4)
    F20 = [tb, tb + 4]; F32 = [tb + 8 + 4*i for i in range(8)]; TW = [tb + 40 + 4*i for i in range(4)]
    stamp(a, 1, 9)
    a(f"s_waitcnt vmcnt({7+NP})")
    a("s_barrier")
    for i in range(14):
        a(f"ds_read_b128 {v(tb+4*i,4)}, {v(l16)} offset:{L1_TAB+1024*i}")
    mk2 = vp.mark()
    f = vp.get(40, 2)
    ac = vp.get(8, 2)
    vp.reset(mk2 + 100)
    rr = vp.get(2, 2); e0 = vp.get(4, 4)
    mean, var, m, den, m2, den2 = [vp.get() for _ in range(6)]
    mk3 = vp.mark()
    stamp(a, 1, 2); stamp(a, 2, 9)
    for i in range(20):
        if i % 4 == 0:
            a(f"s_waitcnt vmcnt({6 + NP - i//4})")
        emit(a, unpack_l(f + 2*i, xr + i))
        if i < 2:
            a(f"v_pk_mul_f32 {v(ac+4+2*i,2)}, {v(f+2*i,2)}, {v(f+2*i,2)}")
        else:
            a(f"v_pk_fma_f32 {v(ac+4+2*(i&1),2)}, {v(f+2*i,2)}, {v(f+2*i,2)}, {v(ac+4+2*(i&1),2)}")
        if i in (2, 3):
            a(f"v_pk_add_f32 {v(ac+2*(i&1),2)}, {v(f+2*i-4,2)}, {v(f+2*i,2)}")
        elif i > 3:
            a(f"v_pk_add_f32 {v(ac+2*(i&1),2)}, {v(ac+2*(i&1),2)}, {v(f+2*i,2)}")
    stamp(a, 2, 2); stamp(a, 3, 9)
    a(f"v_pk_add_f32 {v(ac,2)}, {v(ac,2)}, {v(ac+2,2)}")
    a(f"v_pk_add_f32 {v(ac+4,2)}, {v(ac+4,2)}, {v(ac+6,2)}")
    a(f"v_add_f32 {v(mean)}, {v(ac)}, {v(ac+1)}")
    a(f"v_add_f32 {v(var)}, {v(ac+4)}, {v(ac+5)}")
    for sh in (8, 4, 2, 1):
        for dst in (mean, var):
            a(f"v_add_f32_dpp {v(dst)}, {v(dst)}, {v(dst)} row_ror:{sh} row_mask:0xf bank_mask:0xf")
    a(f"v_mul_f32 {v(mean)}, {hex(f2u(1/640))}, {v(mean)}")
    a(f"v_mul_f32 {v(var)}, {hex(f2u(1/640))}, {v(var)}")
    a(f"v_fma_f32 {v(var)}, -{v(mean)}, {v(mean)}, {v(var)}")
    a(f"v_max_f32 {v(var)}, 0, {v(var)}")
    bf16r(a, m, mean)
    bf16r(a, den, var)
    a(f"v_add_f32 {v(den)}, {hex(f2u(1e-5))}, {v(den)}")
    bf16r(a, den, den)
    a(f"v_sqrt_f32 {v(den)}, {v(den)}")
    bf16r(a, den, den)
    a(f"v_rcp_f32 {v(rr)}, {v(den)}")
    a(f"v_rcp_f32 {v(rr+1)}, {v(den)}")
    a(f"v_mul_f32 {v(ac)}, {v(m)}, {v(rr)}")
    a(f"v_sub_f32 {v(ac)}, 0, {v(ac)}")
    a(f"v_mov_b32 {v(ac+1)}, {v(ac)}")
    for i in range(21):
        if i < 20:
            a(f"v_pk_fma_f32 {v(f+2*i,2)}, {v(f+2*i,2)}, {v(rr,2)}, {v(ac,2)}")
        if i > 0:
            a(cvt_s(xr + i - 1, f + 2*i - 2, f + 2*i - 1))
            if i % 4 == 0:
                a(f"ds_write_b128 {v(xw)}, {v(xr+i-4,4)} offset:{64*(i-4)}")
    vp.reset(mk2)
    d = [[[vp.get(4, 4) for pl in range(2)] for t in range(2)] for row in range(4)]
    af = [[vp.get(4, 4) for t in range(2)] for row in range(4)]
    tmp = [vp.get(4, 4)]
    assert vp.mark() <= mk2 + 100
    vp.reset(mk3)
    tmp.append(vp.get(4, 4))
    zo = [xr + 4*i for i in range(5)] + [vp.get(4, 4) for _ in range(3)]

    def wdma(k):
        i, pl = k >> 1, k & 1
        a(f"s_add_u32 m0, s{s_wm0}, {(L2_WI if pl else L2_WR) + i*8192}")
        dma(a, wv[i], R_C if pl else R_B, f"s{s_wb}")
    a(f"v_sub_f32 {v(m2)}, {v(mean)}, {v(m)}")
    a(f"v_mul_f32 {v(m2)}, {v(m2)}, {v(rr)}")
    bf16r(a, m2, m2)
    a(f"v_mul_f32 {v(den2)}, {v(var)}, {v(rr)}")
    a(f"v_mul_f32 {v(den2)}, {v(den2)}, {v(rr)}")
    bf16r(a, den2, den2)
    a(f"v_add_f32 {v(den2)}, {hex(f2u(1e-5))}, {v(den2)}")
    bf16r(a, den2, den2)
    a("s_waitcnt lgkmcnt(0)")
    stamp(a, 3, 2); stamp(a, 4, 9)
    for row in range(4):
        for t in range(2):
            a(f"ds_read_b64_tr_b16 {v(af[row][t],2)}, {v(ta0)} offset:{row*1280+t*32}")
            a(f"ds_read_b64_tr_b16 {v(af[row][t]+2,2)}, {v(ta1)} offset:{row*1280+t*32}")
        if row == 2:
            nonce(a)
            a(f"v_sqrt_f32 {v(den2)}, {v(den2)}")
            bf16r(a, den2, den2)
            a(f"v_rcp_f32 {v(den2)}, {v(den2)}")
            a(f"v_fma_f32 {v(m)}, {v(m2)}, {v(den)}, {v(m)}")
            a(f"v_mul_f32 {v(e0)}, {v(rr)}, {v(den2)}")
            a(f"v_mul_f32 {v(e0+2)}, {v(e0)}, {v(m)}")
            a(f"v_sub_f32 {v(e0+2)}, 0, {v(e0+2)}")
            a(f"v_mov_b32 {v(e0+1)}, s{S_E}")
            a(f"v_mov_b32 {v(e0+3)}, s{S_E+1}")
            a("s_waitcnt lgkmcnt(8)")
    a(f"s_lshl_b32 s{s_t}, s{s_n}, 3")
    a(f"s_add_u32 s{s_t}, s{s_t}, s{S_W}")
    a(f"s_lshl_b32 s{s_t}, s{s_t}, 6")
    a(f"s_add_u32 s{s_t}, s{s_t}, {WS_ST}")
    a(f"v_lshlrev_b32 {v(t0)}, 4, {v(g)}")
    a("s_mov_b32 exec_lo, 0x00010001")
    a("s_mov_b32 exec_hi, 0x00010001")
    a(f"buffer_store_dwordx4 {v(e0,4)}, {v(t0)}, {s(R_WS,4)}, s{s_t} offen {SC}")
    a("s_mov_b64 exec, -1")
    l = a.newlabel("L_px")
    a(f"s_cmp_lg_u32 s{S_W}, 0")
    a(f"s_cbranch_scc1 {l}")
    publish_xcc(a, s_t)
    a.label(l)
    R1 = lambda row: [mfma_s(d[row][t][pl], af[row][t], F20[pl], "0") for t in range(2) for pl in range(2)]
    R2 = lambda row: ([mfma_s(d[row][u][op], F32[4*u+2*op], af[row][0], "0") for u in range(2) for op in range(2)] +
                      [mfma_s(d[row][u][op], F32[4*u+2*op+1], af[row][1]) for u in range(2) for op in range(2)])
    TWD = lambda row: (twiddle_l(d[row][0][0], d[row][0][1], TW[0], TW[1], tmp[0]) + twiddle_l(d[row][1][0], d[row][1][1], TW[2], TW[3], tmp[1]) +
                       [cvt_s(af[row][pl]+2*t+h, d[row][t][pl]+2*h, d[row][t][pl]+2*h+1) for pl in range(2) for t in range(2) for h in range(2)])
    OUT = lambda row: [cvt_s(zo[4*u+r]+row, d[row][u][0]+r, d[row][u][1]+r) for u in range(2) for r in range(4)]
    emit(a, R1(0))
    a("s_waitcnt lgkmcnt(8)")
    emit(a, R1(1))
    wdma(0)
    a("s_waitcnt lgkmcnt(0)")
    weave(a, R1(2) + R1(3), TWD(0))
    wdma(1)
    weave(a, R2(0), TWD(1))
    wdma(2)
    weave(a, R2(1), TWD(2) + OUT(0))
    wdma(3)
    weave(a, R2(2), TWD(3) + OUT(1))
    wdma(4)
    weave(a, R2(3), OUT(2))
    wdma(5)
    stamp(a, 5, 9)
    o3 = OUT(3)
    for i in range(8):
        a(o3[i])
        a(f"ds_write_b128 {v(za[i])}, {v(zo[i],4)}")
    vp.reset(mk)
    zf = [[vp.get(4, 4) for ks in range(2)] for i in range(12)]
    dd = [vp.get(4, 4) for i in range(12)]
    ob = [vp.get(4, 4) for i in range(6)]
    a("s_waitcnt vmcnt(6) lgkmcnt(0)")
    stamp(a, 6, 9)
    a("s_barrier")
    stamp(a, 4, 2); stamp(a, 7, 9)

    def crd(i):
        return [f"ds_read_b128 {v(zf[i][ks],4)}, {v(ca[2+ks])}" if i == 8 else
                f"ds_read_b128 {v(zf[i][ks],4)}, {v(ca[ks])} offset:{i*2048}" for ks in range(2)]
    cout = lambda i: [cvt_s(dd[i], dd[i], dd[i]+1), cvt_s(dd[i]+1, dd[i]+2, dd[i]+3), f"ds_write_b64 {v(sw)}, {v(dd[i],2)} offset:{L1_ST + i*32}"]
    q = []
    def lds(x, tag):
        a(x); q.append(tag); assert len(q) <= 15
    def lwait(tag):
        idx = [i for i, t in enumerate(q) if t == tag]
        if idx:
            a(f"s_waitcnt lgkmcnt({len(q)-1-idx[-1]})")
            del q[:idx[-1]+1]
    def line_rd(ln):
        for h in range(2):
            lds(f"ds_read_b128 {v(ob[2*ln+h],4)}, {v(sr)} offset:{L1_ST + h*8*SP + ln*128}", ("o", ln))
    def line_st(ln):
        lwait(("o", ln))
        for h in range(2):
            a(f"buffer_store_dwordx4 {v(ob[2*ln+h],4)}, {v(gv)}, {s(R_WS,4)}, s{s_i if h else s_b} offen offset:{ln*128} {SC}")
    for i in range(4):
        for x in crd(i): lds(x, i)
    for i in range(15):
        if i < 12:
            lwait(i)
            mfma(a, dd[i], zf[i][0], mf, "0")
            mfma(a, dd[i], zf[i][1], mf + 4)
        if i + 4 < 12:
            for x in crd(i + 4): lds(x, i + 4)
        if i >= 3:
            c = cout(i - 3); a(c[0]); a(c[1]); lds(c[2], "w")
            if (i - 3) % 4 == 3:
                line_rd((i - 3) // 4)
        if i == 9:
            stamp(a, 1, 7); stamp(a, 8, 9)
            line_st(0)
        if i == 13:
            line_st(1)
    line_st(2)
    stamp(a, 2, 7)

    vp.reset(mk)
    ra, rw, wa, tadr, sr, gv = za[0], za[1], za[2], za[3], za[4], za[5]
    a(f"v_lshrrev_b32 {v(t0)}, 2, v0")
    a(f"v_mul_u32_u24 {v(ra)}, 384, {v(t0)}")
    a(f"v_bfe_u32 {v(t0)}, v0, 3, 2")
    a(f"v_xor_b32 {v(t0)}, s{S_W}, {v(t0)}")
    a(f"v_lshl_add_u32 {v(ra)}, {v(t0)}, 5, {v(ra)}")
    a(f"v_and_b32 {v(t0)}, 3, v0")
    a(f"v_lshl_add_u32 {v(ra)}, {v(t0)}, 3, {v(ra)}")
    a(f"v_add_u32 {v(rw)}, {L2_WR}, {v(ra)}")
    a(f"v_mul_u32_u24 {v(wa)}, 384, {v(i16)}")
    a(f"v_bfe_u32 {v(t0)}, v0, 1, 2")
    a(f"v_xor_b32 {v(t0)}, s{S_W}, {v(t0)}")
    a(f"v_lshl_add_u32 {v(wa)}, {v(t0)}, 5, {v(wa)}")
    a(f"v_lshl_add_u32 {v(wa)}, {v(g)}, 3, {v(wa)}")
    a(f"v_add_u32 {v(tadr)}, {L2_TAB}, {v(l16)}")
    a(f"v_lshrrev_b32 {v(t0)}, 3, v0")
    a(f"v_and_b32 {v(t1)}, 7, v0")
    a(f"v_mul_u32_u24 {v(gv)}, 49152, {v(t0)}")
    a(f"v_lshl_add_u32 {v(gv)}, {v(t1)}, 4, {v(gv)}")
    a(f"v_xor_b32 {v(t2)}, s{s_k1}, {v(t0)}")
    a(f"v_and_b32 {v(t2)}, 6, {v(t2)}")
    a(f"v_xor_b32 {v(t1)}, {v(t1)}, {v(t2)}")
    a(f"v_mul_u32_u24 {v(sr)}, 384, {v(t0)}")
    a(f"v_lshl_add_u32 {v(sr)}, {v(t1)}, 4, {v(sr)}")
    X = [[vp.get(4, 4) for t in range(4)] for pl in range(2)]
    z = [[vp.get(4, 4) for ks in range(2)] for pl in range(2)]
    tb = vp.get(96, 4)
    C = [[tb + 8*t + 4*ks for ks in range(2)] for t in range(4)]
    Sm = [[tb + 32 + 8*t + 4*ks for ks in range(2)] for t in range(4)]
    NS = [[tb + 64 + 8*t + 4*ks for ks in range(2)] for t in range(4)]
    y = [[vp.get(4, 4) for ks in range(2)] for pl in range(2)]
    wq = [[xr + 8*pl + 2*t for t in range(4)] for pl in range(2)]
    wu = [vp.get(4, 4) for _ in range(4)]
    tmp = xr + 16
    for i in range(16):
        a(f"ds_read_b128 {v(tb+4*i,4)}, {v(tadr)} offset:{1024*i}")
        if i == 11:
            a("s_waitcnt lgkmcnt(4)")
    a("s_waitcnt vmcnt(0)")
    a("s_barrier")
    stamp(a, 5, 2); stamp(a, 3, 7)
    wave_flag(a, 0, FL_Z)
    wread = [f"ds_read_b64_tr_b16 {v(wq[pl][t],2)}, {v(rw)} offset:{pl*24576+16*t*384}" for t in range(4) for pl in range(2)]
    zread = [f"ds_read_b64_tr_b16 {v(z[pl][ks]+2*h,2)}, {v(ra)} offset:{(pl*64+32*ks+16*h)*384}"
             for ks in range(2) for pl in range(2) for h in range(2)]
    a("s_waitcnt lgkmcnt(0)")
    emit(a, wread)
    for i in range(32):
        a(f"v_xor_b32 {v(tb+64+i)}, 0x80008000, {v(tb+32+i)}")
    l_np = a.newlabel("L_np")
    a(f"s_cmp_lg_u32 s{S_W}, 7")
    a(f"s_cbranch_scc1 {l_np}")
    a(f"s_lshl_b32 s{s_t+2}, s{S_IDX}, 9")
    a(f"s_add_u32 s{s_t+2}, s{s_t+2}, {FL_Z}")
    poll(a, f"s{s_t+2}", 64, s_t)
    a.label(l_np)
    a(f"s_mul_i32 s{s_b}, s{S_IDX}, 49152")
    a(f"s_mul_i32 s{s_t+1}, s{S_W}, 6144")
    a(f"s_add_u32 s{s_b}, s{s_b}, s{s_t+1}")
    a(f"s_add_u32 s{s_b}, s{s_b}, {WS_ZP}")
    a(f"s_add_u32 m0, s{s_t+1}, {L2_ZB}")
    a("s_barrier")
    stamp(a, 6, 2); stamp(a, 4, 7)
    for i in range(4):
        dma(a, l16, R_WS, f"s{s_b}", SC, off=i * 1024)
    a(f"s_add_u32 m0, s{s_t+1}, {L2_ZB + 4096}")
    a(f"s_add_u32 s{s_b}, s{s_b}, 4096")
    for i in range(2):
        dma(a, l16, R_WS, f"s{s_b}", SC, off=i * 1024)
    a(f"s_lshl_b32 s{s_b}, s{s_h2}, 6")
    a(f"s_add_u32 s{s_b}, s{s_b}, s{s_k1}")
    a(f"s_mul_i32 s{s_b}, s{s_b}, 384")
    a(f"s_add_u32 s{s_b}, s{s_b}, {WS_VP}")
    a(f"s_mul_i32 s{s_i}, s{s_h2}, 3")
    a(f"s_add_u32 s{s_i}, s{s_i}, s{S_W}")
    a("s_waitcnt vmcnt(0)")
    a("s_barrier")
    stamp(a, 7, 2)
    emit(a, zread)
    FW = lambda t: [mfma_s(X[0][t], C[t][0], z[0][0], "0"), mfma_s(X[1][t], C[t][0], z[1][0], "0"),
                    mfma_s(X[0][t], Sm[t][0], z[1][0]), mfma_s(X[1][t], NS[t][0], z[0][0]),
                    mfma_s(X[0][t], C[t][1], z[0][1]), mfma_s(X[1][t], C[t][1], z[1][1]),
                    mfma_s(X[0][t], Sm[t][1], z[1][1]), mfma_s(X[1][t], NS[t][1], z[0][1])]
    def UNP(t):
        o = []
        for pl in range(2):
            for h in range(2):
                o += unpack_l(wu[2*(t&1)+pl] + 2*h, wq[pl][t] + h)
        return o
    def CM(t):
        wr_, wi_ = wu[2*(t&1)], wu[2*(t&1)+1]
        re, im = X[0][t], X[1][t]
        o = [f"v_mul_f32 {v(tmp+r)}, {v(im+r)}, {v(wi_+r)}" for r in range(4)]
        o += [f"v_mul_f32 {v(im+r)}, {v(im+r)}, {v(wr_+r)}" for r in range(4)]
        o += [f"v_fmac_f32 {v(im+r)}, {v(re+r)}, {v(wi_+r)}" for r in range(4)]
        o += [f"v_fma_f32 {v(re+r)}, {v(re+r)}, {v(wr_+r)}, -{v(tmp+r)}" for r in range(4)]
        o += [cvt_s(y[pl][t>>1]+2*(t&1)+h, X[pl][t]+2*h, X[pl][t]+2*h+1) for pl in range(2) for h in range(2)]
        return o
    IV = lambda t, ks: [mfma_s(X[0][t], y[0][ks], C[t][ks], "0" if ks == 0 else None), mfma_s(X[1][t], y[1][ks], C[t][ks], "0" if ks == 0 else None),
                        mfma_s(X[0][t], y[1][ks], NS[t][ks]), mfma_s(X[1][t], y[0][ks], Sm[t][ks])]
    WO = lambda t: [x for pl in range(2) for x in (cvt_s(X[pl][t], X[pl][t], X[pl][t]+1), cvt_s(X[pl][t]+1, X[pl][t]+2, X[pl][t]+3),
                                                   f"ds_write_b64 {v(wa)}, {v(X[pl][t],2)} offset:{(pl*64+16*t)*384}")]
    l_loop, l_r2, l_st = a.newlabel("L_f2l"), a.newlabel("L_f2r"), a.newlabel("L_f2s")
    a.label(l_loop)
    a("s_waitcnt lgkmcnt(0)")
    weave(a, FW(0), UNP(0) + UNP(1))
    weave(a, FW(1), [f"v_add_u32 {v(ra)}, 256, {v(ra)}", f"v_add_u32 {v(rw)}, 256, {v(rw)}"] + CM(0))
    weave(a, FW(2), UNP(2) + CM(1))
    weave(a, FW(3), UNP(3) + CM(2))
    weave(a, IV(0, 0) + IV(1, 0) + IV(2, 0), zread + CM(3))
    a("s_waitcnt lgkmcnt(4)")
    weave(a, IV(0, 1) + IV(3, 0) + IV(1, 1), wread)
    a("s_waitcnt lgkmcnt(4)")
    weave(a, IV(2, 1) + IV(3, 1), WO(0) + WO(1))
    emit(a, WO(2) + WO(3))
    a(f"v_add_u32 {v(wa)}, 256, {v(wa)}")
    a(f"s_cmp_eq_u32 s{s_i}, 64")
    a("s_waitcnt lgkmcnt(0)")
    a(f"s_cbranch_scc1 {l_r2}")
    a("s_barrier")
    a(f"s_cmp_lt_u32 s{s_i}, 4")
    a(f"s_mov_b32 s{s_i}, 64")
    a(f"s_cbranch_scc1 {l_loop}")
    a(f"s_cmp_lt_u32 s{S_W}, 4")
    a(f"s_cbranch_scc1 {l_r2}")
    a(f"s_and_b32 s{s_t}, s{S_W}, 3")
    a(f"s_mul_i32 s{s_t+1}, s{s_t}, {32*384}")
    a(f"v_add_u32 {v(t0)}, s{s_t+1}, {v(sr)}")
    for i in range(8):
        a(f"ds_read_b128 {v(X[0][0]+4*i,4)}, {v(t0)} offset:{L2_ZB + (i>>1)*8*384 + (i&1)*128}")
    a(f"s_and_b32 s{s_t+1}, s{s_t}, 1")
    a(f"s_mul_i32 s{s_t+1}, s{s_t+1}, {32*49152}")
    a(f"s_lshr_b32 s{s_t}, s{s_t}, 1")
    a(f"s_mul_i32 s{s_t}, s{s_t}, {32*384}")
    a(f"s_add_u32 s{s_t}, s{s_t}, s{s_t+1}")
    a(f"s_add_u32 s{s_t}, s{s_t}, s{s_b}")
    for i in range(8):
        if i and not i & 1:
            a(f"s_add_u32 s{s_t}, s{s_t}, {8*49152}")
        a(f"s_waitcnt lgkmcnt({7-i})")
        a(f"buffer_store_dwordx4 {v(X[0][0]+4*i,4)}, {v(gv)}, {s(R_WS,4)}, s{s_t} offen offset:{(i&1)*128} {SC}")
    tab3_dma(a, s_t)
    a(f"s_cmp_lg_u32 s{S_W}, 7")
    a(f"s_cbranch_scc1 {l_r2}")
    gf_make(a, s_t)
    gf_put(a)
    a("s_waitcnt lgkmcnt(0)")
    a.label(l_r2)
    a(f"s_mul_i32 s{s_t+1}, s{S_W}, {16*384}")
    a(f"v_add_u32 {v(t0)}, s{s_t+1}, {v(sr)}")
    a(f"s_and_b32 s{s_t+1}, s{S_W}, 3")
    a(f"s_mul_i32 s{s_t+1}, s{s_t+1}, {16*49152}")
    a(f"s_lshr_b32 s{s_t}, s{S_W}, 2")
    a(f"s_mul_i32 s{s_t}, s{s_t}, {32*384}")
    a(f"s_add_u32 s{s_t}, s{s_t}, s{s_t+1}")
    a(f"s_add_u32 s{s_t}, s{s_t}, s{s_b}")
    a(f"s_add_u32 s{s_t+1}, s{s_t}, {8*49152}")
    a("s_barrier")
    stamp(a, 8, 2); stamp(a, 5, 7)
    for i in range(2):
        a(f"ds_read_b128 {v(z[0][i],4)}, {v(t0)} offset:{L2_ZB + i*8*384 + 256}")
    for i in range(2):
        a(f"s_waitcnt lgkmcnt({1-i})")
        a(f"buffer_store_dwordx4 {v(z[0][i],4)}, {v(gv)}, {s(R_WS,4)}, s{s_t+i} offen offset:256 {SC}")
    stamp(a, 6, 7)
    a("s_waitcnt vmcnt(0)")
    a("s_barrier")
    stamp(a, 7, 7)
    wave_flag(a, 0, FL_V)
    xb2_loads(a, s_t)
    a(f"s_mov_b32 s{S_PJ}, 0")
    a(f"s_mov_b32 s{S_HV}, 0")
    l = a.newlabel("L_ae")
    a(f"s_xor_b32 s{s_t}, s{S_W}, 1")
    a(f"s_or_b32 s{s_t}, s2, s{s_t}")
    a(f"s_cbranch_scc1 {l}")
    advance_epoch(a, s_t)
    a.label(l)


def f3(a, l_f3):
    s_t, s_have = S_T + 11, S_T + 14
    a.label(l_f3)
    stamp(a, 1, 8)
    vq = Pool("v", 88, V_TOP)
    tb = vq.get(56, 4)
    G32 = [tb + 4*i for i in range(8)]; G20 = [tb + 32, tb + 36]; TW = [tb + 40 + 4*i for i in range(4)]
    lc = vq.get(8, 4)
    nsn = vq.get(8, 4); o = vq.get(10, 2); xx = vq.get(10, 2); one2 = vq.get(2, 2)
    F_PFL = vq.get(2, 2)
    F_RA = [vq.get() for _ in range(3)]; F_UA = [vq.get() for _ in range(3)]
    F_UB0, F_UB1, F_SWR, F_SR0, F_SR1 = [vq.get() for _ in range(5)]
    F_PA, F_PB, F_PFA = lc, lc + 1, lc + 7
    a(f"v_add_u32 {v(T3)}, {L3_TAB}, {v(L16)}")
    for i in (14, 15, 11, 13, 10, 12) + tuple(range(8)):
        a(f"ds_read_b128 {v(tb+4*i,4)}, {v(T3)} offset:{1024*i}")
    srd(a, R_C, P_OUT, 2621440)
    a(f"s_mov_b32 s{s_have}, 0")
    a(f"v_mov_b32 {v(one2)}, 1.0"); a(f"v_mov_b32 {v(one2+1)}, 1.0")
    a(f"s_lshl_b32 s{S_PF}, s{S_N3}, 2")
    a(f"s_add_u32 s{S_PF}, s{S_PF}, s{S_Q3}")
    a(f"s_lshl_b32 s{S_PO}, s{S_PF}, 3")
    a(f"s_add_u32 s{S_PO}, s{S_PO}, s{S_W}")
    a(f"s_mul_i32 s{S_PO}, s{S_PO}, 160")
    a(f"s_add_u32 s{S_PO}, s{S_PO}, {WS_P}")
    a(f"s_lshl_b32 s{S_PF}, s{S_PF}, 8")
    a(f"s_add_u32 s{S_PF}, s{S_PF}, {FL_P}")
    l_nv, l_hv = a.newlabel("L_nv"), a.newlabel("L_hv")
    a(f"s_cmp_lt_u32 s{S_W}, 4")
    a(f"s_cbranch_scc1 {l_nv}")
    a(f"s_cmp_lg_u32 s{S_HV}, 0")
    a(f"s_cbranch_scc1 {l_nv}")
    a(f"s_lshl_b32 s{s_t+2}, s{S_N3}, 9")
    a(f"s_add_u32 s{s_t+2}, s{s_t+2}, {FL_V}")
    poll(a, f"s{s_t+2}", 64, s_t, depth=1, sleep=int(os.environ.get("VSLEEP", "0")) or None)
    stamp(a, 8, 7)
    vb_dma(a, s_t)
    a.label(l_nv)
    a("s_waitcnt lgkmcnt(10)")
    for i in (8, 9):
        a(f"ds_read_b128 {v(tb+4*i,4)}, {v(T3)} offset:{1024*i}")
    for i in range(2):
        a(f"ds_read_b128 {v(F_GF+4*i,4)}, {v(L16)} offset:{L3_GF + 1024*i}")
    for t in range(2):
        for r in range(4):
            a(f"v_xor_b32 {v(nsn+4*t+r)}, 0x80000000, {v(TW[2*t+1]+r)}")
    for k in range(3):
        a(f"s_add_u32 s{s_t}, s{S_W}, {8*k}")
        a(f"s_min_u32 s{s_t}, s{s_t}, 20")
        a(f"s_cmp_ge_u32 s{s_t}, 12")
        a(f"s_cselect_b32 s{s_t+1}, {L3_VB1 - L3_VB0 - 384}, 0")
        a(f"s_lshl_b32 s{s_t}, s{s_t}, 5")
        a(f"s_add_u32 s{s_t+1}, s{s_t+1}, s{s_t}")
        a(f"s_add_u32 s{s_t+1}, s{s_t+1}, {L3_VB0}")
        a(f"s_and_b32 s{s_t+2}, s{s_t+1}, 0x60")
        a(f"s_andn2_b32 s{s_t+1}, s{s_t+1}, 0x60")
        a(f"v_xor_b32 {v(F_RA[k])}, s{s_t+2}, {v(lc+2)}")
        a(f"v_add_u32 {v(F_RA[k])}, s{s_t+1}, {v(F_RA[k])}")
        a(f"s_lshl_b32 s{s_t}, s{s_t}, 1")
        a(f"s_add_u32 s{s_t}, s{s_t}, {L3_UX}")
        if k == 2:
            a(f"s_cmp_ge_u32 s{S_W}, 4")
            a(f"s_cselect_b64 vcc, -1, 0")
            a(f"v_cndmask_b32 {v(lc+3)}, {v(lc+3)}, {v(lc+4)}, vcc")
        a(f"v_add_u32 {v(F_UA[k])}, s{s_t}, {v(lc+3)}")
    a(f"s_mul_i32 s{s_t}, s{S_W}, {UP}")
    a(f"s_add_u32 s{s_t}, s{s_t}, {L3_UX}")
    a(f"v_add_u32 {v(F_UB0)}, s{s_t}, {v(lc+5)}")
    a(f"s_add_u32 s{s_t}, s{s_t}, {260*4}")
    a(f"v_sub_u32 {v(F_UB1)}, s{s_t}, {v(lc+5)}")
    a(f"s_lshl_b32 s{s_t}, s{S_W}, 11")
    a(f"s_add_u32 s{s_t}, s{s_t}, {L3_SX}")
    a(f"v_add_u32 {v(F_SWR)}, s{s_t}, {v(lc+6)}")
    a(f"v_add_u32 {v(F_SR0)}, s{s_t}, {v(L16)}")
    a(f"v_add_u32 {v(F_SR1)}, s{s_t}, {v(F_L4)}")
    stamp(a, 2, 8)
    a("s_waitcnt vmcnt(0)")
    stamp(a, 3, 8)
    l_nf = a.newlabel("L_nf")
    a(f"s_cmp_eq_u32 s{S_PJ}, 0")
    a(f"s_cbranch_scc1 {l_nf}")
    push_tag(a, S_FLAG, 8, 8, "fast")
    a.label(l_nf)

    def unpack(dst, A_, B_):
        for i in range(5):
            emit(a, unpack_l(dst + 2*i, A_ + i if i < 4 else B_))
    unpack(o, F_BA, F_BB)
    unpack(xx, F_XA, F_XB)
    vq = Pool("v", 8, 88)
    vf = [[vq.get(4, 4) for ks in range(2)] for k in range(3)]
    dd = [vq.get(4, 4) for k in range(4)]
    tmp = vq.get(4, 4)
    PA = [vq.get(4, 4) for _ in range(3)]; PB = [vq.get() for _ in range(3)]
    w_ = vq.get(10, 2); sf = vf[1][0]

    def load_p():
        for k in range(3):
            a(f"s_add_u32 s{s_t}, s{S_PO}, {k*2621440}")
            a(f"buffer_load_dwordx4 {v(PA[k],4)}, {v(F_PA)}, {s(R_WS,4)}, s{s_t} offen {SC}")
            a(f"buffer_load_dword {v(PB[k])}, {v(F_PB)}, {s(R_WS,4)}, s{s_t} offen {SC}")

    def look():
        a(f"buffer_load_dwordx2 {v(F_PFL,2)}, {v(F_PFA)}, {s(R_WS,4)}, s{S_PF} offen {SC}")

    def try_p(last=False):
        l_d, l_no, l_again = a.newlabel("L_tp"), a.newlabel("L_tn"), a.newlabel("L_ta")
        a(f"s_cmp_lg_u32 s{s_have}, 0")
        a(f"s_cbranch_scc1 {l_d}")
        if last:
            a(f"s_mov_b32 s{s_t+1}, 0x40000")
            a.label(l_again)
        a("s_waitcnt vmcnt(0)")
        a(f"v_cmp_ne_u64 vcc, s[{S_E}:{S_E+1}], {v(F_PFL,2)}")
        a(f"s_cbranch_vccz {l_no}")
        if last:
            a(f"s_sleep {os.environ.get('PSLEEP', '2')}")
        look()
        if last:
            a(f"s_sub_u32 s{s_t+1}, s{s_t+1}, 1")
            a(f"s_cbranch_scc0 {l_again}")
        else:
            a(f"s_branch {l_d}")
        a.label(l_no)
        load_p()
        a(f"s_mov_b32 s{s_have}, 1")
        a.label(l_d)

    a("s_waitcnt lgkmcnt(0)")
    a("s_barrier")
    stamp(a, 4, 8)
    look()
    for k in range(3):
        for ks in range(2):
            for h in range(2):
                a(f"ds_read_b64_tr_b16 {v(vf[k][ks]+2*h,2)}, {v(F_RA[k])} offset:{(32*ks+16*h)*384}")
    for k in range(3):
        a(f"s_waitcnt lgkmcnt({8-4*k})")
        mfma(a, dd[k], F_GF, vf[k][0], "0")
        mfma(a, dd[k], F_GF + 4, vf[k][1])
    for k in range(3):
        a(cvt_s(dd[k], dd[k], dd[k]+1))
        a(cvt_s(dd[k]+1, dd[k]+2, dd[k]+3))
        a(f"ds_write_b32 {v(F_UA[k])}, {v(dd[k])}")
        a(f"ds_write_b32 {v(F_UA[k])}, {v(dd[k]+1)} offset:{UP}")
    a("s_waitcnt lgkmcnt(0)")
    a("s_barrier")
    stamp(a, 5, 8)
    uf = vf[0]
    a(f"ds_read2_b32 {v(uf[0],2)}, {v(F_UB0)} offset0:0 offset1:20")
    a(f"ds_read2_b32 {v(uf[0]+2,2)}, {v(F_UB0)} offset0:40 offset1:60")
    a(f"ds_read2_b32 {v(uf[1],2)}, {v(F_UB1)} offset0:60 offset1:40")
    a(f"ds_read2_b32 {v(uf[1]+2,2)}, {v(F_UB1)} offset0:20 offset1:0")
    try_p()
    a("s_waitcnt lgkmcnt(0)")
    for t in range(2):
        for u in range(2):
            for op in range(2):
                mfma(a, dd[2*t+op], uf[u], G32[4*t+2*op+u], "0" if u == 0 else None)
    tf = vf[2]
    for t in range(2):
        emit(a, twiddle_l(dd[2*t], dd[2*t+1], TW[2*t], TW[2*t+1], tmp, nsn + 4*t))
        for pl in range(2):
            for h in range(2):
                a(cvt_s(tf[t]+2*pl+h, dd[2*t+pl]+2*h, dd[2*t+pl]+2*h+1))
        for tp in range(2):
            mfma(a, dd[2*t+tp], tf[t], G20[tp], "0")
    for t in range(2):
        for tp in range(2):
            r = dd[2*t+tp]
            a(cvt_s(r, r, r+1))
            a(cvt_s(r+1, r+2, r+3))
            a(f"ds_write_b64 {v(F_SWR)}, {v(r,2)} offset:{tp*1024+t*32}")
    stamp(a, 6, 8)
    try_p(True)
    a("s_waitcnt lgkmcnt(0)")
    a(f"ds_read_b128 {v(F_BA,4)}, {v(F_SR0)}")
    a(f"ds_read_b32 {v(F_BB)}, {v(F_SR1)} offset:1024")
    stamp(a, 7, 8)
    for k in range(3):
        a(f"s_waitcnt vmcnt({4-2*k})")
        unpack(w_, PA[k], PB[k])
        for i in range(5):
            a(f"v_pk_add_f32 {v(o+2*i,2)}, {v(o+2*i,2)}, {v(w_+2*i,2)}")
    for i in range(10):
        a(f"v_mul_f32 {v(w_+i)}, {hex(f2u(-np.log2(np.e)))}, {v(o+i)}")
    for i in range(10):
        a(f"v_exp_f32 {v(w_+i)}, {v(w_+i)}")
    a("s_waitcnt lgkmcnt(0)")
    unpack(sf, F_BA, F_BB)
    for i in range(5):
        a(f"v_pk_add_f32 {v(w_+2*i,2)}, {v(w_+2*i,2)}, {v(one2,2)}")
    for i in range(5):
        a(f"v_pk_mul_f32 {v(o+2*i,2)}, {v(o+2*i,2)}, {v(sf+2*i,2)}")
    for i in range(10):
        a(f"v_rcp_f32 {v(w_+i)}, {v(w_+i)}")
    for i in range(5):
        a(f"v_pk_fma_f32 {v(o+2*i,2)}, {v(o+2*i,2)}, {v(w_+2*i,2)}, {v(xx+2*i,2)}")
    if os.environ.get("THR"):
        stamp(a, 9, 0)
        a("s_waitcnt lgkmcnt(0)")
        a(f"s_sub_u32 s3, s{ST0+18}, s{ST0}")
        a(f"s_cmp_gt_u32 s3, {os.environ['THR']}")
        a("s_cselect_b32 s3, s3, 0")
        a(f"v_cvt_f32_u32 {v(T0)}, s3")
        a(f"v_add_f32 {v(o)}, {v(o)}, {v(T0)}")
    if "enc" in OPT:
        stamp(a, 9, 0)
        a("s_waitcnt lgkmcnt(0)")
        for i in range(8):
            k = i + 1 if i < 7 else 9
            a(f"s_sub_u32 s3, s{ST0+2*k}, s{ST0}")
            a(f"s_lshr_b32 s3, s3, 2")
            a(f"v_lshrrev_b32 {v(T0)}, v0, s3") if False else None
            a(f"v_mov_b32 {v(T0)}, s3")
            a(f"v_lshrrev_b32 {v(T0)}, {v(I16)}, {v(T0)}")
            a(f"v_and_b32 {v(T0)}, 1, {v(T0)}")
            a(f"v_cvt_f32_u32 {v(T0)}, {v(T0)}")
            a(f"v_mul_f32 {v(T0)}, {hex(f2u(0.004))}, {v(T0)}")
            a(f"v_add_f32 {v(o+i)}, {v(o+i)}, {v(T0)}")
    for i in range(5):
        a(cvt_s(PA[1] + i if i < 4 else PB[1], o+2*i, o+2*i+1))
    stamp(a, 8, 8)
    fl = os.environ.get("OUTSC", "")
    a(f"buffer_store_dwordx4 {v(PA[1],4)}, {v(L16)}, {s(R_C,4)}, s{S_ROW} offen {fl}")
    a(f"buffer_store_dword {v(PB[1])}, {v(F_L4)}, {s(R_C,4)}, s{S_ROW} offen offset:1024 {fl}")


def build():
    a = Asm()
    a("s_cmpk_ge_u32 s2, 0x100")
    a("s_cbranch_scc1 L_exit")
    a("s_load_dwordx16 s[4:19], s[0:1], 0")
    a("s_load_dwordx2 s[20:21], s[0:1], 64")
    a("s_load_dwordx2 s[24:25], s[0:1], 80")
    stamp_begin(a)
    a(f"s_getpc_b64 s[{R_TAB}:{R_TAB+1}]")
    a(f"s_add_u32 s{R_TAB}, s{R_TAB}, ctab@rel32@lo+4")
    a(f"s_addc_u32 s{R_TAB+1}, s{R_TAB+1}, ctab@rel32@hi+12")
    a(f"s_mov_b32 s{R_TAB+2}, {TAB_END}")
    a(f"s_mov_b32 s{R_TAB+3}, 0x20000")
    a("v_lshrrev_b32 v1, 6, v0")
    a(f"v_readfirstlane_b32 s{S_W}, v1")
    a("v_and_b32 v0, 63, v0")
    a(f"v_and_b32 {v(I16)}, 15, v0")
    a(f"v_lshrrev_b32 {v(G)}, 4, v0")
    a(f"v_lshlrev_b32 {v(L16)}, 4, v0")
    t = S_T
    a(f"s_and_b32 s{t}, s2, 7")
    a(f"s_lshr_b32 s{t+1}, s2, 3")
    a(f"s_lshl_b32 s{S_N3}, s{t}, 3")
    a(f"s_add_u32 s{S_IDX}, s{S_N3}, s{t+1}")
    a(f"s_lshr_b32 s{t+2}, s{t+1}, 2")
    a(f"s_add_u32 s{S_N3}, s{S_N3}, s{t+2}")
    a(f"s_and_b32 s{S_Q3}, s{t+1}, 3")
    a(f"s_sub_u32 s{t+2}, s{t+2}, 2")
    a(f"s_lshl_b32 s{S_RB}, s{t}, 1")
    a(f"s_sub_u32 s{S_KT}, s{t+2}, 3")
    a(f"s_cselect_b32 s{S_KT}, s{t+2}, s{S_KT}")
    a(f"s_cselect_b32 s{t+3}, 0, 1")
    a(f"s_add_u32 s{S_RB}, s{S_RB}, s{t+3}")
    a(f"s_mov_b32 s{S_SUB}, s{S_Q3}")
    a(f"s_mul_i32 s{S_FLAG}, s{S_RB}, 3")
    a(f"s_add_u32 s{S_FLAG}, s{S_FLAG}, s{S_KT}")
    a(f"s_lshl_b32 s{S_FLAG}, s{S_FLAG}, 2")
    a(f"s_add_u32 s{S_FLAG}, s{S_FLAG}, s{S_SUB}")
    a("s_waitcnt lgkmcnt(0)")
    srd(a, R_WS, P_WS, WS_END)
    a(f"s_cmp_ge_u32 s{t+1}, 8")
    a("s_cbranch_scc1 L_gemm")
    for _ in range(int(os.environ.get("SHIFT", "0"))):
        a("s_nop 0")
    fft_head(a)
    a("s_branch L_fft")
    a.label("L_gemm")
    a(f"s_cmp_lt_u32 s{S_W}, 4")
    a("s_cbranch_scc1 L_comp")
    gemm_loader(a, "L_f3")
    a.label("L_comp")
    gemm_compute(a, "L_f3")
    a.label("L_fft")
    fft_role(a)
    f3(a, "L_f3")
    stamp_end(a)
    a.label("L_exit")
    a("s_endpgm")
    a.resolve()
    nv, ns = a.max_regs()
    print("instr", len(a.ins), "vgpr", nv, "sgpr", ns, file=sys.stderr)
    kn = NAME + "_kernel"
    out = "; generated by gen/gen5.py (hand-written generator)\n"
    out += "; @launch grid=(256,1,1) block=(512,1,1) lds=163840\n"
    out += '.amdgcn_target "amdgcn-amd-amdhsa--gfx950"\n.text\n'
    out += f".globl {kn}\n.p2align 8\n.type {kn},@function\n{kn}:\n" + a.text()
    out += f'''.section .rodata,"a"
.p2align 6
.amdhsa_kernel {kn}
  .amdhsa_next_free_vgpr 256
  .amdhsa_next_free_sgpr {ns}
  .amdhsa_accum_offset 256
  .amdhsa_group_segment_fixed_size 0
  .amdhsa_kernarg_size 88
  .amdhsa_user_sgpr_count 2
  .amdhsa_user_sgpr_kernarg_segment_ptr 1
  .amdhsa_system_sgpr_workgroup_id_x 1
  .amdhsa_float_denorm_mode_32 3
.end_amdhsa_kernel
'''
    out += tables.as_asm("ctab", tables.tab_f1() + tables.tab_f2()[:16384] + tables.tab_f3(384))
    return out


if __name__ == "__main__":
    path = sys.argv[1] if len(sys.argv) > 1 else f"cdna_kernels/{NAME}.s"
    open(path, "w").write(build())
```

```python
import sys, struct, os
import numpy as np
from asmlib import Asm, Pool, v, s
import tables

NAME = "recurrent_scan__spectral_gfnet__mixer_channel_mlp__prompt"
STAMP = int(os.environ.get("STAMP", "0"))
OPT = set(os.environ.get("OPT", "").split(","))

WS_H = 0
WS_ZP = WS_H + 2048 * 1536 * 2
WS_VP = WS_ZP + 64 * 45056
WS_P = WS_VP + 64 * 45056
WS_ST = WS_P + 3 * 2621440
WS_EP = WS_ST + 2048 * 16
WS_FL = WS_EP + 128
FL_H = WS_FL
FL_M = FL_H + 192 * 128
FL_Z = FL_M + 2048
FL_V = FL_Z + 64 * 512
FL_P = FL_V + 64 * 512
WS_END = FL_P + 256 * 256
WS_DBG = 24 << 20
TAB_F1, TAB_F2, TAB_F3, TAB_END = 0, 16384, 32768, 49152
WSOFF = (192 << 20) if "wsend" in OPT else 0
SC = "sc1"
SCG = "" if "l2x" in OPT else "sc1"
SGL = os.environ.get("SGL", "sc1")
SGP = os.environ.get("SGP", "sc1")
SCL = os.environ.get("SCL", "sc1")

def f2u(x):
    return struct.unpack("<I", struct.pack("<f", x))[0]

P_X, P_WR, P_WI, P_W1, P_B1, P_W2, P_B2, P_OUT, P_DBG, P_WS = 4, 6, 8, 12, 14, 16, 18, 20, 22, 24
R_WS, R_TAB, R_A, R_B, R_C, R_D, R_DBG = 28, 32, 36, 40, 44, 48, 52
S_W = 26
S_RB, S_SUB, S_KT, S_IDX, S_N3, S_Q3, S_FLAG = 56, 57, 58, 59, 60, 61, 62
S_F2 = 63
S_E = 10
S_PJ = 27
STAG = int(os.environ.get("STAG", "5"))
DEPTH = int(os.environ.get("DEPTH", "3"))
S_T = 64
NSTAMP = 10
ST0 = 80


def stamp(a, i, mode=None):
    if (mode is None and STAMP and (STAMP <= 2 or i in (0, NSTAMP - 1))) or (mode is not None and STAMP == mode):
        a(f"s_memtime s[{ST0+2*i}:{ST0+2*i+1}]")


def stamp3(a, i):
    if STAMP == 1:
        stamp(a, i)


def stamp_begin(a):
    if STAMP:
        for i in range(ST0 + 2, ST0 + 2 * NSTAMP):
            a(f"s_mov_b32 s{i}, 0")
        a("s_memrealtime s[100:101]")
        stamp(a, 0)


def stamp_end(a):
    if STAMP:
        a("s_waitcnt vmcnt(0)")
        stamp(a, NSTAMP - 1)
        a("s_memrealtime s[64:65]")
        a("s_waitcnt lgkmcnt(0)")
        for i in range(NSTAMP):
            a(f"v_mov_b32 v{8+i}, s{ST0+2*i}")
        a(f"v_mov_b32 v{8+NSTAMP}, s100")
        a(f"v_mov_b32 v{9+NSTAMP}, s64")
        a("s_lshl_b32 s66, s2, 3")
        a(f"s_add_u32 s66, s66, s{S_W}")
        a("s_lshl_b32 s66, s66, 6")
        a(f"s_add_u32 s66, s66, {WS_DBG}")
        a(f"s_mov_b32 s{R_WS+2}, 0x2000000")
        a("v_mov_b32 v1, 0")
        a("s_mov_b64 exec, 1")
        for i in range(3):
            a(f"buffer_store_dwordx4 v[{8+4*i}:{11+4*i}], v1, {s(R_WS,4)}, s66 offen offset:{16*i}")


def srd(a, dst, ptr, size):
    a(f"s_mov_b32 s{dst}, s{ptr}")
    a(f"s_mov_b32 s{dst+1}, s{ptr+1}")
    a(f"s_mov_b32 s{dst+2}, {size}")
    a(f"s_mov_b32 s{dst+3}, 0x20000")


def dma(a, voff, srd_, soff, extra=""):
    a(f"buffer_load_dwordx4 {v(voff)}, {s(srd_,4)}, {soff} offen {extra + ' ' if extra else ''}lds")


def bf16r(a, dst, src):
    a(f"v_cvt_pk_bf16_f32 {v(dst)}, {v(src)}, {v(src)}")
    a(f"v_lshlrev_b32 {v(dst)}, 16, {v(dst)}")


def mfma_s(d, A, B, c=None):
    return f"v_mfma_f32_16x16x32_bf16 {v(d,4)}, {v(A,4)}, {v(B,4)}, {v(d,4) if c is None else c}"


def mfma(a, d, A, B, c=None):
    a(mfma_s(d, A, B, c))


def divmod_const(a, q, r, x, c):
    m = (1 << 18) // c + 1
    for t in range(2048):
        assert (t * m) >> 18 == t // c
    a(f"v_mul_u32_u24 {v(q)}, {m}, {v(x)}")
    a(f"v_lshrrev_b32 {v(q)}, 18, {v(q)}")
    a(f"v_mul_u32_u24 {v(r)}, {c}, {v(q)}")
    a(f"v_sub_u32 {v(r)}, {v(x)}, {v(r)}")


def interleave(a, main, fill, per=1):
    fi = 0
    for m in main:
        a(m)
        for _ in range(per):
            if fi < len(fill):
                a(fill[fi]); fi += 1
    while fi < len(fill):
        a(fill[fi]); fi += 1


def weave(a, A, B):
    na, nb = len(A), len(B)
    ia = ib = 0
    while ia < na or ib < nb:
        if ib >= nb or (ia < na and ia * nb <= ib * na):
            a(A[ia]); ia += 1
        else:
            a(B[ib]); ib += 1


class VM:
    def __init__(self, a):
        self.a, self.q = a, []
    def op(self, tag, n=1):
        self.q += [tag] * n
    def wait(self, *tags):
        last = max([i for i, t in enumerate(self.q) if t in tags], default=-1)
        if last < 0:
            return
        n = len(self.q) - 1 - last
        assert n < 64
        self.a(f"s_waitcnt vmcnt({n})")
        self.q = self.q[last + 1:]
    def drain(self):
        self.a("s_waitcnt vmcnt(0)")
        self.q = []


def nonce(a):
    a(f"s_mul_i32 s{S_E}, s{S_E}, 1664525")
    a(f"s_add_u32 s{S_E}, s{S_E}, 1013904223")
    a(f"s_mul_i32 s{S_E+1}, s{S_E+1}, 22695477")
    a(f"s_add_u32 s{S_E+1}, s{S_E+1}, 1")


def advance_epoch(a, vt, s_t):
    for i in range(3):
        poll(a, FL_M + 512 * i, 64, s_t, sleep=8)
    a(f"v_mov_b32 {v(vt)}, s{S_E}")
    a(f"v_mov_b32 {v(vt+1)}, s{S_E+1}")
    a(f"v_mov_b32 {v(vt+2)}, 0")
    a(f"s_mov_b32 s{S_F2}, {WS_EP}")
    a("s_mov_b64 exec, 1")
    a(f"buffer_store_dwordx2 {v(vt,2)}, {v(vt+2)}, {s(R_WS,4)}, s{S_F2} offen {SC}")
    a("s_mov_b64 exec, -1")


def push_flag(a, s_base, nrec, shift, vt, sc=SC):
    a(f"v_mov_b32 {v(vt)}, s{S_E}")
    a(f"v_mov_b32 {v(vt+1)}, s{S_E+1}")
    a(f"v_lshlrev_b32 {v(vt+2)}, {shift}, v0")
    if nrec < 64:
        a(f"s_mov_b64 exec, {(1 << nrec) - 1}")
    a(f"buffer_store_dwordx2 {v(vt,2)}, {v(vt+2)}, {s(R_WS,4)}, s{s_base} offen {sc}")
    if nrec < 64:
        a("s_mov_b64 exec, -1")


V_POLL = 248


def poll_addr(a, base, ntag, s_t):
    ad = V_POLL + 6
    a(f"v_min_u32 {v(ad)}, {ntag-1}, v0")
    a(f"v_lshlrev_b32 {v(ad)}, 3, {v(ad)}")
    a(f"s_mov_b32 s{s_t+1}, {base}")


def poll(a, base, ntag, s_t, sleep=None, depth=None, sc=SC):
    lp, done = a.newlabel("L_poll"), a.newlabel("L_pd")
    ad = V_POLL + 6
    poll_addr(a, base, ntag, s_t)
    ld = lambda i: a(f"buffer_load_dwordx2 {v(V_POLL+2*i,2)}, {v(ad)}, {s(R_WS,4)}, s{s_t+1} offen {sc}")
    a(f"s_mov_b32 s{s_t}, 0x20000")
    depth = 1 if sleep else (depth or DEPTH)
    for i in range(depth - 1):
        ld(i)
        a(f"s_sleep {STAG}")
    a.label(lp)
    for i in range(depth):
        ld((i + depth - 1) % depth)
        a(f"s_waitcnt vmcnt({depth-1})")
        a(f"v_cmp_ne_u64 vcc, s[{S_E}:{S_E+1}], {v(V_POLL+2*i,2)}")
        a(f"s_cbranch_vccz {done}")
        if sleep:
            a(f"s_sleep {sleep}")
    a(f"s_sub_u32 s{s_t}, s{s_t}, 1")
    a(f"s_cbranch_scc0 {lp}")
    a.label(done)


LX = 0
LW = 65536
WSL = 20480
L_STAT = 147456
L_CS = L_STAT + 2048
L_STG = 102400
L3_VB, L3_TAB, L3_UX, L3_SX = 0, 147456, 61440, 61440 + 8 * 1376


def gemm_compute(a, l_f3):
    vp = Pool("v", 1, 248)
    i16, g, r_ = [vp.get() for _ in range(3)]
    t0 = vp.get(4, 2); t1 = t0 + 1; cq = vp.get(); cnt = vp.get(2, 2)
    s_wm, s_wn, s_dx, s_dw, s_cnt, s_t = S_T, S_T + 1, S_T + 2, S_T + 3, S_T + 4, S_T + 5
    s_cb = S_T + 10
    if "prio" in OPT:
        a("s_setprio 2")
    a(f"s_and_b32 s{s_wm}, s{S_W}, 1")
    a(f"s_lshr_b32 s{s_wn}, s{S_W}, 1")
    a(f"s_lshl_b32 s{s_cb}, s{S_KT}, 2")
    a(f"s_add_u32 s{s_cb}, s{s_cb}, s{S_SUB}")
    a(f"v_and_b32 {v(i16)}, 15, v0")
    a(f"v_lshrrev_b32 {v(g)}, 4, v0")
    acc = [[vp.get(4, 4) for mm in range(4)] for tt in range(5)]
    xf = [[vp.get(4, 4) for mm in range(4)] for st in range(2)]
    wf = [[vp.get(4, 4) for tt in range(5)] for st in range(2)]
    cs = acc[4]
    ones = wf[0][4]
    b1r = [vp.get(2, 2) for tt in range(4)]
    srd(a, R_C, P_B1, 3072)
    a(f"s_lshl_b32 s{s_t}, s{s_cb}, 8")
    a(f"s_lshl_b32 s{s_t+1}, s{s_wn}, 7")
    a(f"s_add_u32 s{s_t}, s{s_t}, s{s_t+1}")
    a(f"s_lshl_b32 s{s_t+1}, s{s_wm}, 6")
    a(f"v_lshlrev_b32 {v(t0)}, 3, {v(g)}")
    a(f"v_add_u32 {v(t0)}, s{s_t+1}, {v(t0)}")
    a(f"v_xor_b32 {v(t1)}, 64, {v(t0)}")
    for tt in range(4):
        a(f"buffer_load_dwordx2 {v(b1r[tt],2)}, {v(t0 if tt < 2 else t1)}, {s(R_C,4)}, s{s_t} offen offset:{32*(tt&1)}")
    if "nocode" not in OPT:
        a(f"s_getpc_b64 s[{R_D}:{R_D+1}]")
        a(f"s_add_u32 s{R_D}, s{R_D}, {NAME}_kernel@rel32@lo+4")
        a(f"s_addc_u32 s{R_D+1}, s{R_D+1}, {NAME}_kernel@rel32@hi+12")
        a(f"s_mov_b32 s{R_D+2}, L_exit-{NAME}_kernel")
        a(f"s_mov_b32 s{R_D+3}, 0x20000")
        a(f"s_lshr_b32 s{s_t}, s2, 3")
        a(f"s_and_b32 s{s_t}, s{s_t}, 7")
        a(f"s_lshl_b32 s{s_t}, s{s_t}, 2")
        a(f"s_add_u32 s{s_t}, s{s_t}, s{S_W}")
        a(f"s_lshl_b32 s{s_t}, s{s_t}, 10")
        a(f"v_lshlrev_b32 {v(t0)}, 4, v0")
        a(f"buffer_load_dwordx4 {v(V_POLL,4)}, {v(t0)}, {s(R_D,4)}, s{s_t} offen")
        a(f"s_and_b32 s{s_t}, s{s_t}, 0x3fff")
        a(f"s_add_u32 s{s_t}, s{s_t}, {TAB_F3}")
        a(f"buffer_load_dwordx4 {v(V_POLL,4)}, {v(t0)}, {s(R_TAB,4)}, s{s_t} offen")
    xa = [vp.get(), vp.get()]
    a(f"v_and_b32 {v(t0)}, 7, v0")
    a(f"v_xor_b32 {v(t0)}, {v(t0)}, {v(g)}")
    a(f"v_lshlrev_b32 {v(t0)}, 4, {v(t0)}")
    a(f"v_lshl_add_u32 {v(t0)}, {v(i16)}, 7, {v(t0)}")
    a(f"s_lshl_b32 s{s_t}, s{s_wm}, 13")
    a(f"v_add_u32 {v(xa[0])}, s{s_t}, {v(t0)}")
    a(f"v_xor_b32 {v(xa[1])}, 64, {v(xa[0])}")
    wa = [vp.get() for _ in range(4)]
    a(f"v_lshrrev_b32 {v(r_)}, 2, {v(i16)}")
    a(f"v_and_b32 {v(cq)}, 3, v0")
    a(f"v_lshl_add_u32 {v(t0)}, {v(g)}, 3, {v(r_)}")
    a(f"v_lshlrev_b32 {v(t0)}, 8, {v(t0)}")
    a(f"v_lshl_add_u32 {v(t0)}, {v(cq)}, 3, {v(t0)}")
    a(f"v_add_u32 {v(t0)}, {LW}, {v(t0)}")
    a(f"v_and_b32 {v(t1)}, 1, {v(g)}")
    a(f"v_lshl_or_b32 {v(t1)}, {v(t1)}, 2, {v(r_)}")
    a(f"s_lshl_b32 s{s_t}, s{s_wn}, 2")
    a(f"s_lshl_b32 s{s_t+1}, s{s_wm}, 1")
    a(f"s_or_b32 s{s_t}, s{s_t}, s{s_t+1}")
    a(f"v_xor_b32 {v(t1)}, s{s_t}, {v(t1)}")
    for tt in range(4):
        a(f"v_xor_b32 {v(wa[tt])}, {tt}, {v(t1)}")
        a(f"v_lshl_add_u32 {v(wa[tt])}, {v(wa[tt])}, 5, {v(t0)}")
    xb = vp.get(); wb = [vp.get(), vp.get()]; l16 = vp.get()
    a(f"v_lshlrev_b32 {v(l16)}, 4, v0")
    a(f"s_lshl_b32 s{s_t}, s{s_wm}, 12")
    a(f"s_add_u32 s{s_t}, s{s_t}, {LX + 2*16384}")
    a(f"v_add_u32 {v(xb)}, s{s_t}, {v(l16)}")
    a(f"v_lshrrev_b32 {v(r_)}, 2, v0")
    a(f"v_mul_u32_u24 {v(t0)}, 320, {v(r_)}")
    a(f"v_lshl_add_u32 {v(t0)}, {v(cq)}, 3, {v(t0)}")
    a(f"v_add_u32 {v(t0)}, {LW + 2*WSL}, {v(t0)}")
    a(f"v_and_b32 {v(t1)}, 1, {v(g)}")
    a(f"s_mul_i32 s{s_t}, s{s_wn}, 5")
    a(f"v_xor_b32 {v(wb[0])}, s{s_t}, {v(t1)}")
    a(f"v_lshl_add_u32 {v(wb[0])}, {v(wb[0])}, 5, {v(t0)}")
    a(f"s_add_u32 s{s_t}, s{s_t}, 1")
    a(f"v_xor_b32 {v(wb[1])}, s{s_t}, {v(t1)}")
    a(f"v_lshl_add_u32 {v(wb[1])}, {v(wb[1])}, 5, {v(t0)}")
    SP = 176
    sw = vp.get(); srd_a = [vp.get() for _ in range(5)]
    a(f"s_mul_i32 s{s_t}, s{S_W}, {64*SP}")
    a(f"s_add_u32 s{s_t}, s{s_t}, {L_STG}")
    a(f"v_mul_u32_u24 {v(sw)}, {SP}, {v(i16)}")
    a(f"v_lshl_add_u32 {v(sw)}, {v(g)}, 3, {v(sw)}")
    a(f"v_add_u32 {v(sw)}, s{s_t}, {v(sw)}")
    for ii in range(5):
        a(f"v_add_u32 {v(r_)}, {64*ii}, v0")
        divmod_const(a, t0, t1, r_, 10)
        a(f"v_mul_u32_u24 {v(t0)}, {SP}, {v(t0)}")
        a(f"v_lshl_add_u32 {v(t0)}, {v(t1)}, 4, {v(t0)}")
        a(f"v_add_u32 {v(srd_a[ii])}, s{s_t}, {v(t0)}")
    for tt in range(5):
        for mm in range(4):
            if tt < 4 or mm < 2:
                for r in range(0, 4, 2):
                    a(f"v_pk_mul_f32 {v(acc[tt][mm]+r,2)}, 0, 0") if False else (a(f"v_mov_b32 {v(acc[tt][mm]+r)}, 0"), a(f"v_mov_b32 {v(acc[tt][mm]+r+1)}, 0"))
    for r in range(4):
        a(f"v_mov_b32 {v(ones+r)}, 0x3f803f80")

    def loop(which):
        NT = 4 if which == 1 else 5
        NCH = 10 if which == 1 else 8
        if which == 1:
            xrd = lambda st_, ks, mm: f"ds_read_b128 {v(xf[st_][mm],4)}, {v(xa[ks])} offset:{mm*2048}"
            wrd = lambda st_, ks, tt, h: f"ds_read_b64_tr_b16 {v(wf[st_][tt]+2*h,2)}, {v(wa[tt])} offset:{ks*8192+h*1024}"
            ax, aw = xa, wa
        else:
            xrd = lambda st_, ks, mm: f"ds_read_b128 {v(xf[st_][mm],4)}, {v(xb)} offset:{ks*8192+mm*1024}"
            wrd = lambda st_, ks, tt, h: f"ds_read_b64_tr_b16 {v(wf[st_][tt]+2*h,2)}, {v(wb[tt&1])} offset:{(32*ks+16*h)*320+(tt>>1)*64}"
            ax, aw = [xb], wb

        def reads(st_, ks):
            out = []
            for i in range(max(4, NT)):
                if i < NT:
                    out += [wrd(st_, ks, i, 0), wrd(st_, ks, i, 1)]
                if i < 4:
                    out.append(xrd(st_, ks, i))
            return out

        def mfmas(st_, c=None):
            out = []
            for tt in range(NT):
                for mm in range(4):
                    out.append(mfma_s(acc[tt][mm], wf[st_][tt], xf[st_][mm], c))
                if which == 1 and tt < 2:
                    out.append(mfma_s(cs[tt], wf[st_][tt], ones))
            return out
        c0 = 0 if which == 1 else 10
        a(f"s_mov_b32 s{s_cnt}, {c0}")
        a("s_barrier")
        stamp(a, 1 if which == 1 else 4)
        for x in reads(0, 0):
            a(x)
        l_loop, l_last, l_mid = a.newlabel("L_gl"), a.newlabel("L_gx"), a.newlabel("L_gm")
        per = 2 if "per2" in OPT else 1
        s_end = S_T + 11
        if which == 2:
            a(f"s_mov_b32 s{s_end}, 12")
            a(f"s_add_u32 s{s_cnt}, s{s_cnt}, 1")
            a("s_waitcnt lgkmcnt(0)")
            adv = [f"v_add_u32 {v(r)}, 16384, {v(r)}" for r in ax] + [f"v_add_u32 {v(r)}, {WSL}, {v(r)}" for r in aw]
            interleave(a, mfmas(0, "0"), reads(1, 1) + adv, per)
            a("s_waitcnt vmcnt(0)")
            a(f"s_branch {l_mid}")
        a.label(l_loop)
        a(f"s_add_u32 s{s_cnt}, s{s_cnt}, 1")
        a(f"s_and_b32 s{s_t}, s{s_cnt}, 3")
        a(f"s_cselect_b32 s{s_t}, 1, -3")
        a(f"s_lshl_b32 s{s_dx}, s{s_t}, 14")
        a(f"s_mul_i32 s{s_dw}, s{s_t}, {WSL}")
        a("s_waitcnt lgkmcnt(0)")
        adv = [f"v_add_u32 {v(r)}, s{s_dx}, {v(r)}" for r in ax] + [f"v_add_u32 {v(r)}, s{s_dw}, {v(r)}" for r in aw]
        interleave(a, mfmas(0), reads(1, 1) + adv, per)
        a.label(l_mid)
        a(f"s_cmp_eq_u32 s{s_cnt}, {c0 + NCH}" if which == 1 else f"s_cmp_eq_u32 s{s_cnt}, s{s_end}")
        a("s_waitcnt lgkmcnt(0)")
        if which == 1:
            a(f"s_cbranch_scc1 {l_last}")
            a("s_barrier")
        else:
            a("s_barrier")
            a(f"s_cbranch_scc1 {l_last}")
        interleave(a, mfmas(1), reads(0, 0), per)
        a(f"s_branch {l_loop}")
        a.label(l_last)
        if which == 1:
            load_epoch(a, S_T + 12)
        for x in mfmas(1):
            a(x)
        if which == 2:
            l_done = a.newlabel("L_gd")
            a(f"s_cmp_eq_u32 s{s_cnt}, 18")
            a(f"s_cbranch_scc1 {l_done}")
            a(f"s_mov_b32 s{s_end}, 18")
            a("s_barrier")
            for x in reads(0, 0):
                a(x)
            a(f"s_branch {l_loop}")
            a.label(l_done)

    loop(1)
    stamp(a, 2)
    a(f"s_lshl_b32 s{s_t}, s{s_wn}, 8")
    a(f"s_lshl_b32 s{s_t+1}, s{s_wm}, 7")
    a(f"s_add_u32 s{s_t}, s{s_t}, s{s_t+1}")
    a(f"s_add_u32 s{s_t}, s{s_t}, {L_CS}")
    a(f"v_lshlrev_b32 {v(t0)}, 4, {v(g)}")
    a(f"v_add_u32 {v(t0)}, s{s_t}, {v(t0)}")
    a(f"v_xor_b32 {v(t1)}, 128, {v(t0)}")
    st = [xf[0][mm] for mm in range(4)]
    sa = xa[0]; hw = xa[1]
    a(f"s_lshl_b32 s{s_t}, s{s_wm}, 10")
    a(f"v_lshlrev_b32 {v(sa)}, 4, {v(i16)}")
    a(f"v_add_u32 {v(sa)}, s{s_t}, {v(sa)}")
    sl_ = wa[1]
    a(f"v_add_u32 {v(sl_)}, {L_STAT}, {v(sa)}")
    b1f = [wf[0][tt] for tt in range(4)]
    a("s_waitcnt vmcnt(0)")
    for tt in range(4):
        for h in range(2):
            a(f"v_lshlrev_b32 {v(b1f[tt]+2*h)}, 16, {v(b1r[tt]+h)}")
            a(f"v_and_b32 {v(b1f[tt]+2*h+1)}, 0xffff0000, {v(b1r[tt]+h)}")
    a(f"ds_write_b128 {v(t0)}, {v(cs[0],4)}")
    a(f"ds_write_b128 {v(t0)}, {v(cs[1],4)} offset:64")
    kc = b1r[0]
    K0 = -2.0 * np.sqrt(2.0 / np.pi) * np.log2(np.e)
    for i in range(2):
        a(f"v_mov_b32 {v(b1r[0]+i)}, {hex(f2u(K0))}")
        a(f"v_mov_b32 {v(b1r[1]+i)}, {hex(f2u(K0*0.044715))}")
        a(f"v_mov_b32 {v(b1r[2]+i)}, 1.0")
    a(f"s_mul_i32 s{s_t}, s{S_RB}, {48*8192}")
    a(f"s_lshl_b32 s{s_t+1}, s{s_cb}, 15")
    a(f"s_add_u32 s{s_t}, s{s_t}, s{s_t+1}")
    a(f"s_lshl_b32 s{s_t+1}, s{s_wn}, 14")
    a(f"s_lshl_b32 s{s_t+2}, s{s_wm}, 12")
    a(f"s_add_u32 s{s_t+1}, s{s_t+1}, s{s_t+2}")
    a(f"s_lshl_b32 s{s_t+2}, s{s_wm}, 13")
    a(f"s_add_u32 s{s_t+1}, s{s_t+1}, s{s_t+2}")
    a(f"s_add_u32 s{s_t+2}, s{s_t}, s{s_t+1}")
    a(f"s_xor_b32 s{s_t+3}, s{s_t+1}, 8192")
    a(f"s_add_u32 s{s_t+3}, s{s_t}, s{s_t+3}")
    a(f"s_add_u32 s{s_t+1}, s{s_t+1}, {LX + 2*16384}")
    a(f"v_add_u32 {v(hw)}, s{s_t+1}, {v(l16)}")
    hw2 = wa[0]
    a(f"v_xor_b32 {v(hw2)}, 8192, {v(hw)}")
    a("s_waitcnt lgkmcnt(0)")
    a("s_barrier")
    nonce(a)
    a(f"ds_read_b128 {v(cs[2],4)}, {v(t1)}")
    a(f"ds_read_b128 {v(cs[3],4)}, {v(t1)} offset:64")
    for mm in range(4):
        a(f"ds_read_b128 {v(st[mm],4)}, {v(sl_)} offset:{mm*256}")
    a("s_waitcnt lgkmcnt(0)")
    l_chk, l_ok = a.newlabel("L_chk"), a.newlabel("L_ok")
    a(f"s_mov_b32 s{s_dx}, 0x40000")
    a.label(l_chk)
    a(f"v_xor_b32 {v(t0)}, s{S_E}, {v(st[0]+1)}")
    a(f"v_xor_b32 {v(t1)}, s{S_E+1}, {v(st[0]+3)}")
    for mm in range(1, 4):
        a(f"v_xor_b32 {v(t0+2)}, s{S_E}, {v(st[mm]+1)}")
        a(f"v_xor_b32 {v(t0+3)}, s{S_E+1}, {v(st[mm]+3)}")
        a(f"v_or3_b32 {v(t0)}, {v(t0)}, {v(t0+2)}, {v(t0+3)}")
    a(f"v_or_b32 {v(t0)}, {v(t0)}, {v(t1)}")
    a(f"v_cmp_ne_u32 vcc, 0, {v(t0)}")
    a(f"s_cbranch_vccz {l_ok}")
    a(f"s_lshl_b32 s{s_dw}, s{S_RB}, 11")
    a(f"s_add_u32 s{s_dw}, s{s_dw}, {WS_ST}")
    for mm in range(4):
        a(f"buffer_load_dwordx4 {v(st[mm],4)}, {v(sa)}, {s(R_WS,4)}, s{s_dw} offen offset:{mm*256} {SC}")
    a("s_waitcnt vmcnt(0)")
    a(f"s_sub_u32 s{s_dx}, s{s_dx}, 1")
    a(f"s_cbranch_scc0 {l_chk}")
    a.label(l_ok)
    for mm in range(4):
        a(f"v_mov_b32 {v(st[mm]+1)}, {v(st[mm])}")
        a(f"v_mov_b32 {v(st[mm]+3)}, {v(st[mm]+2)}")
    stamp(a, 3)
    tmp = [xf[1][i] for i in range(4)]
    outs = [wf[1][1], wf[1][2], wf[1][3]]
    n_o = 0
    for mm in range(4):
        for u in range(2):
            o = outs[n_o % 3]; n_o += 1
            prs = [(acc[2*u+k][mm] + 2*h, cs[2*u+k] + 2*h, b1f[2*u+k] + 2*h) for k in range(2) for h in range(2)]
            T = [tmp[0], tmp[0]+2, tmp[1], tmp[1]+2]
            Z = [tmp[2], tmp[2]+2, tmp[3], tmp[3]+2]
            for i, (p, c_, b_) in enumerate(prs):
                a(f"v_pk_fma_f32 {v(T[i],2)}, {v(c_,2)}, {v(st[mm]+2,2)}, {v(b_,2)}")
            for i, (p, c_, b_) in enumerate(prs):
                a(f"v_pk_fma_f32 {v(p,2)}, {v(p,2)}, {v(st[mm],2)}, {v(T[i],2)}")
            for i, (p, c_, b_) in enumerate(prs):
                a(f"v_pk_mul_f32 {v(T[i],2)}, {v(p,2)}, {v(p,2)}")
            for i, (p, c_, b_) in enumerate(prs):
                a(f"v_pk_fma_f32 {v(T[i],2)}, {v(T[i],2)}, {v(b1r[1],2)}, {v(b1r[0],2)}")
            for i, (p, c_, b_) in enumerate(prs):
                a(f"v_pk_mul_f32 {v(Z[i],2)}, {v(p,2)}, {v(T[i],2)}")
            for i in range(4):
                a(f"v_exp_f32 {v(Z[i])}, {v(Z[i])}")
                a(f"v_exp_f32 {v(Z[i]+1)}, {v(Z[i]+1)}")
            for i in range(4):
                a(f"v_pk_add_f32 {v(Z[i],2)}, {v(Z[i],2)}, {v(b1r[2],2)}")
            for i in range(4):
                a(f"v_rcp_f32 {v(Z[i])}, {v(Z[i])}")
                a(f"v_rcp_f32 {v(Z[i]+1)}, {v(Z[i]+1)}")
            for i, (p, c_, b_) in enumerate(prs):
                a(f"v_pk_mul_f32 {v(p,2)}, {v(p,2)}, {v(Z[i],2)}")
            for i, (p, c_, b_) in enumerate(prs):
                a(f"v_cvt_pk_bf16_f32 {v(o+i)}, {v(p)}, {v(p+1)}")
            a(f"buffer_store_dwordx4 {v(o,4)}, {v(l16)}, {s(R_WS,4)}, s{s_t+2+u} offen offset:{mm*1024} {SCG}")
            if "dbl" in OPT:
                a(f"buffer_store_dwordx4 {v(o,4)}, {v(l16)}, {s(R_WS,4)}, s{s_t+2+u} offen offset:{mm*1024}")
            a(f"ds_write_b128 {v(hw if u == 0 else hw2)}, {v(o,4)} offset:{mm*1024}")
    a("s_waitcnt lgkmcnt(0)")
    loop(2)
    stamp(a, 5)
    pk = xf[0][0]
    n = 0
    for mm in range(4):
        for tt in range(5):
            o = pk + 2 * (n % 16); n += 1
            a(f"v_cvt_pk_bf16_f32 {v(o)}, {v(acc[tt][mm])}, {v(acc[tt][mm]+1)}")
            a(f"v_cvt_pk_bf16_f32 {v(o+1)}, {v(acc[tt][mm]+2)}, {v(acc[tt][mm]+3)}")
            a(f"ds_write_b64 {v(sw)}, {v(o,2)} offset:{mm*16*SP+tt*32}")
            if n == 12:
                a("s_waitcnt lgkmcnt(6)")
    a(f"s_mul_i32 s{s_t}, s{S_KT}, 2621440")
    a(f"s_lshl_b32 s{s_t+1}, s{S_SUB}, 1")
    a(f"s_add_u32 s{s_t+1}, s{s_t+1}, s{s_wn}")
    a(f"s_mul_i32 s{s_t+1}, s{s_t+1}, {2048*160}")
    a(f"s_add_u32 s{s_t}, s{s_t}, s{s_t+1}")
    a(f"s_lshl_b32 s{s_t+1}, s{S_RB}, 1")
    a(f"s_add_u32 s{s_t+1}, s{s_t+1}, s{s_wm}")
    a(f"s_mul_i32 s{s_t+1}, s{s_t+1}, {64*160}")
    a(f"s_add_u32 s{s_t}, s{s_t}, s{s_t+1}")
    a(f"s_add_u32 s{s_t}, s{s_t}, {WS_P}")
    a(f"s_add_u32 s{s_t+1}, s{s_t}, 4096")
    a(f"s_add_u32 s{s_t+2}, s{s_t}, 8192")
    a("s_waitcnt lgkmcnt(0)")
    rb_ = [acc[i // 4][i % 4] for i in range(10)]
    for ii in range(10):
        a(f"ds_read_b128 {v(rb_[ii],4)}, {v(srd_a[ii%5])} offset:{(ii//5)*32*SP}")
    for ii in range(10):
        a(f"s_waitcnt lgkmcnt({9-ii})")
        a(f"buffer_store_dwordx4 {v(rb_[ii],4)}, {v(l16)}, {s(R_WS,4)}, s{s_t+ii//4} offen offset:{(ii%4)*1024} {SCG}")
        if "p2x" in OPT:
            a(f"s_add_u32 s{s_t+3}, s{s_t+ii//4}, {32<<20}")
            a(f"buffer_store_dwordx4 {v(rb_[ii],4)}, {v(l16)}, {s(R_WS,4)}, s{s_t+3} offen offset:{(ii%4)*1024} {SC}")
    if "prio" in OPT:
        a("s_setprio 0")
    a(f"s_lshl_b32 s{S_FLAG}, s{S_RB}, 1")
    a(f"s_add_u32 s{S_FLAG}, s{S_FLAG}, s{s_wm}")
    a(f"s_lshl_b32 s{S_FLAG}, s{S_FLAG}, 5")
    a(f"s_add_u32 s{S_FLAG}, s{S_FLAG}, s{S_KT}")
    a(f"s_lshl_b32 s{S_FLAG}, s{S_FLAG}, 2")
    a(f"s_add_u32 s{S_FLAG}, s{S_FLAG}, s{S_SUB}")
    a(f"s_lshl_b32 s{S_FLAG}, s{S_FLAG}, 1")
    a(f"s_add_u32 s{S_FLAG}, s{S_FLAG}, s{s_wn}")
    a(f"s_lshl_b32 s{S_FLAG}, s{S_FLAG}, 3")
    a(f"s_add_u32 s{S_FLAG}, s{S_FLAG}, {FL_P}")
    a(f"s_mov_b32 s{S_PJ}, 1")
    a(f"s_branch {l_f3}")


def gemm_loader(a, l_f3l):
    vp = Pool("v", 1, 248)
    t0 = vp.get(4, 2); t1, t2 = t0 + 1, t0 + 2
    s_lw, s_xo, s_wo, s_m, s_m2, s_ho, s_w2, s_t = [S_T + i for i in range(8)]
    vm = VM(a)
    a(f"s_sub_u32 s{s_lw}, s{S_W}, 4")
    srd(a, R_A, P_X, 2621440); srd(a, R_B, P_W1, 1966080)
    xv = vp.get(); wv = [vp.get(), vp.get()]
    a(f"v_lshrrev_b32 {v(t0)}, 3, v0")
    a(f"v_and_b32 {v(t1)}, 7, v0")
    a(f"v_xor_b32 {v(t1)}, {v(t1)}, {v(t0)}")
    a(f"v_mul_u32_u24 {v(xv)}, {64*1280}, {v(t0)}")
    a(f"v_lshl_add_u32 {v(xv)}, {v(t1)}, 4, {v(xv)}")
    a(f"s_lshl_b32 s{s_xo}, s{S_RB}, 2")
    a(f"s_add_u32 s{s_xo}, s{s_xo}, s{s_lw}")
    a(f"s_mul_i32 s{s_xo}, s{s_xo}, 1280")
    a(f"v_lshrrev_b32 {v(t0)}, 4, v0")
    a(f"v_and_b32 {v(t1)}, 15, v0")
    a(f"v_lshlrev_b32 {v(t2)}, 1, {v(t0)}")
    a(f"v_xor_b32 {v(t1)}, {v(t1)}, {v(t2)}")
    a(f"v_mul_u32_u24 {v(wv[0])}, 3072, {v(t0)}")
    a(f"v_lshl_add_u32 {v(wv[0])}, {v(t1)}, 4, {v(wv[0])}")
    a(f"v_xor_b32 {v(wv[1])}, 128, {v(wv[0])}")
    a(f"s_mul_i32 s{s_wo}, s{s_lw}, {16*3072}")
    a(f"s_lshl_b32 s{s_t}, s{S_KT}, 10")
    a(f"s_add_u32 s{s_wo}, s{s_wo}, s{s_t}")
    a(f"s_lshl_b32 s{s_t}, s{S_SUB}, 8")
    a(f"s_add_u32 s{s_wo}, s{s_wo}, s{s_t}")
    a(f"s_lshl_b32 s{s_m}, s{s_lw}, 12")

    s_kc, s_xc, s_wc = S_T + 11, S_T + 12, S_T + 13
    if "norot" in OPT:
        a(f"s_mov_b32 s{s_kc}, 0")
    elif "oldmap" not in OPT:
        a(f"s_and_b32 s{s_kc}, s{S_RB}, 1")
        a(f"s_mul_i32 s{s_kc}, s{s_kc}, 5")
        a(f"s_lshr_b32 s{s_t}, s{S_RB}, 1")
        a(f"s_add_u32 s{s_kc}, s{s_kc}, s{s_t}")
        a(f"s_lshl_b32 s{s_t}, s{S_KT}, 2")
        a(f"s_add_u32 s{s_kc}, s{s_kc}, s{s_t}")
        a(f"s_add_u32 s{s_kc}, s{s_kc}, s{S_SUB}")
        for _ in range(2):
            a(f"s_sub_u32 s{s_t}, s{s_kc}, 10")
            a(f"s_cselect_b32 s{s_kc}, s{s_kc}, s{s_t}")
    else:
        a(f"s_mul_i32 s{s_kc}, s{S_PJ}, 27")
        a(f"s_lshr_b32 s{s_kc}, s{s_kc}, 4")
        a(f"s_mul_i32 s{s_t}, s{S_SUB}, 5")
        a(f"s_lshr_b32 s{s_t}, s{s_t}, 1")
        a(f"s_add_u32 s{s_kc}, s{s_kc}, s{s_t}")
        a(f"s_sub_u32 s{s_t}, s{s_kc}, 10")
        a(f"s_cselect_b32 s{s_kc}, s{s_kc}, s{s_t}")

    def issue1(c):
        sl = c % 4
        a(f"s_lshl_b32 s{s_xc}, s{s_kc}, 7")
        a(f"s_add_u32 s{s_xc}, s{s_xc}, s{s_xo}")
        a(f"s_mul_i32 s{s_wc}, s{s_kc}, {64*3072}")
        a(f"s_add_u32 s{s_wc}, s{s_wc}, s{s_wo}")
        for i in range(4):
            a(f"s_add_u32 m0, s{s_m}, {LX + sl*16384 + i*1024}")
            a(f"s_add_u32 s{s_t}, s{s_xc}, {i*8*64*1280}")
            dma(a, xv, R_A, f"s{s_t}")
        for i in range(4):
            a(f"s_add_u32 m0, s{s_m}, {LW + sl*WSL + i*1024}")
            a(f"s_add_u32 s{s_t}, s{s_wc}, {i*4*3072}")
            dma(a, wv[i >> 1], R_B, f"s{s_t}")
        a(f"s_add_u32 s{s_kc}, s{s_kc}, 1")
        a(f"s_cmp_eq_u32 s{s_kc}, 10")
        a(f"s_cselect_b32 s{s_kc}, 0, s{s_kc}")
        vm.op(("A", c), 8)

    stamp(a, 1)
    issue1(0); issue1(1)
    srd(a, R_C, P_W2, 1966080)
    l16 = vp.get(); w2v = [vp.get() for _ in range(5)]
    a(f"v_lshlrev_b32 {v(l16)}, 4, v0")
    a(f"s_mul_i32 s{s_ho}, s{S_RB}, {48*8192}")
    a(f"s_lshl_b32 s{s_t}, s{S_KT}, 17")
    a(f"s_add_u32 s{s_ho}, s{s_ho}, s{s_t}")
    a(f"s_add_u32 s{s_ho}, s{s_ho}, s{s_m}")
    for i in range(5):
        a(f"v_add_u32 {v(t2)}, {64*i}, v0")
        divmod_const(a, t0, t1, t2, 20)
        a(f"v_lshrrev_b32 {v(t2)}, 1, {v(t0)}")
        a(f"v_and_b32 {v(t2)}, 2, {v(t2)}")
        a(f"v_xor_b32 {v(t1)}, {v(t1)}, {v(t2)}")
        a(f"v_mul_u32_u24 {v(w2v[i])}, 1280, {v(t0)}")
        a(f"v_lshl_add_u32 {v(w2v[i])}, {v(t1)}, 4, {v(w2v[i])}")
    a(f"s_lshl_b32 s{s_w2}, s{S_KT}, 5")
    a(f"s_add_u32 s{s_w2}, s{s_w2}, s{s_lw}")
    a(f"s_mul_i32 s{s_w2}, s{s_w2}, {16*1280}")
    a(f"s_mul_i32 s{s_t}, s{S_SUB}, 320")
    a(f"s_add_u32 s{s_w2}, s{s_w2}, s{s_t}")
    a(f"s_mul_i32 s{s_m2}, s{s_lw}, 5120")

    def kchunk(c2):
        a(f"s_lshl_b32 s{s_t+1}, s{S_SUB}, 1")
        a(f"s_add_u32 s{s_t+1}, s{s_t+1}, {c2}")
        a(f"s_and_b32 s{s_t+1}, s{s_t+1}, 7")

    def issue_w2(c2):
        sl = (10 + c2) % 4
        kchunk(c2)
        a(f"s_mul_i32 s{s_t}, s{s_t+1}, {64*1280}")
        a(f"s_add_u32 s{s_t}, s{s_t}, s{s_w2}")
        for i in range(5):
            a(f"s_add_u32 m0, s{s_m2}, {LW + sl*WSL + i*1024}")
            dma(a, w2v[i], R_C, f"s{s_t}")
        vm.op(("W", c2), 5)

    def issue_h(c2):
        sl = (10 + c2) % 4
        kchunk(c2)
        a(f"s_lshl_b32 s{s_t}, s{s_t+1}, 14")
        a(f"s_add_u32 s{s_t}, s{s_t}, s{s_ho}")
        a(f"s_add_u32 m0, s{s_m}, {LX + sl*16384}")
        for i in range(4):
            a(f"buffer_load_dwordx4 {v(l16)}, {s(R_WS,4)}, s{s_t} offen offset:{i*1024} {SGL} lds")
        vm.op(("H", c2), 4)

    wreg = [[vp.get(4, 4) for i in range(5)] for c in range(4)]
    fl = vp.get(4, 2); wl = [vp.get(), vp.get()]
    a(f"v_add_u32 {v(wl[0])}, s{s_m2}, {v(l16)}")
    a(f"v_add_u32 {v(wl[0])}, {LW}, {v(wl[0])}")
    a(f"v_add_u32 {v(wl[1])}, {2*WSL}, {v(wl[0])}")

    def load_w2(c2):
        kchunk(c2)
        a(f"s_mul_i32 s{s_t}, s{s_t+1}, {64*1280}")
        a(f"s_add_u32 s{s_t}, s{s_t}, s{s_w2}")
        for i in range(5):
            a(f"buffer_load_dwordx4 {v(wreg[c2-4][i],4)}, {v(w2v[i])}, {s(R_C,4)}, s{s_t} offen")
        vm.op(("R", c2), 5)

    def put_w2(c2):
        sl = (10 + c2) % 4
        for i in range(5):
            a(f"ds_write_b128 {v(wl[sl>>1])}, {v(wreg[c2-4][i],4)} offset:{(sl&1)*WSL + i*1024}")

    load_epoch(a, S_T + 14)
    if "tlb" in OPT:
        l_nt = a.newlabel("L_nt")
        a(f"s_lshr_b32 s{s_t}, s2, 3")
        a(f"s_cmp_lg_u32 s{s_t}, 31")
        a(f"s_cbranch_scc1 {l_nt}")
        a(f"s_lshl_b32 s{s_t}, s{s_lw}, 21")
        for i in range(3):
            a(f"s_add_u32 s{S_T+14}, s{P_WS}, s{s_t}")
            a(f"s_addc_u32 s{S_T+15}, s{P_WS+1}, 0")
            a(f"s_load_dword s3, s[{S_T+14}:{S_T+15}], 0")
            a(f"s_add_u32 s{s_t}, s{s_t}, {4 << 21}")
        for p in (P_OUT, P_W2, P_WR, P_WI, P_B2):
            a(f"s_load_dword s3, s[{p}:{p+1}], 0")
        a(f"s_add_u32 s{S_T+14}, s{P_OUT}, {1 << 21}")
        a(f"s_addc_u32 s{S_T+15}, s{P_OUT+1}, 0")
        a(f"s_load_dword s3, s[{S_T+14}:{S_T+15}], 0")
        a.label(l_nt)
    nxt = 2
    for c in range(10):
        vm.wait(("A", c))
        if c == 0: stamp(a, 2)
        if c >= 2: stamp(a, c - 1, 3)
        a("s_barrier")
        if c >= 2: stamp(a, c - 1, 4)
        while nxt < 10 and nxt <= c + 3 and (nxt <= c + 2 or c >= 1):
            issue1(nxt); nxt += 1
            if c == 0 and "deep0" not in OPT:
                break
        if c == 3 and "nopf" not in OPT:
            a(f"s_lshl_b32 s{s_t}, s{S_FLAG}, 2")
            a(f"s_add_u32 s{s_t}, s{s_t}, s{s_lw}")
            a(f"s_mul_i32 s{s_t}, s{s_t}, 2560")
            for i in range(3):
                a(f"buffer_load_dwordx4 {v(wreg[3][i],4)}, {v(l16)}, {s(R_C,4)}, s{s_t} offen offset:{i*768}")
            vm.op("PF", 3)
        if c == 7:
            a(f"s_lshl_b32 s{s_t}, s{S_RB}, 11")
            a(f"s_add_u32 s{s_t}, s{s_t}, {WS_ST}")
            a(f"s_mov_b32 m0, {L_STAT}")
            for i in range(2):
                a(f"buffer_load_dwordx4 {v(l16)}, {s(R_WS,4)}, s{s_t} offen offset:{i*1024} {SC} lds")
            vm.op("S", 2)
        if c >= 7:
            issue_w2(c - 7)
    vm.wait("S")
    a("s_waitcnt lgkmcnt(0)")
    nonce(a)
    stamp(a, 3)
    a("s_barrier")
    vm.wait(("W", 1))
    issue_w2(3)
    for c2 in range(4, 8):
        if "nopace" not in OPT:
            vm.wait(("W", c2 - 2), ("R", c2 - 2))
        load_w2(c2)
    vm.wait(("W", 0))
    a("s_barrier")
    vm.wait(("W", 1), ("R", 5))
    a("s_barrier")
    stamp(a, 4)
    l_nf = a.newlabel("L_nf")
    a(f"s_cmp_lg_u32 s{s_lw}, 0")
    a(f"s_cbranch_scc1 {l_nf}")
    a(f"s_and_b32 s{s_t}, s{S_FLAG}, 0xfc")
    a(f"s_lshl_b32 s{s_t}, s{s_t}, 7")
    a(f"s_lshl_b32 s{s_t+1}, s{S_SUB}, 3")
    a(f"s_add_u32 s{s_t}, s{s_t}, s{s_t+1}")
    a(f"s_add_u32 s{s_t}, s{s_t}, {FL_H}")
    push_flag(a, s_t, 4, 7, t0, SCG)
    a(f"s_lshl_b32 s{s_t}, s{S_FLAG}, 3")
    a(f"s_add_u32 s{s_t}, s{s_t}, {FL_M}")
    push_flag(a, s_t, 1, 7, t0)
    a.label(l_nf)
    put_w2(4)
    a("s_barrier")
    put_w2(5)
    a(f"s_lshl_b32 s{s_t+2}, s{S_FLAG}, 7")
    a(f"s_add_u32 s{s_t+2}, s{s_t+2}, {FL_H}")
    poll(a, f"s{s_t+2}", 4, s_t, depth=1, sc=SGP); vm.q = []
    stamp(a, 5)
    for c2 in range(2, 6):
        issue_h(c2)
    a("s_waitcnt lgkmcnt(0)")
    for c2 in range(2, 8):
        vm.wait(("H", c2), ("W", c2))
        if c2 == 2: stamp(a, 6)
        stamp(a, c2 - 1, 5)
        a("s_barrier")
        stamp(a, c2 - 1, 6)
        if c2 in (3, 4):
            issue_h(c2 + 3); issue_w2(c2 + 3)
        if c2 == 5:
            a(f"s_and_b32 s{s_t}, s{S_W}, 3")
            a(f"s_lshl_b32 s{s_t}, s{s_t}, 12")
            a(f"s_add_u32 m0, s{s_t}, {L3_TAB}")
            a(f"s_add_u32 s{s_t}, s{s_t}, {TAB_F3}")
            for k in range(4):
                a(f"buffer_load_dwordx4 {v(l16)}, {s(R_TAB,4)}, s{s_t} offen offset:{k*1024} lds")
            vm.op("T3", 4)
    vm.wait("T3")
    stamp(a, 7, 5)
    a("s_barrier")
    stamp(a, 7, 6)
    a(f"s_branch {l_f3l}")


def twiddle_l(re, im, c_, s_, tmp, pk=None):
    o = []
    if pk is not None:
        for h in range(2):
            o.append(f"v_pk_mul_f32 {v(tmp,2)}, {v(im+2*h,2)}, {v(s_+2*h,2)}")
            o.append(f"v_pk_mul_f32 {v(tmp+2,2)}, {v(re+2*h,2)}, {v(pk+2*h,2)}")
            o.append(f"v_pk_fma_f32 {v(re+2*h,2)}, {v(re+2*h,2)}, {v(c_+2*h,2)}, {v(tmp,2)}")
            o.append(f"v_pk_fma_f32 {v(im+2*h,2)}, {v(im+2*h,2)}, {v(c_+2*h,2)}, {v(tmp+2,2)}")
        return o
    o += [f"v_mul_f32 {v(tmp+r)}, {v(re+r)}, {v(s_+r)}" for r in range(4)]
    o += [f"v_mul_f32 {v(re+r)}, {v(re+r)}, {v(c_+r)}" for r in range(4)]
    o += [f"v_fmac_f32 {v(re+r)}, {v(im+r)}, {v(s_+r)}" for r in range(4)]
    o += [f"v_fma_f32 {v(im+r)}, {v(im+r)}, {v(c_+r)}, -{v(tmp+r)}" for r in range(4)]
    return o


def twiddle(a, re, im, c_, s_, tmp, pk=None):
    for x in twiddle_l(re, im, c_, s_, tmp, pk):
        a(x)


def load_epoch(a, s_t):
    a(f"s_add_u32 s{s_t}, s{P_WS}, {WS_EP}")
    a(f"s_addc_u32 s{s_t+1}, s{P_WS+1}, 0")
    a(f"s_load_dwordx2 s[{S_E}:{S_E+1}], s[{s_t}:{s_t+1}], 0")


def copy_out(a, lds_v, g_v, regs, pitch2, s_base, step, s_t):
    for ii in range(8):
        a(f"ds_read_b128 {v(regs[ii],4)}, {v(lds_v)} offset:{ii*pitch2}")
    a("s_mov_b32 exec_lo, 0x3fffff")
    a("s_mov_b32 exec_hi, 0x3fffff")
    for ii in range(8):
        a(f"s_add_u32 s{s_t}, s{s_base}, {ii*step}")
        a(f"s_waitcnt lgkmcnt({7-ii})")
        a(f"buffer_store_dwordx4 {v(regs[ii],4)}, {v(g_v)}, {s(R_WS,4)}, s{s_t} offen {SC}")
    a("s_mov_b64 exec, -1")


def wave0_flag(a, base, vt):
    l = a.newlabel("L_w0")
    a(f"s_cmp_lg_u32 s{S_W}, 0")
    a(f"s_cbranch_scc1 {l}")
    a(f"s_lshl_b32 s{S_F2}, s{S_IDX}, 3")
    a(f"s_add_u32 s{S_F2}, s{S_F2}, {base}")
    push_flag(a, S_F2, 64, 9, vt)
    a.label(l)


L1_TAB, L1_XN, L1_ZX, L1_ST = 0, 16384, 57344, 0
L2_ZB, L2_WR, L2_WI, L2_TAB = 57344, 102400, 124928, 147456


FV = dict(i16=1, g=2, l16=3, t0=4, xr=8)


def fft_head(a):
    i16, g, l16, t0, xr = FV["i16"], FV["g"], FV["l16"], FV["t0"], FV["xr"]
    s_t = S_T
    srd(a, R_A, P_X, 2621440)
    a(f"s_lshl_b32 s{s_t+1}, s{S_W}, 11")
    a(f"s_add_u32 m0, s{s_t+1}, {L1_TAB}")
    a(f"s_lshl_b32 s{s_t}, s{S_W}, 8")
    for i in range(2):
        a(f"buffer_load_dwordx4 {v(l16)}, {s(R_TAB,4)}, s{s_t+1} offen offset:{i*1024} lds")
    a(f"v_mul_u32_u24 {v(t0)}, {64*1280}, {v(g)}")
    a(f"v_lshl_add_u32 {v(t0)}, {v(i16)}, 4, {v(t0)}")
    a(f"s_add_u32 s{s_t}, s{s_t}, s{S_IDX}")
    a(f"s_mul_i32 s{s_t}, s{s_t}, 1280")
    for i in range(5):
        a(f"buffer_load_dwordx4 {v(xr+4*i,4)}, {v(t0)}, {s(R_A,4)}, s{s_t} offen offset:{256*i}")
    a(f"s_add_u32 m0, s{s_t+1}, {L2_TAB}")
    a(f"s_add_u32 s{s_t+1}, s{s_t+1}, {TAB_F2}")
    for i in range(2):
        a(f"buffer_load_dwordx4 {v(l16)}, {s(R_TAB,4)}, s{s_t+1} offen offset:{i*1024} lds")


def fft_role(a, l_f3, l_f3l):
    s_n = S_IDX
    SP = 368
    vp = Pool("v", 28, 248)
    i16, g, l16, t0, xr = FV["i16"], FV["g"], FV["l16"], FV["t0"], FV["xr"]
    t1 = t0 + 1; t2 = t0 + 2
    s_t = S_T
    mf = vp.get(8, 4)
    k1v = vp.get()
    a(f"s_and_b32 s{s_t}, s{S_W}, 1")
    a(f"s_lshl_b32 s{s_t}, s{s_t}, 4")
    a(f"v_add_u32 {v(k1v)}, s{s_t}, {v(i16)}")
    a(f"s_and_b32 s{s_t}, s{S_W}, 2")
    a(f"s_lshl_b32 s{s_t}, s{s_t}, 8")
    a(f"v_lshlrev_b32 {v(t0)}, 8, {v(g)}")
    a(f"v_add_u32 {v(t0)}, s{s_n}, {v(t0)}")
    a(f"v_mul_u32_u24 {v(t0)}, {v(t0)}, {v(k1v)}")
    a(f"v_add_u32 {v(t0)}, s{s_t}, {v(t0)}")
    a(f"v_lshlrev_b32 {v(k1v)}, 6, {v(k1v)}")
    for ks in range(2):
        for jj in range(4):
            a(f"v_mad_u32_u24 {v(t1)}, {v(k1v)}, {16*ks+jj}, {v(t0)}")
            a(f"v_and_b32 {v(t1)}, 2047, {v(t1)}")
            a(f"v_cvt_f32_u32 {v(t1)}, {v(t1)}")
            a(f"v_mul_f32 {v(t1)}, {hex(f2u(1/2048))}, {v(t1)}")
            a(f"v_cos_f32 {v(t2)}, {v(t1)}")
            a(f"v_sin_f32 {v(t1)}, {v(t1)}")
            a(f"v_cvt_pk_bf16_f32 {v(mf+4*ks+jj)}, {v(t2)}, {v(t1)}")
    a(f"v_mov_b32 {v(t1)}, 0")
    a(f"v_and_b32 {v(t0)}, 31, v0")
    a(f"v_lshlrev_b32 {v(t0)}, 2, {v(t0)}")
    a(f"v_add_u32 {v(t0)}, {L1_ZX + 321*128}, {v(t0)}")
    a(f"ds_write_b32 {v(t0)}, {v(t1)}")
    za = [vp.get() for _ in range(8)]
    a(f"v_mul_u32_u24 {v(t0)}, 80, {v(g)}")
    a(f"v_add_u32 {v(t0)}, {v(t0)}, {v(i16)}")
    for u in range(2):
        for r in range(4):
            z = za[4*u+r]
            if u == 0:
                a(f"v_add_u32 {v(t1)}, {20*r}, {v(t0)}")
            else:
                a(f"v_sub_u32 {v(t1)}, {320-20*r}, {v(t0)}")
            a(f"v_and_b32 {v(t2)}, 7, {v(t1)}")
            a(f"v_xor_b32 {v(t2)}, s{S_W}, {v(t2)}")
            a(f"v_lshlrev_b32 {v(t2)}, 4, {v(t2)}")
            a(f"v_lshl_add_u32 {v(z)}, {v(t1)}, 7, {v(t2)}")
            a(f"v_add_u32 {v(z)}, {L1_ZX}, {v(z)}")
    xw, ta0, ta1 = vp.get(), vp.get(), vp.get()
    a(f"s_mul_i32 s{s_t}, s{S_W}, {4*1280}")
    a(f"s_add_u32 s{s_t}, s{s_t}, {L1_XN}")
    a(f"v_mul_u32_u24 {v(xw)}, 1280, {v(g)}")
    a(f"v_lshl_add_u32 {v(xw)}, {v(i16)}, 4, {v(xw)}")
    a(f"v_add_u32 {v(xw)}, s{s_t}, {v(xw)}")
    a(f"v_and_b32 {v(t0)}, 3, v0")
    a(f"v_lshlrev_b32 {v(t0)}, 3, {v(t0)}")
    a(f"v_add_u32 {v(t0)}, s{s_t}, {v(t0)}")
    a(f"v_lshrrev_b32 {v(t1)}, 2, v0")
    a(f"v_lshl_add_u32 {v(ta0)}, {v(t1)}, 6, {v(t0)}")
    a(f"v_and_b32 {v(t1)}, 3, {v(t1)}")
    a(f"v_lshl_add_u32 {v(ta1)}, {v(t1)}, 6, {v(t0)}")
    a(f"v_add_u32 {v(ta1)}, 1024, {v(ta1)}")
    ca = [vp.get() for _ in range(4)]
    s_hf = S_T + 2
    a(f"s_lshr_b32 s{s_hf}, s{S_W}, 2")
    a(f"v_and_b32 {v(t0)}, 7, v0")
    a(f"v_xor_b32 {v(t0)}, {v(t0)}, {v(g)}")
    a(f"v_lshlrev_b32 {v(t0)}, 4, {v(t0)}")
    a(f"v_lshl_add_u32 {v(t0)}, {v(i16)}, 7, {v(t0)}")
    a(f"s_mul_i32 s{s_t}, s{s_hf}, {11*2048}")
    a(f"s_add_u32 s{s_t}, s{s_t}, {L1_ZX}")
    a(f"v_add_u32 {v(ca[0])}, s{s_t}, {v(t0)}")
    a(f"v_xor_b32 {v(ca[1])}, 64, {v(ca[0])}")
    a(f"v_lshlrev_b32 {v(t0)}, 4, {v(g)}")
    a(f"v_add_u32 {v(t0)}, {L1_ZX + 320*128}, {v(t0)}")
    a(f"v_add_u32 {v(t1)}, 128, {v(t0)}")
    a(f"v_cmp_eq_u32 vcc, 7, {v(i16)}")
    a(f"v_cndmask_b32 {v(t0)}, {v(t1)}, {v(t0)}, vcc")
    a(f"v_add_u32 {v(t1)}, {9*2048}, {v(ca[0])}")
    a(f"s_cmp_eq_u32 s{s_hf}, 1")
    a(f"s_cselect_b64 vcc, -1, 0")
    a(f"v_cndmask_b32 {v(ca[2])}, {v(t1)}, {v(t0)}, vcc")
    a(f"v_xor_b32 {v(ca[3])}, 64, {v(ca[2])}")
    sw, sr, gv = vp.get(), vp.get(), vp.get()
    a(f"s_mul_i32 s{s_t}, s{S_W}, {16*SP}")
    a(f"v_mul_u32_u24 {v(sw)}, {SP}, {v(i16)}")
    a(f"v_lshl_add_u32 {v(sw)}, {v(g)}, 3, {v(sw)}")
    a(f"v_add_u32 {v(sw)}, s{s_t}, {v(sw)}")
    a(f"v_lshrrev_b32 {v(t0)}, 5, v0")
    a(f"v_and_b32 {v(t1)}, 31, v0")
    a(f"v_lshlrev_b32 {v(t1)}, 4, {v(t1)}")
    a(f"v_mul_u32_u24 {v(sr)}, {SP}, {v(t0)}")
    a(f"v_add3_u32 {v(sr)}, {v(sr)}, {v(t1)}, s{s_t}")
    a(f"v_mul_u32_u24 {v(gv)}, 90112, {v(t0)}")
    a(f"v_add_u32 {v(gv)}, {v(gv)}, {v(t1)}")
    s_k1, s_h2 = S_T + 6, S_T + 7
    a(f"s_lshr_b32 s{s_k1}, s{S_IDX}, 1")
    a(f"s_and_b32 s{s_h2}, s{S_IDX}, 1")
    wv = [vp.get() for _ in range(3)]
    a(f"s_mul_i32 s{s_t+1}, s{s_h2}, 176")
    for i in range(3):
        a(f"s_lshl_b32 s{s_t}, s{S_W}, 6")
        a(f"s_add_u32 s{s_t}, s{s_t}, {512*i}")
        a(f"v_add_u32 {v(t2)}, s{s_t}, v0")
        divmod_const(a, t0, t1, t2, 22)
        a(f"v_lshlrev_b32 {v(t1)}, 3, {v(t1)}")
        a(f"v_add_u32 {v(t1)}, s{s_t+1}, {v(t1)}")
        a(f"v_min_u32 {v(t1)}, 313, {v(t1)}")
        a(f"v_mul_u32_u24 {v(wv[i])}, {32*642}, {v(t0)}")
        a(f"v_lshl_add_u32 {v(wv[i])}, {v(t1)}, 1, {v(wv[i])}")
    srd(a, R_B, P_WR, 1314816); srd(a, R_C, P_WI, 1314816)
    mk = vp.mark()
    tb = vp.get(56, 4)
    F20 = [tb, tb + 4]; F32 = [tb + 8 + 4*i for i in range(8)]; TW = [tb + 40 + 4*i for i in range(4)]
    a("s_waitcnt vmcnt(7)")
    a("s_barrier")
    for i in range(14):
        a(f"ds_read_b128 {v(tb+4*i,4)}, {v(l16)} offset:{L1_TAB+1024*i}")
    load_epoch(a, s_t)
    mk2 = vp.mark()
    f = vp.get(40, 2)
    ac = vp.get(8, 2)
    vp.reset(mk2 + 100)
    rr = vp.get(2, 2); e0 = vp.get(4, 4)
    mean, var, m, den, m2, den2 = [vp.get() for _ in range(6)]
    mk3 = vp.mark()
    stamp(a, 1)
    for i in range(20):
        if i % 4 == 0:
            a(f"s_waitcnt vmcnt({6 - i//4})")
        a(f"v_lshlrev_b32 {v(f+2*i)}, 16, {v(xr+i)}")
        a(f"v_and_b32 {v(f+2*i+1)}, 0xffff0000, {v(xr+i)}")
        if i < 2:
            a(f"v_pk_mul_f32 {v(ac+4+2*i,2)}, {v(f+2*i,2)}, {v(f+2*i,2)}")
        else:
            a(f"v_pk_fma_f32 {v(ac+4+2*(i&1),2)}, {v(f+2*i,2)}, {v(f+2*i,2)}, {v(ac+4+2*(i&1),2)}")
        if i in (2, 3):
            a(f"v_pk_add_f32 {v(ac+2*(i&1),2)}, {v(f+2*i-4,2)}, {v(f+2*i,2)}")
        elif i > 3:
            a(f"v_pk_add_f32 {v(ac+2*(i&1),2)}, {v(ac+2*(i&1),2)}, {v(f+2*i,2)}")
    stamp(a, 2)
    a(f"v_pk_add_f32 {v(ac,2)}, {v(ac,2)}, {v(ac+2,2)}")
    a(f"v_pk_add_f32 {v(ac+4,2)}, {v(ac+4,2)}, {v(ac+6,2)}")
    a(f"v_add_f32 {v(mean)}, {v(ac)}, {v(ac+1)}")
    a(f"v_add_f32 {v(var)}, {v(ac+4)}, {v(ac+5)}")
    for sh in (8, 4, 2, 1):
        for dst in (mean, var):
            a(f"v_add_f32_dpp {v(dst)}, {v(dst)}, {v(dst)} row_ror:{sh} row_mask:0xf bank_mask:0xf")
    a(f"v_mul_f32 {v(mean)}, {hex(f2u(1/640))}, {v(mean)}")
    a(f"v_mul_f32 {v(var)}, {hex(f2u(1/640))}, {v(var)}")
    a(f"v_fma_f32 {v(var)}, -{v(mean)}, {v(mean)}, {v(var)}")
    a(f"v_max_f32 {v(var)}, 0, {v(var)}")
    bf16r(a, m, mean)
    bf16r(a, den, var)
    a(f"v_add_f32 {v(den)}, {hex(f2u(1e-5))}, {v(den)}")
    bf16r(a, den, den)
    a(f"v_sqrt_f32 {v(den)}, {v(den)}")
    bf16r(a, den, den)
    a(f"v_rcp_f32 {v(rr)}, {v(den)}")
    a(f"v_mul_f32 {v(rr+1)}, {v(m)}, {v(rr)}")
    a(f"v_mov_b32 {v(ac)}, {v(rr)}"); a(f"v_mov_b32 {v(ac+1)}, {v(rr)}")
    a(f"v_sub_f32 {v(ac+2)}, 0, {v(rr+1)}"); a(f"v_sub_f32 {v(ac+3)}, 0, {v(rr+1)}")
    for i in range(21):
        if i < 20:
            a(f"v_pk_fma_f32 {v(f+2*i,2)}, {v(f+2*i,2)}, {v(ac,2)}, {v(ac+2,2)}")
        if i > 0:
            a(f"v_cvt_pk_bf16_f32 {v(xr+i-1)}, {v(f+2*i-2)}, {v(f+2*i-1)}")
            if i % 4 == 0:
                a(f"ds_write_b128 {v(xw)}, {v(xr+i-4,4)} offset:{64*(i-4)}")
    vp.reset(mk2)
    d = [[[vp.get(4, 4) for pl in range(2)] for t in range(2)] for row in range(4)]
    af = [[vp.get(4, 4) for t in range(2)] for row in range(4)]
    tmp = [vp.get(4, 4)]
    assert vp.mark() <= mk2 + 100
    vp.reset(mk3)
    tmp.append(vp.get(4, 4))
    zo = [xr + 4*i for i in range(5)] + [vp.get(4, 4) for _ in range(3)]
    s_wb, s_wm0 = S_T + 8, S_T + 9
    a(f"s_mul_i32 s{s_wb}, s{s_k1}, 642")
    a(f"s_lshl_b32 s{s_wm0}, s{S_W}, 10")

    def wdma(k):
        i, pl = k >> 1, k & 1
        l2 = a.newlabel("L_f2b")
        if i == 2:
            a(f"s_cmp_ge_u32 s{S_W}, 6")
            a(f"s_cbranch_scc1 {l2}")
        a(f"s_add_u32 m0, s{s_wm0}, {(L2_WI if pl else L2_WR) + i*8192}")
        dma(a, wv[i], R_C if pl else R_B, f"s{s_wb}")
        a.label(l2)
    a(f"v_sub_f32 {v(m2)}, {v(mean)}, {v(m)}")
    a(f"v_mul_f32 {v(m2)}, {v(m2)}, {v(rr)}")
    bf16r(a, m2, m2)
    a(f"v_mul_f32 {v(den2)}, {v(var)}, {v(rr)}")
    a(f"v_mul_f32 {v(den2)}, {v(den2)}, {v(rr)}")
    bf16r(a, den2, den2)
    a(f"v_add_f32 {v(den2)}, {hex(f2u(1e-5))}, {v(den2)}")
    bf16r(a, den2, den2)
    a("s_waitcnt lgkmcnt(0)")
    stamp(a, 3)
    for row in range(4):
        for t in range(2):
            a(f"ds_read_b64_tr_b16 {v(af[row][t],2)}, {v(ta0)} offset:{row*1280+t*32}")
            a(f"ds_read_b64_tr_b16 {v(af[row][t]+2,2)}, {v(ta1)} offset:{row*1280+t*32}")
        if row == 2:
            nonce(a)
            a(f"v_sqrt_f32 {v(den2)}, {v(den2)}")
            bf16r(a, den2, den2)
            a(f"v_rcp_f32 {v(den2)}, {v(den2)}")
            a(f"v_fma_f32 {v(m)}, {v(m2)}, {v(den)}, {v(m)}")
            a(f"v_mul_f32 {v(e0)}, {v(rr)}, {v(den2)}")
            a(f"v_mul_f32 {v(e0+2)}, {v(e0)}, {v(m)}")
            a(f"v_sub_f32 {v(e0+2)}, 0, {v(e0+2)}")
            a(f"v_mov_b32 {v(e0+1)}, s{S_E}")
            a(f"v_mov_b32 {v(e0+3)}, s{S_E+1}")
            a("s_waitcnt lgkmcnt(8)")
    a(f"s_lshl_b32 s{s_t}, s{s_n}, 3")
    a(f"s_add_u32 s{s_t}, s{s_t}, s{S_W}")
    a(f"s_lshl_b32 s{s_t}, s{s_t}, 6")
    a(f"s_add_u32 s{s_t}, s{s_t}, {WS_ST}")
    a(f"v_lshlrev_b32 {v(t0)}, 4, {v(g)}")
    a("s_mov_b32 exec_lo, 0x00010001")
    a("s_mov_b32 exec_hi, 0x00010001")
    a(f"buffer_store_dwordx4 {v(e0,4)}, {v(t0)}, {s(R_WS,4)}, s{s_t} offen {SC}")
    a("s_mov_b64 exec, -1")
    R1 = lambda row: [mfma_s(d[row][t][pl], af[row][t], F20[pl], "0") for t in range(2) for pl in range(2)]
    R2 = lambda row: ([mfma_s(d[row][u][op], F32[4*u+2*op], af[row][0], "0") for u in range(2) for op in range(2)] +
                      [mfma_s(d[row][u][op], F32[4*u+2*op+1], af[row][1]) for u in range(2) for op in range(2)])
    TWD = lambda row: (twiddle_l(d[row][0][0], d[row][0][1], TW[0], TW[1], tmp[0]) + twiddle_l(d[row][1][0], d[row][1][1], TW[2], TW[3], tmp[1]) +
                       [f"v_cvt_pk_bf16_f32 {v(af[row][pl]+2*t+h)}, {v(d[row][t][pl]+2*h)}, {v(d[row][t][pl]+2*h+1)}"
                        for pl in range(2) for t in range(2) for h in range(2)])
    OUT = lambda row: [f"v_cvt_pk_bf16_f32 {v(zo[4*u+r]+row)}, {v(d[row][u][0]+r)}, {v(d[row][u][1]+r)}" for u in range(2) for r in range(4)]
    for x in R1(0): a(x)
    a("s_waitcnt lgkmcnt(8)")
    for x in R1(1): a(x)
    wdma(0)
    a("s_waitcnt lgkmcnt(0)")
    weave(a, R1(2) + R1(3), TWD(0))
    wdma(1)
    weave(a, R2(0), TWD(1))
    wdma(2)
    weave(a, R2(1), TWD(2) + OUT(0))
    wdma(3)
    weave(a, R2(2), TWD(3) + OUT(1))
    wdma(4)
    weave(a, R2(3), [f"s_nop 0"] * 2 + OUT(2))
    wdma(5)
    o3 = OUT(3)
    for i in range(8):
        a(o3[i])
        a(f"ds_write_b128 {v(za[i])}, {v(zo[i],4)}")
    vp.reset(mk)
    zf = [[vp.get(4, 4) for ks in range(2)] for i in range(11)]
    dd = [vp.get(4, 4) for i in range(11)]
    a("s_waitcnt lgkmcnt(0)")
    a("s_barrier")
    stamp(a, 4)

    def crd(i):
        for ks in range(2):
            if i == 9:
                a(f"ds_read_b128 {v(zf[i][ks],4)}, {v(ca[2+ks])}")
            else:
                a(f"ds_read_b128 {v(zf[i][ks],4)}, {v(ca[ks])} offset:{i*2048}")
    for i in range(6):
        crd(i)
    for i in range(11):
        if i + 6 < 11:
            a("s_waitcnt lgkmcnt(10)")
        else:
            a(f"s_waitcnt lgkmcnt({2*(10-i)})")
        mfma(a, dd[i], zf[i][0], mf, "0")
        mfma(a, dd[i], zf[i][1], mf + 4)
        if i + 6 < 11:
            crd(i + 6)
    for i in range(11):
        a(f"v_cvt_pk_bf16_f32 {v(dd[i])}, {v(dd[i])}, {v(dd[i]+1)}")
        a(f"v_cvt_pk_bf16_f32 {v(dd[i]+1)}, {v(dd[i]+2)}, {v(dd[i]+3)}")
        a(f"ds_write_b64 {v(sw)}, {v(dd[i],2)} offset:{L1_ST + i*32}")
    s_b = S_T + 3
    a(f"s_and_b32 s{s_b}, s{S_W}, 1")
    a(f"s_lshl_b32 s{s_b}, s{s_b}, 12")
    a(f"s_lshl_b32 s{s_t}, s{s_hf}, 7")
    a(f"s_add_u32 s{s_b}, s{s_b}, s{s_t}")
    a(f"s_and_b32 s{s_t}, s{S_W}, 2")
    a(f"s_lshl_b32 s{s_t}, s{s_t}, 5")
    a(f"s_add_u32 s{s_b}, s{s_b}, s{s_t}")
    a(f"s_add_u32 s{s_b}, s{s_b}, s{s_n}")
    a(f"s_mul_i32 s{s_b}, s{s_b}, 352")
    a(f"s_add_u32 s{s_b}, s{s_b}, {WS_ZP}")
    a("s_waitcnt lgkmcnt(0)")
    stamp(a, 1, 7)
    copy_out(a, sr, gv, [zf[i][0] for i in range(8)], 2*SP, s_b, 180224, s_t)
    stamp(a, 2, 7)

    vp.reset(mk)
    s_b, s_i = S_T + 4, S_T + 5
    ra, rw, wa, tadr = za[0], za[1], za[2], za[3]
    a(f"v_lshrrev_b32 {v(t0)}, 2, v0")
    a(f"v_mul_u32_u24 {v(ra)}, 352, {v(t0)}")
    a(f"v_and_b32 {v(t0)}, 3, v0")
    a(f"v_lshl_add_u32 {v(ra)}, {v(t0)}, 3, {v(ra)}")
    a(f"s_lshl_b32 s{s_t}, s{S_W}, 5")
    a(f"s_add_u32 s{s_t}, s{s_t}, {L2_ZB}")
    a(f"v_add_u32 {v(ra)}, s{s_t}, {v(ra)}")
    a(f"v_add_u32 {v(rw)}, {L2_WR - L2_ZB}, {v(ra)}")
    a(f"v_mul_u32_u24 {v(wa)}, 352, {v(i16)}")
    a(f"v_lshl_add_u32 {v(wa)}, {v(g)}, 3, {v(wa)}")
    a(f"v_add_u32 {v(wa)}, s{s_t}, {v(wa)}")
    a(f"v_add_u32 {v(tadr)}, {L2_TAB}, {v(l16)}")
    a("s_waitcnt vmcnt(0)")
    a("s_barrier")
    stamp(a, 5)
    stamp(a, 3, 7)
    spare = vp.get(32, 4)
    tb = vp.get(96, 4)
    C = [[tb + 8*t + 4*ks for ks in range(2)] for t in range(4)]
    Sm = [[tb + 32 + 8*t + 4*ks for ks in range(2)] for t in range(4)]
    NS = [[tb + 64 + 8*t + 4*ks for ks in range(2)] for t in range(4)]
    X = [[spare + 16*pl + 4*t for t in range(4)] for pl in range(2)]
    z = [[vp.get(4, 4) for ks in range(2)] for pl in range(2)]
    wq = [[xr + 8*pl + 2*t for t in range(4)] for pl in range(2)]
    wu = [vp.get(4, 4) for _ in range(4)]
    tmp = vp.get(4, 4)
    wave0_flag(a, FL_Z, t0)
    l_np = a.newlabel("L_np")
    a(f"s_cmp_lg_u32 s{S_W}, 7")
    a(f"s_cbranch_scc1 {l_np}")
    a(f"s_lshl_b32 s{s_t+2}, s{S_IDX}, 9")
    a(f"s_add_u32 s{s_t+2}, s{s_t+2}, {FL_Z}")
    poll(a, f"s{s_t+2}", 64, s_t)
    a.label(l_np)
    for i in range(16):
        a(f"ds_read_b128 {v(tb+4*i,4)}, {v(tadr)} offset:{1024*i}")
        if i == 11:
            a("s_waitcnt lgkmcnt(4)")
    a("s_barrier")
    stamp(a, 6)
    stamp(a, 4, 7)
    a(f"s_mul_i32 s{s_b}, s{S_IDX}, 45056")
    a(f"s_lshl_b32 s{s_i}, s{S_W}, 10")
    a(f"s_add_u32 s{s_b}, s{s_b}, s{s_i}")
    l1 = a.newlabel("L_f2a")
    for i in range(6):
        if i == 5:
            a(f"s_cmp_ge_u32 s{S_W}, 4")
            a(f"s_cbranch_scc1 {l1}")
        a(f"s_add_u32 m0, s{s_i}, {L2_ZB + i*8192}")
        a(f"s_add_u32 s{s_t}, s{s_b}, {WS_ZP + i*8192}")
        dma(a, l16, R_WS, f"s{s_t}", SCL)
    a.label(l1)
    a("s_waitcnt lgkmcnt(0)")
    for i in range(32):
        a(f"v_xor_b32 {v(tb+64+i)}, 0x80008000, {v(tb+32+i)}")
    a(f"s_mov_b32 s{s_i}, s{S_W}")
    a(f"s_sub_u32 s{s_b}, 11, s{s_h2}")
    a("s_waitcnt vmcnt(0)")
    a("s_barrier")
    stamp(a, 7)
    l3 = a.newlabel("L_t3")
    a(f"s_cmp_lt_u32 s{S_W}, 4")
    a(f"s_cbranch_scc1 {l3}")
    a(f"s_and_b32 s{s_t}, s{S_W}, 3")
    a(f"s_lshl_b32 s{s_t}, s{s_t}, 12")
    a(f"s_add_u32 m0, s{s_t}, {L3_TAB}")
    a(f"s_add_u32 s{s_t}, s{s_t}, {TAB_F3}")
    for k in range(4):
        a(f"buffer_load_dwordx4 {v(l16)}, {s(R_TAB,4)}, s{s_t} offen offset:{k*1024} lds")
    a.label(l3)
    l_loop = a.newlabel("L_f2l")
    a.label(l_loop)
    for pl in range(2):
        for ks in range(2):
            for h in range(2):
                a(f"ds_read_b64_tr_b16 {v(z[pl][ks]+2*h,2)}, {v(ra)} offset:{(pl*64+32*ks+16*h)*352}")
    a("s_waitcnt lgkmcnt(0)")
    for pl in range(2):
        for t in range(4):
            a(f"ds_read_b64_tr_b16 {v(wq[pl][t],2)}, {v(rw)} offset:{pl*22528+16*t*352}")
    for t in range(4):
        mfma(a, X[0][t], C[t][0], z[0][0], "0")
        mfma(a, X[1][t], C[t][0], z[1][0], "0")
        mfma(a, X[0][t], C[t][1], z[0][1])
        mfma(a, X[1][t], C[t][1], z[1][1])
        mfma(a, X[0][t], Sm[t][0], z[1][0])
        mfma(a, X[1][t], NS[t][0], z[0][0])
        mfma(a, X[0][t], Sm[t][1], z[1][1])
        mfma(a, X[1][t], NS[t][1], z[0][1])
    a("s_waitcnt lgkmcnt(0)")
    for t in range(4):
        wr_, wi_ = wu[2*(t&1)], wu[2*(t&1)+1]
        for pl, dst in ((0, wr_), (1, wi_)):
            for h in range(2):
                a(f"v_lshlrev_b32 {v(dst+2*h)}, 16, {v(wq[pl][t]+h)}")
                a(f"v_and_b32 {v(dst+2*h+1)}, 0xffff0000, {v(wq[pl][t]+h)}")
        re, im = X[0][t], X[1][t]
        for r in range(4):
            a(f"v_mul_f32 {v(tmp+r)}, {v(im+r)}, {v(wi_+r)}")
        for r in range(4):
            a(f"v_mul_f32 {v(im+r)}, {v(im+r)}, {v(wr_+r)}")
        for r in range(4):
            a(f"v_fmac_f32 {v(im+r)}, {v(re+r)}, {v(wi_+r)}")
        for r in range(4):
            a(f"v_fma_f32 {v(re+r)}, {v(re+r)}, {v(wr_+r)}, -{v(tmp+r)}")
        for pl in range(2):
            for h in range(2):
                a(f"v_cvt_pk_bf16_f32 {v(z[pl][t>>1]+2*(t&1)+h)}, {v(X[pl][t]+2*h)}, {v(X[pl][t]+2*h+1)}")
    for t in range(4):
        mfma(a, X[0][t], z[0][0], C[t][0], "0")
        mfma(a, X[1][t], z[1][0], C[t][0], "0")
        mfma(a, X[0][t], z[0][1], C[t][1])
        mfma(a, X[1][t], z[1][1], C[t][1])
        mfma(a, X[0][t], z[1][0], NS[t][0])
        mfma(a, X[1][t], z[0][0], Sm[t][0])
        mfma(a, X[0][t], z[1][1], NS[t][1])
        mfma(a, X[1][t], z[0][1], Sm[t][1])
    for t in range(4):
        for pl in range(2):
            r = X[pl][t]
            a(f"v_cvt_pk_bf16_f32 {v(r)}, {v(r)}, {v(r+1)}")
            a(f"v_cvt_pk_bf16_f32 {v(r+1)}, {v(r+2)}, {v(r+3)}")
            a(f"ds_write_b64 {v(wa)}, {v(r,2)} offset:{(pl*64+16*t)*352}")
    for r in (ra, rw, wa):
        a(f"v_add_u32 {v(r)}, 256, {v(r)}")
    a(f"s_add_u32 s{s_i}, s{s_i}, 8")
    a(f"s_cmp_lt_u32 s{s_i}, s{s_b}")
    a("s_waitcnt lgkmcnt(0)")
    a(f"s_cbranch_scc1 {l_loop}")
    sr, gv = ra, rw
    a(f"v_lshrrev_b32 {v(t0)}, 5, v0")
    a(f"v_and_b32 {v(t1)}, 31, v0")
    a(f"v_lshlrev_b32 {v(t1)}, 4, {v(t1)}")
    a(f"s_mul_i32 s{s_t}, s{S_W}, {16*352}")
    a(f"s_add_u32 s{s_t}, s{s_t}, {L2_ZB}")
    a(f"v_mul_u32_u24 {v(sr)}, 352, {v(t0)}")
    a(f"v_add3_u32 {v(sr)}, {v(sr)}, {v(t1)}, s{s_t}")
    a(f"v_mul_u32_u24 {v(gv)}, 45056, {v(t0)}")
    a(f"v_add_u32 {v(gv)}, {v(gv)}, {v(t1)}")
    a(f"s_and_b32 s{s_b}, s{S_W}, 3")
    a(f"s_lshl_b32 s{s_b}, s{s_b}, 11")
    a(f"s_lshl_b32 s{s_t}, s{s_h2}, 6")
    a(f"s_add_u32 s{s_b}, s{s_b}, s{s_t}")
    a(f"s_and_b32 s{s_t}, s{S_W}, 4")
    a(f"s_lshl_b32 s{s_t}, s{s_t}, 3")
    a(f"s_add_u32 s{s_b}, s{s_b}, s{s_t}")
    a(f"s_add_u32 s{s_b}, s{s_b}, s{s_k1}")
    a(f"s_mul_i32 s{s_b}, s{s_b}, 352")
    a(f"s_add_u32 s{s_b}, s{s_b}, {WS_VP}")
    a("s_barrier")
    stamp(a, 8)
    stamp(a, 5, 7)
    copy_out(a, sr, gv, [tb + 4*i for i in range(8)], 2*352, s_b, 90112, s_t)
    stamp(a, 6, 7)
    a("s_waitcnt vmcnt(0)")
    a("s_barrier")
    stamp(a, 7, 7)
    wave0_flag(a, FL_V, t0)
    a(f"s_xor_b32 s{s_t}, s{S_W}, 1")
    a(f"s_or_b32 s{s_t}, s2, s{s_t}")
    a(f"s_cbranch_scc1 {l_f3l}")
    advance_epoch(a, t0, s_t)
    a("s_waitcnt vmcnt(0)")


def f3(a, l_f3, l_f3l):
    UP = 1376
    vp = Pool("v", 1, 248)
    i16, g, l16 = [vp.get() for _ in range(3)]
    t0 = vp.get(3, 2); t1 = t0 + 1; t2 = t0 + 2
    s_t, s_b, s_i, s_row, s_p = S_T, S_T + 3, S_T + 4, S_T + 5, S_T + 6
    s_n, s_qt = S_N3, S_Q3
    a.label(l_f3l)
    a(f"s_mov_b32 s{S_PJ}, 0")
    a.label(l_f3)
    stamp(a, 1, 8)
    srd(a, R_A, P_X, 2621440); srd(a, R_B, P_B2, 1280); srd(a, R_C, P_OUT, 2621440)
    a(f"v_and_b32 {v(i16)}, 15, v0")
    a(f"v_lshrrev_b32 {v(g)}, 4, v0")
    a(f"v_lshlrev_b32 {v(l16)}, 4, v0")
    a(f"s_lshl_b32 s{s_t}, s{s_qt}, 3")
    a(f"s_add_u32 s{s_t}, s{s_t}, s{S_W}")
    a(f"s_lshl_b32 s{s_row}, s{s_t}, 6")
    a(f"s_add_u32 s{s_row}, s{s_row}, s{s_n}")
    a(f"s_mul_i32 s{s_row}, s{s_row}, 1280")
    a(f"s_lshl_b32 s{s_p}, s{s_n}, 5")
    a(f"s_add_u32 s{s_p}, s{s_p}, s{s_t}")
    a(f"s_mul_i32 s{s_p}, s{s_p}, 160")
    a(f"s_add_u32 s{s_p}, s{s_p}, {WS_P}")
    vp.get(101)
    l4, pa, pb = vp.get(), vp.get(), vp.get()
    a(f"v_lshlrev_b32 {v(l4)}, 2, v0")
    PA = [vp.get(4, 4) for _ in range(5)]
    PB = [vp.get() for _ in range(5)]
    a(f"buffer_load_dwordx4 {v(PA[3],4)}, {v(l16)}, {s(R_B,4)}, 0 offen")
    a(f"buffer_load_dword {v(PB[3])}, {v(l4)}, {s(R_B,4)}, 0 offen offset:1024")
    a(f"buffer_load_dwordx4 {v(PA[4],4)}, {v(l16)}, {s(R_A,4)}, s{s_row} offen")
    a(f"buffer_load_dword {v(PB[4])}, {v(l4)}, {s(R_A,4)}, s{s_row} offen offset:1024")
    divmod_const(a, t0, t1, 0, 10)
    a(f"v_mul_u32_u24 {v(pa)}, {2048*160}, {v(t0)}")
    a(f"v_lshl_add_u32 {v(pa)}, {v(t1)}, 4, {v(pa)}")
    a(f"v_add_u32 {v(t2)}, 256, v0")
    divmod_const(a, t0, t1, t2, 40)
    a(f"v_mul_u32_u24 {v(pb)}, {2048*160}, {v(t0)}")
    a(f"v_lshl_add_u32 {v(pb)}, {v(t1)}, 2, {v(pb)}")
    gf = vp.get(8, 4)
    sv, ph = vp.get(), vp.get()
    a(f"v_lshrrev_b32 {v(t0)}, 1, {v(i16)}")
    a(f"s_lshl_b32 s{s_t}, s{s_qt}, 9")
    a(f"s_add_u32 s{s_t}, s{s_t}, s{s_n}")
    a(f"v_lshlrev_b32 {v(sv)}, 6, {v(t0)}")
    a(f"v_add_u32 {v(sv)}, s{s_t}, {v(sv)}")
    a(f"v_lshlrev_b32 {v(t0)}, 2, {v(g)}")
    a(f"v_mul_u32_u24 {v(ph)}, {v(sv)}, {v(t0)}")
    a(f"v_and_b32 {v(t0)}, 1, v0")
    a(f"v_mul_u32_u24 {v(t0)}, 1536, {v(t0)}")
    a(f"v_add_u32 {v(ph)}, {v(ph)}, {v(t0)}")
    cs_ = [vp.get() for _ in range(4)]
    for e2 in range(4):
        for hh in range(2):
            e = 2 * e2 + hh
            ko = e if e < 4 else 16 + e - 4
            a(f"v_mad_u32_u24 {v(t1)}, {v(sv)}, {ko}, {v(ph)}")
            a(f"v_and_b32 {v(t1)}, 2047, {v(t1)}")
            a(f"v_cvt_f32_u32 {v(t1)}, {v(t1)}")
            a(f"v_mul_f32 {v(t1)}, {hex(f2u(1/2048))}, {v(t1)}")
            a(f"v_cos_f32 {v(cs_[hh])}, {v(t1)}")
            a(f"v_sin_f32 {v(cs_[2+hh])}, {v(t1)}")
        a(f"v_cvt_pk_bf16_f32 {v(gf+e2)}, {v(cs_[0])}, {v(cs_[1])}")
        a(f"v_cvt_pk_bf16_f32 {v(gf+4+e2)}, -{v(cs_[2])}, -{v(cs_[3])}")
    ra = [vp.get() for _ in range(3)]; ua = [vp.get() for _ in range(3)]
    a(f"v_lshrrev_b32 {v(t0)}, 2, v0")
    a(f"v_mul_u32_u24 {v(t0)}, 352, {v(t0)}")
    a(f"v_and_b32 {v(t1)}, 3, v0")
    a(f"v_lshl_add_u32 {v(t0)}, {v(t1)}, 3, {v(t0)}")
    a(f"v_mul_u32_u24 {v(t1)}, {2*UP}, {v(g)}")
    a(f"v_lshl_add_u32 {v(t1)}, {v(i16)}, 2, {v(t1)}")
    for k in range(3):
        a(f"s_add_u32 s{s_t}, s{S_W}, {8*k}")
        a(f"s_min_u32 s{s_t}, s{s_t}, 20")
        a(f"s_cmp_ge_u32 s{s_t}, 11")
        a(f"s_cselect_b32 s{s_t+1}, {22528-352}, 0")
        a(f"s_lshl_b32 s{s_b}, s{s_t}, 5")
        a(f"s_add_u32 s{s_t+1}, s{s_t+1}, s{s_b}")
        a(f"v_add_u32 {v(ra[k])}, s{s_t+1}, {v(t0)}")
        a(f"s_lshl_b32 s{s_b}, s{s_t}, 6")
        a(f"s_add_u32 s{s_b}, s{s_b}, {L3_UX}")
        a(f"v_add_u32 {v(ua[k])}, s{s_b}, {v(t1)}")
    a(f"v_add_u32 {v(t0)}, 4, {v(ua[2])}")
    a(f"v_subrev_u32 {v(t1)}, 28, {v(ua[2])}")
    a(f"v_cmp_eq_u32 vcc, 7, {v(i16)}")
    a(f"v_cndmask_b32 {v(t0)}, {v(t0)}, {v(t1)}, vcc")
    a(f"s_cmp_ge_u32 s{S_W}, 4")
    a(f"s_cselect_b64 vcc, -1, 0")
    a(f"v_cndmask_b32 {v(ua[2])}, {v(ua[2])}, {v(t0)}, vcc")
    ub0, ub1, swr, srd0, srd1 = [vp.get() for _ in range(5)]
    a(f"s_mul_i32 s{s_t}, s{S_W}, {UP}")
    a(f"s_add_u32 s{s_t}, s{s_t}, {L3_UX}")
    a(f"v_mul_u32_u24 {v(t0)}, 80, {v(g)}")
    a(f"v_add_u32 {v(t0)}, {v(t0)}, {v(i16)}")
    a(f"v_lshlrev_b32 {v(t0)}, 2, {v(t0)}")
    a(f"v_add_u32 {v(ub0)}, s{s_t}, {v(t0)}")
    a(f"s_add_u32 s{s_t}, s{s_t}, {260*4}")
    a(f"v_sub_u32 {v(ub1)}, s{s_t}, {v(t0)}")
    a(f"s_lshl_b32 s{s_t}, s{S_W}, 11")
    a(f"s_add_u32 s{s_t}, s{s_t}, {L3_SX}")
    a(f"v_lshlrev_b32 {v(t0)}, 6, {v(i16)}")
    a(f"v_lshl_add_u32 {v(t0)}, {v(g)}, 3, {v(t0)}")
    a(f"v_add_u32 {v(swr)}, s{s_t}, {v(t0)}")
    a(f"v_add_u32 {v(srd0)}, s{s_t}, {v(l16)}")
    a(f"v_add_u32 {v(srd1)}, s{s_t}, {v(l4)}")
    vq = Pool("v", 52, 108)
    tb = vq.get(56, 4)
    G32 = [tb + 4*i for i in range(8)]; G20 = [tb + 32, tb + 36]; TW = [tb + 40 + 4*i for i in range(4)]
    a(f"v_add_u32 {v(t0)}, {L3_TAB}, {v(l16)}")
    for i in range(14):
        a(f"ds_read_b128 {v(tb+4*i,4)}, {v(t0)} offset:{1024*i}")
    o = vp.get(10, 2); w_ = vp.get(10, 2); xx = vp.get(10, 2); sf = vp.get(10, 2)
    pfl = vp.get(3, 2)
    s_have, s_pf = S_T + 7, S_T + 8
    a(f"s_mov_b32 s{s_have}, 0")
    a(f"s_lshl_b32 s{s_pf}, s{s_n}, 2")
    a(f"s_add_u32 s{s_pf}, s{s_pf}, s{s_qt}")
    a(f"s_lshl_b32 s{s_pf}, s{s_pf}, 8")
    a(f"s_add_u32 s{s_pf}, s{s_pf}, {FL_P}")
    a(f"v_min_u32 {v(pfl+2)}, 23, v0")
    a(f"v_lshlrev_b32 {v(pfl+2)}, 3, {v(pfl+2)}")

    def unpack(dst, A_, B_):
        for i in range(5):
            src = A_ + i if i < 4 else B_
            a(f"v_lshlrev_b32 {v(dst+2*i)}, 16, {v(src)}")
            a(f"v_and_b32 {v(dst+2*i+1)}, 0xffff0000, {v(src)}")

    def load_p():
        for k in range(3):
            a(f"s_add_u32 s{s_t}, s{s_p}, {k*2621440}")
            a(f"buffer_load_dwordx4 {v(PA[k],4)}, {v(pa)}, {s(R_WS,4)}, s{s_t} offen {SGL}")
            a(f"buffer_load_dword {v(PB[k])}, {v(pb)}, {s(R_WS,4)}, s{s_t} offen {SGL}")

    def look():
        a(f"buffer_load_dwordx2 {v(pfl,2)}, {v(pfl+2)}, {s(R_WS,4)}, s{s_pf} offen {SGP}")

    def try_p(last=False):
        l_d, l_no, l_again = a.newlabel("L_tp"), a.newlabel("L_tn"), a.newlabel("L_ta")
        a(f"s_cmp_lg_u32 s{s_have}, 0")
        a(f"s_cbranch_scc1 {l_d}")
        if last:
            a(f"s_mov_b32 s{s_t+1}, 0x40000")
            a.label(l_again)
        a("s_waitcnt vmcnt(0)")
        a(f"v_cmp_ne_u64 vcc, s[{S_E}:{S_E+1}], {v(pfl,2)}")
        a(f"s_cbranch_vccz {l_no}")
        look()
        if last:
            a(f"s_sub_u32 s{s_t+1}, s{s_t+1}, 1")
            a(f"s_cbranch_scc0 {l_again}")
        else:
            a(f"s_branch {l_d}")
        a.label(l_no)
        load_p()
        a(f"s_mov_b32 s{s_have}, 1")
        a.label(l_d)

    stamp(a, 2, 8)
    a("s_waitcnt vmcnt(0)")
    stamp(a, 3, 8)
    l_nf = a.newlabel("L_nf")
    a(f"s_cmp_eq_u32 s{S_PJ}, 0")
    a(f"s_cbranch_scc1 {l_nf}")
    push_flag(a, S_FLAG, 8, 8, t0, SCG)
    a.label(l_nf)
    unpack(o, PA[3], PB[3])
    unpack(xx, PA[4], PB[4])
    nsn = vp.get(8, 4); one2 = vp.get(2, 2)
    a("s_waitcnt lgkmcnt(0)")
    for t in range(2):
        for r in range(4):
            a(f"v_xor_b32 {v(nsn+4*t+r)}, 0x80000000, {v(TW[2*t+1]+r)}")
    a(f"v_mov_b32 {v(one2)}, 1.0"); a(f"v_mov_b32 {v(one2+1)}, 1.0")
    l_nv = a.newlabel("L_nv")
    a(f"s_cmp_lt_u32 s{S_W}, 4")
    a(f"s_cbranch_scc1 {l_nv}")
    a(f"s_lshl_b32 s{s_t+2}, s{s_n}, 9")
    a(f"s_add_u32 s{s_t+2}, s{s_t+2}, {FL_V}")
    poll(a, f"s{s_t+2}", 64, s_t, depth=2)
    stamp3(a, 7)
    stamp(a, 8, 7)
    a(f"s_sub_u32 s{s_i}, s{S_W}, 4")
    a(f"s_mul_i32 s{s_i}, s{s_i}, 11264")
    a(f"s_mul_i32 s{s_b}, s{s_n}, 45056")
    a(f"s_add_u32 s{s_b}, s{s_b}, s{s_i}")
    for i in range(3):
        a(f"s_add_u32 m0, s{s_i}, {L3_VB + i*4096}")
        a(f"s_add_u32 s{s_t}, s{s_b}, {WS_VP + i*4096}")
        for k in range(4 if i < 2 else 3):
            a(f"buffer_load_dwordx4 {v(l16)}, {s(R_WS,4)}, s{s_t} offen offset:{k*1024} {SCL} lds")
    a("s_waitcnt vmcnt(0)")
    a.label(l_nv)
    a("s_barrier")
    stamp3(a, 6)
    stamp(a, 4, 8)
    look()
    vq = Pool("v", 8, 52)
    vf = [[vq.get(4, 4) for ks in range(2)] for k in range(3)]
    dd = [vq.get(4, 4) for k in range(4)]
    tmp = vq.get(4, 4)
    for k in range(3):
        for ks in range(2):
            for h in range(2):
                a(f"ds_read_b64_tr_b16 {v(vf[k][ks]+2*h,2)}, {v(ra[k])} offset:{(32*ks+16*h)*352}")
    for k in range(3):
        a(f"s_waitcnt lgkmcnt({8-4*k})")
        mfma(a, dd[k], gf, vf[k][0], "0")
        mfma(a, dd[k], gf + 4, vf[k][1])
    for k in range(3):
        a(f"v_cvt_pk_bf16_f32 {v(dd[k])}, {v(dd[k])}, {v(dd[k]+1)}")
        a(f"v_cvt_pk_bf16_f32 {v(dd[k]+1)}, {v(dd[k]+2)}, {v(dd[k]+3)}")
        a(f"ds_write_b32 {v(ua[k])}, {v(dd[k])}")
        a(f"ds_write_b32 {v(ua[k])}, {v(dd[k]+1)} offset:{UP}")
    a("s_waitcnt lgkmcnt(0)")
    a("s_barrier")
    stamp(a, 5, 8)
    uf = vf[0]
    a(f"ds_read2_b32 {v(uf[0],2)}, {v(ub0)} offset0:0 offset1:20")
    a(f"ds_read2_b32 {v(uf[0]+2,2)}, {v(ub0)} offset0:40 offset1:60")
    a(f"ds_read2_b32 {v(uf[1],2)}, {v(ub1)} offset0:60 offset1:40")
    a(f"ds_read2_b32 {v(uf[1]+2,2)}, {v(ub1)} offset0:20 offset1:0")
    a("s_waitcnt lgkmcnt(2)")
    for t in range(2):
        for op in range(2):
            mfma(a, dd[2*t+op], uf[0], G32[4*t+2*op], "0")
    a("s_waitcnt lgkmcnt(0)")
    for t in range(2):
        for op in range(2):
            mfma(a, dd[2*t+op], uf[1], G32[4*t+2*op+1])
    try_p()
    tf = vf[1]
    for t in range(2):
        twiddle(a, dd[2*t], dd[2*t+1], TW[2*t], TW[2*t+1], tmp, nsn + 4*t)
        for pl in range(2):
            for h in range(2):
                a(f"v_cvt_pk_bf16_f32 {v(tf[t]+2*pl+h)}, {v(dd[2*t+pl]+2*h)}, {v(dd[2*t+pl]+2*h+1)}")
        for tp in range(2):
            mfma(a, dd[2*t+tp], tf[t], G20[tp], "0")
    for t in range(2):
        for tp in range(2):
            r = dd[2*t+tp]
            a(f"v_cvt_pk_bf16_f32 {v(r)}, {v(r)}, {v(r+1)}")
            a(f"v_cvt_pk_bf16_f32 {v(r+1)}, {v(r+2)}, {v(r+3)}")
            a(f"ds_write_b64 {v(swr)}, {v(r,2)} offset:{tp*1024+t*32}")
    stamp(a, 6, 8)
    try_p(True)
    a("s_waitcnt lgkmcnt(0)")
    a(f"ds_read_b128 {v(PA[3],4)}, {v(srd0)}")
    a(f"ds_read_b32 {v(PB[3])}, {v(srd1)} offset:1024")
    stamp3(a, 8)
    stamp(a, 7, 8)
    for k in range(3):
        a(f"s_waitcnt vmcnt({4-2*k})")
        unpack(w_, PA[k], PB[k])
        for i in range(5):
            a(f"v_pk_add_f32 {v(o+2*i,2)}, {v(o+2*i,2)}, {v(w_+2*i,2)}")
    for i in range(10):
        a(f"v_mul_f32 {v(w_+i)}, {hex(f2u(-np.log2(np.e)))}, {v(o+i)}")
    for i in range(10):
        a(f"v_exp_f32 {v(w_+i)}, {v(w_+i)}")
    a("s_waitcnt lgkmcnt(0)")
    unpack(sf, PA[3], PB[3])
    for i in range(5):
        a(f"v_pk_add_f32 {v(w_+2*i,2)}, {v(w_+2*i,2)}, {v(one2,2)}")
    for i in range(5):
        a(f"v_pk_mul_f32 {v(o+2*i,2)}, {v(o+2*i,2)}, {v(sf+2*i,2)}")
    for i in range(10):
        a(f"v_rcp_f32 {v(w_+i)}, {v(w_+i)}")
    for i in range(5):
        a(f"v_pk_fma_f32 {v(o+2*i,2)}, {v(o+2*i,2)}, {v(w_+2*i,2)}, {v(xx+2*i,2)}")
    for i in range(5):
        dst = PA[1] + i if i < 4 else PB[1]
        a(f"v_cvt_pk_bf16_f32 {v(dst)}, {v(o+2*i)}, {v(o+2*i+1)}")
    stamp(a, 8, 8)
    a(f"buffer_store_dwordx4 {v(PA[1],4)}, {v(l16)}, {s(R_C,4)}, s{s_row} offen")
    a(f"buffer_store_dword {v(PB[1])}, {v(l4)}, {s(R_C,4)}, s{s_row} offen offset:1024")


def build():
    a = Asm()
    a("s_cmpk_ge_u32 s2, 0x100")
    a("s_cbranch_scc1 L_exit")
    a("s_load_dwordx16 s[4:19], s[0:1], 0")
    a("s_load_dwordx4 s[20:23], s[0:1], 64")
    a("s_load_dwordx2 s[24:25], s[0:1], 80")
    stamp_begin(a)
    a(f"s_getpc_b64 s[{R_TAB}:{R_TAB+1}]")
    a(f"s_add_u32 s{R_TAB}, s{R_TAB}, ctab@rel32@lo+4")
    a(f"s_addc_u32 s{R_TAB+1}, s{R_TAB+1}, ctab@rel32@hi+12")
    a(f"s_mov_b32 s{R_TAB+2}, {TAB_END}")
    a(f"s_mov_b32 s{R_TAB+3}, 0x20000")
    a("v_lshrrev_b32 v1, 6, v0")
    a(f"v_readfirstlane_b32 s{S_W}, v1")
    a("v_and_b32 v0, 63, v0")
    a("v_and_b32 v1, 15, v0")
    a("v_lshrrev_b32 v2, 4, v0")
    a("v_lshlrev_b32 v3, 4, v0")
    t = S_T
    a(f"s_and_b32 s{t}, s2, 7")
    a(f"s_lshr_b32 s{t+1}, s2, 3")
    a(f"s_lshl_b32 s{S_N3}, s{t}, 3")
    a(f"s_add_u32 s{S_IDX}, s{S_N3}, s{t+1}")
    a(f"s_lshr_b32 s{t+2}, s{t+1}, 2")
    a(f"s_add_u32 s{S_N3}, s{S_N3}, s{t+2}")
    a(f"s_and_b32 s{S_Q3}, s{t+1}, 3")
    a(f"s_sub_u32 s{S_PJ}, s{t+2}, 2")
    if "oldmap" in OPT:
        a(f"s_mul_i32 s{t+3}, s{t}, 6")
        a(f"s_add_u32 s{t+3}, s{t+3}, s{S_PJ}")
        a(f"s_and_b32 s{S_RB}, s{t+3}, 15")
        a(f"s_lshr_b32 s{S_KT}, s{t+3}, 4")
    else:
        a(f"s_lshl_b32 s{S_RB}, s{t}, 1")
        a(f"s_sub_u32 s{S_KT}, s{S_PJ}, 3")
        a(f"s_cselect_b32 s{S_KT}, s{S_PJ}, s{S_KT}")
        a(f"s_cselect_b32 s{t+3}, 0, 1")
        a(f"s_add_u32 s{S_RB}, s{S_RB}, s{t+3}")
    a(f"s_mov_b32 s{S_SUB}, s{S_Q3}")
    a(f"s_mul_i32 s{S_FLAG}, s{S_RB}, 3")
    a(f"s_add_u32 s{S_FLAG}, s{S_FLAG}, s{S_KT}")
    a(f"s_lshl_b32 s{S_FLAG}, s{S_FLAG}, 2")
    a(f"s_add_u32 s{S_FLAG}, s{S_FLAG}, s{S_SUB}")
    a(f"s_add_u32 s{t+3}, s{S_IDX}, 192")
    a(f"s_cmp_lt_u32 s{t+1}, 8")
    a(f"s_cselect_b32 s{S_FLAG}, s{t+3}, s{S_FLAG}")
    a("s_waitcnt lgkmcnt(0)")
    a(f"s_add_u32 s{t+4}, s{P_WS}, {WS_EP + ((192<<20) if "wsend" in OPT else 0)}")
    a(f"s_addc_u32 s{t+5}, s{P_WS+1}, 0")
    a(f"s_load_dwordx2 s[{S_E}:{S_E+1}], s[{t+4}:{t+5}], 0")
    if "wsend" in OPT:
        a(f"s_add_u32 s{P_WS}, s{P_WS}, {192<<20}")
        a(f"s_addc_u32 s{P_WS+1}, s{P_WS+1}, 0")
    srd(a, R_WS, P_WS, WS_END if "p2x" not in OPT else 64 << 20)
    a(f"s_cmp_ge_u32 s{t+1}, 8")
    a("s_cbranch_scc1 L_gemm")
    for _ in range(int(os.environ.get("DELAY_FFT", "0"))):
        a("s_sleep 64")
    fft_head(a)
    a("s_branch L_fft")
    a.label("L_gemm")
    for _ in range(int(os.environ.get("DELAY_GEMM", "0"))):
        a("s_sleep 64")
    a(f"s_cmp_lt_u32 s{S_W}, 4")
    a("s_cbranch_scc1 L_comp")
    gemm_loader(a, "L_f3l")
    a.label("L_comp")
    gemm_compute(a, "L_f3")
    a.label("L_fft")
    fft_role(a, "L_f3", "L_f3l")
    f3(a, "L_f3", "L_f3l")
    for _ in range(int(os.environ.get("DELAY_END", "0"))):
        a("s_sleep 64")
    stamp_end(a)
    a.label("L_exit")
    a("s_endpgm")
    a.resolve()
    nv, ns = a.max_regs()
    print("instr", len(a.ins), "vgpr", nv, "sgpr", ns, file=sys.stderr)
    kn = NAME + "_kernel"
    out = "; generated by gen/gen2.py (hand-written generator)\n"
    out += "; @launch grid=(256,1,1) block=(512,1,1) lds=163840\n"
    out += '.amdgcn_target "amdgcn-amd-amdhsa--gfx950"\n.text\n'
    out += f".globl {kn}\n.p2align 8\n.type {kn},@function\n{kn}:\n" + a.text()
    out += f'''.section .rodata,"a"
.p2align 6
.amdhsa_kernel {kn}
  .amdhsa_next_free_vgpr 256
  .amdhsa_next_free_sgpr {ns}
  .amdhsa_accum_offset 256
  .amdhsa_group_segment_fixed_size 0
  .amdhsa_kernarg_size 88
  .amdhsa_user_sgpr_count 2
  .amdhsa_user_sgpr_kernarg_segment_ptr 1
  .amdhsa_system_sgpr_workgroup_id_x 1
  .amdhsa_float_denorm_mode_32 3
.end_amdhsa_kernel
'''
    out += tables.as_asm("ctab", tables.tab_f1() + tables.tab_f2()[:16384] + tables.tab_f3())
    return out


if __name__ == "__main__":
    path = sys.argv[1] if len(sys.argv) > 1 else f"cdna_kernels/{NAME}.s"
    open(path, "w").write(build())
```

```python
import sys, struct, os
import numpy as np
from asmlib import Asm, Pool, v, s
import tables

NAME = "recurrent_scan__spectral_gfnet__mixer_channel_mlp__prompt"
STAMP = int(os.environ.get("STAMP", "0"))
OPT = set(os.environ.get("OPT", "").split(","))

WS_H = 0
WS_ZP = WS_H + 2048 * 1536 * 2
WS_VP = WS_ZP + 64 * 45056
WS_P = WS_VP + 64 * 45056
WS_ST = WS_P + 3 * 2621440
WS_EP = WS_ST + 2048 * 16
WS_FL = WS_EP + 128
FL_H = WS_FL
FL_M = FL_H + 192 * 128
FL_Z = FL_M + 2048
FL_V = FL_Z + 64 * 512
FL_P = FL_V + 64 * 512
WS_END = FL_P + 256 * 256
WS_DBG = 24 << 20
TAB_F1, TAB_F2, TAB_F3, TAB_END = 0, 16384, 32768, 49152
WSOFF = (192 << 20) if "wsend" in OPT else 0
SC = "sc1"
SCG = "" if "l2x" in OPT else "sc1"
SGL = os.environ.get("SGL", "sc1")
SGP = os.environ.get("SGP", "sc1")
SCL = os.environ.get("SCL", "sc1")

def f2u(x):
    return struct.unpack("<I", struct.pack("<f", x))[0]

P_X, P_WR, P_WI, P_W1, P_B1, P_W2, P_B2, P_OUT, P_DBG, P_WS = 4, 6, 8, 12, 14, 16, 18, 20, 22, 24
R_WS, R_TAB, R_A, R_B, R_C, R_D, R_DBG = 28, 32, 36, 40, 44, 48, 52
S_W = 26
S_RB, S_SUB, S_KT, S_IDX, S_N3, S_Q3, S_FLAG = 56, 57, 58, 59, 60, 61, 62
S_F2 = 63
S_E = 10
S_PJ = 27
STAG = int(os.environ.get("STAG", "5"))
DEPTH = int(os.environ.get("DEPTH", "3"))
S_T = 64
NSTAMP = 10
ST0 = 80


def stamp(a, i, mode=None):
    if (mode is None and STAMP and (STAMP <= 2 or i in (0, NSTAMP - 1))) or (mode is not None and STAMP == mode):
        a(f"s_memtime s[{ST0+2*i}:{ST0+2*i+1}]")


def stamp3(a, i):
    if STAMP == 1:
        stamp(a, i)


def stamp_begin(a):
    if STAMP:
        for i in range(ST0 + 2, ST0 + 2 * NSTAMP):
            a(f"s_mov_b32 s{i}, 0")
        a("s_memrealtime s[100:101]")
        stamp(a, 0)


def stamp_end(a):
    if STAMP:
        a("s_waitcnt vmcnt(0)")
        stamp(a, NSTAMP - 1)
        a("s_memrealtime s[64:65]")
        a("s_waitcnt lgkmcnt(0)")
        for i in range(NSTAMP):
            a(f"v_mov_b32 v{8+i}, s{ST0+2*i}")
        a(f"v_mov_b32 v{8+NSTAMP}, s100")
        a(f"v_mov_b32 v{9+NSTAMP}, s64")
        a("s_lshl_b32 s66, s2, 3")
        a(f"s_add_u32 s66, s66, s{S_W}")
        a("s_lshl_b32 s66, s66, 6")
        a(f"s_add_u32 s66, s66, {WS_DBG}")
        a(f"s_mov_b32 s{R_WS+2}, 0x2000000")
        a("v_mov_b32 v1, 0")
        a("s_mov_b64 exec, 1")
        for i in range(3):
            a(f"buffer_store_dwordx4 v[{8+4*i}:{11+4*i}], v1, {s(R_WS,4)}, s66 offen offset:{16*i}")


def srd(a, dst, ptr, size):
    a(f"s_mov_b32 s{dst}, s{ptr}")
    a(f"s_mov_b32 s{dst+1}, s{ptr+1}")
    a(f"s_mov_b32 s{dst+2}, {size}")
    a(f"s_mov_b32 s{dst+3}, 0x20000")


def dma(a, voff, srd_, soff, extra=""):
    a(f"buffer_load_dwordx4 {v(voff)}, {s(srd_,4)}, {soff} offen {extra + ' ' if extra else ''}lds")


def bf16r(a, dst, src):
    a(f"v_cvt_pk_bf16_f32 {v(dst)}, {v(src)}, {v(src)}")
    a(f"v_lshlrev_b32 {v(dst)}, 16, {v(dst)}")


def mfma_s(d, A, B, c=None):
    return f"v_mfma_f32_16x16x32_bf16 {v(d,4)}, {v(A,4)}, {v(B,4)}, {v(d,4) if c is None else c}"


def mfma(a, d, A, B, c=None):
    a(mfma_s(d, A, B, c))


def divmod_const(a, q, r, x, c):
    m = (1 << 18) // c + 1
    for t in range(2048):
        assert (t * m) >> 18 == t // c
    a(f"v_mul_u32_u24 {v(q)}, {m}, {v(x)}")
    a(f"v_lshrrev_b32 {v(q)}, 18, {v(q)}")
    a(f"v_mul_u32_u24 {v(r)}, {c}, {v(q)}")
    a(f"v_sub_u32 {v(r)}, {v(x)}, {v(r)}")


def interleave(a, main, fill, per=1):
    fi = 0
    for m in main:
        a(m)
        for _ in range(per):
            if fi < len(fill):
                a(fill[fi]); fi += 1
    while fi < len(fill):
        a(fill[fi]); fi += 1


def weave(a, A, B):
    na, nb = len(A), len(B)
    ia = ib = 0
    while ia < na or ib < nb:
        if ib >= nb or (ia < na and ia * nb <= ib * na):
            a(A[ia]); ia += 1
        else:
            a(B[ib]); ib += 1


class VM:
    def __init__(self, a):
        self.a, self.q = a, []
    def op(self, tag, n=1):
        self.q += [tag] * n
    def wait(self, *tags):
        last = max([i for i, t in enumerate(self.q) if t in tags], default=-1)
        if last < 0:
            return
        n = len(self.q) - 1 - last
        assert n < 64
        self.a(f"s_waitcnt vmcnt({n})")
        self.q = self.q[last + 1:]
    def drain(self):
        self.a("s_waitcnt vmcnt(0)")
        self.q = []


def nonce(a):
    a(f"s_mul_i32 s{S_E}, s{S_E}, 1664525")
    a(f"s_add_u32 s{S_E}, s{S_E}, 1013904223")
    a(f"s_mul_i32 s{S_E+1}, s{S_E+1}, 22695477")
    a(f"s_add_u32 s{S_E+1}, s{S_E+1}, 1")


def advance_epoch(a, vt, s_t):
    for i in range(3):
        poll(a, FL_M + 512 * i, 64, s_t, sleep=8)
    a(f"v_mov_b32 {v(vt)}, s{S_E}")
    a(f"v_mov_b32 {v(vt+1)}, s{S_E+1}")
    a(f"v_mov_b32 {v(vt+2)}, 0")
    a(f"s_mov_b32 s{S_F2}, {WS_EP}")
    a("s_mov_b64 exec, 1")
    a(f"buffer_store_dwordx2 {v(vt,2)}, {v(vt+2)}, {s(R_WS,4)}, s{S_F2} offen {SC}")
    a("s_mov_b64 exec, -1")


def push_flag(a, s_base, nrec, shift, vt, sc=SC):
    a(f"v_mov_b32 {v(vt)}, s{S_E}")
    a(f"v_mov_b32 {v(vt+1)}, s{S_E+1}")
    a(f"v_lshlrev_b32 {v(vt+2)}, {shift}, v0")
    if nrec < 64:
        a(f"s_mov_b64 exec, {(1 << nrec) - 1}")
    a(f"buffer_store_dwordx2 {v(vt,2)}, {v(vt+2)}, {s(R_WS,4)}, s{s_base} offen {sc}")
    if nrec < 64:
        a("s_mov_b64 exec, -1")


V_POLL = 248


def poll_addr(a, base, ntag, s_t):
    ad = V_POLL + 6
    a(f"v_min_u32 {v(ad)}, {ntag-1}, v0")
    a(f"v_lshlrev_b32 {v(ad)}, 3, {v(ad)}")
    a(f"s_mov_b32 s{s_t+1}, {base}")


def poll(a, base, ntag, s_t, sleep=None, depth=None, sc=SC):
    lp, done = a.newlabel("L_poll"), a.newlabel("L_pd")
    ad = V_POLL + 6
    poll_addr(a, base, ntag, s_t)
    ld = lambda i: a(f"buffer_load_dwordx2 {v(V_POLL+2*i,2)}, {v(ad)}, {s(R_WS,4)}, s{s_t+1} offen {sc}")
    a(f"s_mov_b32 s{s_t}, 0x20000")
    depth = 1 if sleep else (depth or DEPTH)
    for i in range(depth - 1):
        ld(i)
        a(f"s_sleep {STAG}")
    a.label(lp)
    for i in range(depth):
        ld((i + depth - 1) % depth)
        a(f"s_waitcnt vmcnt({depth-1})")
        a(f"v_cmp_ne_u64 vcc, s[{S_E}:{S_E+1}], {v(V_POLL+2*i,2)}")
        a(f"s_cbranch_vccz {done}")
        if sleep:
            a(f"s_sleep {sleep}")
    a(f"s_sub_u32 s{s_t}, s{s_t}, 1")
    a(f"s_cbranch_scc0 {lp}")
    a.label(done)


LX = 0
LW = 65536
WSL = 20480
L_STAT = 147456
L_CS = L_STAT + 2048
L_STG = 102400
L3_VB, L3_TAB, L3_UX, L3_SX = 0, 147456, 61440, 61440 + 8 * 1376


def gemm_compute(a, l_f3):
    vp = Pool("v", 1, 248)
    i16, g, r_ = [vp.get() for _ in range(3)]
    t0 = vp.get(4, 2); t1 = t0 + 1; cq = vp.get(); cnt = vp.get(2, 2)
    s_wm, s_wn, s_dx, s_dw, s_cnt, s_t = S_T, S_T + 1, S_T + 2, S_T + 3, S_T + 4, S_T + 5
    s_cb = S_T + 10
    if "prio" in OPT:
        a("s_setprio 2")
    a(f"s_and_b32 s{s_wm}, s{S_W}, 1")
    a(f"s_lshr_b32 s{s_wn}, s{S_W}, 1")
    a(f"s_lshl_b32 s{s_cb}, s{S_KT}, 2")
    a(f"s_add_u32 s{s_cb}, s{s_cb}, s{S_SUB}")
    a(f"v_and_b32 {v(i16)}, 15, v0")
    a(f"v_lshrrev_b32 {v(g)}, 4, v0")
    acc = [[vp.get(4, 4) for mm in range(4)] for tt in range(5)]
    xf = [[vp.get(4, 4) for mm in range(4)] for st in range(2)]
    wf = [[vp.get(4, 4) for tt in range(5)] for st in range(2)]
    cs = acc[4]
    ones = wf[0][4]
    b1r = [vp.get(2, 2) for tt in range(4)]
    srd(a, R_C, P_B1, 3072)
    a(f"s_lshl_b32 s{s_t}, s{s_cb}, 8")
    a(f"s_lshl_b32 s{s_t+1}, s{s_wn}, 7")
    a(f"s_add_u32 s{s_t}, s{s_t}, s{s_t+1}")
    a(f"s_lshl_b32 s{s_t+1}, s{s_wm}, 6")
    a(f"v_lshlrev_b32 {v(t0)}, 3, {v(g)}")
    a(f"v_add_u32 {v(t0)}, s{s_t+1}, {v(t0)}")
    a(f"v_xor_b32 {v(t1)}, 64, {v(t0)}")
    for tt in range(4):
        a(f"buffer_load_dwordx2 {v(b1r[tt],2)}, {v(t0 if tt < 2 else t1)}, {s(R_C,4)}, s{s_t} offen offset:{32*(tt&1)}")
    if "nocode" not in OPT:
        a(f"s_getpc_b64 s[{R_D}:{R_D+1}]")
        a(f"s_add_u32 s{R_D}, s{R_D}, {NAME}_kernel@rel32@lo+4")
        a(f"s_addc_u32 s{R_D+1}, s{R_D+1}, {NAME}_kernel@rel32@hi+12")
        a(f"s_mov_b32 s{R_D+2}, L_exit-{NAME}_kernel")
        a(f"s_mov_b32 s{R_D+3}, 0x20000")
        a(f"s_lshr_b32 s{s_t}, s2, 3")
        a(f"s_and_b32 s{s_t}, s{s_t}, 7")
        a(f"s_lshl_b32 s{s_t}, s{s_t}, 2")
        a(f"s_add_u32 s{s_t}, s{s_t}, s{S_W}")
        a(f"s_lshl_b32 s{s_t}, s{s_t}, 10")
        a(f"v_lshlrev_b32 {v(t0)}, 4, v0")
        a(f"buffer_load_dwordx4 {v(V_POLL,4)}, {v(t0)}, {s(R_D,4)}, s{s_t} offen")
        a(f"s_and_b32 s{s_t}, s{s_t}, 0x3fff")
        a(f"s_add_u32 s{s_t}, s{s_t}, {TAB_F3}")
        a(f"buffer_load_dwordx4 {v(V_POLL,4)}, {v(t0)}, {s(R_TAB,4)}, s{s_t} offen")
    xa = [vp.get(), vp.get()]
    a(f"v_and_b32 {v(t0)}, 7, v0")
    a(f"v_xor_b32 {v(t0)}, {v(t0)}, {v(g)}")
    a(f"v_lshlrev_b32 {v(t0)}, 4, {v(t0)}")
    a(f"v_lshl_add_u32 {v(t0)}, {v(i16)}, 7, {v(t0)}")
    a(f"s_lshl_b32 s{s_t}, s{s_wm}, 13")
    a(f"v_add_u32 {v(xa[0])}, s{s_t}, {v(t0)}")
    a(f"v_xor_b32 {v(xa[1])}, 64, {v(xa[0])}")
    wa = [vp.get() for _ in range(4)]
    a(f"v_lshrrev_b32 {v(r_)}, 2, {v(i16)}")
    a(f"v_and_b32 {v(cq)}, 3, v0")
    a(f"v_lshl_add_u32 {v(t0)}, {v(g)}, 3, {v(r_)}")
    a(f"v_lshlrev_b32 {v(t0)}, 8, {v(t0)}")
    a(f"v_lshl_add_u32 {v(t0)}, {v(cq)}, 3, {v(t0)}")
    a(f"v_add_u32 {v(t0)}, {LW}, {v(t0)}")
    a(f"v_and_b32 {v(t1)}, 1, {v(g)}")
    a(f"v_lshl_or_b32 {v(t1)}, {v(t1)}, 2, {v(r_)}")
    a(f"s_lshl_b32 s{s_t}, s{s_wn}, 2")
    a(f"s_lshl_b32 s{s_t+1}, s{s_wm}, 1")
    a(f"s_or_b32 s{s_t}, s{s_t}, s{s_t+1}")
    a(f"v_xor_b32 {v(t1)}, s{s_t}, {v(t1)}")
    for tt in range(4):
        a(f"v_xor_b32 {v(wa[tt])}, {tt}, {v(t1)}")
        a(f"v_lshl_add_u32 {v(wa[tt])}, {v(wa[tt])}, 5, {v(t0)}")
    xb = vp.get(); wb = [vp.get(), vp.get()]; l16 = vp.get()
    a(f"v_lshlrev_b32 {v(l16)}, 4, v0")
    a(f"s_lshl_b32 s{s_t}, s{s_wm}, 12")
    a(f"s_add_u32 s{s_t}, s{s_t}, {LX + 2*16384}")
    a(f"v_add_u32 {v(xb)}, s{s_t}, {v(l16)}")
    a(f"v_lshrrev_b32 {v(r_)}, 2, v0")
    a(f"v_mul_u32_u24 {v(t0)}, 320, {v(r_)}")
    a(f"v_lshl_add_u32 {v(t0)}, {v(cq)}, 3, {v(t0)}")
    a(f"v_add_u32 {v(t0)}, {LW + 2*WSL}, {v(t0)}")
    a(f"v_and_b32 {v(t1)}, 1, {v(g)}")
    a(f"s_mul_i32 s{s_t}, s{s_wn}, 5")
    a(f"v_xor_b32 {v(wb[0])}, s{s_t}, {v(t1)}")
    a(f"v_lshl_add_u32 {v(wb[0])}, {v(wb[0])}, 5, {v(t0)}")
    a(f"s_add_u32 s{s_t}, s{s_t}, 1")
    a(f"v_xor_b32 {v(wb[1])}, s{s_t}, {v(t1)}")
    a(f"v_lshl_add_u32 {v(wb[1])}, {v(wb[1])}, 5, {v(t0)}")
    SP = 176
    sw = vp.get(); srd_a = [vp.get() for _ in range(5)]
    a(f"s_mul_i32 s{s_t}, s{S_W}, {64*SP}")
    a(f"s_add_u32 s{s_t}, s{s_t}, {L_STG}")
    a(f"v_mul_u32_u24 {v(sw)}, {SP}, {v(i16)}")
    a(f"v_lshl_add_u32 {v(sw)}, {v(g)}, 3, {v(sw)}")
    a(f"v_add_u32 {v(sw)}, s{s_t}, {v(sw)}")
    for ii in range(5):
        a(f"v_add_u32 {v(r_)}, {64*ii}, v0")
        divmod_const(a, t0, t1, r_, 10)
        a(f"v_mul_u32_u24 {v(t0)}, {SP}, {v(t0)}")
        a(f"v_lshl_add_u32 {v(t0)}, {v(t1)}, 4, {v(t0)}")
        a(f"v_add_u32 {v(srd_a[ii])}, s{s_t}, {v(t0)}")
    for tt in range(5):
        for mm in range(4):
            if tt < 4 or mm < 2:
                for r in range(0, 4, 2):
                    a(f"v_pk_mul_f32 {v(acc[tt][mm]+r,2)}, 0, 0") if False else (a(f"v_mov_b32 {v(acc[tt][mm]+r)}, 0"), a(f"v_mov_b32 {v(acc[tt][mm]+r+1)}, 0"))
    for r in range(4):
        a(f"v_mov_b32 {v(ones+r)}, 0x3f803f80")

    def loop(which):
        NT = 4 if which == 1 else 5
        NCH = 10 if which == 1 else 8
        if which == 1:
            xrd = lambda st_, ks, mm: f"ds_read_b128 {v(xf[st_][mm],4)}, {v(xa[ks])} offset:{mm*2048}"
            wrd = lambda st_, ks, tt, h: f"ds_read_b64_tr_b16 {v(wf[st_][tt]+2*h,2)}, {v(wa[tt])} offset:{ks*8192+h*1024}"
            ax, aw = xa, wa
        else:
            xrd = lambda st_, ks, mm: f"ds_read_b128 {v(xf[st_][mm],4)}, {v(xb)} offset:{ks*8192+mm*1024}"
            wrd = lambda st_, ks, tt, h: f"ds_read_b64_tr_b16 {v(wf[st_][tt]+2*h,2)}, {v(wb[tt&1])} offset:{(32*ks+16*h)*320+(tt>>1)*64}"
            ax, aw = [xb], wb

        def reads(st_, ks):
            out = []
            for i in range(max(4, NT)):
                if i < NT:
                    out += [wrd(st_, ks, i, 0), wrd(st_, ks, i, 1)]
                if i < 4:
                    out.append(xrd(st_, ks, i))
            return out

        def mfmas(st_, c=None):
            out = []
            for tt in range(NT):
                for mm in range(4):
                    out.append(mfma_s(acc[tt][mm], wf[st_][tt], xf[st_][mm], c))
                if which == 1 and tt < 2:
                    out.append(mfma_s(cs[tt], wf[st_][tt], ones))
            return out
        c0 = 0 if which == 1 else 10
        a(f"s_mov_b32 s{s_cnt}, {c0}")
        a("s_barrier")
        stamp(a, 1 if which == 1 else 4)
        for x in reads(0, 0):
            a(x)
        l_loop, l_last, l_mid = a.newlabel("L_gl"), a.newlabel("L_gx"), a.newlabel("L_gm")
        per = 2 if "per2" in OPT else 1
        s_end = S_T + 11
        if which == 2:
            a(f"s_mov_b32 s{s_end}, 12")
            a(f"s_add_u32 s{s_cnt}, s{s_cnt}, 1")
            a("s_waitcnt lgkmcnt(0)")
            adv = [f"v_add_u32 {v(r)}, 16384, {v(r)}" for r in ax] + [f"v_add_u32 {v(r)}, {WSL}, {v(r)}" for r in aw]
            interleave(a, mfmas(0, "0"), reads(1, 1) + adv, per)
            a("s_waitcnt vmcnt(0)")
            a(f"s_branch {l_mid}")
        a.label(l_loop)
        a(f"s_add_u32 s{s_cnt}, s{s_cnt}, 1")
        a(f"s_and_b32 s{s_t}, s{s_cnt}, 3")
        a(f"s_cselect_b32 s{s_t}, 1, -3")
        a(f"s_lshl_b32 s{s_dx}, s{s_t}, 14")
        a(f"s_mul_i32 s{s_dw}, s{s_t}, {WSL}")
        a("s_waitcnt lgkmcnt(0)")
        adv = [f"v_add_u32 {v(r)}, s{s_dx}, {v(r)}" for r in ax] + [f"v_add_u32 {v(r)}, s{s_dw}, {v(r)}" for r in aw]
        interleave(a, mfmas(0), reads(1, 1) + adv, per)
        a.label(l_mid)
        a(f"s_cmp_eq_u32 s{s_cnt}, {c0 + NCH}" if which == 1 else f"s_cmp_eq_u32 s{s_cnt}, s{s_end}")
        a("s_waitcnt lgkmcnt(0)")
        if which == 1:
            a(f"s_cbranch_scc1 {l_last}")
            a("s_barrier")
        else:
            a("s_barrier")
            a(f"s_cbranch_scc1 {l_last}")
        interleave(a, mfmas(1), reads(0, 0), per)
        a(f"s_branch {l_loop}")
        a.label(l_last)
        if which == 1:
            load_epoch(a, S_T + 12)
        for x in mfmas(1):
            a(x)
        if which == 2:
            l_done = a.newlabel("L_gd")
            a(f"s_cmp_eq_u32 s{s_cnt}, 18")
            a(f"s_cbranch_scc1 {l_done}")
            a(f"s_mov_b32 s{s_end}, 18")
            a("s_barrier")
            for x in reads(0, 0):
                a(x)
            a(f"s_branch {l_loop}")
            a.label(l_done)

    loop(1)
    stamp(a, 2)
    a(f"s_lshl_b32 s{s_t}, s{s_wn}, 8")
    a(f"s_lshl_b32 s{s_t+1}, s{s_wm}, 7")
    a(f"s_add_u32 s{s_t}, s{s_t}, s{s_t+1}")
    a(f"s_add_u32 s{s_t}, s{s_t}, {L_CS}")
    a(f"v_lshlrev_b32 {v(t0)}, 4, {v(g)}")
    a(f"v_add_u32 {v(t0)}, s{s_t}, {v(t0)}")
    a(f"v_xor_b32 {v(t1)}, 128, {v(t0)}")
    st = [xf[0][mm] for mm in range(4)]
    sa = xa[0]; hw = xa[1]
    a(f"s_lshl_b32 s{s_t}, s{s_wm}, 10")
    a(f"v_lshlrev_b32 {v(sa)}, 4, {v(i16)}")
    a(f"v_add_u32 {v(sa)}, s{s_t}, {v(sa)}")
    sl_ = wa[1]
    a(f"v_add_u32 {v(sl_)}, {L_STAT}, {v(sa)}")
    b1f = [wf[0][tt] for tt in range(4)]
    a("s_waitcnt vmcnt(0)")
    for tt in range(4):
        for h in range(2):
            a(f"v_lshlrev_b32 {v(b1f[tt]+2*h)}, 16, {v(b1r[tt]+h)}")
            a(f"v_and_b32 {v(b1f[tt]+2*h+1)}, 0xffff0000, {v(b1r[tt]+h)}")
    a(f"ds_write_b128 {v(t0)}, {v(cs[0],4)}")
    a(f"ds_write_b128 {v(t0)}, {v(cs[1],4)} offset:64")
    kc = b1r[0]
    K0 = -2.0 * np.sqrt(2.0 / np.pi) * np.log2(np.e)
    a(f"v_mov_b32 {v(kc)}, {hex(f2u(K0))}")
    a(f"v_mov_b32 {v(kc+1)}, {hex(f2u(K0*0.044715))}")
    a(f"s_mul_i32 s{s_t}, s{S_RB}, {48*8192}")
    a(f"s_lshl_b32 s{s_t+1}, s{s_cb}, 15")
    a(f"s_add_u32 s{s_t}, s{s_t}, s{s_t+1}")
    a(f"s_lshl_b32 s{s_t+1}, s{s_wn}, 14")
    a(f"s_lshl_b32 s{s_t+2}, s{s_wm}, 12")
    a(f"s_add_u32 s{s_t+1}, s{s_t+1}, s{s_t+2}")
    a(f"s_lshl_b32 s{s_t+2}, s{s_wm}, 13")
    a(f"s_add_u32 s{s_t+1}, s{s_t+1}, s{s_t+2}")
    a(f"s_add_u32 s{s_t+2}, s{s_t}, s{s_t+1}")
    a(f"s_xor_b32 s{s_t+3}, s{s_t+1}, 8192")
    a(f"s_add_u32 s{s_t+3}, s{s_t}, s{s_t+3}")
    a(f"s_add_u32 s{s_t+1}, s{s_t+1}, {LX + 2*16384}")
    a(f"v_add_u32 {v(hw)}, s{s_t+1}, {v(l16)}")
    hw2 = wa[0]
    a(f"v_xor_b32 {v(hw2)}, 8192, {v(hw)}")
    a("s_waitcnt lgkmcnt(0)")
    a("s_barrier")
    nonce(a)
    a(f"ds_read_b128 {v(cs[2],4)}, {v(t1)}")
    a(f"ds_read_b128 {v(cs[3],4)}, {v(t1)} offset:64")
    for mm in range(4):
        a(f"ds_read_b128 {v(st[mm],4)}, {v(sl_)} offset:{mm*256}")
    a("s_waitcnt lgkmcnt(0)")
    l_chk, l_ok = a.newlabel("L_chk"), a.newlabel("L_ok")
    a(f"s_mov_b32 s{s_dx}, 0x40000")
    a.label(l_chk)
    a(f"v_xor_b32 {v(t0)}, s{S_E}, {v(st[0]+1)}")
    a(f"v_xor_b32 {v(t1)}, s{S_E+1}, {v(st[0]+3)}")
    for mm in range(1, 4):
        a(f"v_xor_b32 {v(t0+2)}, s{S_E}, {v(st[mm]+1)}")
        a(f"v_xor_b32 {v(t0+3)}, s{S_E+1}, {v(st[mm]+3)}")
        a(f"v_or3_b32 {v(t0)}, {v(t0)}, {v(t0+2)}, {v(t0+3)}")
    a(f"v_or_b32 {v(t0)}, {v(t0)}, {v(t1)}")
    a(f"v_cmp_ne_u32 vcc, 0, {v(t0)}")
    a(f"s_cbranch_vccz {l_ok}")
    a(f"s_lshl_b32 s{s_dw}, s{S_RB}, 11")
    a(f"s_add_u32 s{s_dw}, s{s_dw}, {WS_ST}")
    for mm in range(4):
        a(f"buffer_load_dwordx4 {v(st[mm],4)}, {v(sa)}, {s(R_WS,4)}, s{s_dw} offen offset:{mm*256} {SC}")
    a("s_waitcnt vmcnt(0)")
    a(f"s_sub_u32 s{s_dx}, s{s_dx}, 1")
    a(f"s_cbranch_scc0 {l_chk}")
    a.label(l_ok)
    for mm in range(4):
        a(f"v_mov_b32 {v(st[mm]+1)}, {v(st[mm]+2)}")
    stamp(a, 3)
    tmp = [xf[1][i] for i in range(4)]
    outs = [wf[1][1], wf[1][2], wf[1][3]]
    n_o = 0
    for mm in range(4):
        for u in range(2):
            o = outs[n_o % 3]; n_o += 1
            prs = [(acc[2*u+k][mm] + 2*h, cs[2*u+k] + 2*h, b1f[2*u+k] + 2*h) for k in range(2) for h in range(2)]
            T = [tmp[0], tmp[0]+2, tmp[1], tmp[1]+2]
            Z = [tmp[2], tmp[2]+2, tmp[3], tmp[3]+2]
            for i, (p, c_, b_) in enumerate(prs):
                a(f"v_pk_fma_f32 {v(T[i],2)}, {v(c_,2)}, {v(st[mm],2)}, {v(b_,2)} op_sel:[0,1,0] op_sel_hi:[1,1,1]")
            for i, (p, c_, b_) in enumerate(prs):
                a(f"v_pk_fma_f32 {v(p,2)}, {v(p,2)}, {v(st[mm],2)}, {v(T[i],2)} op_sel_hi:[1,0,1]")
            for i, (p, c_, b_) in enumerate(prs):
                a(f"v_pk_mul_f32 {v(T[i],2)}, {v(p,2)}, {v(p,2)}")
            for i, (p, c_, b_) in enumerate(prs):
                a(f"v_pk_fma_f32 {v(T[i],2)}, {v(T[i],2)}, {v(kc,2)}, {v(kc,2)} op_sel:[0,1,0] op_sel_hi:[1,1,0]")
            for i, (p, c_, b_) in enumerate(prs):
                a(f"v_pk_mul_f32 {v(Z[i],2)}, {v(p,2)}, {v(T[i],2)}")
            for i in range(4):
                a(f"v_exp_f32 {v(Z[i])}, {v(Z[i])}")
                a(f"v_exp_f32 {v(Z[i]+1)}, {v(Z[i]+1)}")
            for i in range(4):
                a(f"v_pk_add_f32 {v(Z[i],2)}, {v(Z[i],2)}, 1.0 op_sel_hi:[1,0]")
            for i in range(4):
                a(f"v_rcp_f32 {v(Z[i])}, {v(Z[i])}")
                a(f"v_rcp_f32 {v(Z[i]+1)}, {v(Z[i]+1)}")
            for i, (p, c_, b_) in enumerate(prs):
                a(f"v_pk_mul_f32 {v(p,2)}, {v(p,2)}, {v(Z[i],2)}")
            for i, (p, c_, b_) in enumerate(prs):
                a(f"v_cvt_pk_bf16_f32 {v(o+i)}, {v(p)}, {v(p+1)}")
            a(f"buffer_store_dwordx4 {v(o,4)}, {v(l16)}, {s(R_WS,4)}, s{s_t+2+u} offen offset:{mm*1024} {SCG}")
            if "dbl" in OPT:
                a(f"buffer_store_dwordx4 {v(o,4)}, {v(l16)}, {s(R_WS,4)}, s{s_t+2+u} offen offset:{mm*1024}")
            a(f"ds_write_b128 {v(hw if u == 0 else hw2)}, {v(o,4)} offset:{mm*1024}")
    a("s_waitcnt lgkmcnt(0)")
    loop(2)
    stamp(a, 5)
    pk = xf[0][0]
    n = 0
    for mm in range(4):
        for tt in range(5):
            o = pk + 2 * (n % 16); n += 1
            a(f"v_cvt_pk_bf16_f32 {v(o)}, {v(acc[tt][mm])}, {v(acc[tt][mm]+1)}")
            a(f"v_cvt_pk_bf16_f32 {v(o+1)}, {v(acc[tt][mm]+2)}, {v(acc[tt][mm]+3)}")
            a(f"ds_write_b64 {v(sw)}, {v(o,2)} offset:{mm*16*SP+tt*32}")
            if n == 12:
                a("s_waitcnt lgkmcnt(6)")
    a(f"s_mul_i32 s{s_t}, s{S_KT}, 2621440")
    a(f"s_lshl_b32 s{s_t+1}, s{S_SUB}, 1")
    a(f"s_add_u32 s{s_t+1}, s{s_t+1}, s{s_wn}")
    a(f"s_mul_i32 s{s_t+1}, s{s_t+1}, {2048*160}")
    a(f"s_add_u32 s{s_t}, s{s_t}, s{s_t+1}")
    a(f"s_lshl_b32 s{s_t+1}, s{S_RB}, 1")
    a(f"s_add_u32 s{s_t+1}, s{s_t+1}, s{s_wm}")
    a(f"s_mul_i32 s{s_t+1}, s{s_t+1}, {64*160}")
    a(f"s_add_u32 s{s_t}, s{s_t}, s{s_t+1}")
    a(f"s_add_u32 s{s_t}, s{s_t}, {WS_P}")
    a(f"s_add_u32 s{s_t+1}, s{s_t}, 4096")
    a(f"s_add_u32 s{s_t+2}, s{s_t}, 8192")
    a("s_waitcnt lgkmcnt(0)")
    rb_ = [acc[i // 4][i % 4] for i in range(10)]
    for ii in range(10):
        a(f"ds_read_b128 {v(rb_[ii],4)}, {v(srd_a[ii%5])} offset:{(ii//5)*32*SP}")
    for ii in range(10):
        a(f"s_waitcnt lgkmcnt({9-ii})")
        a(f"buffer_store_dwordx4 {v(rb_[ii],4)}, {v(l16)}, {s(R_WS,4)}, s{s_t+ii//4} offen offset:{(ii%4)*1024} {SCG}")
        if "p2x" in OPT:
            a(f"s_add_u32 s{s_t+3}, s{s_t+ii//4}, {32<<20}")
            a(f"buffer_store_dwordx4 {v(rb_[ii],4)}, {v(l16)}, {s(R_WS,4)}, s{s_t+3} offen offset:{(ii%4)*1024} {SC}")
    if "prio" in OPT:
        a("s_setprio 0")
    a(f"s_lshl_b32 s{S_FLAG}, s{S_RB}, 1")
    a(f"s_add_u32 s{S_FLAG}, s{S_FLAG}, s{s_wm}")
    a(f"s_lshl_b32 s{S_FLAG}, s{S_FLAG}, 5")
    a(f"s_add_u32 s{S_FLAG}, s{S_FLAG}, s{S_KT}")
    a(f"s_lshl_b32 s{S_FLAG}, s{S_FLAG}, 2")
    a(f"s_add_u32 s{S_FLAG}, s{S_FLAG}, s{S_SUB}")
    a(f"s_lshl_b32 s{S_FLAG}, s{S_FLAG}, 1")
    a(f"s_add_u32 s{S_FLAG}, s{S_FLAG}, s{s_wn}")
    a(f"s_lshl_b32 s{S_FLAG}, s{S_FLAG}, 3")
    a(f"s_add_u32 s{S_FLAG}, s{S_FLAG}, {FL_P}")
    a(f"s_mov_b32 s{S_PJ}, 1")
    a(f"s_branch {l_f3}")


def gemm_loader(a, l_f3l):
    vp = Pool("v", 1, 248)
    t0 = vp.get(4, 2); t1, t2 = t0 + 1, t0 + 2
    s_lw, s_xo, s_wo, s_m, s_m2, s_ho, s_w2, s_t = [S_T + i for i in range(8)]
    vm = VM(a)
    a(f"s_sub_u32 s{s_lw}, s{S_W}, 4")
    srd(a, R_A, P_X, 2621440); srd(a, R_B, P_W1, 1966080)
    xv = vp.get(); wv = [vp.get(), vp.get()]
    a(f"v_lshrrev_b32 {v(t0)}, 3, v0")
    a(f"v_and_b32 {v(t1)}, 7, v0")
    a(f"v_xor_b32 {v(t1)}, {v(t1)}, {v(t0)}")
    a(f"v_mul_u32_u24 {v(xv)}, {64*1280}, {v(t0)}")
    a(f"v_lshl_add_u32 {v(xv)}, {v(t1)}, 4, {v(xv)}")
    a(f"s_lshl_b32 s{s_xo}, s{S_RB}, 2")
    a(f"s_add_u32 s{s_xo}, s{s_xo}, s{s_lw}")
    a(f"s_mul_i32 s{s_xo}, s{s_xo}, 1280")
    a(f"v_lshrrev_b32 {v(t0)}, 4, v0")
    a(f"v_and_b32 {v(t1)}, 15, v0")
    a(f"v_lshlrev_b32 {v(t2)}, 1, {v(t0)}")
    a(f"v_xor_b32 {v(t1)}, {v(t1)}, {v(t2)}")
    a(f"v_mul_u32_u24 {v(wv[0])}, 3072, {v(t0)}")
    a(f"v_lshl_add_u32 {v(wv[0])}, {v(t1)}, 4, {v(wv[0])}")
    a(f"v_xor_b32 {v(wv[1])}, 128, {v(wv[0])}")
    a(f"s_mul_i32 s{s_wo}, s{s_lw}, {16*3072}")
    a(f"s_lshl_b32 s{s_t}, s{S_KT}, 10")
    a(f"s_add_u32 s{s_wo}, s{s_wo}, s{s_t}")
    a(f"s_lshl_b32 s{s_t}, s{S_SUB}, 8")
    a(f"s_add_u32 s{s_wo}, s{s_wo}, s{s_t}")
    a(f"s_lshl_b32 s{s_m}, s{s_lw}, 12")

    s_kc, s_xc, s_wc = S_T + 11, S_T + 12, S_T + 13
    if "norot" in OPT:
        a(f"s_mov_b32 s{s_kc}, 0")
    elif "oldmap" not in OPT:
        a(f"s_and_b32 s{s_kc}, s{S_RB}, 1")
        a(f"s_mul_i32 s{s_kc}, s{s_kc}, 5")
        a(f"s_lshr_b32 s{s_t}, s{S_RB}, 1")
        a(f"s_add_u32 s{s_kc}, s{s_kc}, s{s_t}")
        a(f"s_lshl_b32 s{s_t}, s{S_KT}, 2")
        a(f"s_add_u32 s{s_kc}, s{s_kc}, s{s_t}")
        a(f"s_add_u32 s{s_kc}, s{s_kc}, s{S_SUB}")
        for _ in range(2):
            a(f"s_sub_u32 s{s_t}, s{s_kc}, 10")
            a(f"s_cselect_b32 s{s_kc}, s{s_kc}, s{s_t}")
    else:
        a(f"s_mul_i32 s{s_kc}, s{S_PJ}, 27")
        a(f"s_lshr_b32 s{s_kc}, s{s_kc}, 4")
        a(f"s_mul_i32 s{s_t}, s{S_SUB}, 5")
        a(f"s_lshr_b32 s{s_t}, s{s_t}, 1")
        a(f"s_add_u32 s{s_kc}, s{s_kc}, s{s_t}")
        a(f"s_sub_u32 s{s_t}, s{s_kc}, 10")
        a(f"s_cselect_b32 s{s_kc}, s{s_kc}, s{s_t}")

    def issue1(c):
        sl = c % 4
        a(f"s_lshl_b32 s{s_xc}, s{s_kc}, 7")
        a(f"s_add_u32 s{s_xc}, s{s_xc}, s{s_xo}")
        a(f"s_mul_i32 s{s_wc}, s{s_kc}, {64*3072}")
        a(f"s_add_u32 s{s_wc}, s{s_wc}, s{s_wo}")
        for i in range(4):
            a(f"s_add_u32 m0, s{s_m}, {LX + sl*16384 + i*1024}")
            a(f"s_add_u32 s{s_t}, s{s_xc}, {i*8*64*1280}")
            dma(a, xv, R_A, f"s{s_t}")
        for i in range(4):
            a(f"s_add_u32 m0, s{s_m}, {LW + sl*WSL + i*1024}")
            a(f"s_add_u32 s{s_t}, s{s_wc}, {i*4*3072}")
            dma(a, wv[i >> 1], R_B, f"s{s_t}")
        a(f"s_add_u32 s{s_kc}, s{s_kc}, 1")
        a(f"s_cmp_eq_u32 s{s_kc}, 10")
        a(f"s_cselect_b32 s{s_kc}, 0, s{s_kc}")
        vm.op(("A", c), 8)

    stamp(a, 1)
    issue1(0); issue1(1)
    srd(a, R_C, P_W2, 1966080)
    l16 = vp.get(); w2v = [vp.get() for _ in range(5)]
    a(f"v_lshlrev_b32 {v(l16)}, 4, v0")
    a(f"s_mul_i32 s{s_ho}, s{S_RB}, {48*8192}")
    a(f"s_lshl_b32 s{s_t}, s{S_KT}, 17")
    a(f"s_add_u32 s{s_ho}, s{s_ho}, s{s_t}")
    a(f"s_add_u32 s{s_ho}, s{s_ho}, s{s_m}")
    for i in range(5):
        a(f"v_add_u32 {v(t2)}, {64*i}, v0")
        divmod_const(a, t0, t1, t2, 20)
        a(f"v_lshrrev_b32 {v(t2)}, 1, {v(t0)}")
        a(f"v_and_b32 {v(t2)}, 2, {v(t2)}")
        a(f"v_xor_b32 {v(t1)}, {v(t1)}, {v(t2)}")
        a(f"v_mul_u32_u24 {v(w2v[i])}, 1280, {v(t0)}")
        a(f"v_lshl_add_u32 {v(w2v[i])}, {v(t1)}, 4, {v(w2v[i])}")
    a(f"s_lshl_b32 s{s_w2}, s{S_KT}, 5")
    a(f"s_add_u32 s{s_w2}, s{s_w2}, s{s_lw}")
    a(f"s_mul_i32 s{s_w2}, s{s_w2}, {16*1280}")
    a(f"s_mul_i32 s{s_t}, s{S_SUB}, 320")
    a(f"s_add_u32 s{s_w2}, s{s_w2}, s{s_t}")
    a(f"s_mul_i32 s{s_m2}, s{s_lw}, 5120")

    def kchunk(c2):
        a(f"s_lshl_b32 s{s_t+1}, s{S_SUB}, 1")
        a(f"s_add_u32 s{s_t+1}, s{s_t+1}, {c2}")
        a(f"s_and_b32 s{s_t+1}, s{s_t+1}, 7")

    def issue_w2(c2):
        sl = (10 + c2) % 4
        kchunk(c2)
        a(f"s_mul_i32 s{s_t}, s{s_t+1}, {64*1280}")
        a(f"s_add_u32 s{s_t}, s{s_t}, s{s_w2}")
        for i in range(5):
            a(f"s_add_u32 m0, s{s_m2}, {LW + sl*WSL + i*1024}")
            dma(a, w2v[i], R_C, f"s{s_t}")
        vm.op(("W", c2), 5)

    def issue_h(c2):
        sl = (10 + c2) % 4
        kchunk(c2)
        a(f"s_lshl_b32 s{s_t}, s{s_t+1}, 14")
        a(f"s_add_u32 s{s_t}, s{s_t}, s{s_ho}")
        a(f"s_add_u32 m0, s{s_m}, {LX + sl*16384}")
        for i in range(4):
            a(f"buffer_load_dwordx4 {v(l16)}, {s(R_WS,4)}, s{s_t} offen offset:{i*1024} {SGL} lds")
        vm.op(("H", c2), 4)

    wreg = [[vp.get(4, 4) for i in range(5)] for c in range(4)]
    fl = vp.get(4, 2); wl = [vp.get(), vp.get()]
    a(f"v_add_u32 {v(wl[0])}, s{s_m2}, {v(l16)}")
    a(f"v_add_u32 {v(wl[0])}, {LW}, {v(wl[0])}")
    a(f"v_add_u32 {v(wl[1])}, {2*WSL}, {v(wl[0])}")

    def load_w2(c2):
        kchunk(c2)
        a(f"s_mul_i32 s{s_t}, s{s_t+1}, {64*1280}")
        a(f"s_add_u32 s{s_t}, s{s_t}, s{s_w2}")
        for i in range(5):
            a(f"buffer_load_dwordx4 {v(wreg[c2-4][i],4)}, {v(w2v[i])}, {s(R_C,4)}, s{s_t} offen")
        vm.op(("R", c2), 5)

    def put_w2(c2):
        sl = (10 + c2) % 4
        for i in range(5):
            a(f"ds_write_b128 {v(wl[sl>>1])}, {v(wreg[c2-4][i],4)} offset:{(sl&1)*WSL + i*1024}")

    load_epoch(a, S_T + 14)
    if "tlb" in OPT:
        l_nt = a.newlabel("L_nt")
        a(f"s_lshr_b32 s{s_t}, s2, 3")
        a(f"s_cmp_lg_u32 s{s_t}, 31")
        a(f"s_cbranch_scc1 {l_nt}")
        a(f"s_lshl_b32 s{s_t}, s{s_lw}, 21")
        for i in range(3):
            a(f"s_add_u32 s{S_T+14}, s{P_WS}, s{s_t}")
            a(f"s_addc_u32 s{S_T+15}, s{P_WS+1}, 0")
            a(f"s_load_dword s3, s[{S_T+14}:{S_T+15}], 0")
            a(f"s_add_u32 s{s_t}, s{s_t}, {4 << 21}")
        for p in (P_OUT, P_W2, P_WR, P_WI, P_B2):
            a(f"s_load_dword s3, s[{p}:{p+1}], 0")
        a(f"s_add_u32 s{S_T+14}, s{P_OUT}, {1 << 21}")
        a(f"s_addc_u32 s{S_T+15}, s{P_OUT+1}, 0")
        a(f"s_load_dword s3, s[{S_T+14}:{S_T+15}], 0")
        a.label(l_nt)
    nxt = 2
    for c in range(10):
        vm.wait(("A", c))
        if c == 0: stamp(a, 2)
        if c >= 2: stamp(a, c - 1, 3)
        a("s_barrier")
        if c >= 2: stamp(a, c - 1, 4)
        while nxt < 10 and nxt <= c + 3 and (nxt <= c + 2 or c >= 1):
            issue1(nxt); nxt += 1
            if c == 0 and "deep0" not in OPT:
                break
        if c == 3 and "nopf" not in OPT:
            a(f"s_lshl_b32 s{s_t}, s{S_FLAG}, 2")
            a(f"s_add_u32 s{s_t}, s{s_t}, s{s_lw}")
            a(f"s_mul_i32 s{s_t}, s{s_t}, 2560")
            for i in range(3):
                a(f"buffer_load_dwordx4 {v(wreg[3][i],4)}, {v(l16)}, {s(R_C,4)}, s{s_t} offen offset:{i*768}")
            vm.op("PF", 3)
        if c == 7:
            a(f"s_lshl_b32 s{s_t}, s{S_RB}, 11")
            a(f"s_add_u32 s{s_t}, s{s_t}, {WS_ST}")
            a(f"s_mov_b32 m0, {L_STAT}")
            for i in range(2):
                a(f"buffer_load_dwordx4 {v(l16)}, {s(R_WS,4)}, s{s_t} offen offset:{i*1024} {SC} lds")
            vm.op("S", 2)
        if c >= 7:
            issue_w2(c - 7)
    vm.wait("S")
    a("s_waitcnt lgkmcnt(0)")
    nonce(a)
    stamp(a, 3)
    a("s_barrier")
    vm.wait(("W", 1))
    issue_w2(3)
    for c2 in range(4, 8):
        if "nopace" not in OPT:
            vm.wait(("W", c2 - 2), ("R", c2 - 2))
        load_w2(c2)
    vm.wait(("W", 0))
    a("s_barrier")
    vm.wait(("W", 1), ("R", 5))
    a("s_barrier")
    stamp(a, 4)
    l_nf = a.newlabel("L_nf")
    a(f"s_cmp_lg_u32 s{s_lw}, 0")
    a(f"s_cbranch_scc1 {l_nf}")
    a(f"s_and_b32 s{s_t}, s{S_FLAG}, 0xfc")
    a(f"s_lshl_b32 s{s_t}, s{s_t}, 7")
    a(f"s_lshl_b32 s{s_t+1}, s{S_SUB}, 3")
    a(f"s_add_u32 s{s_t}, s{s_t}, s{s_t+1}")
    a(f"s_add_u32 s{s_t}, s{s_t}, {FL_H}")
    push_flag(a, s_t, 4, 7, t0, SCG)
    a(f"s_lshl_b32 s{s_t}, s{S_FLAG}, 3")
    a(f"s_add_u32 s{s_t}, s{s_t}, {FL_M}")
    push_flag(a, s_t, 1, 7, t0)
    a.label(l_nf)
    put_w2(4)
    a("s_barrier")
    put_w2(5)
    a(f"s_lshl_b32 s{s_t+2}, s{S_FLAG}, 7")
    a(f"s_add_u32 s{s_t+2}, s{s_t+2}, {FL_H}")
    poll(a, f"s{s_t+2}", 4, s_t, depth=1, sc=SGP); vm.q = []
    stamp(a, 5)
    for c2 in range(2, 6):
        issue_h(c2)
    a("s_waitcnt lgkmcnt(0)")
    for c2 in range(2, 8):
        vm.wait(("H", c2), ("W", c2))
        if c2 == 2: stamp(a, 6)
        stamp(a, c2 - 1, 5)
        a("s_barrier")
        stamp(a, c2 - 1, 6)
        if c2 in (3, 4):
            issue_h(c2 + 3); issue_w2(c2 + 3)
        if c2 == 5:
            a(f"s_and_b32 s{s_t}, s{S_W}, 3")
            a(f"s_lshl_b32 s{s_t}, s{s_t}, 12")
            a(f"s_add_u32 m0, s{s_t}, {L3_TAB}")
            a(f"s_add_u32 s{s_t}, s{s_t}, {TAB_F3}")
            for k in range(4):
                a(f"buffer_load_dwordx4 {v(l16)}, {s(R_TAB,4)}, s{s_t} offen offset:{k*1024} lds")
            vm.op("T3", 4)
    vm.wait("T3")
    stamp(a, 7, 5)
    a("s_barrier")
    stamp(a, 7, 6)
    a(f"s_branch {l_f3l}")


def twiddle_l(re, im, c_, s_, tmp, pk=None):
    o = []
    if ("pktw" in OPT) if pk is None else pk:
        for h in range(2):
            o.append(f"v_pk_mul_f32 {v(tmp,2)}, {v(im+2*h,2)}, {v(s_+2*h,2)}")
            o.append(f"v_pk_mul_f32 {v(tmp+2,2)}, {v(re+2*h,2)}, {v(s_+2*h,2)}")
            o.append(f"v_pk_fma_f32 {v(re+2*h,2)}, {v(re+2*h,2)}, {v(c_+2*h,2)}, {v(tmp,2)}")
            o.append(f"v_pk_fma_f32 {v(im+2*h,2)}, {v(im+2*h,2)}, {v(c_+2*h,2)}, {v(tmp+2,2)} neg_lo:[0,0,1] neg_hi:[0,0,1]")
        return o
    o += [f"v_mul_f32 {v(tmp+r)}, {v(re+r)}, {v(s_+r)}" for r in range(4)]
    o += [f"v_mul_f32 {v(re+r)}, {v(re+r)}, {v(c_+r)}" for r in range(4)]
    o += [f"v_fmac_f32 {v(re+r)}, {v(im+r)}, {v(s_+r)}" for r in range(4)]
    o += [f"v_fma_f32 {v(im+r)}, {v(im+r)}, {v(c_+r)}, -{v(tmp+r)}" for r in range(4)]
    return o


def twiddle(a, re, im, c_, s_, tmp, pk=None):
    for x in twiddle_l(re, im, c_, s_, tmp, pk):
        a(x)


def load_epoch(a, s_t):
    a(f"s_add_u32 s{s_t}, s{P_WS}, {WS_EP}")
    a(f"s_addc_u32 s{s_t+1}, s{P_WS+1}, 0")
    a(f"s_load_dwordx2 s[{S_E}:{S_E+1}], s[{s_t}:{s_t+1}], 0")


def copy_out(a, lds_v, g_v, regs, pitch2, s_base, step, s_t):
    for ii in range(8):
        a(f"ds_read_b128 {v(regs[ii],4)}, {v(lds_v)} offset:{ii*pitch2}")
    a("s_mov_b32 exec_lo, 0x3fffff")
    a("s_mov_b32 exec_hi, 0x3fffff")
    for ii in range(8):
        a(f"s_add_u32 s{s_t}, s{s_base}, {ii*step}")
        a(f"s_waitcnt lgkmcnt({7-ii})")
        a(f"buffer_store_dwordx4 {v(regs[ii],4)}, {v(g_v)}, {s(R_WS,4)}, s{s_t} offen {SC}")
    a("s_mov_b64 exec, -1")


def wave0_flag(a, base, vt):
    l = a.newlabel("L_w0")
    a(f"s_cmp_lg_u32 s{S_W}, 0")
    a(f"s_cbranch_scc1 {l}")
    a(f"s_lshl_b32 s{S_F2}, s{S_IDX}, 3")
    a(f"s_add_u32 s{S_F2}, s{S_F2}, {base}")
    push_flag(a, S_F2, 64, 9, vt)
    a.label(l)


L1_TAB, L1_XN, L1_ZX, L1_ST = 0, 16384, 57344, 0
L2_ZB, L2_WR, L2_WI, L2_TAB = 57344, 102400, 124928, 147456


FV = dict(i16=1, g=2, l16=3, t0=4, xr=8)


def fft_head(a):
    i16, g, l16, t0, xr = FV["i16"], FV["g"], FV["l16"], FV["t0"], FV["xr"]
    s_t = S_T
    srd(a, R_A, P_X, 2621440)
    a(f"s_lshl_b32 s{s_t+1}, s{S_W}, 11")
    a(f"s_add_u32 m0, s{s_t+1}, {L1_TAB}")
    a(f"s_lshl_b32 s{s_t}, s{S_W}, 8")
    for i in range(2):
        a(f"buffer_load_dwordx4 {v(l16)}, {s(R_TAB,4)}, s{s_t+1} offen offset:{i*1024} lds")
    a(f"v_mul_u32_u24 {v(t0)}, {64*1280}, {v(g)}")
    a(f"v_lshl_add_u32 {v(t0)}, {v(i16)}, 4, {v(t0)}")
    a(f"s_add_u32 s{s_t}, s{s_t}, s{S_IDX}")
    a(f"s_mul_i32 s{s_t}, s{s_t}, 1280")
    for i in range(5):
        a(f"buffer_load_dwordx4 {v(xr+4*i,4)}, {v(t0)}, {s(R_A,4)}, s{s_t} offen offset:{256*i}")
    a(f"s_add_u32 m0, s{s_t+1}, {L2_TAB}")
    a(f"s_add_u32 s{s_t+1}, s{s_t+1}, {TAB_F2}")
    for i in range(2):
        a(f"buffer_load_dwordx4 {v(l16)}, {s(R_TAB,4)}, s{s_t+1} offen offset:{i*1024} lds")


def fft_role(a, l_f3, l_f3l):
    s_n = S_IDX
    SP = 368
    vp = Pool("v", 28, 248)
    i16, g, l16, t0, xr = FV["i16"], FV["g"], FV["l16"], FV["t0"], FV["xr"]
    t1 = t0 + 1; t2 = t0 + 2
    s_t = S_T
    mf = vp.get(8, 4)
    k1v = vp.get()
    a(f"s_and_b32 s{s_t}, s{S_W}, 1")
    a(f"s_lshl_b32 s{s_t}, s{s_t}, 4")
    a(f"v_add_u32 {v(k1v)}, s{s_t}, {v(i16)}")
    a(f"s_and_b32 s{s_t}, s{S_W}, 2")
    a(f"s_lshl_b32 s{s_t}, s{s_t}, 8")
    a(f"v_lshlrev_b32 {v(t0)}, 8, {v(g)}")
    a(f"v_add_u32 {v(t0)}, s{s_n}, {v(t0)}")
    a(f"v_mul_u32_u24 {v(t0)}, {v(t0)}, {v(k1v)}")
    a(f"v_add_u32 {v(t0)}, s{s_t}, {v(t0)}")
    a(f"v_lshlrev_b32 {v(k1v)}, 6, {v(k1v)}")
    for ks in range(2):
        for jj in range(4):
            a(f"v_mad_u32_u24 {v(t1)}, {v(k1v)}, {16*ks+jj}, {v(t0)}")
            a(f"v_and_b32 {v(t1)}, 2047, {v(t1)}")
            a(f"v_cvt_f32_u32 {v(t1)}, {v(t1)}")
            a(f"v_mul_f32 {v(t1)}, {hex(f2u(1/2048))}, {v(t1)}")
            a(f"v_cos_f32 {v(t2)}, {v(t1)}")
            a(f"v_sin_f32 {v(t1)}, {v(t1)}")
            a(f"v_cvt_pk_bf16_f32 {v(mf+4*ks+jj)}, {v(t2)}, {v(t1)}")
    a(f"v_mov_b32 {v(t1)}, 0")
    a(f"v_and_b32 {v(t0)}, 31, v0")
    a(f"v_lshlrev_b32 {v(t0)}, 2, {v(t0)}")
    a(f"v_add_u32 {v(t0)}, {L1_ZX + 321*128}, {v(t0)}")
    a(f"ds_write_b32 {v(t0)}, {v(t1)}")
    za = [vp.get() for _ in range(8)]
    a(f"v_mul_u32_u24 {v(t0)}, 80, {v(g)}")
    a(f"v_add_u32 {v(t0)}, {v(t0)}, {v(i16)}")
    for u in range(2):
        for r in range(4):
            z = za[4*u+r]
            if u == 0:
                a(f"v_add_u32 {v(t1)}, {20*r}, {v(t0)}")
            else:
                a(f"v_sub_u32 {v(t1)}, {320-20*r}, {v(t0)}")
            a(f"v_and_b32 {v(t2)}, 7, {v(t1)}")
            a(f"v_xor_b32 {v(t2)}, s{S_W}, {v(t2)}")
            a(f"v_lshlrev_b32 {v(t2)}, 4, {v(t2)}")
            a(f"v_lshl_add_u32 {v(z)}, {v(t1)}, 7, {v(t2)}")
            a(f"v_add_u32 {v(z)}, {L1_ZX}, {v(z)}")
    xw, ta0, ta1 = vp.get(), vp.get(), vp.get()
    a(f"s_mul_i32 s{s_t}, s{S_W}, {4*1280}")
    a(f"s_add_u32 s{s_t}, s{s_t}, {L1_XN}")
    a(f"v_mul_u32_u24 {v(xw)}, 1280, {v(g)}")
    a(f"v_lshl_add_u32 {v(xw)}, {v(i16)}, 4, {v(xw)}")
    a(f"v_add_u32 {v(xw)}, s{s_t}, {v(xw)}")
    a(f"v_and_b32 {v(t0)}, 3, v0")
    a(f"v_lshlrev_b32 {v(t0)}, 3, {v(t0)}")
    a(f"v_add_u32 {v(t0)}, s{s_t}, {v(t0)}")
    a(f"v_lshrrev_b32 {v(t1)}, 2, v0")
    a(f"v_lshl_add_u32 {v(ta0)}, {v(t1)}, 6, {v(t0)}")
    a(f"v_and_b32 {v(t1)}, 3, {v(t1)}")
    a(f"v_lshl_add_u32 {v(ta1)}, {v(t1)}, 6, {v(t0)}")
    a(f"v_add_u32 {v(ta1)}, 1024, {v(ta1)}")
    ca = [vp.get() for _ in range(4)]
    s_hf = S_T + 2
    a(f"s_lshr_b32 s{s_hf}, s{S_W}, 2")
    a(f"v_and_b32 {v(t0)}, 7, v0")
    a(f"v_xor_b32 {v(t0)}, {v(t0)}, {v(g)}")
    a(f"v_lshlrev_b32 {v(t0)}, 4, {v(t0)}")
    a(f"v_lshl_add_u32 {v(t0)}, {v(i16)}, 7, {v(t0)}")
    a(f"s_mul_i32 s{s_t}, s{s_hf}, {11*2048}")
    a(f"s_add_u32 s{s_t}, s{s_t}, {L1_ZX}")
    a(f"v_add_u32 {v(ca[0])}, s{s_t}, {v(t0)}")
    a(f"v_xor_b32 {v(ca[1])}, 64, {v(ca[0])}")
    a(f"v_lshlrev_b32 {v(t0)}, 4, {v(g)}")
    a(f"v_add_u32 {v(t0)}, {L1_ZX + 320*128}, {v(t0)}")
    a(f"v_add_u32 {v(t1)}, 128, {v(t0)}")
    a(f"v_cmp_eq_u32 vcc, 7, {v(i16)}")
    a(f"v_cndmask_b32 {v(t0)}, {v(t1)}, {v(t0)}, vcc")
    a(f"v_add_u32 {v(t1)}, {9*2048}, {v(ca[0])}")
    a(f"s_cmp_eq_u32 s{s_hf}, 1")
    a(f"s_cselect_b64 vcc, -1, 0")
    a(f"v_cndmask_b32 {v(ca[2])}, {v(t1)}, {v(t0)}, vcc")
    a(f"v_xor_b32 {v(ca[3])}, 64, {v(ca[2])}")
    sw, sr, gv = vp.get(), vp.get(), vp.get()
    a(f"s_mul_i32 s{s_t}, s{S_W}, {16*SP}")
    a(f"v_mul_u32_u24 {v(sw)}, {SP}, {v(i16)}")
    a(f"v_lshl_add_u32 {v(sw)}, {v(g)}, 3, {v(sw)}")
    a(f"v_add_u32 {v(sw)}, s{s_t}, {v(sw)}")
    a(f"v_lshrrev_b32 {v(t0)}, 5, v0")
    a(f"v_and_b32 {v(t1)}, 31, v0")
    a(f"v_lshlrev_b32 {v(t1)}, 4, {v(t1)}")
    a(f"v_mul_u32_u24 {v(sr)}, {SP}, {v(t0)}")
    a(f"v_add3_u32 {v(sr)}, {v(sr)}, {v(t1)}, s{s_t}")
    a(f"v_mul_u32_u24 {v(gv)}, 90112, {v(t0)}")
    a(f"v_add_u32 {v(gv)}, {v(gv)}, {v(t1)}")
    s_k1, s_h2 = S_T + 6, S_T + 7
    a(f"s_lshr_b32 s{s_k1}, s{S_IDX}, 1")
    a(f"s_and_b32 s{s_h2}, s{S_IDX}, 1")
    wv = [vp.get() for _ in range(3)]
    a(f"s_mul_i32 s{s_t+1}, s{s_h2}, 176")
    for i in range(3):
        a(f"s_lshl_b32 s{s_t}, s{S_W}, 6")
        a(f"s_add_u32 s{s_t}, s{s_t}, {512*i}")
        a(f"v_add_u32 {v(t2)}, s{s_t}, v0")
        divmod_const(a, t0, t1, t2, 22)
        a(f"v_lshlrev_b32 {v(t1)}, 3, {v(t1)}")
        a(f"v_add_u32 {v(t1)}, s{s_t+1}, {v(t1)}")
        a(f"v_min_u32 {v(t1)}, 313, {v(t1)}")
        a(f"v_mul_u32_u24 {v(wv[i])}, {32*642}, {v(t0)}")
        a(f"v_lshl_add_u32 {v(wv[i])}, {v(t1)}, 1, {v(wv[i])}")
    srd(a, R_B, P_WR, 1314816); srd(a, R_C, P_WI, 1314816)
    mk = vp.mark()
    tb = vp.get(56, 4)
    F20 = [tb, tb + 4]; F32 = [tb + 8 + 4*i for i in range(8)]; TW = [tb + 40 + 4*i for i in range(4)]
    a("s_waitcnt vmcnt(7)")
    a("s_barrier")
    for i in range(14):
        a(f"ds_read_b128 {v(tb+4*i,4)}, {v(l16)} offset:{L1_TAB+1024*i}")
    load_epoch(a, s_t)
    mk2 = vp.mark()
    f = vp.get(40, 2)
    ac = vp.get(8, 2)
    vp.reset(mk2 + 100)
    rr = vp.get(2, 2); e0 = vp.get(4, 4)
    mean, var, m, den, m2, den2 = [vp.get() for _ in range(6)]
    mk3 = vp.mark()
    stamp(a, 1)
    for i in range(20):
        if i % 4 == 0:
            a(f"s_waitcnt vmcnt({6 - i//4})")
        a(f"v_lshlrev_b32 {v(f+2*i)}, 16, {v(xr+i)}")
        a(f"v_and_b32 {v(f+2*i+1)}, 0xffff0000, {v(xr+i)}")
        if i < 2:
            a(f"v_pk_mul_f32 {v(ac+4+2*i,2)}, {v(f+2*i,2)}, {v(f+2*i,2)}")
        else:
            a(f"v_pk_fma_f32 {v(ac+4+2*(i&1),2)}, {v(f+2*i,2)}, {v(f+2*i,2)}, {v(ac+4+2*(i&1),2)}")
        if i in (2, 3):
            a(f"v_pk_add_f32 {v(ac+2*(i&1),2)}, {v(f+2*i-4,2)}, {v(f+2*i,2)}")
        elif i > 3:
            a(f"v_pk_add_f32 {v(ac+2*(i&1),2)}, {v(ac+2*(i&1),2)}, {v(f+2*i,2)}")
    stamp(a, 2)
    a(f"v_pk_add_f32 {v(ac,2)}, {v(ac,2)}, {v(ac+2,2)}")
    a(f"v_pk_add_f32 {v(ac+4,2)}, {v(ac+4,2)}, {v(ac+6,2)}")
    a(f"v_add_f32 {v(mean)}, {v(ac)}, {v(ac+1)}")
    a(f"v_add_f32 {v(var)}, {v(ac+4)}, {v(ac+5)}")
    for sh in (8, 4, 2, 1):
        for dst in (mean, var):
            a(f"v_add_f32_dpp {v(dst)}, {v(dst)}, {v(dst)} row_ror:{sh} row_mask:0xf bank_mask:0xf")
    a(f"v_mul_f32 {v(mean)}, {hex(f2u(1/640))}, {v(mean)}")
    a(f"v_mul_f32 {v(var)}, {hex(f2u(1/640))}, {v(var)}")
    a(f"v_fma_f32 {v(var)}, -{v(mean)}, {v(mean)}, {v(var)}")
    a(f"v_max_f32 {v(var)}, 0, {v(var)}")
    bf16r(a, m, mean)
    bf16r(a, den, var)
    a(f"v_add_f32 {v(den)}, {hex(f2u(1e-5))}, {v(den)}")
    bf16r(a, den, den)
    a(f"v_sqrt_f32 {v(den)}, {v(den)}")
    bf16r(a, den, den)
    a(f"v_rcp_f32 {v(rr)}, {v(den)}")
    a(f"v_mul_f32 {v(rr+1)}, {v(m)}, {v(rr)}")
    for i in range(20):
        a(f"v_pk_fma_f32 {v(f+2*i,2)}, {v(f+2*i,2)}, {v(rr,2)}, {v(rr,2)} op_sel:[0,0,1] op_sel_hi:[1,0,1] neg_lo:[0,0,1] neg_hi:[0,0,1]")
        a(f"v_cvt_pk_bf16_f32 {v(xr+i)}, {v(f+2*i)}, {v(f+2*i+1)}")
        if i % 4 == 3:
            a(f"ds_write_b128 {v(xw)}, {v(xr+i-3,4)} offset:{64*(i-3)}")
    vp.reset(mk2)
    d = [[[vp.get(4, 4) for pl in range(2)] for t in range(2)] for row in range(4)]
    af = [[vp.get(4, 4) for t in range(2)] for row in range(4)]
    tmp = [vp.get(4, 4)]
    assert vp.mark() <= mk2 + 100
    vp.reset(mk3)
    tmp.append(vp.get(4, 4))
    zo = [xr + 4*i for i in range(5)] + [vp.get(4, 4) for _ in range(3)]
    s_wb, s_wm0 = S_T + 8, S_T + 9
    a(f"s_mul_i32 s{s_wb}, s{s_k1}, 642")
    a(f"s_lshl_b32 s{s_wm0}, s{S_W}, 10")

    def wdma(k):
        i, pl = k >> 1, k & 1
        l2 = a.newlabel("L_f2b")
        if i == 2:
            a(f"s_cmp_ge_u32 s{S_W}, 6")
            a(f"s_cbranch_scc1 {l2}")
        a(f"s_add_u32 m0, s{s_wm0}, {(L2_WI if pl else L2_WR) + i*8192}")
        dma(a, wv[i], R_C if pl else R_B, f"s{s_wb}")
        a.label(l2)
    a(f"v_sub_f32 {v(m2)}, {v(mean)}, {v(m)}")
    a(f"v_mul_f32 {v(m2)}, {v(m2)}, {v(rr)}")
    bf16r(a, m2, m2)
    a(f"v_mul_f32 {v(den2)}, {v(var)}, {v(rr)}")
    a(f"v_mul_f32 {v(den2)}, {v(den2)}, {v(rr)}")
    bf16r(a, den2, den2)
    a(f"v_add_f32 {v(den2)}, {hex(f2u(1e-5))}, {v(den2)}")
    bf16r(a, den2, den2)
    a("s_waitcnt lgkmcnt(0)")
    stamp(a, 3)
    for row in range(4):
        for t in range(2):
            a(f"ds_read_b64_tr_b16 {v(af[row][t],2)}, {v(ta0)} offset:{row*1280+t*32}")
            a(f"ds_read_b64_tr_b16 {v(af[row][t]+2,2)}, {v(ta1)} offset:{row*1280+t*32}")
        if row == 2:
            nonce(a)
            a(f"v_sqrt_f32 {v(den2)}, {v(den2)}")
            bf16r(a, den2, den2)
            a(f"v_rcp_f32 {v(den2)}, {v(den2)}")
            a(f"v_fma_f32 {v(m)}, {v(m2)}, {v(den)}, {v(m)}")
            a(f"v_mul_f32 {v(e0)}, {v(rr)}, {v(den2)}")
            a(f"v_mul_f32 {v(e0+2)}, {v(e0)}, {v(m)}")
            a(f"v_sub_f32 {v(e0+2)}, 0, {v(e0+2)}")
            a(f"v_mov_b32 {v(e0+1)}, s{S_E}")
            a(f"v_mov_b32 {v(e0+3)}, s{S_E+1}")
            a("s_waitcnt lgkmcnt(8)")
    a(f"s_lshl_b32 s{s_t}, s{s_n}, 3")
    a(f"s_add_u32 s{s_t}, s{s_t}, s{S_W}")
    a(f"s_lshl_b32 s{s_t}, s{s_t}, 6")
    a(f"s_add_u32 s{s_t}, s{s_t}, {WS_ST}")
    a(f"v_lshlrev_b32 {v(t0)}, 4, {v(g)}")
    a("s_mov_b32 exec_lo, 0x00010001")
    a("s_mov_b32 exec_hi, 0x00010001")
    a(f"buffer_store_dwordx4 {v(e0,4)}, {v(t0)}, {s(R_WS,4)}, s{s_t} offen {SC}")
    a("s_mov_b64 exec, -1")
    R1 = lambda row: [mfma_s(d[row][t][pl], af[row][t], F20[pl], "0") for t in range(2) for pl in range(2)]
    R2 = lambda row: ([mfma_s(d[row][u][op], F32[4*u+2*op], af[row][0], "0") for u in range(2) for op in range(2)] +
                      [mfma_s(d[row][u][op], F32[4*u+2*op+1], af[row][1]) for u in range(2) for op in range(2)])
    TWD = lambda row: (twiddle_l(d[row][0][0], d[row][0][1], TW[0], TW[1], tmp[0]) + twiddle_l(d[row][1][0], d[row][1][1], TW[2], TW[3], tmp[1]) +
                       [f"v_cvt_pk_bf16_f32 {v(af[row][pl]+2*t+h)}, {v(d[row][t][pl]+2*h)}, {v(d[row][t][pl]+2*h+1)}"
                        for pl in range(2) for t in range(2) for h in range(2)])
    OUT = lambda row: [f"v_cvt_pk_bf16_f32 {v(zo[4*u+r]+row)}, {v(d[row][u][0]+r)}, {v(d[row][u][1]+r)}" for u in range(2) for r in range(4)]
    for x in R1(0): a(x)
    a("s_waitcnt lgkmcnt(8)")
    for x in R1(1): a(x)
    wdma(0)
    a("s_waitcnt lgkmcnt(0)")
    weave(a, R1(2) + R1(3), TWD(0))
    wdma(1)
    weave(a, R2(0), TWD(1))
    wdma(2)
    weave(a, R2(1), TWD(2) + OUT(0))
    wdma(3)
    weave(a, R2(2), TWD(3) + OUT(1))
    wdma(4)
    weave(a, R2(3), [f"s_nop 0"] * 2 + OUT(2))
    wdma(5)
    o3 = OUT(3)
    for i in range(8):
        a(o3[i])
        a(f"ds_write_b128 {v(za[i])}, {v(zo[i],4)}")
    vp.reset(mk)
    zf = [[vp.get(4, 4) for ks in range(2)] for i in range(11)]
    dd = [vp.get(4, 4) for i in range(11)]
    a("s_waitcnt lgkmcnt(0)")
    a("s_barrier")
    stamp(a, 4)

    def crd(i):
        for ks in range(2):
            if i == 9:
                a(f"ds_read_b128 {v(zf[i][ks],4)}, {v(ca[2+ks])}")
            else:
                a(f"ds_read_b128 {v(zf[i][ks],4)}, {v(ca[ks])} offset:{i*2048}")
    for i in range(6):
        crd(i)
    for i in range(11):
        if i + 6 < 11:
            a("s_waitcnt lgkmcnt(10)")
        else:
            a(f"s_waitcnt lgkmcnt({2*(10-i)})")
        mfma(a, dd[i], zf[i][0], mf, "0")
        mfma(a, dd[i], zf[i][1], mf + 4)
        if i + 6 < 11:
            crd(i + 6)
    for i in range(11):
        a(f"v_cvt_pk_bf16_f32 {v(dd[i])}, {v(dd[i])}, {v(dd[i]+1)}")
        a(f"v_cvt_pk_bf16_f32 {v(dd[i]+1)}, {v(dd[i]+2)}, {v(dd[i]+3)}")
        a(f"ds_write_b64 {v(sw)}, {v(dd[i],2)} offset:{L1_ST + i*32}")
    s_b = S_T + 3
    a(f"s_and_b32 s{s_b}, s{S_W}, 1")
    a(f"s_lshl_b32 s{s_b}, s{s_b}, 12")
    a(f"s_lshl_b32 s{s_t}, s{s_hf}, 7")
    a(f"s_add_u32 s{s_b}, s{s_b}, s{s_t}")
    a(f"s_and_b32 s{s_t}, s{S_W}, 2")
    a(f"s_lshl_b32 s{s_t}, s{s_t}, 5")
    a(f"s_add_u32 s{s_b}, s{s_b}, s{s_t}")
    a(f"s_add_u32 s{s_b}, s{s_b}, s{s_n}")
    a(f"s_mul_i32 s{s_b}, s{s_b}, 352")
    a(f"s_add_u32 s{s_b}, s{s_b}, {WS_ZP}")
    a("s_waitcnt lgkmcnt(0)")
    stamp(a, 1, 7)
    copy_out(a, sr, gv, [zf[i][0] for i in range(8)], 2*SP, s_b, 180224, s_t)
    stamp(a, 2, 7)

    vp.reset(mk)
    s_b, s_i = S_T + 4, S_T + 5
    ra, rw, wa, tadr = za[0], za[1], za[2], za[3]
    a(f"v_lshrrev_b32 {v(t0)}, 2, v0")
    a(f"v_mul_u32_u24 {v(ra)}, 352, {v(t0)}")
    a(f"v_and_b32 {v(t0)}, 3, v0")
    a(f"v_lshl_add_u32 {v(ra)}, {v(t0)}, 3, {v(ra)}")
    a(f"s_lshl_b32 s{s_t}, s{S_W}, 5")
    a(f"s_add_u32 s{s_t}, s{s_t}, {L2_ZB}")
    a(f"v_add_u32 {v(ra)}, s{s_t}, {v(ra)}")
    a(f"v_add_u32 {v(rw)}, {L2_WR - L2_ZB}, {v(ra)}")
    a(f"v_mul_u32_u24 {v(wa)}, 352, {v(i16)}")
    a(f"v_lshl_add_u32 {v(wa)}, {v(g)}, 3, {v(wa)}")
    a(f"v_add_u32 {v(wa)}, s{s_t}, {v(wa)}")
    a(f"v_add_u32 {v(tadr)}, {L2_TAB}, {v(l16)}")
    a("s_waitcnt vmcnt(0)")
    a("s_barrier")
    stamp(a, 5)
    stamp(a, 3, 7)
    spare = vp.get(32, 4)
    tb = vp.get(96, 4)
    C = [[tb + 8*t + 4*ks for ks in range(2)] for t in range(4)]
    Sm = [[tb + 32 + 8*t + 4*ks for ks in range(2)] for t in range(4)]
    NS = [[tb + 64 + 8*t + 4*ks for ks in range(2)] for t in range(4)]
    X = [[spare + 16*pl + 4*t for t in range(4)] for pl in range(2)]
    z = [[vp.get(4, 4) for ks in range(2)] for pl in range(2)]
    wq = [[xr + 8*pl + 2*t for t in range(4)] for pl in range(2)]
    wu = [vp.get(4, 4) for _ in range(4)]
    tmp = vp.get(4, 4)
    wave0_flag(a, FL_Z, t0)
    l_np = a.newlabel("L_np")
    a(f"s_cmp_lg_u32 s{S_W}, 7")
    a(f"s_cbranch_scc1 {l_np}")
    a(f"s_lshl_b32 s{s_t+2}, s{S_IDX}, 9")
    a(f"s_add_u32 s{s_t+2}, s{s_t+2}, {FL_Z}")
    poll(a, f"s{s_t+2}", 64, s_t)
    a.label(l_np)
    for i in range(16):
        a(f"ds_read_b128 {v(tb+4*i,4)}, {v(tadr)} offset:{1024*i}")
        if i == 11:
            a("s_waitcnt lgkmcnt(4)")
    a("s_barrier")
    stamp(a, 6)
    stamp(a, 4, 7)
    a(f"s_mul_i32 s{s_b}, s{S_IDX}, 45056")
    a(f"s_lshl_b32 s{s_i}, s{S_W}, 10")
    a(f"s_add_u32 s{s_b}, s{s_b}, s{s_i}")
    l1 = a.newlabel("L_f2a")
    for i in range(6):
        if i == 5:
            a(f"s_cmp_ge_u32 s{S_W}, 4")
            a(f"s_cbranch_scc1 {l1}")
        a(f"s_add_u32 m0, s{s_i}, {L2_ZB + i*8192}")
        a(f"s_add_u32 s{s_t}, s{s_b}, {WS_ZP + i*8192}")
        dma(a, l16, R_WS, f"s{s_t}", SCL)
    a.label(l1)
    a("s_waitcnt lgkmcnt(0)")
    for i in range(32):
        a(f"v_xor_b32 {v(tb+64+i)}, 0x80008000, {v(tb+32+i)}")
    a(f"s_mov_b32 s{s_i}, s{S_W}")
    a(f"s_sub_u32 s{s_b}, 11, s{s_h2}")
    a("s_waitcnt vmcnt(0)")
    a("s_barrier")
    stamp(a, 7)
    l3 = a.newlabel("L_t3")
    a(f"s_cmp_lt_u32 s{S_W}, 4")
    a(f"s_cbranch_scc1 {l3}")
    a(f"s_and_b32 s{s_t}, s{S_W}, 3")
    a(f"s_lshl_b32 s{s_t}, s{s_t}, 12")
    a(f"s_add_u32 m0, s{s_t}, {L3_TAB}")
    a(f"s_add_u32 s{s_t}, s{s_t}, {TAB_F3}")
    for k in range(4):
        a(f"buffer_load_dwordx4 {v(l16)}, {s(R_TAB,4)}, s{s_t} offen offset:{k*1024} lds")
    a.label(l3)
    l_loop = a.newlabel("L_f2l")
    a.label(l_loop)
    for pl in range(2):
        for ks in range(2):
            for h in range(2):
                a(f"ds_read_b64_tr_b16 {v(z[pl][ks]+2*h,2)}, {v(ra)} offset:{(pl*64+32*ks+16*h)*352}")
    a("s_waitcnt lgkmcnt(0)")
    for pl in range(2):
        for t in range(4):
            a(f"ds_read_b64_tr_b16 {v(wq[pl][t],2)}, {v(rw)} offset:{pl*22528+16*t*352}")
    for t in range(4):
        mfma(a, X[0][t], C[t][0], z[0][0], "0")
        mfma(a, X[1][t], C[t][0], z[1][0], "0")
        mfma(a, X[0][t], C[t][1], z[0][1])
        mfma(a, X[1][t], C[t][1], z[1][1])
        mfma(a, X[0][t], Sm[t][0], z[1][0])
        mfma(a, X[1][t], NS[t][0], z[0][0])
        mfma(a, X[0][t], Sm[t][1], z[1][1])
        mfma(a, X[1][t], NS[t][1], z[0][1])
    a("s_waitcnt lgkmcnt(0)")
    for t in range(4):
        wr_, wi_ = wu[2*(t&1)], wu[2*(t&1)+1]
        for pl, dst in ((0, wr_), (1, wi_)):
            for h in range(2):
                a(f"v_lshlrev_b32 {v(dst+2*h)}, 16, {v(wq[pl][t]+h)}")
                a(f"v_and_b32 {v(dst+2*h+1)}, 0xffff0000, {v(wq[pl][t]+h)}")
        re, im = X[0][t], X[1][t]
        for r in range(4):
            a(f"v_mul_f32 {v(tmp+r)}, {v(im+r)}, {v(wi_+r)}")
        for r in range(4):
            a(f"v_mul_f32 {v(im+r)}, {v(im+r)}, {v(wr_+r)}")
        for r in range(4):
            a(f"v_fmac_f32 {v(im+r)}, {v(re+r)}, {v(wi_+r)}")
        for r in range(4):
            a(f"v_fma_f32 {v(re+r)}, {v(re+r)}, {v(wr_+r)}, -{v(tmp+r)}")
        for pl in range(2):
            for h in range(2):
                a(f"v_cvt_pk_bf16_f32 {v(z[pl][t>>1]+2*(t&1)+h)}, {v(X[pl][t]+2*h)}, {v(X[pl][t]+2*h+1)}")
    for t in range(4):
        mfma(a, X[0][t], z[0][0], C[t][0], "0")
        mfma(a, X[1][t], z[1][0], C[t][0], "0")
        mfma(a, X[0][t], z[0][1], C[t][1])
        mfma(a, X[1][t], z[1][1], C[t][1])
        mfma(a, X[0][t], z[1][0], NS[t][0])
        mfma(a, X[1][t], z[0][0], Sm[t][0])
        mfma(a, X[0][t], z[1][1], NS[t][1])
        mfma(a, X[1][t], z[0][1], Sm[t][1])
    for t in range(4):
        for pl in range(2):
            r = X[pl][t]
            a(f"v_cvt_pk_bf16_f32 {v(r)}, {v(r)}, {v(r+1)}")
            a(f"v_cvt_pk_bf16_f32 {v(r+1)}, {v(r+2)}, {v(r+3)}")
            a(f"ds_write_b64 {v(wa)}, {v(r,2)} offset:{(pl*64+16*t)*352}")
    for r in (ra, rw, wa):
        a(f"v_add_u32 {v(r)}, 256, {v(r)}")
    a(f"s_add_u32 s{s_i}, s{s_i}, 8")
    a(f"s_cmp_lt_u32 s{s_i}, s{s_b}")
    a("s_waitcnt lgkmcnt(0)")
    a(f"s_cbranch_scc1 {l_loop}")
    sr, gv = ra, rw
    a(f"v_lshrrev_b32 {v(t0)}, 5, v0")
    a(f"v_and_b32 {v(t1)}, 31, v0")
    a(f"v_lshlrev_b32 {v(t1)}, 4, {v(t1)}")
    a(f"s_mul_i32 s{s_t}, s{S_W}, {16*352}")
    a(f"s_add_u32 s{s_t}, s{s_t}, {L2_ZB}")
    a(f"v_mul_u32_u24 {v(sr)}, 352, {v(t0)}")
    a(f"v_add3_u32 {v(sr)}, {v(sr)}, {v(t1)}, s{s_t}")
    a(f"v_mul_u32_u24 {v(gv)}, 45056, {v(t0)}")
    a(f"v_add_u32 {v(gv)}, {v(gv)}, {v(t1)}")
    a(f"s_and_b32 s{s_b}, s{S_W}, 3")
    a(f"s_lshl_b32 s{s_b}, s{s_b}, 11")
    a(f"s_lshl_b32 s{s_t}, s{s_h2}, 6")
    a(f"s_add_u32 s{s_b}, s{s_b}, s{s_t}")
    a(f"s_and_b32 s{s_t}, s{S_W}, 4")
    a(f"s_lshl_b32 s{s_t}, s{s_t}, 3")
    a(f"s_add_u32 s{s_b}, s{s_b}, s{s_t}")
    a(f"s_add_u32 s{s_b}, s{s_b}, s{s_k1}")
    a(f"s_mul_i32 s{s_b}, s{s_b}, 352")
    a(f"s_add_u32 s{s_b}, s{s_b}, {WS_VP}")
    a("s_barrier")
    stamp(a, 8)
    stamp(a, 5, 7)
    copy_out(a, sr, gv, [tb + 4*i for i in range(8)], 2*352, s_b, 90112, s_t)
    stamp(a, 6, 7)
    a("s_waitcnt vmcnt(0)")
    a("s_barrier")
    stamp(a, 7, 7)
    wave0_flag(a, FL_V, t0)
    a(f"s_xor_b32 s{s_t}, s{S_W}, 1")
    a(f"s_or_b32 s{s_t}, s2, s{s_t}")
    a(f"s_cbranch_scc1 {l_f3l}")
    advance_epoch(a, t0, s_t)
    a("s_waitcnt vmcnt(0)")


def f3(a, l_f3, l_f3l):
    UP = 1376
    vp = Pool("v", 1, 248)
    i16, g, l16 = [vp.get() for _ in range(3)]
    t0 = vp.get(3, 2); t1 = t0 + 1; t2 = t0 + 2
    s_t, s_b, s_i, s_row, s_p = S_T, S_T + 3, S_T + 4, S_T + 5, S_T + 6
    s_n, s_qt = S_N3, S_Q3
    a.label(l_f3l)
    a(f"s_mov_b32 s{S_PJ}, 0")
    a.label(l_f3)
    stamp(a, 1, 8)
    srd(a, R_A, P_X, 2621440); srd(a, R_B, P_B2, 1280); srd(a, R_C, P_OUT, 2621440)
    a(f"v_and_b32 {v(i16)}, 15, v0")
    a(f"v_lshrrev_b32 {v(g)}, 4, v0")
    a(f"v_lshlrev_b32 {v(l16)}, 4, v0")
    a(f"s_lshl_b32 s{s_t}, s{s_qt}, 3")
    a(f"s_add_u32 s{s_t}, s{s_t}, s{S_W}")
    a(f"s_lshl_b32 s{s_row}, s{s_t}, 6")
    a(f"s_add_u32 s{s_row}, s{s_row}, s{s_n}")
    a(f"s_mul_i32 s{s_row}, s{s_row}, 1280")
    a(f"s_lshl_b32 s{s_p}, s{s_n}, 5")
    a(f"s_add_u32 s{s_p}, s{s_p}, s{s_t}")
    a(f"s_mul_i32 s{s_p}, s{s_p}, 160")
    a(f"s_add_u32 s{s_p}, s{s_p}, {WS_P}")
    vp.get(101)
    l4, pa, pb = vp.get(), vp.get(), vp.get()
    a(f"v_lshlrev_b32 {v(l4)}, 2, v0")
    PA = [vp.get(4, 4) for _ in range(5)]
    PB = [vp.get() for _ in range(5)]
    a(f"buffer_load_dwordx4 {v(PA[3],4)}, {v(l16)}, {s(R_B,4)}, 0 offen")
    a(f"buffer_load_dword {v(PB[3])}, {v(l4)}, {s(R_B,4)}, 0 offen offset:1024")
    a(f"buffer_load_dwordx4 {v(PA[4],4)}, {v(l16)}, {s(R_A,4)}, s{s_row} offen")
    a(f"buffer_load_dword {v(PB[4])}, {v(l4)}, {s(R_A,4)}, s{s_row} offen offset:1024")
    divmod_const(a, t0, t1, 0, 10)
    a(f"v_mul_u32_u24 {v(pa)}, {2048*160}, {v(t0)}")
    a(f"v_lshl_add_u32 {v(pa)}, {v(t1)}, 4, {v(pa)}")
    a(f"v_add_u32 {v(t2)}, 256, v0")
    divmod_const(a, t0, t1, t2, 40)
    a(f"v_mul_u32_u24 {v(pb)}, {2048*160}, {v(t0)}")
    a(f"v_lshl_add_u32 {v(pb)}, {v(t1)}, 2, {v(pb)}")
    gf = vp.get(8, 4)
    sv, ph = vp.get(), vp.get()
    a(f"v_lshrrev_b32 {v(t0)}, 1, {v(i16)}")
    a(f"s_lshl_b32 s{s_t}, s{s_qt}, 9")
    a(f"s_add_u32 s{s_t}, s{s_t}, s{s_n}")
    a(f"v_lshlrev_b32 {v(sv)}, 6, {v(t0)}")
    a(f"v_add_u32 {v(sv)}, s{s_t}, {v(sv)}")
    a(f"v_lshlrev_b32 {v(t0)}, 2, {v(g)}")
    a(f"v_mul_u32_u24 {v(ph)}, {v(sv)}, {v(t0)}")
    a(f"v_and_b32 {v(t0)}, 1, v0")
    a(f"v_mul_u32_u24 {v(t0)}, 1536, {v(t0)}")
    a(f"v_add_u32 {v(ph)}, {v(ph)}, {v(t0)}")
    cs_ = [vp.get() for _ in range(4)]
    for e2 in range(4):
        for hh in range(2):
            e = 2 * e2 + hh
            ko = e if e < 4 else 16 + e - 4
            a(f"v_mad_u32_u24 {v(t1)}, {v(sv)}, {ko}, {v(ph)}")
            a(f"v_and_b32 {v(t1)}, 2047, {v(t1)}")
            a(f"v_cvt_f32_u32 {v(t1)}, {v(t1)}")
            a(f"v_mul_f32 {v(t1)}, {hex(f2u(1/2048))}, {v(t1)}")
            a(f"v_cos_f32 {v(cs_[hh])}, {v(t1)}")
            a(f"v_sin_f32 {v(cs_[2+hh])}, {v(t1)}")
        a(f"v_cvt_pk_bf16_f32 {v(gf+e2)}, {v(cs_[0])}, {v(cs_[1])}")
        a(f"v_cvt_pk_bf16_f32 {v(gf+4+e2)}, -{v(cs_[2])}, -{v(cs_[3])}")
    ra = [vp.get() for _ in range(3)]; ua = [vp.get() for _ in range(3)]
    a(f"v_lshrrev_b32 {v(t0)}, 2, v0")
    a(f"v_mul_u32_u24 {v(t0)}, 352, {v(t0)}")
    a(f"v_and_b32 {v(t1)}, 3, v0")
    a(f"v_lshl_add_u32 {v(t0)}, {v(t1)}, 3, {v(t0)}")
    a(f"v_mul_u32_u24 {v(t1)}, {2*UP}, {v(g)}")
    a(f"v_lshl_add_u32 {v(t1)}, {v(i16)}, 2, {v(t1)}")
    for k in range(3):
        a(f"s_add_u32 s{s_t}, s{S_W}, {8*k}")
        a(f"s_min_u32 s{s_t}, s{s_t}, 20")
        a(f"s_cmp_ge_u32 s{s_t}, 11")
        a(f"s_cselect_b32 s{s_t+1}, {22528-352}, 0")
        a(f"s_lshl_b32 s{s_b}, s{s_t}, 5")
        a(f"s_add_u32 s{s_t+1}, s{s_t+1}, s{s_b}")
        a(f"v_add_u32 {v(ra[k])}, s{s_t+1}, {v(t0)}")
        a(f"s_lshl_b32 s{s_b}, s{s_t}, 6")
        a(f"s_add_u32 s{s_b}, s{s_b}, {L3_UX}")
        a(f"v_add_u32 {v(ua[k])}, s{s_b}, {v(t1)}")
    a(f"v_add_u32 {v(t0)}, 4, {v(ua[2])}")
    a(f"v_subrev_u32 {v(t1)}, 28, {v(ua[2])}")
    a(f"v_cmp_eq_u32 vcc, 7, {v(i16)}")
    a(f"v_cndmask_b32 {v(t0)}, {v(t0)}, {v(t1)}, vcc")
    a(f"s_cmp_ge_u32 s{S_W}, 4")
    a(f"s_cselect_b64 vcc, -1, 0")
    a(f"v_cndmask_b32 {v(ua[2])}, {v(ua[2])}, {v(t0)}, vcc")
    ub0, ub1, swr, srd0, srd1 = [vp.get() for _ in range(5)]
    a(f"s_mul_i32 s{s_t}, s{S_W}, {UP}")
    a(f"s_add_u32 s{s_t}, s{s_t}, {L3_UX}")
    a(f"v_mul_u32_u24 {v(t0)}, 80, {v(g)}")
    a(f"v_add_u32 {v(t0)}, {v(t0)}, {v(i16)}")
    a(f"v_lshlrev_b32 {v(t0)}, 2, {v(t0)}")
    a(f"v_add_u32 {v(ub0)}, s{s_t}, {v(t0)}")
    a(f"s_add_u32 s{s_t}, s{s_t}, {260*4}")
    a(f"v_sub_u32 {v(ub1)}, s{s_t}, {v(t0)}")
    a(f"s_lshl_b32 s{s_t}, s{S_W}, 11")
    a(f"s_add_u32 s{s_t}, s{s_t}, {L3_SX}")
    a(f"v_lshlrev_b32 {v(t0)}, 6, {v(i16)}")
    a(f"v_lshl_add_u32 {v(t0)}, {v(g)}, 3, {v(t0)}")
    a(f"v_add_u32 {v(swr)}, s{s_t}, {v(t0)}")
    a(f"v_add_u32 {v(srd0)}, s{s_t}, {v(l16)}")
    a(f"v_add_u32 {v(srd1)}, s{s_t}, {v(l4)}")
    vq = Pool("v", 52, 108)
    tb = vq.get(56, 4)
    G32 = [tb + 4*i for i in range(8)]; G20 = [tb + 32, tb + 36]; TW = [tb + 40 + 4*i for i in range(4)]
    a(f"v_add_u32 {v(t0)}, {L3_TAB}, {v(l16)}")
    for i in range(14):
        a(f"ds_read_b128 {v(tb+4*i,4)}, {v(t0)} offset:{1024*i}")
    o = vp.get(10, 2); w_ = vp.get(10, 2); xx = vp.get(10, 2); sf = vp.get(10, 2)
    pfl = vp.get(3, 2)
    s_have, s_pf = S_T + 7, S_T + 8
    a(f"s_mov_b32 s{s_have}, 0")
    a(f"s_lshl_b32 s{s_pf}, s{s_n}, 2")
    a(f"s_add_u32 s{s_pf}, s{s_pf}, s{s_qt}")
    a(f"s_lshl_b32 s{s_pf}, s{s_pf}, 8")
    a(f"s_add_u32 s{s_pf}, s{s_pf}, {FL_P}")
    a(f"v_min_u32 {v(pfl+2)}, 23, v0")
    a(f"v_lshlrev_b32 {v(pfl+2)}, 3, {v(pfl+2)}")

    def unpack(dst, A_, B_):
        for i in range(5):
            src = A_ + i if i < 4 else B_
            a(f"v_lshlrev_b32 {v(dst+2*i)}, 16, {v(src)}")
            a(f"v_and_b32 {v(dst+2*i+1)}, 0xffff0000, {v(src)}")

    def load_p():
        for k in range(3):
            a(f"s_add_u32 s{s_t}, s{s_p}, {k*2621440}")
            a(f"buffer_load_dwordx4 {v(PA[k],4)}, {v(pa)}, {s(R_WS,4)}, s{s_t} offen {SGL}")
            a(f"buffer_load_dword {v(PB[k])}, {v(pb)}, {s(R_WS,4)}, s{s_t} offen {SGL}")

    def look():
        a(f"buffer_load_dwordx2 {v(pfl,2)}, {v(pfl+2)}, {s(R_WS,4)}, s{s_pf} offen {SGP}")

    def try_p(last=False):
        l_d, l_no, l_again = a.newlabel("L_tp"), a.newlabel("L_tn"), a.newlabel("L_ta")
        a(f"s_cmp_lg_u32 s{s_have}, 0")
        a(f"s_cbranch_scc1 {l_d}")
        if last:
            a(f"s_mov_b32 s{s_t+1}, 0x40000")
            a.label(l_again)
        a("s_waitcnt vmcnt(0)")
        a(f"v_cmp_ne_u64 vcc, s[{S_E}:{S_E+1}], {v(pfl,2)}")
        a(f"s_cbranch_vccz {l_no}")
        look()
        if last:
            a(f"s_sub_u32 s{s_t+1}, s{s_t+1}, 1")
            a(f"s_cbranch_scc0 {l_again}")
        else:
            a(f"s_branch {l_d}")
        a.label(l_no)
        load_p()
        a(f"s_mov_b32 s{s_have}, 1")
        a.label(l_d)

    stamp(a, 2, 8)
    a("s_waitcnt vmcnt(0)")
    stamp(a, 3, 8)
    l_nf = a.newlabel("L_nf")
    a(f"s_cmp_eq_u32 s{S_PJ}, 0")
    a(f"s_cbranch_scc1 {l_nf}")
    push_flag(a, S_FLAG, 8, 8, t0, SCG)
    a.label(l_nf)
    unpack(o, PA[3], PB[3])
    unpack(xx, PA[4], PB[4])
    l_nv = a.newlabel("L_nv")
    a(f"s_cmp_lt_u32 s{S_W}, 4")
    a(f"s_cbranch_scc1 {l_nv}")
    a(f"s_lshl_b32 s{s_t+2}, s{s_n}, 9")
    a(f"s_add_u32 s{s_t+2}, s{s_t+2}, {FL_V}")
    poll(a, f"s{s_t+2}", 64, s_t, depth=2)
    stamp3(a, 7)
    stamp(a, 8, 7)
    a(f"s_sub_u32 s{s_i}, s{S_W}, 4")
    a(f"s_mul_i32 s{s_i}, s{s_i}, 11264")
    a(f"s_mul_i32 s{s_b}, s{s_n}, 45056")
    a(f"s_add_u32 s{s_b}, s{s_b}, s{s_i}")
    for i in range(3):
        a(f"s_add_u32 m0, s{s_i}, {L3_VB + i*4096}")
        a(f"s_add_u32 s{s_t}, s{s_b}, {WS_VP + i*4096}")
        for k in range(4 if i < 2 else 3):
            a(f"buffer_load_dwordx4 {v(l16)}, {s(R_WS,4)}, s{s_t} offen offset:{k*1024} {SCL} lds")
    a("s_waitcnt vmcnt(0)")
    a.label(l_nv)
    a("s_waitcnt lgkmcnt(0)")
    a("s_barrier")
    stamp3(a, 6)
    stamp(a, 4, 8)
    look()
    vq = Pool("v", 8, 52)
    vf = [[vq.get(4, 4) for ks in range(2)] for k in range(3)]
    dd = [vq.get(4, 4) for k in range(4)]
    tmp = vq.get(4, 4)
    for k in range(3):
        for ks in range(2):
            for h in range(2):
                a(f"ds_read_b64_tr_b16 {v(vf[k][ks]+2*h,2)}, {v(ra[k])} offset:{(32*ks+16*h)*352}")
    for k in range(3):
        a(f"s_waitcnt lgkmcnt({8-4*k})")
        mfma(a, dd[k], gf, vf[k][0], "0")
        mfma(a, dd[k], gf + 4, vf[k][1])
    for k in range(3):
        a(f"v_cvt_pk_bf16_f32 {v(dd[k])}, {v(dd[k])}, {v(dd[k]+1)}")
        a(f"v_cvt_pk_bf16_f32 {v(dd[k]+1)}, {v(dd[k]+2)}, {v(dd[k]+3)}")
        a(f"ds_write_b32 {v(ua[k])}, {v(dd[k])}")
        a(f"ds_write_b32 {v(ua[k])}, {v(dd[k]+1)} offset:{UP}")
    a("s_waitcnt lgkmcnt(0)")
    a("s_barrier")
    stamp(a, 5, 8)
    uf = vf[0]
    a(f"ds_read2_b32 {v(uf[0],2)}, {v(ub0)} offset0:0 offset1:20")
    a(f"ds_read2_b32 {v(uf[0]+2,2)}, {v(ub0)} offset0:40 offset1:60")
    a(f"ds_read2_b32 {v(uf[1],2)}, {v(ub1)} offset0:60 offset1:40")
    a(f"ds_read2_b32 {v(uf[1]+2,2)}, {v(ub1)} offset0:20 offset1:0")
    a("s_waitcnt lgkmcnt(2)")
    for t in range(2):
        for op in range(2):
            mfma(a, dd[2*t+op], uf[0], G32[4*t+2*op], "0")
    a("s_waitcnt lgkmcnt(0)")
    for t in range(2):
        for op in range(2):
            mfma(a, dd[2*t+op], uf[1], G32[4*t+2*op+1])
    try_p()
    tf = vf[1]
    for t in range(2):
        twiddle(a, dd[2*t], dd[2*t+1], TW[2*t], TW[2*t+1], tmp, True)
        for pl in range(2):
            for h in range(2):
                a(f"v_cvt_pk_bf16_f32 {v(tf[t]+2*pl+h)}, {v(dd[2*t+pl]+2*h)}, {v(dd[2*t+pl]+2*h+1)}")
        for tp in range(2):
            mfma(a, dd[2*t+tp], tf[t], G20[tp], "0")
    for t in range(2):
        for tp in range(2):
            r = dd[2*t+tp]
            a(f"v_cvt_pk_bf16_f32 {v(r)}, {v(r)}, {v(r+1)}")
            a(f"v_cvt_pk_bf16_f32 {v(r+1)}, {v(r+2)}, {v(r+3)}")
            a(f"ds_write_b64 {v(swr)}, {v(r,2)} offset:{tp*1024+t*32}")
    stamp(a, 6, 8)
    try_p(True)
    a("s_waitcnt lgkmcnt(0)")
    a(f"ds_read_b128 {v(PA[3],4)}, {v(srd0)}")
    a(f"ds_read_b32 {v(PB[3])}, {v(srd1)} offset:1024")
    stamp3(a, 8)
    stamp(a, 7, 8)
    for k in range(3):
        a(f"s_waitcnt vmcnt({4-2*k})")
        unpack(w_, PA[k], PB[k])
        for i in range(5):
            a(f"v_pk_add_f32 {v(o+2*i,2)}, {v(o+2*i,2)}, {v(w_+2*i,2)}")
    for i in range(10):
        a(f"v_mul_f32 {v(w_+i)}, {hex(f2u(-np.log2(np.e)))}, {v(o+i)}")
    for i in range(10):
        a(f"v_exp_f32 {v(w_+i)}, {v(w_+i)}")
    a("s_waitcnt lgkmcnt(0)")
    unpack(sf, PA[3], PB[3])
    for i in range(5):
        a(f"v_pk_add_f32 {v(w_+2*i,2)}, {v(w_+2*i,2)}, 1.0 op_sel_hi:[1,0]")
    for i in range(5):
        a(f"v_pk_mul_f32 {v(o+2*i,2)}, {v(o+2*i,2)}, {v(sf+2*i,2)}")
    for i in range(10):
        a(f"v_rcp_f32 {v(w_+i)}, {v(w_+i)}")
    for i in range(5):
        a(f"v_pk_fma_f32 {v(o+2*i,2)}, {v(o+2*i,2)}, {v(w_+2*i,2)}, {v(xx+2*i,2)}")
    for i in range(5):
        dst = PA[1] + i if i < 4 else PB[1]
        a(f"v_cvt_pk_bf16_f32 {v(dst)}, {v(o+2*i)}, {v(o+2*i+1)}")
    stamp(a, 8, 8)
    a(f"buffer_store_dwordx4 {v(PA[1],4)}, {v(l16)}, {s(R_C,4)}, s{s_row} offen")
    a(f"buffer_store_dword {v(PB[1])}, {v(l4)}, {s(R_C,4)}, s{s_row} offen offset:1024")


def build():
    a = Asm()
    a("s_cmpk_ge_u32 s2, 0x100")
    a("s_cbranch_scc1 L_exit")
    a("s_load_dwordx16 s[4:19], s[0:1], 0")
    a("s_load_dwordx4 s[20:23], s[0:1], 64")
    a("s_load_dwordx2 s[24:25], s[0:1], 80")
    stamp_begin(a)
    a(f"s_getpc_b64 s[{R_TAB}:{R_TAB+1}]")
    a(f"s_add_u32 s{R_TAB}, s{R_TAB}, ctab@rel32@lo+4")
    a(f"s_addc_u32 s{R_TAB+1}, s{R_TAB+1}, ctab@rel32@hi+12")
    a(f"s_mov_b32 s{R_TAB+2}, {TAB_END}")
    a(f"s_mov_b32 s{R_TAB+3}, 0x20000")
    a("v_lshrrev_b32 v1, 6, v0")
    a(f"v_readfirstlane_b32 s{S_W}, v1")
    a("v_and_b32 v0, 63, v0")
    a("v_and_b32 v1, 15, v0")
    a("v_lshrrev_b32 v2, 4, v0")
    a("v_lshlrev_b32 v3, 4, v0")
    t = S_T
    a(f"s_and_b32 s{t}, s2, 7")
    a(f"s_lshr_b32 s{t+1}, s2, 3")
    a(f"s_lshl_b32 s{S_N3}, s{t}, 3")
    a(f"s_add_u32 s{S_IDX}, s{S_N3}, s{t+1}")
    a(f"s_lshr_b32 s{t+2}, s{t+1}, 2")
    a(f"s_add_u32 s{S_N3}, s{S_N3}, s{t+2}")
    a(f"s_and_b32 s{S_Q3}, s{t+1}, 3")
    a(f"s_sub_u32 s{S_PJ}, s{t+2}, 2")
    if "oldmap" in OPT:
        a(f"s_mul_i32 s{t+3}, s{t}, 6")
        a(f"s_add_u32 s{t+3}, s{t+3}, s{S_PJ}")
        a(f"s_and_b32 s{S_RB}, s{t+3}, 15")
        a(f"s_lshr_b32 s{S_KT}, s{t+3}, 4")
    else:
        a(f"s_lshl_b32 s{S_RB}, s{t}, 1")
        a(f"s_sub_u32 s{S_KT}, s{S_PJ}, 3")
        a(f"s_cselect_b32 s{S_KT}, s{S_PJ}, s{S_KT}")
        a(f"s_cselect_b32 s{t+3}, 0, 1")
        a(f"s_add_u32 s{S_RB}, s{S_RB}, s{t+3}")
    a(f"s_mov_b32 s{S_SUB}, s{S_Q3}")
    a(f"s_mul_i32 s{S_FLAG}, s{S_RB}, 3")
    a(f"s_add_u32 s{S_FLAG}, s{S_FLAG}, s{S_KT}")
    a(f"s_lshl_b32 s{S_FLAG}, s{S_FLAG}, 2")
    a(f"s_add_u32 s{S_FLAG}, s{S_FLAG}, s{S_SUB}")
    a(f"s_add_u32 s{t+3}, s{S_IDX}, 192")
    a(f"s_cmp_lt_u32 s{t+1}, 8")
    a(f"s_cselect_b32 s{S_FLAG}, s{t+3}, s{S_FLAG}")
    a("s_waitcnt lgkmcnt(0)")
    a(f"s_add_u32 s{t+4}, s{P_WS}, {WS_EP + ((192<<20) if "wsend" in OPT else 0)}")
    a(f"s_addc_u32 s{t+5}, s{P_WS+1}, 0")
    a(f"s_load_dwordx2 s[{S_E}:{S_E+1}], s[{t+4}:{t+5}], 0")
    if "wsend" in OPT:
        a(f"s_add_u32 s{P_WS}, s{P_WS}, {192<<20}")
        a(f"s_addc_u32 s{P_WS+1}, s{P_WS+1}, 0")
    srd(a, R_WS, P_WS, WS_END if "p2x" not in OPT else 64 << 20)
    a(f"s_cmp_ge_u32 s{t+1}, 8")
    a("s_cbranch_scc1 L_gemm")
    for _ in range(int(os.environ.get("DELAY_FFT", "0"))):
        a("s_sleep 64")
    fft_head(a)
    a("s_branch L_fft")
    a.label("L_gemm")
    for _ in range(int(os.environ.get("DELAY_GEMM", "0"))):
        a("s_sleep 64")
    a(f"s_cmp_lt_u32 s{S_W}, 4")
    a("s_cbranch_scc1 L_comp")
    gemm_loader(a, "L_f3l")
    a.label("L_comp")
    gemm_compute(a, "L_f3")
    a.label("L_fft")
    fft_role(a, "L_f3", "L_f3l")
    f3(a, "L_f3", "L_f3l")
    for _ in range(int(os.environ.get("DELAY_END", "0"))):
        a("s_sleep 64")
    stamp_end(a)
    a.label("L_exit")
    a("s_endpgm")
    a.resolve()
    nv, ns = a.max_regs()
    print("instr", len(a.ins), "vgpr", nv, "sgpr", ns, file=sys.stderr)
    kn = NAME + "_kernel"
    out = "; generated by gen/gen2.py (hand-written generator)\n"
    out += "; @launch grid=(256,1,1) block=(512,1,1) lds=163840\n"
    out += '.amdgcn_target "amdgcn-amd-amdhsa--gfx950"\n.text\n'
    out += f".globl {kn}\n.p2align 8\n.type {kn},@function\n{kn}:\n" + a.text()
    out += f'''.section .rodata,"a"
.p2align 6
.amdhsa_kernel {kn}
  .amdhsa_next_free_vgpr 256
  .amdhsa_next_free_sgpr {ns}
  .amdhsa_accum_offset 256
  .amdhsa_group_segment_fixed_size 0
  .amdhsa_kernarg_size 88
  .amdhsa_user_sgpr_count 2
  .amdhsa_user_sgpr_kernarg_segment_ptr 1
  .amdhsa_system_sgpr_workgroup_id_x 1
  .amdhsa_float_denorm_mode_32 3
.end_amdhsa_kernel
'''
    out += tables.as_asm("ctab", tables.tab_f1() + tables.tab_f2()[:16384] + tables.tab_f3())
    return out


if __name__ == "__main__":
    path = sys.argv[1] if len(sys.argv) > 1 else f"cdna_kernels/{NAME}.s"
    open(path, "w").write(build())
```
